```python
import torch

def _softmax(x, axis=-1):
    return torch.softmax(x, dim=axis)

def _gelu(x):
    return torch.nn.functional.gelu(x, approximate='tanh')

def _silu(x):
    return torch.nn.functional.silu(x)

def _sigmoid(x):
    return torch.sigmoid(x)

def _layernorm(x, axis=-1, eps=1e-05):
    m = x.mean(dim=axis, keepdim=True)
    v = x.var(dim=axis, keepdim=True, unbiased=False)
    return (x - m) / torch.sqrt(v + eps)

def _scatter_add(tgt, idx, src, axis=0):
    return tgt.clone().index_add_(axis, idx, src)

def _segment_sum(src, seg, n):
    out = torch.zeros((n,) + src.shape[1:], dtype=src.dtype)
    return out.index_add_(0, seg, src)

def _pad(x, pw):
    flat = tuple((v for pair in reversed(pw) for v in pair))
    return torch.nn.functional.pad(x, flat)
kernel_name = 'recurrent_scan__memory_aug_recurrent_mem_tr__dense_activation_mish__prompt'

def setup_inputs():

    _w = lambda a: (lambda t: t.to(torch.bfloat16) if t.is_floating_point() else t)(torch.as_tensor(a))

    def _A_setup():
        B, S, Dm = (1, 2048, 640)
        H, Dh = (32, 128)
        M, seg = (8, 32)
        seg = min(seg, S)
        S = S // seg * seg
        return {'x': _w((lambda *s: torch.randn(*s, dtype=torch.bfloat16) * 0.05)(B, S, Dm)), 'mem0': _w((lambda *s: torch.randn(*s, dtype=torch.bfloat16) * 0.8)(B, M, Dm)), 'Wq': _w((lambda *s: torch.randn(*s, dtype=torch.bfloat16) * 0.8)(Dm, H, Dh) * Dm ** (-0.5)), 'Wk': _w((lambda *s: torch.randn(*s, dtype=torch.bfloat16) * 0.8)(Dm, H, Dh) * Dm ** (-0.5)), 'Wv': _w((lambda *s: torch.randn(*s, dtype=torch.bfloat16) * 0.8)(Dm, H, Dh) * Dm ** (-0.5)), 'Wo': _w((lambda *s: torch.randn(*s, dtype=torch.bfloat16) * 0.8)(H, Dh, Dm) * (H * Dh) ** (-0.5)), 'seg_len': seg}
    _A_in = _A_setup()

    def _B_setup():
        B, S, D, F = (1, 2048, 640, 1728)
        return {'x': _w((lambda *s: torch.randn(*s, dtype=torch.bfloat16) * 0.05)(B, S, D)), 'w1': _w((lambda *s: torch.randn(*s, dtype=torch.bfloat16) * 0.8)(D, F) * D ** (-0.5)), 'b1': _w((lambda *s: torch.randn(*s, dtype=torch.bfloat16) * 0.4)(F)), 'w2': _w((lambda *s: torch.randn(*s, dtype=torch.bfloat16) * 0.2)(F, D) * F ** (-0.5))}
    _B_in = _B_setup()
    return {'A_x': _A_in['x'], 'A_mem0': _A_in['mem0'], 'A_Wq': _A_in['Wq'], 'A_Wk': _A_in['Wk'], 'A_Wv': _A_in['Wv'], 'A_Wo': _A_in['Wo'], 'A_seg_len': _A_in['seg_len'], 'B_x': _B_in['x'], 'B_w1': _B_in['w1'], 'B_b1': _B_in['b1'], 'B_w2': _B_in['w2']}

def reference(A_x, A_mem0, A_Wq, A_Wk, A_Wv, A_Wo, A_seg_len, B_x, B_w1, B_b1, B_w2):

    def _A_ref(x, mem0, Wq, Wk, Wv, Wo, seg_len):
        B, S, Dm = x.shape
        H, Dh = (Wq.shape[1], Wq.shape[2])
        M = mem0.shape[1]
        scale = Dh ** (-0.5)
        n_seg = S // seg_len
        L = M + seg_len
        idx = torch.arange(L)
        mask = (idx[:, None] < M) | (idx[:, None] >= idx[None, :])
        mem = mem0
        outs = []
        for s in range(n_seg):
            xs = x[:, s * seg_len:(s + 1) * seg_len, :].clone()
            h = torch.concatenate([mem, xs], axis=1)
            q = torch.einsum('btd,dhe->bhte', h, Wq)
            k = torch.einsum('btd,dhe->bhte', h, Wk)
            v = torch.einsum('btd,dhe->bhte', h, Wv)
            scores = torch.einsum('bhqe,bhke->bhqk', q, k) * scale
            scores = torch.where(mask[None, None], scores, -1000000000.0)
            p = _softmax(scores, axis=-1)
            o = torch.einsum('bhqk,bhke->bhqe', p, v)
            o = torch.einsum('bhte,hed->btd', o, Wo)
            mem = o[:, :M, :].clone()
            outs.append(o[:, M:, :])
        return torch.concatenate(outs, axis=1)

    def _B_ref(x, w1, b1, w2):
        h = torch.einsum('bsd,df->bsf', x, w1) + b1
        sp = torch.log1p(torch.exp(-torch.abs(h))) + torch.where(h > 0, h, torch.zeros_like(h))
        act = h * torch.tanh(sp)
        return torch.einsum('bsf,fd->bsd', act, w2)
    x = A_x
    xn = _layernorm(x, axis=-1)
    s = _A_ref(xn, A_mem0, A_Wq, A_Wk, A_Wv, A_Wo, A_seg_len)
    g = _silu(_B_ref(xn, B_w1, B_b1, B_w2))
    return x + s * g
```

```python
import re

VCC = (106, 107)
EXEC = (126, 127)
M0 = 124

def v(i, n=1):
    return f"v{i}" if n == 1 else f"v[{i}:{i+n-1}]"
def a(i, n=1):
    return f"a{i}" if n == 1 else f"a[{i}:{i+n-1}]"
def s(i, n=1):
    return f"s{i}" if n == 1 else f"s[{i}:{i+n-1}]"
def r(i, n=1):
    if i >= 256:
        return a(i - 256, n)
    assert i + n <= 256, (i, n)
    return v(i, n)

_reg_re = re.compile(r'^(-?)(abs\()?\|?([vas])(?:(\d+)|\[(\d+):(\d+)\])\|?\)?$')

def parse_op(tok):
    tok = tok.strip()
    if tok in ('vcc',): return ('s', list(VCC))
    if tok == 'vcc_lo': return ('s', [106])
    if tok == 'vcc_hi': return ('s', [107])
    if tok == 'exec': return ('s', list(EXEC))
    if tok == 'exec_lo': return ('s', [126])
    if tok == 'exec_hi': return ('s', [127])
    if tok == 'm0': return ('s', [M0])
    m = _reg_re.match(tok)
    if not m: return (None, [])
    k = m.group(3)
    if m.group(4) is not None:
        lo = hi = int(m.group(4))
    else:
        lo, hi = int(m.group(5)), int(m.group(6))
    regs = list(range(lo, hi + 1))
    if k == 'a': return ('v', [x + 256 for x in regs])
    return (k, regs)

TRANS = ('v_exp_f32', 'v_log_f32', 'v_rcp_f32', 'v_rsq_f32', 'v_sqrt_f32', 'v_sin_f32', 'v_cos_f32',
         'v_rcp_iflag_f32', 'v_exp_f16', 'v_log_f16', 'v_rcp_f16', 'v_rsq_f16', 'v_sqrt_f16')

class Ins:
    __slots__ = ('text', 'op', 'cls', 'wv', 'rv', 'ws', 'rs', 'D', 'A', 'B', 'C', 'passes', 'label',
                 'target', 'trans', 'dpp', 'perm', 'rdlane', 'widestore', 'ldsdma', 'nop', 'lanesel', 'isload', 'uncond', 'sdwa')
    def __init__(self, text):
        self.text = text
        self.label = None; self.target = None
        self.wv = set(); self.rv = set(); self.ws = set(); self.rs = set()
        self.D = self.A = self.B = self.C = ()
        self.passes = 0
        self.trans = self.dpp = self.perm = self.rdlane = self.ldsdma = self.isload = self.uncond = self.sdwa = False
        self.widestore = set(); self.lanesel = set()
        self.nop = 1
        t = text.split(';')[0].split('//')[0].strip()
        if t.endswith(':'):
            self.label = t[:-1]; self.cls = 'label'; self.op = ''; self.nop = 0
            return
        if not t or t.startswith('.'):
            self.cls = 'dir'; self.op = ''; self.nop = 0
            return
        parts = t.split(None, 1)
        op = parts[0]; self.op = op
        rest = parts[1] if len(parts) > 1 else ''
        ops = []; mods = ''
        depth = 0; cur = ''
        for ch in rest:
            if ch in '[(': depth += 1
            if ch in '])': depth -= 1
            if ch == ',' and depth == 0:
                ops.append(cur.strip()); cur = ''
            else:
                cur += ch
        if cur.strip():
            last = cur.strip().split(None, 1)
            ops.append(last[0])
            if len(last) > 1: mods = last[1]
        P = [parse_op(o) for o in ops]
        def rd(p):
            if p[0] == 'v': self.rv.update(p[1])
            elif p[0] == 's': self.rs.update(p[1])
        def wr(p):
            if p[0] == 'v': self.wv.update(p[1])
            elif p[0] == 's': self.ws.update(p[1])
        if op.startswith('v_mfma') or op.startswith('v_smfmac'):
            self.cls = 'mfma'
            if '32x32' in op: self.passes = 8
            elif '16x16' in op: self.passes = 4
            else: self.passes = 2
            if op in ('v_mfma_f32_16x16x4_f32',): self.passes = 8
            self.D = tuple(P[0][1]); self.A = tuple(P[1][1]); self.B = tuple(P[2][1])
            if op.startswith('v_smfmac'):
                self.C = self.D
                self.A = self.A + tuple(P[3][1])
            else:
                self.C = tuple(P[3][1]) if P[3][0] == 'v' else ()
            self.wv.update(self.D); self.rv.update(self.A); self.rv.update(self.B); self.rv.update(self.C)
            return
        if op.startswith('v_'):
            self.cls = 'valu'
            base = re.sub(r'_(e32|e64|dpp|sdwa)$', '', op)
            self.trans = base in TRANS
            self.dpp = bool(re.search(r'(row_|quad_perm|wave_|row_bcast|_dpp)', mods + op))
            self.sdwa = ('sdwa' in op) or ('op_sel' in mods and not op.startswith('v_pk_')) or ('dst_sel' in mods)
            if base.startswith('v_permlane'):
                self.perm = True
                wr(P[0]); wr(P[1]); rd(P[0]); rd(P[1])
                return
            if base.startswith('v_cmpx'):
                self.ws.update(EXEC)
                wr(P[0])
                for p in P[1:]: rd(p)
                return
            if base in ('v_readlane_b32', 'v_readfirstlane_b32'):
                self.rdlane = True
                wr(P[0]); rd(P[1])
                if len(P) > 2 and P[2][0] == 's': self.lanesel.update(P[2][1])
                return
            if base == 'v_writelane_b32':
                wr(P[0]); rd(P[0]); rd(P[1])
                if len(P) > 2 and P[2][0] == 's': self.lanesel.update(P[2][1])
                return
            if base in ('v_nop',):
                return
            wr(P[0])
            k = 1
            if re.match(r'v_(add|sub|subrev|addc|subb|subbrev)_co_u32', base) or base.startswith('v_div_scale') or base.startswith('v_mad_u64_u32') or base.startswith('v_mad_i64_i32'):
                wr(P[1]); k = 2
            for p in P[k:]: rd(p)
            if base.startswith('v_fmac') or base.startswith('v_pk_fmac') or base.startswith('v_dot2c') or self.dpp or base.startswith('v_swap'):
                rd(P[0])
            if base.startswith('v_swap'):
                wr(P[1])
            if base.startswith('v_cndmask') and len(P) == 3:
                self.rs.update(VCC)
            if base.startswith('v_div_fmas'):
                self.rs.update(VCC)
            return
        if op.startswith('buffer_') or op.startswith('global_') or op.startswith('flat_'):
            self.cls = 'vmem'
            allm = ' ' + mods + ' '
            if op in ('buffer_wbl2', 'buffer_inv'):
                return
            if ('_lds_' in op) or (' lds ' in allm):
                self.ldsdma = True
                for p in P: rd(p)
                self.rs.add(M0)
                return
            if '_load_' in op:
                self.isload = True
                wr(P[0])
                for p in P[1:]: rd(p)
                return
            if '_atomic_' in op:
                ret = ' sc0 ' in allm
                if op.startswith('buffer_'):
                    for p in P: rd(p)
                    if ret: wr(P[0]); self.isload = True
                else:
                    if ret:
                        wr(P[0]); self.isload = True
                        for p in P[1:]: rd(p)
                    else:
                        for p in P: rd(p)
                return
            for p in P: rd(p)
            data = P[0] if op.startswith('buffer_') else P[1]
            if len(data[1]) >= 3: self.widestore = set(data[1])
            return
        if op.startswith('ds_'):
            self.cls = 'ds'
            if op.startswith('ds_read') or op.startswith('ds_bpermute') or op.startswith('ds_permute') or op.startswith('ds_swizzle') or '_rtn' in op:
                self.isload = True
                wr(P[0])
                for p in P[1:]: rd(p)
            else:
                for p in P: rd(p)
            return
        if op.startswith('s_'):
            if op == 's_nop':
                self.cls = 'nop'; self.nop = int(ops[0], 0) + 1
                return
            if op.startswith('s_cbranch') or op == 's_branch':
                self.cls = 'branch'; self.target = ops[0]; self.uncond = (op == 's_branch')
                return
            if op == 's_endpgm':
                self.cls = 'branch'; self.uncond = True
                return
            if op.startswith('s_load') or op.startswith('s_buffer_load') or op in ('s_memtime', 's_memrealtime'):
                self.cls = 'smem'; self.isload = True
                wr(P[0])
                for p in P[1:]: rd(p)
                return
            if op in ('s_waitcnt', 's_barrier', 's_setprio', 's_sleep', 's_sendmsg'):
                self.cls = 'other'
                return
            self.cls = 'salu'
            if op.startswith('s_cmp') or op.startswith('s_bitcmp') or op.startswith('s_setreg'):
                for p in P: rd(p)
                return
            wr(P[0])
            for p in P[1:]: rd(p)
            if 'saveexec' in op:
                self.ws.update(EXEC); self.rs.update(EXEC)
            if op.startswith('s_addk') or op.startswith('s_mulk'):
                rd(P[0])
            return
        raise ValueError('unknown instruction: ' + text)

T_OVC = {2: 4, 4: 6, 8: 10, 16: 18}
T_AB = {2: 5, 4: 8, 8: 12, 16: 20}
T_WARC = {2: 1, 4: 3, 8: 7, 16: 15}

def need(P, C):
    n = 0
    if P.cls == 'valu':
        if P.wv:
            if C.cls == 'mfma' and (P.wv & C.rv): n = max(n, 2)
            if C.cls == 'valu':
                if (C.dpp or C.perm) and (P.wv & C.rv): n = max(n, 2)
                if C.rdlane and (P.wv & C.rv): n = max(n, 1)
                if P.trans and not C.trans and (P.wv & C.rv): n = max(n, 1)
                if P.sdwa and (P.wv & (C.rv | C.wv)): n = max(n, 1)
        if P.ws:
            ex = P.ws & set(EXEC)
            if C.cls == 'valu':
                if P.ws & C.rs: n = max(n, 2)
                if P.ws & C.lanesel: n = max(n, 4)
                if ex:
                    if C.dpp: n = max(n, 5)
                    if C.rdlane or C.perm or C.op.startswith('v_writelane'): n = max(n, 4)
                if C.op.startswith('v_div_fmas') and (P.ws & set(VCC)): n = max(n, 4)
            if C.cls == 'vmem' and (P.ws & C.rs): n = max(n, 5)
            if C.cls == 'mfma' and ex: n = max(n, 4)
    elif P.cls == 'mfma':
        D = set(P.D)
        if C.cls == 'mfma':
            if D & set(C.C):
                if C.C == P.D and C.passes == P.passes:
                    n = max(n, 2 if P.passes == 2 else 0)
                else:
                    n = max(n, T_OVC[P.passes])
            if D & (set(C.A) | set(C.B)): n = max(n, T_AB[P.passes])
            if (D & set(C.D)) and not (D & set(C.C)) and C.passes != P.passes:
                n = max(n, T_AB[P.passes])
        elif C.cls in ('valu', 'vmem', 'ds'):
            if D & (C.rv | C.wv): n = max(n, T_AB[P.passes])
            if C.cls == 'valu' and (set(P.C) & C.wv): n = max(n, T_WARC[P.passes])
    elif P.cls == 'vmem':
        if P.widestore and (P.widestore & C.wv):
            n = max(n, 2 if C.cls in ('valu', 'mfma') else 1)
    elif P.cls == 'salu':
        if M0 in P.ws and (C.ldsdma or C.op.startswith('s_movrel') or 'addtid' in C.op): n = max(n, 1)
    return n

MAXW = 20

class Kernel:
    def __init__(self, name):
        self.name = name
        self.ins = []
        self._uid = 0
    def __call__(self, text):
        for ln in text.split('\n'):
            ln = ln.strip()
            if ln and not ln.startswith(';'):
                self.ins.append(Ins(ln))
    def label(self, name):
        self.ins.append(Ins(name + ':'))
    def uid(self, base='L'):
        self._uid += 1
        return f"{base}_{self.name}_{self._uid}"
    def pad(self):
        ins = self.ins
        i = 0
        total = 0
        while i < len(ins):
            C = ins[i]
            if C.cls in ('label', 'dir', 'nop', 'other', 'branch', 'smem'):
                i += 1; continue
            req = self._req(i)
            if req > 0:
                k = req
                news = []
                while k > 0:
                    t = min(k, 16)
                    news.append(Ins(f's_nop {t-1}'))
                    k -= t
                ins[i:i] = news
                total += req
                i += len(news)
                self._branch_index = None
            i += 1
        return total
    def _targets(self):
        if getattr(self, '_branch_index', None) is None:
            d = {}
            for j, I in enumerate(self.ins):
                if I.cls == 'branch' and I.target:
                    d.setdefault(I.target, []).append(j)
            self._branch_index = d
        return self._branch_index
    def _req(self, i):
        ins = self.ins
        C = ins[i]
        best = 0
        stack = [(i - 1, 0)]
        seen = set()
        while stack:
            j, dist = stack.pop()
            while j >= 0 and dist < MAXW:
                if (j, dist) in seen: break
                seen.add((j, dist))
                P = ins[j]
                if P.cls == 'label':
                    for b in self._targets().get(P.label, []):
                        stack.append((b - 1, dist + 1))
                    j -= 1
                    continue
                if P.cls == 'branch' and P.uncond:
                    break
                if P.cls in ('valu', 'mfma', 'vmem', 'salu'):
                    n = need(P, C)
                    if n - dist > best: best = n - dist
                dist += P.nop
                j -= 1
        return best
    def lint(self, maxsteps=400000):
        ins = self.ins
        pos = {I.label: k for k, I in enumerate(ins) if I.cls == 'label'}
        vm = []; lg = []
        taken = {}
        warns = set()
        i = 0; steps = 0
        while i < len(ins) and steps < maxsteps:
            steps += 1
            I = ins[i]
            if I.cls in ('label', 'dir'):
                i += 1; continue
            if I.op == 's_waitcnt':
                m = re.search(r'vmcnt\((\d+)\)', I.text)
                if m:
                    n = int(m.group(1))
                    while len(vm) > n: vm.pop(0)
                m = re.search(r'lgkmcnt\((\d+)\)', I.text)
                if m:
                    n = int(m.group(1))
                    if n == 0: lg = []
                    elif not any(x[0] == 's' for x in lg):
                        while len(lg) > n: lg.pop(0)
                i += 1; continue
            usedv = I.rv | I.wv
            useds = I.rs | I.ws
            for (dst, src) in vm:
                if ';poll' in src and not (dst & I.wv): continue
                if dst & usedv and not (I.cls == 'vmem' and I.isload and not (dst & I.rv)):
                    warns.add((i, f'vm pending on {sorted(dst & usedv)[:4]} from [{src}] used by [{I.text}]'))
            for (k, dst, src) in lg:
                if k == 'd' and (dst & usedv) and not (I.cls == 'ds' and I.isload and not (dst & I.rv)):
                    warns.add((i, f'lgkm pending on {sorted(dst & usedv)[:4]} from [{src}] used by [{I.text}]'))
                if k == 's' and (dst & useds):
                    warns.add((i, f'smem pending on s{sorted(dst & useds)[:4]} from [{src}] used by [{I.text}]'))
            if I.cls == 'vmem':
                vm.append((set(I.wv), I.text))
                if len(vm) > 63: warns.add((i, 'vmcnt overflow >63'))
            elif I.cls == 'ds':
                lg.append(('d', set(I.wv), I.text))
            elif I.cls == 'smem':
                lg.append(('s', set(I.ws), I.text))
            if I.cls == 'branch':
                if I.op == 's_endpgm':
                    vm = []; lg = []
                    i += 1; continue
                t = pos.get(I.target)
                if t is not None and t < i and not taken.get(i):
                    taken[i] = True
                    i = t; continue
                if I.uncond and t is not None and t > i:
                    vm = []; lg = []
            i += 1
        return sorted(warns)
    def text(self):
        out = []
        for I in self.ins:
            if I.cls == 'label': out.append(I.text)
            else: out.append('    ' + I.text)
        return '\n'.join(out)
    def count(self):
        return sum(1 for I in self.ins if I.cls not in ('label', 'dir'))

def kernel_block(name, body, vgpr=512, accum=256, sgpr=102):
    return f""".text
.globl {name}
.p2align 8
.type {name},@function
{name}:
{body}
.section .rodata,"a"
.p2align 6
.amdhsa_kernel {name}
  .amdhsa_next_free_vgpr {vgpr}
  .amdhsa_next_free_sgpr {sgpr}
  .amdhsa_accum_offset {accum}
  .amdhsa_group_segment_fixed_size 0
  .amdhsa_kernarg_size 112
  .amdhsa_user_sgpr_count 2
  .amdhsa_user_sgpr_kernarg_segment_ptr 1
  .amdhsa_system_sgpr_workgroup_id_x 1
.end_amdhsa_kernel
"""
```

```python
NAME = "recurrent_scan__memory_aug_recurrent_mem_tr__dense_activation_mish__prompt"
WS_SIZE = 256 << 20
WS_XN   = 0x0000000
WS_Q    = 0x0400000
WS_K    = 0x1400000
WS_VT   = 0x2400000
WS_ACT  = 0x3400000
WS_O    = 0x3C00000
WS_FM   = 0x4C00000
WS_SYNC = 0x5C00000
SY_PART = 0x00000
PART_SLOT = 80 * 2048
PART_GRP = 2 * PART_SLOT
SY_MEML = 0x140000
SY_MEMR = 0x150000
SY_FLAG = 0x160000
FL_G1   = 0x0000
FL_FF   = 0x1000
FL_FM   = 0x1400
FL_O    = 0x2000
FL_END  = 0x2400
SY_END  = SY_FLAG + FL_END
SPIN_MAX = 100000
```

```python
import sys
from asmlib import *
from cfg import *

S_WG = 2
S_WAVE = 3
S_X = 4
S_T = 5
SRD_WS = 8
SRD_A = 12
SRD_B = 16
SRD_C = 20
SRD_DBG = 24
KA = 64
KA_X, KA_MEM0, KA_WQ, KA_WK, KA_WV, KA_WO, KA_W1, KA_B1, KA_W2, KA_OUT, KA_DBG, KA_WS = 64, 66, 68, 70, 72, 74, 80, 82, 84, 86, 88, 90
V_LANE = 0

def srd(k, dst, ka, size):
    k(f"s_mov_b32 {s(dst)}, {s(ka)}")
    k(f"s_and_b32 {s(dst+1)}, {s(ka+1)}, 0xffff")
    k(f"s_mov_b32 {s(dst+2)}, {size}")
    k(f"s_mov_b32 {s(dst+3)}, 0x20000")

def prologue(k, ngrid=256):
    k(f"""
    s_load_dwordx16 s[64:79], s[0:1], 0
    s_load_dwordx8 s[80:87], s[0:1], 64
    s_load_dwordx4 s[88:91], s[0:1], 96
    v_lshrrev_b32 v1, 6, v0
    v_and_b32 v0, 63, v0
    v_readfirstlane_b32 {s(S_WAVE)}, v1
    s_and_b32 {s(S_X)}, {s(S_WG)}, 7
    s_lshr_b32 {s(S_T)}, {s(S_WG)}, 3
    s_waitcnt lgkmcnt(0)
    """)
    srd(k, SRD_WS, KA_WS, WS_SIZE)
    srd(k, SRD_DBG, KA_DBG, 256)
    k(f"s_cmp_ge_u32 {s(S_WG)}, {ngrid}")
    k(f"s_cbranch_scc1 {k.name}_exit")

STAMPS = True
WS_STAMP = 0x6000000
def stamp(k, idx, vt=254):
    if not STAMPS: return
    k(f"""
    s_memrealtime s[92:93]
    s_lshl_b32 s94, {s(S_WG)}, 10
    s_lshl_b32 s95, {s(S_WAVE)}, 8
    s_add_u32 s94, s94, s95
    s_add_u32 s94, s94, {WS_STAMP + 4*idx}
    s_waitcnt lgkmcnt(0)
    v_mov_b32 {v(vt)}, s92
    buffer_store_dword {v(vt)}, off, {s(SRD_WS,4)}, s94
    s_memtime s[92:93]
    s_waitcnt lgkmcnt(0)
    v_mov_b32 {v(vt+1)}, s92
    buffer_store_dword {v(vt+1)}, off, {s(SRD_WS,4)}, s94 offset:128
    """)

def epilogue(k):
    k.label(f"{k.name}_exit")
    k("s_endpgm")

def xsum_g(k, x, t):
    k(f"v_mov_b32 {v(t)}, {v(x)}")
    k(f"v_permlane32_swap_b32 {v(x)}, {v(t)}")
    k(f"v_add_f32 {v(x)}, {v(x)}, {v(t)}")
    k(f"v_mov_b32 {v(t)}, {v(x)}")
    k(f"v_permlane16_swap_b32 {v(x)}, {v(t)}")
    k(f"v_add_f32 {v(x)}, {v(x)}, {v(t)}")

def rbf(k, x):
    k(f"v_cvt_pk_bf16_f32 {v(x)}, {v(x)}, {v(x)}")
    k(f"v_lshlrev_b32 {v(x)}, 16, {v(x)}")

def role_ln(k, s_tile, fused=False):
    srd(k, SRD_A, KA_X, 2048 * 1280)
    RAW = 16; F = 96
    k(f"""
    v_and_b32 v1, 15, v0
    v_lshrrev_b32 v2, 4, v0
    v_mul_u32_u24 v1, 1280, v1
    v_lshl_add_u32 v1, v2, 4, v1
    s_mul_i32 s30, {s(s_tile)}, 20480
    v_lshlrev_b32 v2, 4, v0
    """)
    for ks in range(20):
        k(f"buffer_load_dwordx4 {v(RAW+4*ks,4)}, v1, {s(SRD_A,4)}, s30 offen offset:{64*ks}")
    k(f"""
    s_lshr_b32 s31, {s(s_tile)}, 1
    s_mul_i32 s31, s31, 40960
    s_and_b32 s32, {s(s_tile)}, 1
    s_lshl_b32 s32, s32, 10
    s_add_u32 s31, s31, s32
    s_add_u32 s31, s31, {WS_XN}
    v_mov_b32 v4, 0
    v_mov_b32 v5, 0
    v_mov_b32 v6, 0
    v_mov_b32 v7, 0
    """)
    for ks in range(20):
        k(f"s_waitcnt vmcnt({19-ks})")
        for j in range(4):
            rr = RAW + 4*ks + j; f = F + 8*ks + 2*j
            k(f"v_lshlrev_b32 {v(f)}, 16, {v(rr)}")
            k(f"v_and_b32 {v(f+1)}, 0xffff0000, {v(rr)}")
        for j in range(4):
            f = F + 8*ks + 2*j
            acc = 4 + 2*(j & 1)
            k(f"v_pk_add_f32 {v(acc,2)}, {v(acc,2)}, {v(f,2)}")
    k("v_pk_add_f32 v[4:5], v[4:5], v[6:7]")
    k("v_add_f32 v4, v4, v5")
    xsum_g(k, 4, 5)
    k(f"v_mul_f32 v4, {float_hex(1.0/640)}, v4")
    k("v_mov_b32 v5, v4")
    k("v_mov_b32 v8, 0\nv_mov_b32 v9, 0\nv_mov_b32 v10, 0\nv_mov_b32 v11, 0")
    for j in range(80):
        f = F + 2*j
        t = 12 + 2*(j & 1)
        acc = 8 + 2*(j & 1)
        k(f"v_pk_add_f32 {v(t,2)}, {v(f,2)}, v[4:5] neg_lo:[0,1] neg_hi:[0,1]")
        k(f"v_pk_fma_f32 {v(acc,2)}, {v(t,2)}, {v(t,2)}, {v(acc,2)}")
    k("v_pk_add_f32 v[8:9], v[8:9], v[10:11]")
    k("v_add_f32 v8, v8, v9")
    xsum_g(k, 8, 9)
    k(f"v_mul_f32 v8, {float_hex(1.0/640)}, v8")
    rbf(k, 8)
    k(f"v_add_f32 v8, {float_hex(1e-5)}, v8")
    rbf(k, 8)
    k("v_sqrt_f32 v8, v8")
    rbf(k, 8)
    k("v_rcp_f32 v8, v8")
    rbf(k, 4)
    k("v_mov_b32 v5, v4")
    k("v_mov_b32 v9, v8")
    for ks in range(20):
        for j in range(4):
            f = F + 8*ks + 2*j; o = RAW + 4*ks + j
            k(f"v_pk_add_f32 {v(f,2)}, {v(f,2)}, v[4:5] neg_lo:[0,1] neg_hi:[0,1]")
            k(f"v_cvt_pk_bf16_f32 {v(o)}, {v(f)}, {v(f+1)}")
            k(f"v_lshlrev_b32 {v(f)}, 16, {v(o)}")
            k(f"v_and_b32 {v(f+1)}, 0xffff0000, {v(o)}")
            k(f"v_pk_mul_f32 {v(f,2)}, {v(f,2)}, v[8:9]")
            k(f"v_cvt_pk_bf16_f32 {v(o)}, {v(f)}, {v(f+1)}")
        if ks % 2 == 0 and ks:
            k("s_add_u32 s31, s31, 4096")
        k(f"buffer_store_dwordx4 {v(RAW+4*ks,4)}, v2, {s(SRD_WS,4)}, s31 offen offset:{2048*(ks%2)} sc1")

import struct
def float_hex(x):
    return hex(struct.unpack('<I', struct.pack('<f', x))[0])

def load_weights(k, pieces, srd_w, v_goff, v_lds, lds_base_s, nslots, s_tmp, group=8):
    n = len(pieces)
    def issue(i):
        (sb, c), _ = pieces[i]
        slot = i % nslots
        k(f"s_add_u32 {s(s_tmp)}, {s(sb)}, {c}")
        k(f"s_add_u32 m0, {s(lds_base_s)}, {slot*1024}")
        k(f"buffer_load_dwordx4 {v(v_goff)}, {s(srd_w,4)}, {s(s_tmp)} offen lds")
    issued = 0
    while issued < min(n, nslots):
        issue(issued); issued += 1
    done = 0
    while done < n:
        g = min(group, n - done)
        k(f"s_waitcnt vmcnt({issued - done - g})")
        for i in range(done, done + g):
            slot = i % nslots
            for (reg, off) in pieces[i][1]:
                k(f"ds_read_b64_tr_b16 {r(reg,2)}, {v(v_lds)} offset:{slot*1024+off}")
        done += g
        if issued < n:
            k("s_waitcnt lgkmcnt(0)")
            for i in range(issued, min(n, issued + g)):
                issue(i)
            issued = min(n, issued + g)
    k("s_waitcnt lgkmcnt(0)")

G1_ACC = 16; G1_X = 48; G1_PK = 80; G1_BIAS = 96; G1_T = 112
def g1_wreg(ks, blk, t):
    f = (ks * 2 + blk) * 2 + t
    return 256 + 4 * f if f < 64 else 192 + 4 * (f - 64)

def role_gemm1(k, fused=False):
    L = k.uid
    l_ffn = L('g1ffn'); l_common = L('g1common'); l_done = L('g1done')
    k(f"s_cmp_ge_u32 {s(S_T)}, 31")
    k(f"s_cbranch_scc1 {l_done}")
    k(f"s_sub_u32 s33, {s(S_X)}, 2")
    k(f"s_cmp_ge_u32 {s(S_T)}, 24")
    k(f"s_cbranch_scc1 {l_ffn}")
    k(f"""
    s_mul_i32 s34, {s(S_T)}, 43
    s_lshr_b32 s34, s34, 7          ; t/3
    s_mul_i32 s35, s34, 3
    s_sub_u32 s26, {s(S_T)}, s35    ; replica
    s_mov_b32 s27, 3
    s_lshl_b32 s35, s33, 3
    s_add_u32 s34, s34, s35         ; slice 0..47
    s_lshr_b32 s28, s34, 4          ; kind
    s_and_b32 s34, s34, 15
    s_lshl_b32 s34, s34, 2
    s_add_u32 s34, s34, {s(S_WAVE)}
    s_lshl_b32 s30, s34, 7
    s_mov_b32 s29, 8192
    s_lshl_b32 s31, s34, 12
    s_lshl_b32 s35, s28, 24
    s_add_u32 s31, s31, s35
    s_add_u32 s31, s31, {WS_Q}
    s_mov_b32 s32, {32*8192}
    s_cmp_eq_u32 s28, 0
    s_cselect_b32 {s(SRD_A)}, {s(KA_WQ)}, {s(KA_WK)}
    s_cselect_b32 {s(SRD_A+1)}, {s(KA_WQ+1)}, {s(KA_WK+1)}
    s_cmp_eq_u32 s28, 2
    s_cselect_b32 {s(SRD_A)}, {s(KA_WV)}, {s(SRD_A)}
    s_cselect_b32 {s(SRD_A+1)}, {s(KA_WV+1)}, {s(SRD_A+1)}
    s_and_b32 {s(SRD_A+1)}, {s(SRD_A+1)}, 0xffff
    s_mov_b32 {s(SRD_A+2)}, {640*8192}
    s_mov_b32 {s(SRD_A+3)}, 0x20000
    s_branch {l_common}
    """)
    k.label(l_ffn)
    k(f"""
    s_mov_b32 s26, s33
    s_mov_b32 s27, 6
    s_mov_b32 s28, 3
    s_sub_u32 s34, {s(S_T)}, 24
    s_lshl_b32 s34, s34, 2
    s_add_u32 s34, s34, {s(S_WAVE)}
    s_min_u32 s34, s34, 26
    s_lshl_b32 s30, s34, 7
    s_mov_b32 s29, 3456
    s_lshl_b32 s31, s34, 11
    s_add_u32 s31, s31, {WS_ACT}
    s_mov_b32 s32, {108*1024}
    """)
    srd(k, SRD_A, KA_W1, 640 * 3456)
    k.label(l_common)
    srd(k, SRD_B, KA_B1, 3456)
    stamp(k, 0, 6)
    k(f"""
    v_lshrrev_b32 v1, 4, v0
    v_bfe_u32 v2, v0, 2, 2
    v_lshl_add_u32 v2, v1, 3, v2
    v_mul_lo_u32 v2, v2, s29
    v_and_b32 v3, 3, v0
    v_lshl_add_u32 v2, v3, 4, v2
    s_mul_i32 s36, {s(S_WAVE)}, 40960
    v_lshlrev_b32 v3, 4, v0              ; v3 = lane*16
    v_add_u32 v4, s36, v3
    v_lshlrev_b32 v5, 4, v1
    buffer_load_dwordx4 v[8:11], v5, {s(SRD_B,4)}, s30 offen
    buffer_load_dwordx4 v[12:15], v5, {s(SRD_B,4)}, s30 offen offset:64
    s_waitcnt vmcnt(0)
    """)
    for blk in range(2):
        for j in range(4):
            k(f"v_lshlrev_b32 {v(G1_BIAS+8*blk+2*j)}, 16, {v(8+4*blk+j)}")
            k(f"v_and_b32 {v(G1_BIAS+8*blk+2*j+1)}, 0xffff0000, {v(8+4*blk+j)}")
    k("s_lshl_b32 s38, s29, 2")
    k("s_mul_i32 s39, s29, 28")
    k("s_mov_b32 s37, s30")
    pieces = []
    for ks in range(20):
        for u in range(2):
            for blk in range(2):
                pieces.append((ks, u, blk))
    nsl = 40
    def issue(i):
        ks, u, blk = pieces[i]
        if blk == 0 and i > 0:
            k(f"s_add_u32 s37, s37, {'s38' if u == 1 else 's39'}")
        k(f"s_add_u32 m0, s36, {(i % nsl)*1024 - 64*blk}")
        k(f"buffer_load_dwordx4 v2, {s(SRD_A,4)}, s37 offen offset:{64*blk} lds")
    issued = 0
    for i in range(nsl): issue(i)
    issued = nsl; done = 0
    while done < 80:
        k(f"s_waitcnt vmcnt({issued - done - 8})")
        for i in range(done, done + 8):
            ks, u, blk = pieces[i]
            for t in range(2):
                k(f"ds_read_b64_tr_b16 {r(g1_wreg(ks,blk,t)+2*u,2)}, v4 offset:{(i%nsl)*1024+8*t}")
        done += 8
        if issued < 80:
            k("s_waitcnt lgkmcnt(0)")
            for i in range(issued, issued + 8): issue(i)
            issued += 8
    k("s_waitcnt lgkmcnt(0)")
    stamp(k, 1, 6)
    k("s_barrier")
    def dma_xn(s_seg, s_slot):
        k(f"s_min_u32 s44, {s(s_seg)}, 63")
        k(f"s_mul_i32 s44, s44, 40960")
        k(f"s_add_u32 s44, s44, s45")
        k(f"s_add_u32 m0, {s(s_slot)}, s46")
        for i in range(10):
            if i in (4, 8):
                k("s_add_u32 s44, s44, 4096")
                k("s_add_u32 m0, m0, 4096")
            k(f"buffer_load_dwordx4 v3, {s(SRD_WS,4)}, s44 offen offset:{1024*(i%4)} sc1 lds")
    k(f"""
    s_mul_i32 s46, {s(S_WAVE)}, 10240
    s_add_u32 s45, s46, {WS_XN}
    s_mov_b32 s40, s26
    s_mov_b32 s41, 0
    s_mov_b32 s43, 40960
    s_add_u32 s42, s26, s27
    """)
    dma_xn(40, 41)
    dma_xn(42, 43)
    k("s_add_u32 s42, s42, s27")
    k("s_mov_b32 s43, 81920")
    k("s_waitcnt vmcnt(10)")
    loops = {}
    for kind in ('qk', 'v', 'ffn'):
        loops[kind] = L('g1loop_' + kind)
    k("s_cmp_eq_u32 s28, 2")
    k(f"s_cbranch_scc1 {loops['v']}")
    k("s_cmp_eq_u32 s28, 3")
    k(f"s_cbranch_scc1 {loops['ffn']}")
    for kind in ('qk', 'v', 'ffn'):
        k.label(loops[kind])
        k("s_barrier")
        dma_xn(42, 43)
        k("v_add_u32 v5, s41, v3")
        NB = 4
        def rd(ks):
            for tt in range(2):
                k(f"ds_read_b128 {v(G1_X + 8*(ks % NB) + 4*tt, 4)}, v5 offset:{ks*2048 + tt*1024}")
        for ks in range(NB - 1): rd(ks)
        for ks in range(20):
            if ks + NB - 1 < 20:
                rd(ks + NB - 1)
                k(f"s_waitcnt lgkmcnt({2*(NB-1)})")
            else:
                k(f"s_waitcnt lgkmcnt({2*(19-ks)})")
            for blk in range(2):
                for t in range(2):
                    for tt in range(2):
                        acc = G1_ACC + 4 * ((blk * 2 + t) * 2 + tt)
                        w = r(g1_wreg(ks, blk, t), 4)
                        x = v(G1_X + 8*(ks % NB) + 4*tt, 4)
                        if ks == 0:
                            c = v(G1_BIAS + 8*blk + 4*t, 4) if kind == 'ffn' else '0'
                        else:
                            c = v(acc, 4)
                        if kind == 'v':
                            k(f"v_mfma_f32_16x16x32_bf16 {v(acc,4)}, {x}, {w}, {c}")
                        else:
                            k(f"v_mfma_f32_16x16x32_bf16 {v(acc,4)}, {w}, {x}, {c}")
        k("s_mul_i32 s47, s40, s32")
        k("s_add_u32 s47, s47, s31")
        if kind == 'ffn':
            k(f"s_add_u32 s48, s47, {54*1024}")
            LOG2E = float_hex(1.4426950408889634)
            for i in range(32):
                h = G1_ACC + i; t0 = G1_T + 2*i; t1 = t0 + 1
                k(f"v_mul_f32 {v(t0)}, {LOG2E}, {v(h)}")
                k(f"v_min_f32 {v(t0)}, {float_hex(30.0)}, {v(t0)}")
                k(f"v_exp_f32 {v(t0)}, {v(t0)}")
            for i in range(32):
                h = G1_ACC + i; t0 = G1_T + 2*i; t1 = t0 + 1
                k(f"v_add_f32 {v(t1)}, 2.0, {v(t0)}")
                k(f"v_mul_f32 {v(t0)}, {v(t0)}, {v(t1)}")
                k(f"v_add_f32 {v(t1)}, 2.0, {v(t0)}")
                k(f"v_rcp_f32 {v(t1)}, {v(t1)}")
                k(f"v_mul_f32 {v(h)}, {v(h)}, {v(t0)}")
            for i in range(32):
                h = G1_ACC + i; t1 = G1_T + 2*i + 1
                k(f"v_mul_f32 {v(h)}, {v(h)}, {v(t1)}")
        for blk in range(2):
            for o in range(2):
                pk = G1_PK + 4 * (blk * 2 + o)
                for i2 in range(2):
                    if kind == 'v':
                        acc = G1_ACC + 4 * ((blk * 2 + o) * 2 + i2)
                    else:
                        acc = G1_ACC + 4 * ((blk * 2 + i2) * 2 + o)
                    k(f"v_cvt_pk_bf16_f32 {v(pk+2*i2)}, {v(acc)}, {v(acc+1)}")
                    k(f"v_cvt_pk_bf16_f32 {v(pk+2*i2+1)}, {v(acc+2)}, {v(acc+3)}")
                if kind == 'ffn':
                    k(f"buffer_store_dwordx4 {v(pk,4)}, v3, {s(SRD_WS,4)}, {'s47' if o == 0 else 's48'} offen offset:{1024*blk} sc1")
                else:
                    k(f"buffer_store_dwordx4 {v(pk,4)}, v3, {s(SRD_WS,4)}, s47 offen offset:{(blk*2+o)*1024} sc1")
        k(f"""
        s_add_u32 s40, s40, s27
        s_add_u32 s42, s42, s27
        s_mov_b32 s43, s41
        s_add_u32 s41, s41, 40960
        s_cmp_eq_u32 s41, {3*40960}
        s_cselect_b32 s41, 0, s41
        s_cmp_lt_u32 s40, 64
        s_waitcnt vmcnt(14)
        s_cbranch_scc1 {loops[kind]}
        s_branch {l_done}
        """)
    k.label(l_done)
    stamp(k, 2, 6)

def build_dev():
    kernels = []
    k = Kernel("ln_kernel"); prologue(k)
    k(f"s_cmp_lt_u32 {s(S_X)}, 2")
    k(f"s_cbranch_scc1 {k.name}_exit")
    k(f"s_cmp_lg_u32 {s(S_WAVE)}, 0")
    k(f"s_cbranch_scc1 {k.name}_exit")
    k(f"s_sub_u32 s6, {s(S_X)}, 2")
    k(f"s_mul_i32 s7, {s(S_T)}, 6")
    k(f"s_add_u32 s6, s6, s7")
    k(f"s_cmp_ge_u32 s6, 128")
    k(f"s_cbranch_scc1 {k.name}_exit")
    role_ln(k, 6)
    epilogue(k); kernels.append(k)
    k = Kernel("g1_kernel"); prologue(k)
    k(f"s_cmp_lt_u32 {s(S_X)}, 2")
    k(f"s_cbranch_scc1 g1_idle")
    role_gemm1(k)
    k(f"s_branch {k.name}_exit")
    k.label("g1_idle")
    stamp(k, 0, 6)
    for part in (1, 2):
        k("s_mov_b32 s30, 0")
        k.label(f"g1_idle_l{part}")
        k("s_nop 15\ns_nop 15\ns_add_u32 s30, s30, 1\ns_cmp_lt_u32 s30, 300")
        k(f"s_cbranch_scc1 g1_idle_l{part}")
        stamp(k, part, 6)
    epilogue(k); kernels.append(k)
    return kernels

def emit(kernels, path):
    hdr = ""
    for k in kernels:
        hdr += f"; @launch kernel={k.name} grid=(256,1,1) block=(256,1,1) lds=163840\n"
    hdr += '.amdgcn_target "amdgcn-amd-amdhsa--gfx950"\n'
    body = ""
    for k in kernels:
        n = k.pad()
        w = k.lint()
        print(f"{k.name}: {k.count()} instrs, {n} pad states, {len(w)} lint warnings")
        for x in w[:6]: print("   LINT", str(x)[:200])
        body += kernel_block(k.name, k.text())
    open(path, 'w').write(hdr + body)

if __name__ == '__main__':
    emit(build_dev(), sys.argv[1] if len(sys.argv) > 1 else 'dev.s')
```

```python
import sys, math
from gen import *

LK, LL, LR, LW, LWS = 0, 8192, 12288, 16384, 36864
ACC = 16; A = 40; PP = 60; WB = 96
AQ, AK, AV = ACC, ACC + 8, ACC + 16
SRD_WO = 96
V16, VIDX, VFW, V8, VOW, VPS, VPL, VPUB, VLW, VC0, VM1, VSEL, VDUM = 0, 1, 2, 3, 4, 5, 6, 7, 8, 9, 13, 14, 15

def wmap():
    regs = {}; lds = {}
    n = 0
    def add(key):
        nonlocal n
        regs[key] = WB + 8 * n; n += 1
    for i in range(5):
        for m in range(3):
            for t in range(2): add(('R', i, m, t))
    for i in range(5):
        for t in range(2): add(('L', i, 0, t))
    for t in range(2): add(('L', 0, 1, t))
    for j in range(5):
        for ke in range(2): add(('O', j, ke))
    assert n == 52
    q = 0
    for i in range(5):
        for m in (1, 2):
            if m == 1 and i == 0: continue
            for t in range(2):
                lds[('L', i, m, t)] = q; q += 1
    assert q == 18
    return regs, lds
WREG, WLDS = wmap()

def delay(k, n):
    n = n // 4
    while n > 0:
        t = min(n, 16); k(f"s_nop {t-1}"); n -= t

def role_team(k, P, fused=False):
    b = S_X; h = S_T; w = S_WAVE
    lst = P.get('lst', '')
    last = k.uid('last')
    srd(k, SRD_A, KA_WQ, 640 * 8192); srd(k, SRD_B, KA_WK, 640 * 8192); srd(k, SRD_C, KA_WV, 640 * 8192)
    srd(k, SRD_WO, KA_WO, 4096 * 1280)
    SR = [SRD_A, SRD_B, SRD_C]
    stamp(k, 0, 20)
    k(f"""
    v_lshrrev_b32 v16, 4, v0            ; g
    v_and_b32 v17, 15, v0               ; n
    v_bfe_u32 v18, v0, 1, 1
    v_mov_b32 {v(VIDX)}, 0x4444
    v_mul_u32_u24 v18, 0xaaaa, v18
    v_add_u32 {v(VIDX)}, {v(VIDX)}, v18
    s_lshl_b32 s35, {s(w)}, 10
    v_lshlrev_b32 {v(VFW)}, 5, v17
    v_lshl_add_u32 {v(VFW)}, v16, 3, {v(VFW)}
    v_add_u32 {v(VFW)}, s35, {v(VFW)}
    v_lshlrev_b32 {v(V8)}, 3, v0
    v_lshrrev_b32 v18, 1, v16
    v_lshlrev_b32 {v(VOW)}, 8, v18
    v_and_b32 v18, 1, v16
    v_lshl_add_u32 {v(VOW)}, v18, 5, {v(VOW)}
    v_lshrrev_b32 v18, 2, v17
    v_lshl_add_u32 {v(VOW)}, v18, 6, {v(VOW)}
    v_and_b32 v18, 1, v17
    v_lshl_add_u32 {v(VOW)}, v18, 4, {v(VOW)}
    v_bfe_u32 v18, v17, 1, 1
    v_xor_b32 v18, 1, v18
    v_lshl_add_u32 {v(VOW)}, v18, 11, {v(VOW)}
    s_lshl_b32 s36, {s(w)}, 9
    v_add_u32 {v(VOW)}, s36, {v(VOW)}
    v_lshlrev_b32 {v(VPS)}, 11, v16
    v_lshl_add_u32 {v(VPS)}, v17, 2, {v(VPS)}
    v_and_b32 v18, 3, v17
    v_lshl_add_u32 v18, v16, 2, v18
    v_lshlrev_b32 {v(VPL)}, 6, v18
    v_lshrrev_b32 v18, 2, v17
    v_lshl_add_u32 {v(VPL)}, v18, 4, {v(VPL)}
    v_lshrrev_b32 v18, 1, v16
    v_lshlrev_b32 {v(VPUB)}, 5, v18
    v_and_b32 v18, 1, v16
    v_lshl_add_u32 {v(VPUB)}, v18, 3, {v(VPUB)}
    v_bfe_u32 v19, v17, 2, 1
    v_lshl_add_u32 {v(VPUB)}, v19, 4, {v(VPUB)}
    v_and_b32 v18, 3, v17
    v_lshl_add_u32 {v(VPUB)}, v18, 1, {v(VPUB)}
    v_lshlrev_b32 v18, 4, v19
    v_mov_b32 {v(VSEL)}, 0x3c00
    v_lshlrev_b32 {v(VSEL)}, v18, {v(VSEL)}
    v_mov_b32 {v(VM1)}, -1
    v_lshrrev_b32 v18, 1, v16
    v_lshlrev_b32 v20, 4, v18
    v_and_b32 v18, 1, v16
    v_lshl_add_u32 v20, v18, 2, v20
    v_bfe_u32 v18, v17, 2, 1
    v_add_u32 v20, v20, v18
    v_lshrrev_b32 v18, 3, v17
    v_lshl_add_u32 v20, v18, 3, v20
    v_lshlrev_b32 v20, 13, v20
    v_and_b32 v18, 3, v17
    v_lshl_add_u32 v20, v18, 4, v20
    v_lshrrev_b32 v18, 5, v0
    v_lshlrev_b32 v21, 1, v18
    v_bfe_u32 v18, v0, 4, 1
    v_lshl_add_u32 v21, v18, 4, v21
    v_bfe_u32 v18, v0, 3, 1
    v_lshl_add_u32 v21, v18, 2, v21
    v_bfe_u32 v18, v0, 1, 1
    v_add_u32 v21, v21, v18
    v_bfe_u32 v18, v0, 2, 1
    v_lshl_add_u32 v21, v18, 3, v21
    v_mul_u32_u24 v21, 1280, v21
    v_and_b32 v18, 1, v0
    v_lshl_add_u32 v21, v18, 4, v21
    v_mul_u32_u24 v22, 1280, v19
    v_and_b32 v18, 3, v17
    v_lshl_add_u32 v18, v16, 2, v18
    v_lshl_add_u32 v22, v18, 1, v22
    v_lshlrev_b32 {v(V16)}, 4, v0
    s_mul_i32 s37, {s(w)}, {LWS}
    s_add_u32 s37, s37, {LW}
    v_add_u32 {v(VLW)}, s37, {v(V16)}
    v_add_u32 v23, s37, {v(V8)}
    v_add_u32 {v(VC0)}, s35, {v(V16)}
    v_xor_b32 {v(VC0+1)}, 0x400, {v(VC0)}
    v_xor_b32 {v(VC0+2)}, 0x800, {v(VC0)}
    v_xor_b32 {v(VC0+3)}, 0xc00, {v(VC0)}
    """)
    k(f"""
    s_lshl_b32 s38, {s(h)}, 8
    s_lshl_b32 s39, {s(w)}, 6
    s_add_u32 s38, s38, s39
    s_mul_i32 s39, {s(b)}, {5*64*8192}
    s_add_u32 s50, s38, s39
    s_sub_u32 s39, {5*64*8192}, s39
    s_add_u32 s51, s38, s39
    """)
    for i in range(5):
        if i == 1:
            k(f"s_mov_b32 s39, {4*64*8192}")
        else:
            x = 0 if i == 0 else i - 1
            k(f"s_xor_b32 s39, {s(w)}, {x}")
            k(f"s_lshl_b32 s39, s39, 19")
        k(f"s_add_u32 s{40+i}, s50, s39")
        k(f"s_add_u32 s{45+i}, s51, s39")
    k(f"""
    s_mul_i32 s52, {s(h)}, 163840
    s_mul_i32 s39, {s(b)}, 640
    s_add_u32 s52, s52, s39
    s_lshl_b32 s39, {s(w)}, 5
    s_add_u32 s52, s52, s39
    """)
    k(f"""
    s_mul_i32 s39, {s(b)}, {PART_GRP}
    s_add_u32 s39, s39, {WS_SYNC+SY_PART}
    s_lshl_b32 s26, {s(h)}, 6
    s_lshl_b32 s27, {s(w)}, 13
    s_add_u32 s26, s26, s27
    s_add_u32 s26, s26, s39
    s_lshl_b32 s28, {s(w)}, 5
    s_add_u32 s28, s28, {s(h)}           ; rho
    s_lshl_b32 s27, s28, 11
    s_add_u32 s27, s27, s39
    s_lshl_b32 s39, {s(b)}, 15
    s_add_u32 s29, s39, {WS_SYNC+SY_MEML}
    s_add_u32 s30, s39, {WS_SYNC+SY_MEMR}
    s_xor_b32 s39, s39, 0x8000
    s_add_u32 s31, s39, {WS_SYNC+SY_MEMR}
    s_lshl_b32 s32, s28, 6
    s_lshl_b32 s39, {s(h)}, 13
    s_add_u32 s53, s39, {WS_K}
    s_lshl_b32 s54, {s(w)}, 11
    s_add_u32 s54, s54, s39
    s_add_u32 s54, s54, {WS_VT}
    s_add_u32 s55, s39, {WS_FM}
    s_mov_b32 s56, 0x11111111
    s_mov_b32 s57, 0x11111111
    s_mov_b32 s58, 0x22222222
    s_mov_b32 s59, 0x22222222
    s_mov_b32 s60, 0x44444444
    s_mov_b32 s61, 0x44444444
    s_mov_b32 s62, 0x88888888
    s_mov_b32 s63, 0x88888888
    s_mov_b32 s6, 0x00550055
    s_mov_b32 s7, 0x00550055
    """)
    nopub = k.uid('nopub')
    k(f"""
    s_cmp_ge_u32 s28, 80
    s_cbranch_scc1 {nopub}
    s_mov_b32 s92, {s(KA_MEM0)}
    s_and_b32 s93, {s(KA_MEM0+1)}, 0xffff
    s_mov_b32 s94, 10240
    s_mov_b32 s95, 0x20000
    s_and_b32 s39, s28, 3
    s_mul_i32 s39, s39, 2560             ; g*2 rows
    s_lshr_b32 s38, s28, 2
    s_lshl_b32 s38, s38, 5               ; T*16 cols*2B
    s_add_u32 s39, s39, s38
    s_mul_i32 s38, {s(b)}, 640
    s_add_u32 s39, s39, s38
    s_mov_b64 exec, s[6:7]
    buffer_load_dword v24, v22, s[92:95], s39 offen
    s_add_u32 s38, s32, s29
    s_add_u32 s39, s32, s30
    s_waitcnt vmcnt(0)
    v_min_u32 v24, 0xfffffffe, v24
    buffer_store_dword v24, {v(VPUB)}, {s(SRD_WS,4)}, s39 offen sc1
    buffer_store_dword v24, {v(VPUB)}, {s(SRD_WS,4)}, s38 offen {lst}
    s_mov_b64 exec, -1
    """)
    k.label(nopub)
    pieces = []
    def qkv_pair(loc, i, m, dst0, dst1):
        sb = (40 if loc == 'L' else 45) + i
        for u in range(2):
            for vv in range(2):
                pieces.append((SR[m], sb, (32*u + 2*vv) * 8192, 20,
                               [(dst0 + 4*u + 2*vv, VLW, 0), (dst1 + 4*u + 2*vv, VLW, 8)] if dst0 is not None else []))
    for i in range(5):
        qkv_pair('L', i, 0, WREG[('L', i, 0, 0)], WREG[('L', i, 0, 1)])
    qkv_pair('L', 0, 1, WREG[('L', 0, 1, 0)], WREG[('L', 0, 1, 1)])
    for i in range(5):
        for m in range(3):
            qkv_pair('R', i, m, WREG[('R', i, m, 0)], WREG[('R', i, m, 1)])
    for j in range(5):
        for ke in range(2):
            for u in range(2):
                d = WREG[('O', j, ke)] + 4*u
                pieces.append((SRD_WO, 52, (64*ke + 32*u) * 1280 + j * 128, 21, [(d, 23, 0), (d + 2, 23, 512)]))
    nreg = len(pieces)
    pad = (-nreg) % 36
    ldskeys = sorted(WLDS, key=lambda x: WLDS[x])
    for key in ldskeys[::2]:
        qkv_pair('L', key[1], key[2], None, None)
    NS = 36
    slot = lambda i: (i + pad) % NS
    def issue(i):
        sr, sb, c, vg, _ = pieces[i]
        k(f"s_add_u32 s39, s{sb}, {c}")
        k(f"s_add_u32 m0, s37, {slot(i)*1024}")
        k(f"buffer_load_dwordx4 {v(vg)}, {s(sr,4)}, s39 offen lds")
    n = len(pieces)
    for i in range(NS): issue(i)
    issued = NS; done = 0; G = 4
    while done < nreg:
        k(f"s_waitcnt vmcnt({issued - done - G})")
        for i in range(done, done + G):
            for (reg, va, off) in pieces[i][4]:
                k(f"ds_read_b64_tr_b16 {r(reg,2)}, {v(va)} offset:{slot(i)*1024+off}")
        done += G
        if issued < n:
            k("s_waitcnt lgkmcnt(0)")
            for i in range(issued, issued + G): issue(i)
            issued += G
    for pr in range(9):
        k(f"s_waitcnt vmcnt({n - nreg - 4*(pr+1)})")
        for u in range(2):
            for vv in range(2):
                for t in range(2):
                    k(f"ds_read_b64_tr_b16 {v(PP + 8*t + 4*u + 2*vv, 2)}, {v(VLW)} offset:{(4*pr + 2*u + vv)*1024 + 8*t}")
        k("s_waitcnt lgkmcnt(0)")
        for q in range(4):
            k(f"ds_write_b128 {v(VLW)}, {v(PP + 4*q, 4)} offset:{(4*pr+q)*1024}")
        k("s_waitcnt lgkmcnt(0)")
    stamp(k, 1, 20)
    ldsq = list(ldskeys)
    def tb_reg(q): return PP + 8 * (q % 4)
    def tb_load(q):
        k(f"ds_read_b128 {v(tb_reg(q),4)}, {v(VLW)} offset:{q*2048}")
        k(f"ds_read_b128 {v(tb_reg(q)+4,4)}, {v(VLW)} offset:{q*2048+1024}")
    def smf(acc, areg, breg):
        k(f"v_smfmac_f32_16x16x64_bf16 {v(acc,4)}, {v(areg,4)}, {r(breg,8)}, {v(VIDX)}")
    def kx_dma():
        k(f"s_mov_b32 m0, {LK}")
        for i in range(8):
            if i == 4:
                k("s_add_u32 s39, s53, 4096")
                k(f"s_mov_b32 m0, {LK+4096}")
            k(f"buffer_load_dwordx4 {v(V16)}, {s(SRD_WS,4)}, {'s53' if i < 4 else 's39'} offen offset:{1024*(i%4)} sc1 lds")
    def poll_local():
        k(f"buffer_load_dwordx4 {v(A,4)}, {v(VC0)}, {s(SRD_WS,4)}, s35 offen sc1 ;poll")
        k(f"buffer_load_dwordx4 {v(A+4,4)}, {v(V16)}, {s(SRD_WS,4)}, s36 offen sc1 ;poll")
    def poll_remote():
        k(f"buffer_load_dwordx4 {v(A+12,4)}, {v(VC0)}, {s(SRD_WS,4)}, s40 offen sc1 ;poll")
        k(f"buffer_load_dwordx4 {v(A+16,4)}, {v(V16)}, {s(SRD_WS,4)}, s41 offen sc1 ;poll")
    def set_slots(snext):
        k(f"""
        s_and_b32 s42, {snext}, 3
        s_lshl_b32 s42, s42, 13
        s_add_u32 s35, s42, s29
        s_add_u32 s36, s35, 4096
        s_add_u32 s40, s42, s31
        s_add_u32 s41, s40, 4096
        """)
    def check8(base, T):
        k(f"v_max3_u32 {v(T)}, {v(base)}, {v(base+1)}, {v(base+2)}")
        k(f"v_max3_u32 {v(T)}, {v(T)}, {v(base+3)}, {v(base+4)}")
        k(f"v_max3_u32 {v(T)}, {v(T)}, {v(base+5)}, {v(base+6)}")
        k(f"v_max_u32 {v(T)}, {v(T)}, {v(base+7)}")
        k(f"v_cmp_{'f' if P.get('nosync') else 'eq'}_u32 vcc, -1, {v(T)}")
    def bound(lbl_retry, cnt):
        k(f"s_add_u32 s{cnt}, s{cnt}, 1")
        k(f"s_cmp_gt_u32 s{cnt}, 20000")
        k(f"s_cbranch_scc1 {last}")
    def tick(i):
        if P.get('tick'):
            k(f"s_memtime s[92:93]\ns_waitcnt lgkmcnt(0)\ns_sub_u32 s94, s92, s95\ns_add_u32 s{64+i}, s{64+i}, s94\ns_mov_b32 s95, s92")
    k(f"""
    s_mov_b32 s33, 0
    s_mov_b32 s43, 0
    s_mov_b32 s44, 0
    s_mov_b32 s45, 0
    s_mov_b32 s46, 0
    s_mov_b32 s49, 0
    s_cmp_eq_u32 {s(w)}, 3
    s_cselect_b32 s50, -1, 0
    s_mov_b32 s51, s50
    ds_write_b32 {v(VC0)}, {v(VM1)} offset:{LL}
    """)
    for i in range(24): k(f"v_mov_b32 {v(ACC+i)}, 0")
    nk = k.uid('nokx')
    k(f"s_cmp_lg_u32 {s(w)}, 3")
    k(f"s_cbranch_scc1 {nk}")
    kx_dma()
    k.label(nk)
    set_slots('s33')
    for q in range(4): tb_load(q)
    poll_local(); poll_remote()
    k("s_waitcnt lgkmcnt(0)")
    k("s_barrier")
    if P.get('tick'):
        for i in range(16): k(f"s_mov_b32 s{64+i}, 0")
        k("s_memtime s[92:93]\ns_waitcnt lgkmcnt(0)\ns_mov_b32 s95, s92")
    loop = k.uid('tloop'); k.label(loop)
    lchk = k.uid('lchk'); lok = k.uid('lok')
    k("s_waitcnt vmcnt(2)")
    k.label(lchk)
    check8(A, VDUM)
    k(f"s_cbranch_vccz {lok}")
    poll_local()
    bound(lchk, 43)
    k("s_waitcnt vmcnt(0)")
    k(f"s_branch {lchk}")
    k.label(lok)
    tick(0)
    k(f"ds_write_b32 {v(VC0)}, {v(VM1)} offset:{LR}")
    k(f"ds_write_b128 {v(VC0)}, {v(A,4)} offset:{LL}")
    pend = ['w', 'w']
    def lwait(tag):
        idx = max(i for i, t in enumerate(pend) if t == tag)
        nleft = len(pend) - idx - 1
        k(f"s_waitcnt lgkmcnt({min(nleft,15)})")
        del pend[:idx+1]
    areg = [A, A+4, A+8, A, A+4]
    def a_read(i, base, dst):
        k(f"ds_read_b128 {v(dst,4)}, {v(VC0+i-1)} offset:{base}")
        pend.append(f'a{i}')
    def a_check(i, base, dst, cnt):
        lwait(f'a{i}')
        ok = k.uid('aok'); rt = k.uid('art')
        k.label(rt)
        k(f"v_cmp_{'f' if P.get('nosync') else 'eq'}_u32 vcc, -1, {v(dst)}")
        k(f"s_cbranch_vccz {ok}")
        k(f"ds_read_b128 {v(dst,4)}, {v(VC0+i-1)} offset:{base}")
        bound(rt, cnt)
        k("s_waitcnt lgkmcnt(0)")
        k(f"s_branch {rt}")
        k.label(ok)
    qn = 0
    ql = 4
    for i in range(5):
        if i >= 2: a_check(i, LL, areg[i], 44)
        order = [(0, 0), (0, 1), (1, 0), (1, 1), (2, 0), (2, 1)]
        for (m, t) in order:
            key = ('L', i, m, t)
            if key in WREG:
                smf(ACC + 8*m + 4*t, areg[i], WREG[key])
            else:
                assert WLDS[key] == qn
                if qn >= 4: lwait(f'b{qn}')
                smf(ACC + 8*m + 4*t, areg[i], tb_reg(qn))
                qn += 1
                if ql < 18:
                    tb_load(ql); pend.extend([f'b{ql}', f'b{ql}']); ql += 1
        if i == 0: a_read(2, LL, areg[2])
        if i == 0: pass
        if i == 1: a_read(3, LL, areg[3])
        if i == 2: a_read(4, LL, areg[4])
    tick(1)
    rchk = k.uid('rchk'); rok = k.uid('rok')
    k.label(rchk)
    k("s_waitcnt vmcnt(0)")
    check8(A+12, VDUM)
    k(f"s_cbranch_vccz {rok}")
    poll_remote()
    bound(rchk, 45)
    k(f"s_branch {rchk}")
    k.label(rok)
    tick(2)
    pend = []
    k(f"ds_write_b128 {v(VC0)}, {v(A+12,4)} offset:{LR}"); pend.append('w')
    VX = PP + 28; KR = PP + 16; PF = PP
    k(f"buffer_load_dwordx4 {v(VX,4)}, {v(V16)}, {s(SRD_WS,4)}, s54 offen sc1")
    k(f"buffer_load_dwordx4 {v(VX+4,4)}, {v(V16)}, {s(SRD_WS,4)}, s54 offen offset:1024 sc1")
    PFD = P.get('pfd', 2)
    def prefetch(dist):
        k(f"v_lshlrev_b32 {v(VDUM)}, 3, {v(V16)}")
        k(f"s_add_u32 s38, s53, {dist*32*8192}")
        k(f"s_add_u32 s39, s53, {dist*32*8192 + WS_VT - WS_K}")
        k(f"s_mov_b64 exec, s[50:51]")
        k(f"buffer_load_dword {v(VDUM)}, {v(VDUM)}, {s(SRD_WS,4)}, s38 offen sc1 ;poll")
        k(f"buffer_load_dword {v(VDUM)}, {v(VDUM)}, {s(SRD_WS,4)}, s39 offen sc1 ;poll")
        k(f"s_mov_b64 exec, -1")
    prefetch(PFD)
    rreg = [A+12, A+16, A, A+4, A+8]
    for i in range(5):
        if i >= 2: a_check(i, LR, rreg[i], 46)
        for (m, t) in [(1, 0), (0, 0), (1, 1), (0, 1)]:
            smf(ACC + 8*m + 4*t, rreg[i], WREG[('R', i, m, t)])
        if i == 0:
            for ii in (2, 3, 4): a_read(ii, LR, rreg[ii])
    def vrem(i):
        for t in range(2): smf(AV + 4*t, rreg[i], WREG[('R', i, 2, t)])
    vrem(0)
    for t in range(2):
        kq = AK + 4*t; qq = AQ + 4*t
        k(f"v_add_f32 {v(kq)}, {v(kq)}, {v(kq+2)}")
        k(f"v_add_f32 {v(kq+1)}, {v(kq+1)}, {v(kq+3)}")
        k(f"v_add_f32 {v(qq)}, {v(qq)}, {v(qq+2)}")
        k(f"v_add_f32 {v(qq+1)}, {v(qq+1)}, {v(qq+3)}")
        k(f"v_cvt_pk_bf16_f32 {v(kq+2)}, {v(kq)}, {v(kq+1)}")
        k(f"v_cvt_pk_bf16_f32 {v(kq+3)}, {v(qq)}, {v(qq+1)}")
        k(f"ds_write_b64 {v(VFW)}, {v(kq+2,2)} offset:{LL + 512*t}")
        if t == 0: vrem(1)
    vrem(2)
    k("s_waitcnt lgkmcnt(0)")
    k("s_barrier")
    pend = []
    for i in range(8):
        k(f"ds_read_b64_tr_b16 {v(PF+2*i,2)}, {v(V8)} offset:{LL + 512*i}"); pend.append(f'f{i//2}')
    kfr = [KR, KR+4, KR+8, rreg[0], rreg[1], rreg[2], rreg[3], rreg[4]]
    def kread(f):
        k(f"ds_read_b128 {v(kfr[f],4)}, {v(V16)} offset:{LK + 1024*f}"); pend.append(f'k{f}')
    for f in range(6): kread(f)
    vrem(3)
    kread(6)
    vrem(4)
    kread(7)
    tick(3)
    SX0, SX1, SM = AQ, AQ + 4, AK
    T0, T1 = AK + 4, AK + 5; VM = AK + 6
    def smfma(ks):
        c = lambda x: '0' if ks == 0 else v(x, 4)
        if f'f{ks}' in pend: lwait(f'f{ks}')
        k(f"v_mfma_f32_16x16x32_bf16 {v(SM,4)}, {v(PF+4*ks,4)}, {v(PF+4*ks,4)}, {c(SM)}")
        if f'k{2*ks}' in pend: lwait(f'k{2*ks}')
        k(f"v_mfma_f32_16x16x32_bf16 {v(SX0,4)}, {v(kfr[2*ks],4)}, {v(PF+4*ks,4)}, {c(SX0)}")
        if f'k{2*ks+1}' in pend: lwait(f'k{2*ks+1}')
        k(f"v_mfma_f32_16x16x32_bf16 {v(SX1,4)}, {v(kfr[2*ks+1],4)}, {v(PF+4*ks,4)}, {c(SX1)}")
    smfma(0)
    smfma(1)
    for t in range(2):
        vv = AV + 4*t
        k(f"v_add_f32 {v(vv)}, {v(vv)}, {v(vv+2)}")
        k(f"v_add_f32 {v(vv+1)}, {v(vv+1)}, {v(vv+3)}")
        k(f"v_cvt_pk_bf16_f32 {v(VM+t)}, {v(vv)}, {v(vv+1)}")
    smfma(2)
    PK = KR; PM0 = KR + 4; PM1 = KR + 6; ONE = KR + 8
    for i in range(4): k(f"v_mov_b32 {v(ONE+i)}, 0x3f803f80")
    k(f"v_mov_b32 {v(PM0+1)}, 0")
    k(f"v_mov_b32 {v(PM1)}, 0")
    smfma(3)
    k("s_waitcnt vmcnt(2)")
    g1 = k.uid('g1'); pe = k.uid('pe')
    k(f"s_cmp_eq_u32 {s(b)}, 1")
    k(f"s_cbranch_scc1 {g1}")
    k(f"s_cmp_lg_u32 {s(w)}, 3")
    k(f"s_cbranch_scc1 {pe}")
    for ks in range(4):
        k(f"buffer_store_dwordx4 {v(PF+4*ks,4)}, {v(V16)}, {s(SRD_WS,4)}, s55 offen offset:{1024*ks} sc1")
    k(f"s_branch {pe}")
    k.label(g1)
    k(f"s_lshl_b32 s39, {s(w)}, 9")
    k(f"s_add_u32 s39, s39, s55")
    k(f"s_add_u32 s39, s39, 4096")
    k(f"buffer_store_dwordx2 {v(VM,2)}, {v(V8)}, {s(SRD_WS,4)}, s39 offen sc1")
    k.label(pe)
    k("s_cmp_eq_u32 s33, 63")
    k(f"s_cbranch_scc1 {last}")
    C = float_hex(128 ** -0.5 * math.log2(math.e))
    k(f"s_mov_b32 s39, {C}")
    k(f"v_max3_f32 {v(T0)}, {v(SM)}, {v(SM+1)}, {v(SX0)}")
    k(f"v_max3_f32 {v(T0)}, {v(T0)}, {v(SX0+1)}, {v(SX0+2)}")
    k(f"v_max3_f32 {v(T1)}, {v(SX0+3)}, {v(SX1)}, {v(SX1+1)}")
    k(f"v_max3_f32 {v(T1)}, {v(T1)}, {v(SX1+2)}, {v(SX1+3)}")
    k(f"v_max_f32 {v(T0)}, {v(T0)}, {v(T1)}")
    k(f"v_mov_b32 {v(T1)}, {v(T0)}")
    k(f"v_permlane32_swap_b32 {v(T0)}, {v(T1)}")
    k(f"v_max_f32 {v(T0)}, {v(T0)}, {v(T1)}")
    k(f"v_mov_b32 {v(T1)}, {v(T0)}")
    k(f"v_permlane16_swap_b32 {v(T0)}, {v(T1)}")
    k(f"v_max_f32 {v(T0)}, {v(T0)}, {v(T1)}")
    k(f"v_mul_f32 {v(T0)}, s39, {v(T0)}")
    sv = [SX0+i for i in range(8)] + [SM, SM+1]
    for x in sv: k(f"v_fma_f32 {v(x)}, {v(x)}, s39, -{v(T0)}")
    for x in sv: k(f"v_exp_f32 {v(x)}, {v(x)}")
    for i in range(4): k(f"v_cvt_pk_bf16_f32 {v(PK+i)}, {v(SX0+2*i)}, {v(SX0+2*i+1)}")
    k(f"v_cvt_pk_bf16_f32 {v(PM0)}, {v(SM)}, {v(SM+1)}")
    k(f"v_mov_b32 {v(PM1+1)}, {v(PM0)}")
    tick(4)
    O0, O1 = AV, AV + 4; RS = PF
    k(f"v_mfma_f32_16x16x32_bf16 {v(O0,4)}, {v(VX,4)}, {v(PK,4)}, 0")
    k(f"v_mfma_f32_16x16x32_bf16 {v(O1,4)}, {v(VX+4,4)}, {v(PK,4)}, 0")
    k(f"v_mfma_f32_16x16x16_bf16 {v(O0,4)}, {v(VM,2)}, {v(PM0,2)}, {v(O0,4)}")
    k(f"v_mfma_f32_16x16x16_bf16 {v(O1,4)}, {v(VM,2)}, {v(PM1,2)}, {v(O1,4)}")
    k(f"v_mfma_f32_16x16x32_bf16 {v(RS,4)}, {v(PK,4)}, {v(ONE,4)}, 0")
    k(f"v_mfma_f32_16x16x16_bf16 {v(RS,4)}, {v(PM0,2)}, {v(ONE,2)}, {v(RS,4)}")
    for i in range(4): k(f"v_mov_b32 {v(A+i)}, 0")
    OP = AQ
    k(f"v_cvt_pk_bf16_f32 {v(OP)}, {v(O0)}, {v(O0+1)}")
    k(f"v_cvt_pk_bf16_f32 {v(OP+1)}, {v(O0+2)}, {v(O0+3)}")
    k(f"v_cvt_pk_bf16_f32 {v(OP+2)}, {v(O1)}, {v(O1+1)}")
    k(f"v_cvt_pk_bf16_f32 {v(OP+3)}, {v(O1+2)}, {v(O1+3)}")
    k(f"ds_write_b128 {v(VOW)}, {v(OP,4)} offset:{LR}")
    for i in range(4, 12): k(f"v_mov_b32 {v(A+i)}, 0")
    k("s_waitcnt lgkmcnt(0)")
    k("s_barrier")
    OA = PF + 4; RI = PF + 12
    k(f"ds_read_b128 {v(OA,4)}, {v(V16)} offset:{LR}")
    k(f"ds_read_b128 {v(OA+4,4)}, {v(V16)} offset:{LR+1024}")
    k(f"ds_write_b32 {v(VC0)}, {v(VM1)} offset:{LL}")
    for i in range(12, 20): k(f"v_mov_b32 {v(A+i)}, 0")
    k(f"v_rcp_f32 {v(RI)}, {v(RS+2)}")
    k(f"v_rcp_f32 {v(RI+1)}, {v(RS+3)}")
    k(f"""
    s_and_b32 s39, s33, 1
    s_mul_i32 s39, s39, {PART_SLOT}
    s_add_u32 s47, s39, s26
    s_add_u32 s48, s39, s27
    s_bfe_u32 s34, s33, 0x10001
    s_add_u32 s33, s33, 1
    """)
    set_slots('s33')
    tick(5)
    k("s_waitcnt lgkmcnt(2)")
    def fin(j):
        d = A + 4*j
        k(f"v_add_f32 {v(d)}, {v(d)}, {v(d+2)}")
        k(f"v_add_f32 {v(d+1)}, {v(d+1)}, {v(d+3)}")
        k(f"v_fma_mixlo_f16 {v(d+2)}, {v(d)}, {v(RI)}, 0")
        k(f"v_fma_mixhi_f16 {v(d+2)}, {v(d+1)}, {v(RI+1)}, 0")
        k(f"v_bfi_b32 {v(d+2)}, 1, s34, {v(d+2)}")
        k(f"buffer_store_dword {v(d+2)}, {v(VPS)}, {s(SRD_WS,4)}, s47 offen {lst}")
        if j < 4: k("s_add_u32 s47, s47, 32768")
    smf(A, OA, WREG[('O', 0, 0)])
    smf(A+4, OA, WREG[('O', 1, 0)])
    k("s_waitcnt lgkmcnt(0)")
    smf(A, OA+4, WREG[('O', 0, 1)])
    smf(A+4, OA+4, WREG[('O', 1, 1)])
    for j in range(2, 5):
        smf(A+4*j, OA, WREG[('O', j, 0)])
        smf(A+4*j, OA+4, WREG[('O', j, 1)])
        fin(j - 2)
    fin(3); fin(4)
    tick(6)
    k(f"""
    s_add_u32 s53, s53, {32*8192}
    s_add_u32 s54, s54, {32*8192}
    s_add_u32 s55, s55, {32*8192}
    """)
    for q in range(4): tb_load(q)
    nored = k.uid('nored'); join = k.uid('join')
    k("s_cmp_ge_u32 s28, 80")
    k(f"s_cbranch_scc1 {nored}")
    RD = ACC; SEL = ACC + 8; D = ACC + 12; T = ACC + 16
    for d in range(4): k(f"v_cndmask_b32 {v(SEL+d)}, 0, {v(VSEL)}, s[{56+2*d}:{57+2*d}]")
    k("s_add_u32 s38, s42, s32")
    k("s_add_u32 s39, s38, s30")
    k("s_add_u32 s38, s38, s29")
    delay(k, P['rdelay'])
    def rload():
        k(f"buffer_load_dwordx4 {v(RD,4)}, {v(VPL)}, {s(SRD_WS,4)}, s48 offen sc1 ;poll")
        k(f"buffer_load_dwordx4 {v(RD+4,4)}, {v(VPL)}, {s(SRD_WS,4)}, s48 offen offset:1024 sc1 ;poll")
    for d in range(P['rdepth'] - 1):
        rload(); delay(k, P['rgap'])
    rl = k.uid('rl'); k.label(rl)
    rload()
    k(f"s_waitcnt vmcnt({2*(P['rdepth']-1)})")
    for q in range(4):
        k(f"v_bitop3_b32 {v(T+q)}, {v(RD+2*q)}, {v(RD+2*q+1)}, s34 bitop3:0x7e")
    k(f"v_or3_b32 {v(T)}, {v(T)}, {v(T+1)}, {v(T+2)}")
    k(f"v_bitop3_b32 {v(T)}, {v(T)}, {v(T+3)}, 1 bitop3:0xa8")
    k(f"v_cmp_{'f' if P.get('nosync') else 'ne'}_u32 vcc, 0, {v(T)}")
    k(f"v_mfma_f32_16x16x32_f16 {v(D,4)}, {v(RD,4)}, {v(SEL,4)}, 0")
    k(f"v_mfma_f32_16x16x32_f16 {v(D,4)}, {v(RD+4,4)}, {v(SEL,4)}, {v(D,4)}")
    k("s_add_u32 s49, s49, 1")
    k("s_cmp_gt_u32 s49, 20000")
    k(f"s_cbranch_scc1 {last}")
    k(f"s_cbranch_vccnz {rl}")
    k(f"""
    v_add_f32 {v(D)}, {v(D)}, {v(D+1)}
    v_add_f32 {v(D+2)}, {v(D+2)}, {v(D+3)}
    v_add_f32 {v(D)}, {v(D)}, {v(D+2)}
    v_mov_b32_dpp {v(D+1)}, {v(D)} quad_perm:[1,1,3,3] row_mask:0xf bank_mask:0xf
    v_cvt_pk_bf16_f32 {v(D)}, {v(D)}, {v(D+1)}
    s_mov_b64 exec, s[6:7]
    v_min_u32 {v(D)}, 0xfffffffe, {v(D)}
    buffer_store_dword {v(D)}, {v(VPUB)}, {s(SRD_WS,4)}, s39 offen sc1
    buffer_store_dword {v(D)}, {v(VPUB)}, {s(SRD_WS,4)}, s38 offen {lst}
    s_xor_b32 s38, s38, 0x4000
    s_xor_b32 s39, s39, 0x4000
    buffer_store_dword {v(VM1)}, {v(VPUB)}, {s(SRD_WS,4)}, s38 offen {lst}
    buffer_store_dword {v(VM1)}, {v(VPUB)}, {s(SRD_WS,4)}, s39 offen sc1
    s_mov_b64 exec, -1
    """)
    tick(7)
    if P['rdepth'] > 1:
        k("s_waitcnt vmcnt(4)")
    for i in range(24): k(f"v_mov_b32 {v(ACC+i)}, 0")
    delay(k, P['ldelay'])
    k(f"s_branch {join}")
    k.label(nored)
    nk2 = k.uid('nokx')
    k(f"s_cmp_lg_u32 {s(w)}, 3")
    k(f"s_cbranch_scc1 {nk2}")
    kx_dma()
    k.label(nk2)
    for i in range(24): k(f"v_mov_b32 {v(ACC+i)}, 0")
    delay(k, P['nrdelay'])
    k.label(join)
    for d in range(P['ldepth']):
        poll_local(); delay(k, P['lgap'])
    poll_remote()
    k("s_waitcnt lgkmcnt(0)")
    tick(8)
    k(f"s_branch {loop}")
    k.label(last)
    stamp(k, 2, 20)
    if P.get('tick'):
        k(f"""
        s_lshl_b32 s94, {s(S_WG)}, 10
        s_lshl_b32 s95, {s(S_WAVE)}, 8
        s_add_u32 s94, s94, s95
        s_add_u32 s94, s94, {WS_STAMP}
        """)
        for i, sr in enumerate(list(range(64, 73)) + [43, 44, 45, 46, 49, 33]):
            k(f"v_mov_b32 v20, s{sr}")
            k(f"buffer_store_dword v20, off, {s(SRD_WS,4)}, s94 offset:{16+4*i}")

TP = dict(rdelay=100, rdepth=2, rgap=100, ldelay=0, nrdelay=500, ldepth=2, lgap=150, tick=True)

if __name__ == '__main__':
    ks = build_dev()
    variants = eval(open('tvariants.txt').read())
    for n, d in variants.items():
        P = dict(TP); P.update(d)
        k = Kernel(f"team{n}_kernel"); prologue(k)
        k(f"s_cmp_ge_u32 {s(S_X)}, 2")
        k(f"s_cbranch_scc1 {k.name}_exit")
        k("s_mov_b32 s49, 0")
        role_team(k, P)
        epilogue(k); ks.append(k)
    import work
    ks.append(work.dev_att()); ks.append(work.dev_out())
    emit(ks, 'dev.s')
```

```python
import sys, math
from gen import *

NEG = float_hex(-1e30)
LOG2E = 1.4426950408889634

def wload(k, pieces, v_lds, s_ldsbase, nslots, s_tmp, group=8):
    n = len(pieces)
    def issue(i):
        sr, sb, c, vg, _ = pieces[i]
        k(f"s_add_u32 {s(s_tmp)}, {s(sb)}, {c}")
        k(f"s_add_u32 m0, {s(s_ldsbase)}, {(i % nslots)*1024}")
        k(f"buffer_load_dwordx4 {v(vg)}, {s(sr,4)}, {s(s_tmp)} offen lds")
    issued = 0
    while issued < min(n, nslots):
        issue(issued); issued += 1
    done = 0
    while done < n:
        g = min(group, n - done)
        k(f"s_waitcnt vmcnt({issued - done - g})")
        for i in range(done, done + g):
            for (reg, off) in pieces[i][4]:
                k(f"ds_read_b64_tr_b16 {r(reg,2)}, {v(v_lds)} offset:{(i % nslots)*1024+off}")
        done += g
        if issued < n:
            k("s_waitcnt lgkmcnt(0)")
            for i in range(issued, min(n, issued + g)): issue(i)
            issued = min(n, issued + g)
    k("s_waitcnt lgkmcnt(0)")

def spin_ge(k, vdst, vaddr, soff, s_thr, s_cnt, exec_mask=None, off=0, sleep=2):
    top = k.uid('spin'); ok = k.uid('spok')
    k.label(top)
    k(f"buffer_load_dword {v(vdst)}, {v(vaddr)}, {s(SRD_WS,4)}, {s(soff)} offen offset:{off} sc1")
    k("s_waitcnt vmcnt(0)")
    k(f"v_cmp_gt_u32 vcc, {s(s_thr)}, {v(vdst)}")
    k(f"s_cbranch_vccz {ok}")
    k(f"s_add_u32 {s(s_cnt)}, {s(s_cnt)}, 1")
    k(f"s_cmp_gt_u32 {s(s_cnt)}, {SPIN_MAX}")
    k(f"s_cbranch_scc1 {k.name}_exit")
    k(f"s_sleep {sleep}")
    k(f"s_branch {top}")
    k.label(ok)

def role_att(k, s_a, fused=False):
    Q = 16; K = 32; V = 64; F = 96; VM = 112; S0 = 120; S1 = 124; SM = 128; C0 = 132; C1 = 136
    PK = 140; PM0 = 144; PM1 = 146; T0 = 148; T1 = 149; RS = 150; O = 160; OP = 192
    w = S_WAVE
    done = k.uid('attdone')
    k(f"""
    v_mbcnt_lo_u32_b32 v0, -1, 0
    v_mbcnt_hi_u32_b32 v0, -1, v0
    s_lshr_b32 s26, {s(s_a)}, 4
    s_and_b32 s27, {s(s_a)}, 15
    s_lshl_b32 s27, s27, 1
    s_lshr_b32 s28, {s(w)}, 1
    s_add_u32 s27, s27, s28              ; head
    s_and_b32 s28, {s(w)}, 1             ; qt
    v_lshrrev_b32 v2, 4, v0              ; g
    v_and_b32 v3, 15, v0                 ; n
    s_lshl_b32 s29, s28, 4
    v_add_u32 v3, s29, v3
    v_lshlrev_b32 v2, 2, v2              ; 4g
    v_sub_u32 v3, v3, v2                 ; q - 4g   (signed)
    v_mov_b32 v4, {NEG}
    """)
    for i in range(4):
        k(f"v_cmp_gt_i32 vcc, {i}, v3")
        k(f"v_cndmask_b32 {v(C0+i)}, 0, v4, vcc")
        k(f"v_cmp_gt_i32 vcc, {16+i}, v3")
        k(f"v_cndmask_b32 {v(C1+i)}, 0, v4, vcc")
    k(f"""
    v_min_u32 v5, 4, v0
    v_lshlrev_b32 v5, 2, v5
    v_min_u32 v6, 17, v0
    v_lshlrev_b32 v6, 2, v6
    v_lshlrev_b32 v1, 3, v0
    v_lshlrev_b32 v0, 4, v0
    v_mov_b32 {v(PM0+1)}, 0
    v_mov_b32 {v(PM1)}, 0
    s_lshl_b32 s30, s27, 13              ; h*8192
    s_lshl_b32 s31, s26, 18
    s_add_u32 s30, s30, s31
    s_lshl_b32 s31, s28, 10              ; qt*1024
    s_lshl_b32 s32, s27, 12
    s_lshl_b32 s33, s28, 17
    s_add_u32 s32, s32, s33
    s_lshl_b32 s33, s26, 18
    s_add_u32 s32, s32, s33
    s_add_u32 s32, s32, {WS_O}
    s_lshl_b32 s34, s27, 6
    s_add_u32 s34, s34, {WS_SYNC+SY_FLAG+FL_FM}
    s_lshl_b32 s35, s27, 7
    s_add_u32 s35, s35, {WS_SYNC+SY_FLAG+FL_G1}
    s_lshl_b32 s36, s26, 8               ; FL_O[rep][qt][h]
    s_lshl_b32 s37, s28, 7
    s_add_u32 s36, s36, s37
    s_lshl_b32 s37, s27, 2
    s_add_u32 s36, s36, s37
    s_add_u32 s36, s36, {WS_SYNC+SY_FLAG+FL_O}
    s_mov_b32 s40, 0
    s_mov_b32 s41, {float_hex(128 ** -0.5 * LOG2E)}
    """)
    def qkv_loads():
        if fused:
            k("s_add_u32 s37, s26, 1")
            spin_ge(k, T0, 6, 35, 37, 40)
        k(f"s_add_u32 s37, s30, {WS_Q}")
        k(f"s_add_u32 s37, s37, s31")
        k(f"s_add_u32 s38, s37, 4096")
        for ks in range(4):
            k(f"buffer_load_dwordx4 {v(Q+4*ks,4)}, v0, {s(SRD_WS,4)}, {'s37' if ks < 2 else 's38'} offen offset:{2048*(ks%2)} sc1")
        for base, reg in ((WS_K, K), (WS_VT, V)):
            k(f"s_add_u32 s37, s30, {base}")
            k(f"s_add_u32 s38, s37, 4096")
            for f in range(8):
                k(f"buffer_load_dwordx4 {v(reg+4*f,4)}, v0, {s(SRD_WS,4)}, {'s37' if f < 4 else 's38'} offen offset:{1024*(f%4)} sc1")
    qkv_loads()
    loop = k.uid('attloop'); k.label(loop)
    k("s_waitcnt vmcnt(8)")
    for ks in range(4):
        for tt, S, C in ((0, S0, C0), (1, S1, C1)):
            k(f"v_mfma_f32_16x16x32_bf16 {v(S,4)}, {v(K+8*ks+4*tt,4)}, {v(Q+4*ks,4)}, {v(C if ks == 0 else S,4)}")
    if fused:
        k("s_add_u32 s37, s26, 1")
        spin_ge(k, T0, 5, 34, 37, 40)
    k(f"s_add_u32 s37, s30, {WS_FM}")
    k(f"s_add_u32 s38, s37, 4096")
    for ks in range(4):
        k(f"buffer_load_dwordx4 {v(F+4*ks,4)}, v0, {s(SRD_WS,4)}, s37 offen offset:{1024*ks} sc1")
    for b in range(4):
        k(f"buffer_load_dwordx2 {v(VM+2*b,2)}, v1, {s(SRD_WS,4)}, s38 offen offset:{512*b} sc1")
    k(f"v_max3_f32 {v(T0)}, {v(S0)}, {v(S0+1)}, {v(S0+2)}")
    k(f"v_max3_f32 {v(T1)}, {v(S0+3)}, {v(S1)}, {v(S1+1)}")
    k(f"v_max3_f32 {v(T1)}, {v(T1)}, {v(S1+2)}, {v(S1+3)}")
    k(f"v_max_f32 {v(T0)}, {v(T0)}, {v(T1)}")
    for ks in range(4):
        k(f"s_waitcnt vmcnt({7-ks})")
        k(f"v_mfma_f32_16x16x32_bf16 {v(SM,4)}, {v(F+4*ks,4)}, {v(Q+4*ks,4)}, {'0' if ks == 0 else v(SM,4)}")
    k(f"""
    v_max3_f32 {v(T0)}, {v(T0)}, {v(SM)}, {v(SM+1)}
    v_mov_b32 {v(T1)}, {v(T0)}
    v_permlane32_swap_b32 {v(T0)}, {v(T1)}
    v_max_f32 {v(T0)}, {v(T0)}, {v(T1)}
    v_mov_b32 {v(T1)}, {v(T0)}
    v_permlane16_swap_b32 {v(T0)}, {v(T1)}
    v_max_f32 {v(T0)}, {v(T0)}, {v(T1)}
    v_mul_f32 {v(T0)}, s41, {v(T0)}
    """)
    sv = [S0 + i for i in range(10)]
    for x in sv: k(f"v_fma_f32 {v(x)}, {v(x)}, s41, -{v(T0)}")
    for x in sv: k(f"v_exp_f32 {v(x)}, {v(x)}")
    for i in range(4): k(f"v_cvt_pk_bf16_f32 {v(PK+i)}, {v(S0+2*i)}, {v(S0+2*i+1)}")
    k(f"v_cvt_pk_bf16_f32 {v(PM0)}, {v(SM)}, {v(SM+1)}")
    k(f"v_mov_b32 {v(PM1+1)}, {v(PM0)}")
    k("s_waitcnt vmcnt(0)")
    for et in range(8):
        k(f"v_mfma_f32_16x16x32_bf16 {v(O+4*et,4)}, {v(V+4*et,4)}, {v(PK,4)}, 0")
        if et == 0:
            k(f"v_pk_add_f32 {v(S0,2)}, {v(S0,2)}, {v(S0+2,2)}")
            k(f"v_pk_add_f32 {v(S1,2)}, {v(S1,2)}, {v(S1+2,2)}")
        if et == 1:
            k(f"v_pk_add_f32 {v(S0,2)}, {v(S0,2)}, {v(SM,2)}")
        if et == 2:
            k(f"v_pk_add_f32 {v(S0,2)}, {v(S0,2)}, {v(S1,2)}")
        if et == 3:
            k(f"v_add_f32 {v(RS)}, {v(S0)}, {v(S0+1)}")
        if et == 4:
            xsum_g(k, RS, T1)
        if et == 7:
            k(f"v_rcp_f32 {v(RS)}, {v(RS)}")
    for et in range(8):
        k(f"v_mfma_f32_16x16x16_bf16 {v(O+4*et,4)}, {v(VM+2*(et//2),2)}, {v(PM1 if et % 2 else PM0,2)}, {v(O+4*et,4)}")
    k(f"v_mov_b32 {v(RS+1)}, {v(RS)}")
    for b in range(4):
        for i in range(4):
            o = O + 8*b + 2*i
            k(f"v_pk_mul_f32 {v(o,2)}, {v(o,2)}, {v(RS,2)}")
            k(f"v_cvt_pk_bf16_f32 {v(OP+4*b+i)}, {v(o)}, {v(o+1)}")
        k(f"buffer_store_dwordx4 {v(OP+4*b,4)}, v0, {s(SRD_WS,4)}, s32 offen offset:{1024*b} sc1")
    k(f"""
    s_add_u32 s26, s26, 4
    s_add_u32 s30, s30, {4 << 18}
    s_add_u32 s32, s32, {4 << 18}
    """)
    if fused:
        k(f"v_mov_b32 {v(T1)}, s26")
        k("s_waitcnt vmcnt(0)")
        k(f"buffer_store_dword {v(T1)}, off, {s(SRD_WS,4)}, s36 sc1")
    k("s_cmp_ge_u32 s26, 64")
    k(f"s_cbranch_scc1 {done}")
    qkv_loads()
    k(f"s_branch {loop}")
    k.label(done)

def role_out(k, s_x, s_blk, fused=False):
    ACS = 16; ACG = 24; RA = 32; RB = 88; W2 = 144; WO = 256
    w = S_WAVE
    done = k.uid('outdone')
    srd(k, SRD_A, KA_WO, 4096 * 1280); srd(k, SRD_B, KA_W2, 1728 * 1280)
    srd(k, SRD_C, KA_X, 2048 * 1280); srd(k, 28, KA_OUT, 2048 * 1280)
    SRD_O = 28
    k(f"""
    v_mbcnt_lo_u32_b32 v0, -1, 0
    v_mbcnt_hi_u32_b32 v0, -1, v0
    v_lshrrev_b32 v1, 4, v0              ; g
    v_bfe_u32 v2, v0, 2, 2
    v_lshl_add_u32 v2, v1, 3, v2
    v_mul_u32_u24 v2, 1280, v2
    v_and_b32 v3, 3, v0
    v_lshl_add_u32 v2, v3, 4, v2
    v_and_b32 v3, 15, v0
    v_mul_u32_u24 v3, 1280, v3
    v_lshl_add_u32 v3, v1, 4, v3         ; v3 = n*1280 + 16g
    s_lshl_b32 s32, {s(s_blk)}, 6
    s_lshl_b32 s33, {s(w)}, 2
    s_add_u32 s33, s33, s32
    v_add_u32 v3, s33, v3
    v_and_b32 v5, 7, v0
    v_lshlrev_b32 v5, 2, v5
    v_lshlrev_b32 v7, 2, v0
    v_lshlrev_b32 v0, 4, v0
    s_lshl_b32 s34, {s(w)}, 15
    s_add_u32 s34, s34, 32768
    v_add_u32 v4, s34, v0
    s_mul_i32 s35, {s(w)}, {1024*1280}
    s_add_u32 s35, s35, s32
    s_mul_i32 s36, {s(w)}, {32*1280}
    s_add_u32 s36, s36, s32              ; w2 base
    s_lshl_b32 s37, {s(w)}, 12
    v_add_u32 v6, s37, v0
    s_lshr_b32 s37, {s(w)}, 1
    s_lshl_b32 s37, s37, 10
    s_and_b32 s38, {s(w)}, 1
    s_lshl_b32 s38, s38, 3
    s_add_u32 s37, s37, s38
    v_add_u32 v8, s37, v0
    s_barrier
    """)
    pieces = []
    for i in range(14):
        for u in range(2):
            pieces.append((SRD_B, 36, (128*i + 4*u) * 1280, 2, [(W2 + 8*i + 4*t + 2*u, 8*t) for t in range(2)]))
    for ks in range(32):
        for u in range(2):
            pieces.append((SRD_A, 35, (32*ks + 4*u) * 1280, 2, [(WO + 8*ks + 4*t + 2*u, 8*t) for t in range(2)]))
    wload(k, pieces, 4, 34, 32, 39)
    nz = k.uid('nz')
    k(f"s_cmp_lt_u32 {s(w)}, 2")
    k(f"s_cbranch_scc1 {nz}")
    for i in range(8): k(f"v_mov_b32 {v(W2+8*13+i)}, 0")
    k.label(nz)
    k(f"""
    s_mov_b32 s40, {s(s_x)}
    s_mul_i32 s41, s40, {54*1024}
    s_lshl_b32 s39, {s(w)}, 10
    s_add_u32 s41, s41, s39
    s_add_u32 s41, s41, {WS_ACT}
    s_lshl_b32 s42, s40, 17
    s_lshl_b32 s39, {s(w)}, 15
    s_add_u32 s42, s42, s39
    s_add_u32 s42, s42, {WS_O}
    s_cmp_lt_u32 {s(w)}, 2
    s_cselect_b32 s43, {13*4096}, 0
    s_mov_b32 s44, 0
    s_mov_b32 s45, 0
    s_lshl_b32 s46, {s(w)}, 5
    s_add_u32 s46, s46, {WS_SYNC+SY_FLAG+FL_O}
    """)
    if fused:
        k(f"s_mov_b32 s38, {WS_SYNC+SY_FLAG+FL_FF}")
        k("s_mov_b32 s39, 64")
        for i in range(3):
            spin_ge(k, 9, 7, 38, 39, 44, off=256*i)
    def act_load(i):
        if i < 13: k(f"s_add_u32 s39, s41, {4096*i}")
        else: k("s_add_u32 s39, s41, s43")
        k(f"buffer_load_dwordx4 {v(RA+4*i,4)}, v0, {s(SRD_WS,4)}, s39 offen sc1")
    def oreg(f):
        return RB + 4*f if f < 14 else (RA + 4*(f-14) if f < 28 else RB + 4*(f-28))
    def o_load(f):
        if f % 4 == 0: k(f"s_add_u32 s38, s42, {1024*f}")
        k(f"buffer_load_dwordx4 {v(oreg(f),4)}, v0, {s(SRD_WS,4)}, s38 offen offset:{1024*(f%4)} sc1")
    for i in range(14): act_load(i)
    k(f"buffer_load_dword v9, v3, {s(SRD_C,4)}, 0 offen")
    loop = k.uid('outloop'); k.label(loop)
    k("s_mul_i32 s47, s40, 20480")
    for i in range(14):
        k(f"s_waitcnt vmcnt({14-i})")
        for t in range(2):
            k(f"v_mfma_f32_16x16x32_bf16 {v(ACG+4*t,4)}, {v(W2+8*i+4*t,4)}, {v(RA+4*i,4)}, {'0' if i == 0 else v(ACG+4*t,4)}")
    if fused:
        k(f"""
        s_lshr_b32 s38, s40, 1
        s_add_u32 s39, s38, 1
        s_and_b32 s38, s40, 7            ; (seg&3)*2+tt
        s_lshl_b32 s38, s38, 7
        s_add_u32 s38, s38, s46
        """)
        spin_ge(k, 9, 5, 38, 39, 44)
    for f in range(28): o_load(f)
    k(f"buffer_load_dword v9, v3, {s(SRD_C,4)}, s47 offen")
    k("v_add_u32 v10, s45, v6")
    k("v_add_u32 v11, s45, v8")
    for t in range(2):
        k(f"ds_write_b128 v10, {v(ACG+4*t,4)} offset:{2048+1024*t}")
    k(f"s_add_u32 s41, s41, {6*54*1024}")
    k("s_add_u32 s48, s40, 6")
    k("s_cmp_lt_u32 s48, 128")
    k(f"s_cselect_b32 s41, s41, {WS_ACT}")
    q = [f'o{f}' for f in range(28)] + ['x']
    for f in range(32):
        idx = q.index(f'o{f}')
        k(f"s_waitcnt vmcnt({len(q)-idx-1})")
        del q[:idx+1]
        for t in range(2):
            k(f"v_mfma_f32_16x16x32_bf16 {v(ACS+4*t,4)}, {r(WO+8*f+4*t,4)}, {v(oreg(f),4)}, {'0' if f == 0 else v(ACS+4*t,4)}")
        if f < 4:
            o_load(28 + f); q.append(f'o{28+f}')
        if 14 <= f < 28:
            act_load(f - 14); q.append(f'a{f-14}')
    for t in range(2):
        k(f"ds_write_b128 v10, {v(ACS+4*t,4)} offset:{1024*t}")
    k("s_waitcnt lgkmcnt(0)")
    k("s_barrier")
    E = RB
    for p in range(2):
        for ww in range(4):
            k(f"ds_read_b64 {v(E+8*p+2*ww,2)}, v11 offset:{4096*ww+2048*(1-p)}")
    G = E; S = E + 8
    k("s_waitcnt lgkmcnt(4)")
    k(f"v_pk_add_f32 {v(G,2)}, {v(G,2)}, {v(G+2,2)}")
    k(f"v_pk_add_f32 {v(G+4,2)}, {v(G+4,2)}, {v(G+6,2)}")
    k(f"v_pk_add_f32 {v(G,2)}, {v(G,2)}, {v(G+4,2)}")
    def rb2(x, t):
        k(f"v_cvt_pk_bf16_f32 {v(t)}, {v(x)}, {v(x+1)}")
        k(f"v_lshlrev_b32 {v(x)}, 16, {v(t)}")
        k(f"v_and_b32 {v(x+1)}, 0xffff0000, {v(t)}")
    rb2(G, G+2)
    for i in range(2):
        k(f"v_mul_f32 {v(G+2+i)}, {float_hex(-LOG2E)}, {v(G+i)}")
        k(f"v_exp_f32 {v(G+2+i)}, {v(G+2+i)}")
    for i in range(2):
        k(f"v_add_f32 {v(G+2+i)}, 1.0, {v(G+2+i)}")
        k(f"v_rcp_f32 {v(G+2+i)}, {v(G+2+i)}")
    k("s_waitcnt lgkmcnt(0)")
    k(f"v_pk_add_f32 {v(S,2)}, {v(S,2)}, {v(S+2,2)}")
    k(f"v_pk_add_f32 {v(S+4,2)}, {v(S+4,2)}, {v(S+6,2)}")
    k(f"v_pk_add_f32 {v(S,2)}, {v(S,2)}, {v(S+4,2)}")
    k(f"v_pk_mul_f32 {v(G,2)}, {v(G,2)}, {v(G+2,2)}")
    rb2(S, S+2)
    rb2(G, G+2)
    k(f"v_pk_mul_f32 {v(S,2)}, {v(S,2)}, {v(G,2)}")
    k(f"v_lshlrev_b32 {v(G)}, 16, v9")
    k(f"v_and_b32 {v(G+1)}, 0xffff0000, v9")
    rb2(S, S+2)
    k(f"v_pk_add_f32 {v(S,2)}, {v(S,2)}, {v(G,2)}")
    k(f"v_cvt_pk_bf16_f32 v12, {v(S)}, {v(S+1)}")
    k(f"buffer_store_dword v12, v3, {s(SRD_O,4)}, s47 offen")
    k(f"""
    s_mov_b32 s40, s48
    s_add_u32 s42, s42, {6 << 17}
    s_xor_b32 s45, s45, 16384
    s_cmp_lt_u32 s40, 128
    s_cbranch_scc1 {loop}
    """)
    k.label(done)

def dev_att():
    k = Kernel("att_kernel"); prologue(k)
    k(f"""
    s_cmp_lt_u32 {s(S_X)}, 2
    s_cbranch_scc1 {k.name}_exit
    s_cmp_lt_u32 {s(S_T)}, 20
    s_cbranch_scc1 {k.name}_exit
    s_sub_u32 s6, {s(S_X)}, 2
    s_mul_i32 s6, s6, 12
    s_add_u32 s6, s6, {s(S_T)}
    s_sub_u32 s6, s6, 20
    s_cmp_ge_u32 s6, 64
    s_cbranch_scc1 {k.name}_exit
    """)
    role_att(k, 6)
    epilogue(k); return k
def dev_out():
    k = Kernel("out_kernel"); prologue(k)
    k(f"""
    s_cmp_lt_u32 {s(S_X)}, 2
    s_cbranch_scc1 {k.name}_exit
    s_cmp_ge_u32 {s(S_T)}, 20
    s_cbranch_scc1 {k.name}_exit
    s_sub_u32 s6, {s(S_X)}, 2
    """)
    role_out(k, 6, S_T)
    epilogue(k); return k
```

```python
import gen
gen.STAMPS = False
from gen import *
import team, work
ks = []
k = Kernel("ln_kernel"); prologue(k)
k(f"""
s_cmp_ge_u32 {s(S_X)}, 2
s_cbranch_scc1 ln_do
s_lshl_b32 s6, {s(S_T)}, 1
s_add_u32 s6, s6, {s(S_X)}
s_lshl_b32 s6, s6, 2
s_add_u32 s6, s6, {s(S_WAVE)}
s_mul_i32 s6, s6, 6144
s_add_u32 s6, s6, {WS_SYNC}
s_add_u32 s7, s6, 4096
v_lshlrev_b32 v1, 4, v0
v_mov_b32 v4, -1
v_mov_b32 v5, -1
v_mov_b32 v6, -1
v_mov_b32 v7, -1
""")
for i in range(6):
    k(f"buffer_store_dwordx4 v[4:7], v1, {s(SRD_WS,4)}, {'s6' if i < 4 else 's7'} offen offset:{1024*(i%4)} sc1")
k(f"s_branch {k.name}_exit")
k.label("ln_do")
k(f"""
s_cmp_lg_u32 {s(S_WAVE)}, 0
s_cbranch_scc1 {k.name}_exit
s_sub_u32 s6, {s(S_X)}, 2
s_mul_i32 s7, {s(S_T)}, 6
s_add_u32 s6, s6, s7
s_cmp_ge_u32 s6, 128
s_cbranch_scc1 {k.name}_exit
""")
role_ln(k, 6)
epilogue(k); ks.append(k)
k = Kernel("g1_kernel"); prologue(k)
k(f"s_cmp_lt_u32 {s(S_X)}, 2")
k(f"s_cbranch_scc1 {k.name}_exit")
role_gemm1(k)
epilogue(k); ks.append(k)
P = dict(team.TP); P.update(tick=False, lst='sc1')
k = Kernel("team_kernel"); prologue(k)
k(f"s_cmp_ge_u32 {s(S_X)}, 2")
k(f"s_cbranch_scc1 {k.name}_exit")
team.role_team(k, P)
epilogue(k); ks.append(k)
ks.append(work.dev_att()); ks.append(work.dev_out())
emit(ks, 'cdna_kernels/' + NAME + '.s')
```

```python
import re

VCC = (106, 107)
EXEC = (126, 127)
M0 = 124

def v(i, n=1):
    return f"v{i}" if n == 1 else f"v[{i}:{i+n-1}]"
def a(i, n=1):
    return f"a{i}" if n == 1 else f"a[{i}:{i+n-1}]"
def s(i, n=1):
    return f"s{i}" if n == 1 else f"s[{i}:{i+n-1}]"
def r(i, n=1):
    if i >= 256:
        return a(i - 256, n)
    assert i + n <= 256, (i, n)
    return v(i, n)

_reg_re = re.compile(r'^(-?)(abs\()?\|?([vas])(?:(\d+)|\[(\d+):(\d+)\])\|?\)?$')

def parse_op(tok):
    tok = tok.strip()
    if tok in ('vcc',): return ('s', list(VCC))
    if tok == 'vcc_lo': return ('s', [106])
    if tok == 'vcc_hi': return ('s', [107])
    if tok == 'exec': return ('s', list(EXEC))
    if tok == 'exec_lo': return ('s', [126])
    if tok == 'exec_hi': return ('s', [127])
    if tok == 'm0': return ('s', [M0])
    m = _reg_re.match(tok)
    if not m: return (None, [])
    k = m.group(3)
    if m.group(4) is not None:
        lo = hi = int(m.group(4))
    else:
        lo, hi = int(m.group(5)), int(m.group(6))
    regs = list(range(lo, hi + 1))
    if k == 'a': return ('v', [x + 256 for x in regs])
    return (k, regs)

TRANS = ('v_exp_f32', 'v_log_f32', 'v_rcp_f32', 'v_rsq_f32', 'v_sqrt_f32', 'v_sin_f32', 'v_cos_f32',
         'v_rcp_iflag_f32', 'v_exp_f16', 'v_log_f16', 'v_rcp_f16', 'v_rsq_f16', 'v_sqrt_f16')

class Ins:
    __slots__ = ('text', 'op', 'cls', 'wv', 'rv', 'ws', 'rs', 'D', 'A', 'B', 'C', 'passes', 'label',
                 'target', 'trans', 'dpp', 'perm', 'rdlane', 'widestore', 'ldsdma', 'nop', 'lanesel', 'isload', 'uncond', 'sdwa')
    def __init__(self, text):
        self.text = text
        self.label = None; self.target = None
        self.wv = set(); self.rv = set(); self.ws = set(); self.rs = set()
        self.D = self.A = self.B = self.C = ()
        self.passes = 0
        self.trans = self.dpp = self.perm = self.rdlane = self.ldsdma = self.isload = self.uncond = self.sdwa = False
        self.widestore = set(); self.lanesel = set()
        self.nop = 1
        t = text.split(';')[0].split('//')[0].strip()
        if t.endswith(':'):
            self.label = t[:-1]; self.cls = 'label'; self.op = ''; self.nop = 0
            return
        if not t or t.startswith('.'):
            self.cls = 'dir'; self.op = ''; self.nop = 0
            return
        parts = t.split(None, 1)
        op = parts[0]; self.op = op
        rest = parts[1] if len(parts) > 1 else ''
        ops = []; mods = ''
        depth = 0; cur = ''
        for ch in rest:
            if ch in '[(': depth += 1
            if ch in '])': depth -= 1
            if ch == ',' and depth == 0:
                ops.append(cur.strip()); cur = ''
            else:
                cur += ch
        if cur.strip():
            last = cur.strip().split(None, 1)
            ops.append(last[0])
            if len(last) > 1: mods = last[1]
        P = [parse_op(o) for o in ops]
        def rd(p):
            if p[0] == 'v': self.rv.update(p[1])
            elif p[0] == 's': self.rs.update(p[1])
        def wr(p):
            if p[0] == 'v': self.wv.update(p[1])
            elif p[0] == 's': self.ws.update(p[1])
        if op.startswith('v_mfma') or op.startswith('v_smfmac'):
            self.cls = 'mfma'
            if '32x32' in op: self.passes = 8
            elif '16x16' in op: self.passes = 4
            else: self.passes = 2
            if op in ('v_mfma_f32_16x16x4_f32',): self.passes = 8
            self.D = tuple(P[0][1]); self.A = tuple(P[1][1]); self.B = tuple(P[2][1])
            if op.startswith('v_smfmac'):
                self.C = self.D
                self.A = self.A + tuple(P[3][1])
            else:
                self.C = tuple(P[3][1]) if P[3][0] == 'v' else ()
            self.wv.update(self.D); self.rv.update(self.A); self.rv.update(self.B); self.rv.update(self.C)
            return
        if op.startswith('v_'):
            self.cls = 'valu'
            base = re.sub(r'_(e32|e64|dpp|sdwa)$', '', op)
            self.trans = base in TRANS
            self.dpp = bool(re.search(r'(row_|quad_perm|wave_|row_bcast|_dpp)', mods + op))
            self.sdwa = ('sdwa' in op) or ('op_sel' in mods and not op.startswith('v_pk_')) or ('dst_sel' in mods)
            if base.startswith('v_permlane'):
                self.perm = True
                wr(P[0]); wr(P[1]); rd(P[0]); rd(P[1])
                return
            if base.startswith('v_cmpx'):
                self.ws.update(EXEC)
                wr(P[0])
                for p in P[1:]: rd(p)
                return
            if base in ('v_readlane_b32', 'v_readfirstlane_b32'):
                self.rdlane = True
                wr(P[0]); rd(P[1])
                if len(P) > 2 and P[2][0] == 's': self.lanesel.update(P[2][1])
                return
            if base == 'v_writelane_b32':
                wr(P[0]); rd(P[0]); rd(P[1])
                if len(P) > 2 and P[2][0] == 's': self.lanesel.update(P[2][1])
                return
            if base in ('v_nop',):
                return
            wr(P[0])
            k = 1
            if re.match(r'v_(add|sub|subrev|addc|subb|subbrev)_co_u32', base) or base.startswith('v_div_scale') or base.startswith('v_mad_u64_u32') or base.startswith('v_mad_i64_i32'):
                wr(P[1]); k = 2
            for p in P[k:]: rd(p)
            if base.startswith('v_fmac') or base.startswith('v_pk_fmac') or base.startswith('v_dot2c') or self.dpp or base.startswith('v_swap'):
                rd(P[0])
            if base.startswith('v_swap'):
                wr(P[1])
            if base.startswith('v_cndmask') and len(P) == 3:
                self.rs.update(VCC)
            if base.startswith('v_div_fmas'):
                self.rs.update(VCC)
            return
        if op.startswith('buffer_') or op.startswith('global_') or op.startswith('flat_'):
            self.cls = 'vmem'
            allm = ' ' + mods + ' '
            if op in ('buffer_wbl2', 'buffer_inv'):
                return
            if ('_lds_' in op) or (' lds ' in allm):
                self.ldsdma = True
                for p in P: rd(p)
                self.rs.add(M0)
                return
            if '_load_' in op:
                self.isload = True
                wr(P[0])
                for p in P[1:]: rd(p)
                return
            if '_atomic_' in op:
                ret = ' sc0 ' in allm
                if op.startswith('buffer_'):
                    for p in P: rd(p)
                    if ret: wr(P[0]); self.isload = True
                else:
                    if ret:
                        wr(P[0]); self.isload = True
                        for p in P[1:]: rd(p)
                    else:
                        for p in P: rd(p)
                return
            for p in P: rd(p)
            data = P[0] if op.startswith('buffer_') else P[1]
            if len(data[1]) >= 3: self.widestore = set(data[1])
            return
        if op.startswith('ds_'):
            self.cls = 'ds'
            if op.startswith('ds_read') or op.startswith('ds_bpermute') or op.startswith('ds_permute') or op.startswith('ds_swizzle') or '_rtn' in op:
                self.isload = True
                wr(P[0])
                for p in P[1:]: rd(p)
            else:
                for p in P: rd(p)
            return
        if op.startswith('s_'):
            if op == 's_nop':
                self.cls = 'nop'; self.nop = int(ops[0], 0) + 1
                return
            if op.startswith('s_cbranch') or op == 's_branch':
                self.cls = 'branch'; self.target = ops[0]; self.uncond = (op == 's_branch')
                return
            if op == 's_endpgm':
                self.cls = 'branch'; self.uncond = True
                return
            if op.startswith('s_load') or op.startswith('s_buffer_load') or op in ('s_memtime', 's_memrealtime'):
                self.cls = 'smem'; self.isload = True
                wr(P[0])
                for p in P[1:]: rd(p)
                return
            if op in ('s_waitcnt', 's_barrier', 's_setprio', 's_sleep', 's_sendmsg'):
                self.cls = 'other'
                return
            self.cls = 'salu'
            if op.startswith('s_cmp') or op.startswith('s_bitcmp') or op.startswith('s_setreg'):
                for p in P: rd(p)
                return
            wr(P[0])
            for p in P[1:]: rd(p)
            if 'saveexec' in op:
                self.ws.update(EXEC); self.rs.update(EXEC)
            if op.startswith('s_addk') or op.startswith('s_mulk'):
                rd(P[0])
            return
        raise ValueError('unknown instruction: ' + text)

T_OVC = {2: 4, 4: 6, 8: 10, 16: 18}
T_AB = {2: 5, 4: 8, 8: 12, 16: 20}
T_WARC = {2: 1, 4: 3, 8: 7, 16: 15}

def need(P, C):
    n = 0
    if P.cls == 'valu':
        if P.wv:
            if C.cls == 'mfma' and (P.wv & C.rv): n = max(n, 2)
            if C.cls == 'valu':
                if (C.dpp or C.perm) and (P.wv & C.rv): n = max(n, 2)
                if C.rdlane and (P.wv & C.rv): n = max(n, 1)
                if P.trans and not C.trans and (P.wv & C.rv): n = max(n, 1)
                if P.sdwa and (P.wv & (C.rv | C.wv)): n = max(n, 1)
        if P.ws:
            ex = P.ws & set(EXEC)
            if C.cls == 'valu':
                if P.ws & C.rs: n = max(n, 2)
                if P.ws & C.lanesel: n = max(n, 4)
                if ex:
                    if C.dpp: n = max(n, 5)
                    if C.rdlane or C.perm or C.op.startswith('v_writelane'): n = max(n, 4)
                if C.op.startswith('v_div_fmas') and (P.ws & set(VCC)): n = max(n, 4)
            if C.cls == 'vmem' and (P.ws & C.rs): n = max(n, 5)
            if C.cls == 'mfma' and ex: n = max(n, 4)
    elif P.cls == 'mfma':
        D = set(P.D)
        if C.cls == 'mfma':
            if D & set(C.C):
                if C.C == P.D and C.passes == P.passes:
                    n = max(n, 2 if P.passes == 2 else 0)
                else:
                    n = max(n, T_OVC[P.passes])
            if D & (set(C.A) | set(C.B)): n = max(n, T_AB[P.passes])
            if (D & set(C.D)) and not (D & set(C.C)) and C.passes != P.passes:
                n = max(n, T_AB[P.passes])
        elif C.cls in ('valu', 'vmem', 'ds'):
            if D & (C.rv | C.wv): n = max(n, T_AB[P.passes])
            if C.cls == 'valu' and (set(P.C) & C.wv): n = max(n, T_WARC[P.passes])
    elif P.cls == 'vmem':
        if P.widestore and (P.widestore & C.wv):
            n = max(n, 2 if C.cls in ('valu', 'mfma') else 1)
    elif P.cls == 'salu':
        if M0 in P.ws and (C.ldsdma or C.op.startswith('s_movrel') or 'addtid' in C.op): n = max(n, 1)
    return n

MAXW = 20

class Kernel:
    def __init__(self, name):
        self.name = name
        self.ins = []
        self._uid = 0
    def __call__(self, text):
        for ln in text.split('\n'):
            ln = ln.strip()
            if ln and not ln.startswith(';'):
                self.ins.append(Ins(ln))
    def label(self, name):
        self.ins.append(Ins(name + ':'))
    def uid(self, base='L'):
        self._uid += 1
        return f"{base}_{self.name}_{self._uid}"
    def pad(self):
        ins = self.ins
        i = 0
        total = 0
        while i < len(ins):
            C = ins[i]
            if C.cls in ('label', 'dir', 'nop', 'other', 'branch', 'smem'):
                i += 1; continue
            req = self._req(i)
            if req > 0:
                k = req
                news = []
                while k > 0:
                    t = min(k, 16)
                    news.append(Ins(f's_nop {t-1}'))
                    k -= t
                ins[i:i] = news
                total += req
                i += len(news)
                self._branch_index = None
            i += 1
        return total
    def _targets(self):
        if getattr(self, '_branch_index', None) is None:
            d = {}
            for j, I in enumerate(self.ins):
                if I.cls == 'branch' and I.target:
                    d.setdefault(I.target, []).append(j)
            self._branch_index = d
        return self._branch_index
    def _req(self, i):
        ins = self.ins
        C = ins[i]
        best = 0
        timed = getattr(self, 'timed', False)
        stack = [(i - 1, 0, -1)]
        seen = set()
        while stack:
            j, dist, dm = stack.pop()
            while j >= 0 and dist < MAXW:
                if (j, dist, dm) in seen: break
                seen.add((j, dist, dm))
                P = ins[j]
                if P.cls == 'label':
                    for b in self._targets().get(P.label, []):
                        stack.append((b - 1, dist + 1, dm))
                    j -= 1
                    continue
                if P.cls == 'branch' and P.uncond:
                    break
                if P.cls == 'mfma' and timed:
                    if dm >= 0: dist = max(dist, dm + P.passes)
                    dm = dist
                if P.cls in ('valu', 'mfma', 'vmem', 'salu'):
                    n = need(P, C)
                    if n - dist > best: best = n - dist
                dist += P.nop
                j -= 1
        return best
    def lint(self, maxsteps=400000):
        ins = self.ins
        pos = {I.label: k for k, I in enumerate(ins) if I.cls == 'label'}
        vm = []; lg = []
        taken = {}
        warns = set()
        i = 0; steps = 0
        while i < len(ins) and steps < maxsteps:
            steps += 1
            I = ins[i]
            if I.cls in ('label', 'dir'):
                i += 1; continue
            if I.op == 's_waitcnt':
                m = re.search(r'vmcnt\((\d+)\)', I.text)
                if m:
                    n = int(m.group(1))
                    while len(vm) > n: vm.pop(0)
                m = re.search(r'lgkmcnt\((\d+)\)', I.text)
                if m:
                    n = int(m.group(1))
                    if n == 0: lg = []
                    elif not any(x[0] == 's' for x in lg):
                        while len(lg) > n: lg.pop(0)
                i += 1; continue
            usedv = I.rv | I.wv
            useds = I.rs | I.ws
            for (dst, src) in vm:
                if ';poll' in src and not (dst & I.wv): continue
                if dst & usedv and not (I.cls == 'vmem' and I.isload and not (dst & I.rv)):
                    warns.add((i, f'vm pending on {sorted(dst & usedv)[:4]} from [{src}] used by [{I.text}]'))
            for (k, dst, src) in lg:
                if k == 'd' and (dst & usedv) and not (I.cls == 'ds' and I.isload and not (dst & I.rv)):
                    warns.add((i, f'lgkm pending on {sorted(dst & usedv)[:4]} from [{src}] used by [{I.text}]'))
                if k == 's' and (dst & useds):
                    warns.add((i, f'smem pending on s{sorted(dst & useds)[:4]} from [{src}] used by [{I.text}]'))
            if I.cls == 'vmem':
                vm.append((set(I.wv), I.text))
                if len(vm) > 63: warns.add((i, 'vmcnt overflow >63'))
            elif I.cls == 'ds':
                lg.append(('d', set(I.wv), I.text))
            elif I.cls == 'smem':
                lg.append(('s', set(I.ws), I.text))
            if I.cls == 'branch':
                if I.op == 's_endpgm':
                    vm = []; lg = []
                    i += 1; continue
                t = pos.get(I.target)
                if t is not None and t < i and not taken.get(i):
                    taken[i] = True
                    i = t; continue
                if I.uncond and t is not None and t > i:
                    vm = []; lg = []
            i += 1
        return sorted(warns)
    def text(self):
        out = []
        for I in self.ins:
            if I.cls == 'label': out.append(I.text)
            else: out.append('    ' + I.text)
        return '\n'.join(out)
    def count(self):
        return sum(1 for I in self.ins if I.cls not in ('label', 'dir'))

def kernel_block(name, body, vgpr=512, accum=256, sgpr=102):
    return f""".text
.globl {name}
.p2align 8
.type {name},@function
{name}:
{body}
.section .rodata,"a"
.p2align 6
.amdhsa_kernel {name}
  .amdhsa_next_free_vgpr {vgpr}
  .amdhsa_next_free_sgpr {sgpr}
  .amdhsa_accum_offset {accum}
  .amdhsa_group_segment_fixed_size 0
  .amdhsa_kernarg_size 112
  .amdhsa_user_sgpr_count 2
  .amdhsa_user_sgpr_kernarg_segment_ptr 1
  .amdhsa_system_sgpr_workgroup_id_x 1
.end_amdhsa_kernel
"""
```

```python
NAME = "recurrent_scan__memory_aug_recurrent_mem_tr__dense_activation_mish__prompt"
WS_SIZE = 256 << 20
WS_XN   = 0x0000000
WS_Q    = 0x0400000
WS_K    = WS_Q + 8192
WS_VT   = WS_Q + 16384
WS_FM   = WS_Q + 24576
HS = 21; SS = 15
WS_ACT  = 0x4400000
WS_O    = 0x4C00000
WS_SYNC = 0x5C00000
SY_PART = 0x00000
PART_SLOT = 80 * 2048
PART_GRP = 2 * PART_SLOT
SY_MEML = 0x140000
SY_MEMR = 0x200000
SY_FLAG = 0x160000
SY_HINT = 0x170000
FL_G1   = 0x0000
FL_FF   = 0x2000
FL_FM   = 0x2400
FL_O    = 0x3000
FL_END  = 0x4000
DB_TICK, DB_SNAP, DB_INIT, DB_LN, DB_POL = 0, 8, 64, 128, 192
SY_END  = SY_FLAG + FL_END
SPIN_MAX = 100000
```

```python
import sys
from asmlib import *
from cfg import *

S_WG = 2
S_WAVE = 3
S_X = 4
S_T = 5
SRD_WS = 8
SRD_A = 12
SRD_B = 16
SRD_C = 20
SRD_DBG = 24
KA = 64
KA_X, KA_MEM0, KA_WQ, KA_WK, KA_WV, KA_WO, KA_W1, KA_B1, KA_W2, KA_OUT, KA_DBG, KA_WS = 64, 66, 68, 70, 72, 74, 80, 82, 84, 86, 88, 90
V_LANE = 0

def srd(k, dst, ka, size):
    k(f"s_mov_b32 {s(dst)}, {s(ka)}")
    k(f"s_and_b32 {s(dst+1)}, {s(ka+1)}, 0xffff")
    k(f"s_mov_b32 {s(dst+2)}, {size}")
    k(f"s_mov_b32 {s(dst+3)}, 0x20000")

def prologue(k, ngrid=256):
    k(f"""
    s_load_dwordx16 s[64:79], s[0:1], 0
    s_load_dwordx8 s[80:87], s[0:1], 64
    s_load_dwordx4 s[88:91], s[0:1], 96
    v_lshrrev_b32 v1, 6, v0
    v_and_b32 v0, 63, v0
    v_readfirstlane_b32 {s(S_WAVE)}, v1
    s_and_b32 {s(S_X)}, {s(S_WG)}, 7
    s_lshr_b32 {s(S_T)}, {s(S_WG)}, 3
    s_waitcnt lgkmcnt(0)
    """)
    srd(k, SRD_WS, KA_WS, WS_SIZE)
    srd(k, SRD_DBG, KA_DBG, 256)
    k(f"s_cmp_ge_u32 {s(S_WG)}, {ngrid}")
    k(f"s_cbranch_scc1 {k.name}_exit")

STAMPS = True
WS_STAMP = 0x6000000
def stamp(k, idx, vt=254):
    if not STAMPS: return
    k(f"""
    s_memrealtime s[92:93]
    s_lshl_b32 s94, {s(S_WG)}, 10
    s_lshl_b32 s95, {s(S_WAVE)}, 8
    s_add_u32 s94, s94, s95
    s_add_u32 s94, s94, {WS_STAMP + 4*idx}
    s_waitcnt lgkmcnt(0)
    v_mov_b32 {v(vt)}, s92
    buffer_store_dword {v(vt)}, off, {s(SRD_WS,4)}, s94
    s_memtime s[92:93]
    s_waitcnt lgkmcnt(0)
    v_mov_b32 {v(vt+1)}, s92
    buffer_store_dword {v(vt+1)}, off, {s(SRD_WS,4)}, s94 offset:128
    """)

def epilogue(k):
    k.label(f"{k.name}_exit")
    k("s_endpgm")

def xsum_g(k, x, t):
    k(f"v_mov_b32 {v(t)}, {v(x)}")
    k(f"v_permlane32_swap_b32 {v(x)}, {v(t)}")
    k(f"v_add_f32 {v(x)}, {v(x)}, {v(t)}")
    k(f"v_mov_b32 {v(t)}, {v(x)}")
    k(f"v_permlane16_swap_b32 {v(x)}, {v(t)}")
    k(f"v_add_f32 {v(x)}, {v(x)}, {v(t)}")

def rbf(k, x):
    k(f"v_cvt_pk_bf16_f32 {v(x)}, {v(x)}, {v(x)}")
    k(f"v_lshlrev_b32 {v(x)}, 16, {v(x)}")

def role_ln(k, s_tile, fused=False):
    srd(k, SRD_A, KA_X, 2048 * 1280)
    RAW = 16; F = 96
    k(f"""
    v_and_b32 v1, 15, v0
    v_lshrrev_b32 v2, 4, v0
    v_mul_u32_u24 v1, 1280, v1
    v_lshl_add_u32 v1, v2, 4, v1
    s_mul_i32 s30, {s(s_tile)}, 20480
    v_lshlrev_b32 v2, 4, v0
    """)
    for ks in range(20):
        k(f"buffer_load_dwordx4 {v(RAW+4*ks,4)}, v1, {s(SRD_A,4)}, s30 offen offset:{64*ks}")
    k(f"""
    s_lshr_b32 s31, {s(s_tile)}, 1
    s_mul_i32 s31, s31, 40960
    s_and_b32 s32, {s(s_tile)}, 1
    s_lshl_b32 s32, s32, 10
    s_add_u32 s31, s31, s32
    s_add_u32 s31, s31, {WS_XN}
    v_mov_b32 v4, 0
    v_mov_b32 v5, 0
    v_mov_b32 v6, 0
    v_mov_b32 v7, 0
    """)
    for ks in range(20):
        k(f"s_waitcnt vmcnt({19-ks})")
        for j in range(4):
            rr = RAW + 4*ks + j; f = F + 8*ks + 2*j
            k(f"v_lshlrev_b32 {v(f)}, 16, {v(rr)}")
            k(f"v_and_b32 {v(f+1)}, 0xffff0000, {v(rr)}")
        for j in range(4):
            f = F + 8*ks + 2*j
            acc = 4 + 2*(j & 1)
            k(f"v_pk_add_f32 {v(acc,2)}, {v(acc,2)}, {v(f,2)}")
    k("v_pk_add_f32 v[4:5], v[4:5], v[6:7]")
    k("v_add_f32 v4, v4, v5")
    xsum_g(k, 4, 5)
    k(f"v_mul_f32 v4, {float_hex(1.0/640)}, v4")
    k("v_mov_b32 v5, v4")
    k("v_mov_b32 v8, 0\nv_mov_b32 v9, 0\nv_mov_b32 v10, 0\nv_mov_b32 v11, 0")
    for j in range(80):
        f = F + 2*j
        t = 12 + 2*(j & 1)
        acc = 8 + 2*(j & 1)
        k(f"v_pk_add_f32 {v(t,2)}, {v(f,2)}, v[4:5] neg_lo:[0,1] neg_hi:[0,1]")
        k(f"v_pk_fma_f32 {v(acc,2)}, {v(t,2)}, {v(t,2)}, {v(acc,2)}")
    k("v_pk_add_f32 v[8:9], v[8:9], v[10:11]")
    k("v_add_f32 v8, v8, v9")
    xsum_g(k, 8, 9)
    k(f"v_mul_f32 v8, {float_hex(1.0/640)}, v8")
    rbf(k, 8)
    k(f"v_add_f32 v8, {float_hex(1e-5)}, v8")
    rbf(k, 8)
    k("v_sqrt_f32 v8, v8")
    rbf(k, 8)
    k("v_rcp_f32 v8, v8")
    rbf(k, 4)
    k("v_mov_b32 v5, v4")
    k("v_mov_b32 v9, v8")
    for ks in range(20):
        for j in range(4):
            f = F + 8*ks + 2*j; o = RAW + 4*ks + j
            k(f"v_pk_add_f32 {v(f,2)}, {v(f,2)}, v[4:5] neg_lo:[0,1] neg_hi:[0,1]")
            k(f"v_cvt_pk_bf16_f32 {v(o)}, {v(f)}, {v(f+1)}")
            k(f"v_lshlrev_b32 {v(f)}, 16, {v(o)}")
            k(f"v_and_b32 {v(f+1)}, 0xffff0000, {v(o)}")
            k(f"v_pk_mul_f32 {v(f,2)}, {v(f,2)}, v[8:9]")
            k(f"v_cvt_pk_bf16_f32 {v(o)}, {v(f)}, {v(f+1)}")
        if ks % 2 == 0 and ks:
            k("s_add_u32 s31, s31, 4096")
        k(f"buffer_store_dwordx4 {v(RAW+4*ks,4)}, v2, {s(SRD_WS,4)}, s31 offen offset:{2048*(ks%2)} sc1")

import struct
def float_hex(x):
    return hex(struct.unpack('<I', struct.pack('<f', x))[0])

def load_weights(k, pieces, srd_w, v_goff, v_lds, lds_base_s, nslots, s_tmp, group=8):
    n = len(pieces)
    def issue(i):
        (sb, c), _ = pieces[i]
        slot = i % nslots
        k(f"s_add_u32 {s(s_tmp)}, {s(sb)}, {c}")
        k(f"s_add_u32 m0, {s(lds_base_s)}, {slot*1024}")
        k(f"buffer_load_dwordx4 {v(v_goff)}, {s(srd_w,4)}, {s(s_tmp)} offen lds")
    issued = 0
    while issued < min(n, nslots):
        issue(issued); issued += 1
    done = 0
    while done < n:
        g = min(group, n - done)
        k(f"s_waitcnt vmcnt({issued - done - g})")
        for i in range(done, done + g):
            slot = i % nslots
            for (reg, off) in pieces[i][1]:
                k(f"ds_read_b64_tr_b16 {r(reg,2)}, {v(v_lds)} offset:{slot*1024+off}")
        done += g
        if issued < n:
            k("s_waitcnt lgkmcnt(0)")
            for i in range(issued, min(n, issued + g)):
                issue(i)
            issued = min(n, issued + g)
    k("s_waitcnt lgkmcnt(0)")

def wait_dbg(k, ln):
    top = k.uid('dw'); ok = k.uid('dwok')
    k(f"""
    s_cmp_lg_u32 {s(S_WAVE)}, 0
    s_cbranch_scc1 {ok}
    s_mov_b32 s52, 0
    v_mbcnt_lo_u32_b32 v7, -1, 0
    v_mbcnt_hi_u32_b32 v7, -1, v7
    v_lshlrev_b32 v7, 2, v7
    """)
    srd(k, 56, KA_DBG, 256)
    k.label(top)
    k(f"""
    buffer_load_dword v6, v7, s[56:59], 0 offen sc1
    s_waitcnt vmcnt(0)
    v_readlane_b32 s50, v6, {DB_INIT//4}
    v_readlane_b32 s51, v6, {DB_LN//4}
    s_lshl_b32 s51, s51, 16
    s_or_b32 s51, s51, s50
    s_cmp_eq_u32 {'s51' if ln else 's50'}, {(128 << 16) + 256 if ln else 256}
    s_cbranch_scc1 {ok}
    s_add_u32 s52, s52, 1
    s_cmp_gt_u32 s52, {SPIN_MAX}
    s_cbranch_scc1 {ok}
    s_sleep 2
    s_branch {top}
    """)
    k.label(ok)

G1_ACC = 16; G1_X = 48; G1_PK = 80; G1_BIAS = 96; G1_T = 112
def g1_wreg(ks, blk, t):
    f = (ks * 2 + blk) * 2 + t
    return 256 + 4 * f if f < 64 else 192 + 4 * (f - 64)

def role_gemm1(k, fused=False):
    L = k.uid
    l_ffn = L('g1ffn'); l_common = L('g1common'); l_done = L('g1done'); l_fin = L('g1fin')
    k(f"s_cmp_ge_u32 {s(S_T)}, 31")
    k(f"s_cbranch_scc1 {l_done}")
    k(f"s_sub_u32 s33, {s(S_X)}, 2")
    k(f"s_cmp_ge_u32 {s(S_T)}, 24")
    k(f"s_cbranch_scc1 {l_ffn}")
    k(f"""
    s_mul_i32 s34, {s(S_T)}, 43
    s_lshr_b32 s34, s34, 7          ; t/3
    s_mul_i32 s35, s34, 3
    s_sub_u32 s26, {s(S_T)}, s35    ; replica
    s_mov_b32 s27, 3
    s_lshl_b32 s35, s33, 3
    s_add_u32 s34, s34, s35         ; slice 0..47
    s_lshr_b32 s28, s34, 4          ; kind
    s_and_b32 s34, s34, 15
    s_lshl_b32 s34, s34, 2
    s_add_u32 s34, s34, {s(S_WAVE)}
    s_lshl_b32 s30, s34, 7
    s_mov_b32 s29, 8192
    s_lshr_b32 s31, s34, 1
    s_lshl_b32 s31, s31, {HS}
    s_and_b32 s35, s34, 1
    s_lshl_b32 s35, s35, 12
    s_add_u32 s31, s31, s35
    s_lshl_b32 s35, s28, 13
    s_add_u32 s31, s31, s35
    s_add_u32 s31, s31, {WS_Q}
    s_mov_b32 s32, {1 << SS}
    s_add_u32 s35, s28, 2
    s_cmp_ge_u32 s35, 3
    s_cselect_b32 s49, 3, 0
    s_sub_u32 s35, s35, s49         ; K0 V1 Q2
    s_mul_i32 s35, s35, 3
    s_add_u32 s35, s35, s26
    s_lshl_b32 s35, s35, 3
    s_and_b32 s49, s34, 1
    s_lshl_b32 s49, s49, 2
    s_add_u32 s35, s35, s49
    s_lshr_b32 s49, s34, 1
    s_lshl_b32 s49, s49, 8
    s_add_u32 s49, s49, s35
    s_add_u32 s49, s49, {WS_SYNC+SY_FLAG+FL_G1}
    s_cmp_eq_u32 s28, 0
    s_cselect_b32 {s(SRD_A)}, {s(KA_WQ)}, {s(KA_WK)}
    s_cselect_b32 {s(SRD_A+1)}, {s(KA_WQ+1)}, {s(KA_WK+1)}
    s_cmp_eq_u32 s28, 2
    s_cselect_b32 {s(SRD_A)}, {s(KA_WV)}, {s(SRD_A)}
    s_cselect_b32 {s(SRD_A+1)}, {s(KA_WV+1)}, {s(SRD_A+1)}
    s_and_b32 {s(SRD_A+1)}, {s(SRD_A+1)}, 0xffff
    s_mov_b32 {s(SRD_A+2)}, {640*8192}
    s_mov_b32 {s(SRD_A+3)}, 0x20000
    s_branch {l_common}
    """)
    k.label(l_ffn)
    k(f"""
    s_mov_b32 s26, s33
    s_mov_b32 s27, 6
    s_mov_b32 s28, 3
    s_sub_u32 s34, {s(S_T)}, 24
    s_lshl_b32 s34, s34, 2
    s_add_u32 s34, s34, {s(S_WAVE)}
    s_lshl_b32 s49, s33, 5
    s_add_u32 s49, s49, s34
    s_lshl_b32 s49, s49, 2
    s_add_u32 s49, s49, {WS_SYNC+SY_FLAG+FL_FF}
    s_min_u32 s34, s34, 26
    s_lshl_b32 s30, s34, 7
    s_mov_b32 s29, 3456
    s_lshl_b32 s31, s34, 11
    s_add_u32 s31, s31, {WS_ACT}
    s_mov_b32 s32, {108*1024}
    """)
    srd(k, SRD_A, KA_W1, 640 * 3456)
    k.label(l_common)
    srd(k, SRD_B, KA_B1, 3456)
    stamp(k, 0, 6)
    k(f"""
    v_lshrrev_b32 v1, 4, v0
    v_bfe_u32 v2, v0, 2, 2
    v_lshl_add_u32 v2, v1, 3, v2
    v_mul_lo_u32 v2, v2, s29
    v_and_b32 v3, 3, v0
    v_lshl_add_u32 v2, v3, 4, v2
    s_mul_i32 s36, {s(S_WAVE)}, 40960
    v_lshlrev_b32 v3, 4, v0              ; v3 = lane*16
    v_add_u32 v4, s36, v3
    v_lshlrev_b32 v5, 4, v1
    buffer_load_dwordx4 v[8:11], v5, {s(SRD_B,4)}, s30 offen
    buffer_load_dwordx4 v[12:15], v5, {s(SRD_B,4)}, s30 offen offset:64
    s_waitcnt vmcnt(0)
    """)
    for blk in range(2):
        for j in range(4):
            k(f"v_lshlrev_b32 {v(G1_BIAS+8*blk+2*j)}, 16, {v(8+4*blk+j)}")
            k(f"v_and_b32 {v(G1_BIAS+8*blk+2*j+1)}, 0xffff0000, {v(8+4*blk+j)}")
    k("s_lshl_b32 s38, s29, 2")
    k("s_mul_i32 s39, s29, 28")
    k("s_mov_b32 s37, s30")
    pieces = []
    for ks in range(20):
        for u in range(2):
            for blk in range(2):
                pieces.append((ks, u, blk))
    nsl = 40
    def issue(i):
        ks, u, blk = pieces[i]
        if blk == 0 and i > 0:
            k(f"s_add_u32 s37, s37, {'s38' if u == 1 else 's39'}")
        k(f"s_add_u32 m0, s36, {(i % nsl)*1024 - 64*blk}")
        k(f"buffer_load_dwordx4 v2, {s(SRD_A,4)}, s37 offen offset:{64*blk} lds")
    issued = 0
    for i in range(nsl): issue(i)
    issued = nsl; done = 0
    while done < 80:
        k(f"s_waitcnt vmcnt({issued - done - 8})")
        for i in range(done, done + 8):
            ks, u, blk = pieces[i]
            for t in range(2):
                k(f"ds_read_b64_tr_b16 {r(g1_wreg(ks,blk,t)+2*u,2)}, v4 offset:{(i%nsl)*1024+8*t}")
        done += 8
        if issued < 80:
            k("s_waitcnt lgkmcnt(0)")
            for i in range(issued, issued + 8): issue(i)
            issued += 8
    k("s_waitcnt lgkmcnt(0)")
    stamp(k, 1, 6)
    if fused: wait_dbg(k, ln=True)
    k("s_barrier")
    def dma_xn(s_seg, s_slot):
        k(f"s_min_u32 s44, {s(s_seg)}, 63")
        k(f"s_mul_i32 s44, s44, 40960")
        k(f"s_add_u32 s44, s44, s45")
        k(f"s_add_u32 m0, {s(s_slot)}, s46")
        for i in range(10):
            if i in (4, 8):
                k("s_add_u32 s44, s44, 4096")
                k("s_add_u32 m0, m0, 4096")
            k(f"buffer_load_dwordx4 v3, {s(SRD_WS,4)}, s44 offen offset:{1024*(i%4)} sc1 lds")
    k(f"""
    s_mul_i32 s46, {s(S_WAVE)}, 10240
    s_add_u32 s45, s46, {WS_XN}
    s_mov_b32 s40, s26
    s_mov_b32 s41, 0
    s_mov_b32 s43, 40960
    s_add_u32 s42, s26, s27
    """)
    dma_xn(40, 41)
    dma_xn(42, 43)
    k("s_add_u32 s42, s42, s27")
    k("s_mov_b32 s43, 81920")
    k("s_waitcnt vmcnt(10)")
    loops = {}
    for kind in ('qk', 'v', 'ffn'):
        loops[kind] = L('g1loop_' + kind)
    k("s_cmp_eq_u32 s28, 2")
    k(f"s_cbranch_scc1 {loops['v']}")
    k("s_cmp_eq_u32 s28, 3")
    k(f"s_cbranch_scc1 {loops['ffn']}")
    for kind in ('qk', 'v', 'ffn'):
        k.label(loops[kind])
        k("s_barrier")
        dma_xn(42, 43)
        k("v_add_u32 v5, s41, v3")
        NB = 4
        def rd(ks):
            for tt in range(2):
                k(f"ds_read_b128 {v(G1_X + 8*(ks % NB) + 4*tt, 4)}, v5 offset:{ks*2048 + tt*1024}")
        for ks in range(NB - 1): rd(ks)
        for ks in range(20):
            if ks + NB - 1 < 20:
                rd(ks + NB - 1)
                k(f"s_waitcnt lgkmcnt({2*(NB-1)})")
            else:
                k(f"s_waitcnt lgkmcnt({2*(19-ks)})")
            for blk in range(2):
                for t in range(2):
                    for tt in range(2):
                        acc = G1_ACC + 4 * ((blk * 2 + t) * 2 + tt)
                        w = r(g1_wreg(ks, blk, t), 4)
                        x = v(G1_X + 8*(ks % NB) + 4*tt, 4)
                        if ks == 0:
                            c = v(G1_BIAS + 8*blk + 4*t, 4) if kind == 'ffn' else '0'
                        else:
                            c = v(acc, 4)
                        if kind == 'v':
                            k(f"v_mfma_f32_16x16x32_bf16 {v(acc,4)}, {x}, {w}, {c}")
                        else:
                            k(f"v_mfma_f32_16x16x32_bf16 {v(acc,4)}, {w}, {x}, {c}")
        k("s_mul_i32 s47, s40, s32")
        k("s_add_u32 s47, s47, s31")
        if kind == 'ffn':
            k(f"s_add_u32 s48, s47, {54*1024}")
            LOG2E = float_hex(1.4426950408889634)
            for i in range(32):
                h = G1_ACC + i; t0 = G1_T + 2*i; t1 = t0 + 1
                k(f"v_mul_f32 {v(t0)}, {LOG2E}, {v(h)}")
                k(f"v_min_f32 {v(t0)}, {float_hex(30.0)}, {v(t0)}")
                k(f"v_exp_f32 {v(t0)}, {v(t0)}")
            for i in range(32):
                h = G1_ACC + i; t0 = G1_T + 2*i; t1 = t0 + 1
                k(f"v_add_f32 {v(t1)}, 2.0, {v(t0)}")
                k(f"v_mul_f32 {v(t0)}, {v(t0)}, {v(t1)}")
                k(f"v_add_f32 {v(t1)}, 2.0, {v(t0)}")
                k(f"v_rcp_f32 {v(t1)}, {v(t1)}")
                k(f"v_mul_f32 {v(h)}, {v(h)}, {v(t0)}")
            for i in range(32):
                h = G1_ACC + i; t1 = G1_T + 2*i + 1
                k(f"v_mul_f32 {v(h)}, {v(h)}, {v(t1)}")
        for blk in range(2):
            for o in range(2):
                pk = G1_PK + 4 * (blk * 2 + o)
                for i2 in range(2):
                    if kind == 'v':
                        acc = G1_ACC + 4 * ((blk * 2 + o) * 2 + i2)
                    else:
                        acc = G1_ACC + 4 * ((blk * 2 + i2) * 2 + o)
                    k(f"v_cvt_pk_bf16_f32 {v(pk+2*i2)}, {v(acc)}, {v(acc+1)}")
                    k(f"v_cvt_pk_bf16_f32 {v(pk+2*i2+1)}, {v(acc+2)}, {v(acc+3)}")
                if kind == 'ffn':
                    k(f"buffer_store_dwordx4 {v(pk,4)}, v3, {s(SRD_WS,4)}, {'s47' if o == 0 else 's48'} offen offset:{1024*blk} sc1")
                else:
                    k(f"buffer_store_dwordx4 {v(pk,4)}, v3, {s(SRD_WS,4)}, s47 offen offset:{(blk*2+o)*1024} sc1")
        if fused: k("v_mov_b32 v6, s40")
        k(f"""
        s_add_u32 s40, s40, s27
        s_add_u32 s42, s42, s27
        s_mov_b32 s43, s41
        s_add_u32 s41, s41, 40960
        s_cmp_eq_u32 s41, {3*40960}
        s_cselect_b32 s41, 0, s41
        s_cmp_lt_u32 s40, 64
        s_waitcnt vmcnt(14)
        """)
        if fused and kind != 'ffn': k(f"buffer_store_dword v6, off, {s(SRD_WS,4)}, s49 sc1")
        k(f"s_cbranch_scc1 {loops[kind]}")
        k(f"s_branch {l_fin}")
    k.label(l_fin)
    if fused:
        k("v_mov_b32 v6, 64")
        k("s_waitcnt vmcnt(0)")
        k(f"buffer_store_dword v6, off, {s(SRD_WS,4)}, s49 sc1")
    k.label(l_done)
    stamp(k, 2, 6)

def build_dev():
    kernels = []
    k = Kernel("ln_kernel"); prologue(k)
    k(f"s_cmp_lt_u32 {s(S_X)}, 2")
    k(f"s_cbranch_scc1 {k.name}_exit")
    k(f"s_cmp_lg_u32 {s(S_WAVE)}, 0")
    k(f"s_cbranch_scc1 {k.name}_exit")
    k(f"s_sub_u32 s6, {s(S_X)}, 2")
    k(f"s_mul_i32 s7, {s(S_T)}, 6")
    k(f"s_add_u32 s6, s6, s7")
    k(f"s_cmp_ge_u32 s6, 128")
    k(f"s_cbranch_scc1 {k.name}_exit")
    role_ln(k, 6)
    epilogue(k); kernels.append(k)
    k = Kernel("g1_kernel"); prologue(k)
    k(f"s_cmp_lt_u32 {s(S_X)}, 2")
    k(f"s_cbranch_scc1 g1_idle")
    role_gemm1(k)
    k(f"s_branch {k.name}_exit")
    k.label("g1_idle")
    stamp(k, 0, 6)
    for part in (1, 2):
        k("s_mov_b32 s30, 0")
        k.label(f"g1_idle_l{part}")
        k("s_nop 15\ns_nop 15\ns_add_u32 s30, s30, 1\ns_cmp_lt_u32 s30, 300")
        k(f"s_cbranch_scc1 g1_idle_l{part}")
        stamp(k, part, 6)
    epilogue(k); kernels.append(k)
    return kernels

def emit(kernels, path):
    hdr = ""
    for k in kernels:
        hdr += f"; @launch kernel={k.name} grid=(256,1,1) block=(256,1,1) lds=163840\n"
    hdr += '.amdgcn_target "amdgcn-amd-amdhsa--gfx950"\n'
    body = ""
    for k in kernels:
        n = k.pad()
        w = k.lint()
        print(f"{k.name}: {k.count()} instrs, {n} pad states, {len(w)} lint warnings")
        for x in w[:6]: print("   LINT", str(x)[:200])
        body += kernel_block(k.name, k.text())
    open(path, 'w').write(hdr + body)

if __name__ == '__main__':
    emit(build_dev(), sys.argv[1] if len(sys.argv) > 1 else 'dev.s')
```

```python
import sys, math
from gen import *

LK, LL, LR, LW, LWS = 0, 8192, 12288, 16384, 36864
ACC = 16; A = 40; PP = 60; WB = 96
AQ, AK, AV = ACC, ACC + 8, ACC + 16
SRD_WO = 96
V16, VIDX, VFW, V8, VOW, VPS, VPL, VPUB, VLW, VC0, VQ, VSEL, VDUM = 0, 1, 2, 3, 4, 5, 6, 7, 8, 9, 13, 14, 15

LGRP = [('L', 0, 1), ('L', 0, 2), ('L', 1, 2), ('L', 2, 2), ('L', 3, 2), ('L', 4, 2), ('R', 0, 1), ('R', 0, 0), ('O', 4)]
WLDS = {}
for gi, g in enumerate(LGRP):
    for t in range(2): WLDS[g + (t,)] = gi * 4096 + t * 2048
WREG = {}
for key in [(l, i, m, t) for l in 'LR' for i in range(5) for m in range(3) for t in range(2)] + [('O', j, ke) for j in range(5) for ke in range(2)]:
    if key not in WLDS: WREG[key] = WB + 8 * len(WREG)
assert len(WREG) == 52
WS_ST2 = 0x7000000

def delay(k, n):
    n = n // 4
    while n > 0:
        t = min(n, 16); k(f"s_nop {t-1}"); n -= t

def role_team(k, P, fused=False):
    b = S_X; h = S_T; w = S_WAVE
    lst = P.get('lst', '')
    last = k.uid('last')
    srd(k, SRD_A, KA_WQ, 640 * 8192); srd(k, SRD_B, KA_WK, 640 * 8192); srd(k, SRD_C, KA_WV, 640 * 8192)
    srd(k, SRD_WO, KA_WO, 4096 * 1280)
    SR = [SRD_A, SRD_B, SRD_C]
    stamp(k, 0, 20)
    k(f"""
    v_lshrrev_b32 v16, 4, v0            ; g
    v_and_b32 v17, 15, v0               ; n
    v_bfe_u32 v18, v0, 1, 1
    v_mov_b32 {v(VIDX)}, 0x4444
    v_mul_u32_u24 v18, 0xaaaa, v18
    v_add_u32 {v(VIDX)}, {v(VIDX)}, v18
    s_lshl_b32 s35, {s(w)}, 10
    v_lshlrev_b32 {v(VFW)}, 5, v17
    v_lshl_add_u32 {v(VFW)}, v16, 3, {v(VFW)}
    v_add_u32 {v(VFW)}, s35, {v(VFW)}
    v_lshlrev_b32 {v(V8)}, 3, v0
    v_lshrrev_b32 v18, 1, v16
    v_lshlrev_b32 {v(VOW)}, 8, v18
    v_and_b32 v18, 1, v16
    v_lshl_add_u32 {v(VOW)}, v18, 5, {v(VOW)}
    v_lshrrev_b32 v18, 2, v17
    v_lshl_add_u32 {v(VOW)}, v18, 6, {v(VOW)}
    v_and_b32 v18, 1, v17
    v_lshl_add_u32 {v(VOW)}, v18, 4, {v(VOW)}
    v_bfe_u32 v18, v17, 1, 1
    v_xor_b32 v18, 1, v18
    v_lshl_add_u32 {v(VOW)}, v18, 11, {v(VOW)}
    s_lshl_b32 s36, {s(w)}, 9
    v_add_u32 {v(VOW)}, s36, {v(VOW)}
    v_lshlrev_b32 {v(VPS)}, 11, v16
    v_lshl_add_u32 {v(VPS)}, v17, 2, {v(VPS)}
    v_and_b32 v18, 3, v17
    v_lshl_add_u32 v18, v16, 2, v18
    v_lshlrev_b32 {v(VPL)}, 6, v18
    v_lshrrev_b32 v18, 2, v17
    v_lshl_add_u32 {v(VPL)}, v18, 4, {v(VPL)}
    v_lshrrev_b32 v18, 1, v16
    v_lshlrev_b32 {v(VPUB)}, 5, v18
    v_and_b32 v18, 1, v16
    v_lshl_add_u32 {v(VPUB)}, v18, 3, {v(VPUB)}
    v_bfe_u32 v19, v17, 2, 1
    v_lshl_add_u32 {v(VPUB)}, v19, 4, {v(VPUB)}
    v_and_b32 v18, 3, v17
    v_lshl_add_u32 {v(VPUB)}, v18, 1, {v(VPUB)}
    v_lshlrev_b32 v18, 4, v19
    v_mov_b32 {v(VSEL)}, 0x3c00
    v_lshlrev_b32 {v(VSEL)}, v18, {v(VSEL)}
    v_lshrrev_b32 v18, 1, v16
    v_lshlrev_b32 v20, 4, v18
    v_and_b32 v18, 1, v16
    v_lshl_add_u32 v20, v18, 2, v20
    v_bfe_u32 v18, v17, 2, 1
    v_add_u32 v20, v20, v18
    v_lshrrev_b32 v18, 3, v17
    v_lshl_add_u32 v20, v18, 3, v20
    v_lshlrev_b32 v20, 13, v20
    v_and_b32 v18, 3, v17
    v_lshl_add_u32 v20, v18, 4, v20
    v_lshrrev_b32 v18, 5, v0
    v_lshlrev_b32 v21, 1, v18
    v_bfe_u32 v18, v0, 4, 1
    v_lshl_add_u32 v21, v18, 4, v21
    v_bfe_u32 v18, v0, 3, 1
    v_lshl_add_u32 v21, v18, 2, v21
    v_bfe_u32 v18, v0, 1, 1
    v_add_u32 v21, v21, v18
    v_bfe_u32 v18, v0, 2, 1
    v_lshl_add_u32 v21, v18, 3, v21
    v_mul_u32_u24 v21, 1280, v21
    v_and_b32 v18, 1, v0
    v_lshl_add_u32 v21, v18, 4, v21
    v_mul_u32_u24 v22, 1280, v19
    v_and_b32 v18, 3, v17
    v_lshl_add_u32 v18, v16, 2, v18
    v_lshl_add_u32 v22, v18, 1, v22
    v_lshlrev_b32 {v(V16)}, 4, v0
    s_mul_i32 s37, {s(w)}, {LWS}
    s_add_u32 s37, s37, {LW}
    v_add_u32 {v(VLW)}, s37, {v(V16)}
    v_add_u32 v23, s37, {v(V8)}
    v_add_u32 {v(VC0)}, s35, {v(V16)}
    v_lshrrev_b32 {v(VQ)}, 2, {v(VC0)}
    v_xor_b32 {v(VC0+1)}, 0x400, {v(VC0)}
    v_xor_b32 {v(VC0+2)}, 0x800, {v(VC0)}
    v_xor_b32 {v(VC0+3)}, 0xc00, {v(VC0)}
    """)
    k(f"""
    s_lshl_b32 s38, {s(h)}, 8
    s_lshl_b32 s39, {s(w)}, 6
    s_add_u32 s38, s38, s39
    s_mul_i32 s39, {s(b)}, {5*64*8192}
    s_add_u32 s50, s38, s39
    s_sub_u32 s39, {5*64*8192}, s39
    s_add_u32 s51, s38, s39
    """)
    for i in range(5):
        if i == 1:
            k(f"s_mov_b32 s39, {4*64*8192}")
        else:
            x = 0 if i == 0 else i - 1
            k(f"s_xor_b32 s39, {s(w)}, {x}")
            k(f"s_lshl_b32 s39, s39, 19")
        k(f"s_add_u32 s{40+i}, s50, s39")
        k(f"s_add_u32 s{45+i}, s51, s39")
    k(f"""
    s_mul_i32 s52, {s(h)}, 163840
    s_mul_i32 s39, {s(b)}, 640
    s_add_u32 s52, s52, s39
    s_lshl_b32 s39, {s(w)}, 5
    s_add_u32 s52, s52, s39
    """)
    k(f"""
    s_mul_i32 s39, {s(b)}, {PART_GRP}
    s_add_u32 s39, s39, {WS_SYNC+SY_PART}
    s_lshl_b32 s100, {s(h)}, 6
    s_lshl_b32 s101, {s(w)}, 13
    s_add_u32 s100, s100, s101
    s_add_u32 s100, s100, s39
    s_lshl_b32 s28, {s(w)}, 5
    s_add_u32 s28, s28, {s(h)}           ; rho
    s_lshl_b32 s101, s28, 11
    s_add_u32 s101, s101, s39
    s_lshl_b32 s39, {s(b)}, 15
    s_add_u32 s29, s39, {WS_SYNC+SY_MEML}
    s_lshl_b32 s39, {s(b)}, 20
    s_add_u32 s30, s39, {WS_SYNC+SY_MEMR+8192*P.get('pol',0)}
    s_xor_b32 s39, s39, 0x100000
    s_add_u32 s31, s39, {WS_SYNC+SY_MEMR+8192*P.get('pol',0)}
    s_lshl_b32 s32, s28, 6
    s_lshl_b32 s39, {s(h)}, {HS}
    s_add_u32 s53, s39, {WS_K}
    s_lshl_b32 s54, {s(w)}, 11
    s_add_u32 s54, s54, s39
    s_add_u32 s54, s54, {WS_VT}
    s_add_u32 s55, s39, {WS_FM - (1 << SS)}
    s_mov_b32 s56, 0x11111111
    s_mov_b32 s57, 0x11111111
    s_mov_b32 s58, 0x22222222
    s_mov_b32 s59, 0x22222222
    s_mov_b32 s60, 0x44444444
    s_mov_b32 s61, 0x44444444
    s_mov_b32 s62, 0x88888888
    s_mov_b32 s63, 0x88888888
    s_mov_b32 s6, 0x00550055
    s_mov_b32 s7, 0x00550055
    """)
    nopub = k.uid('nopub')
    k(f"""
    s_cmp_ge_u32 s28, 80
    s_cbranch_scc1 {nopub}
    s_mov_b32 s92, {s(KA_MEM0)}
    s_and_b32 s93, {s(KA_MEM0+1)}, 0xffff
    s_mov_b32 s94, 10240
    s_mov_b32 s95, 0x20000
    s_and_b32 s39, s28, 3
    s_mul_i32 s39, s39, 2560             ; g*2 rows
    s_lshr_b32 s38, s28, 2
    s_lshl_b32 s38, s38, 5               ; T*16 cols*2B
    s_add_u32 s39, s39, s38
    s_mul_i32 s38, {s(b)}, 640
    s_add_u32 s39, s39, s38
    s_mov_b64 exec, s[6:7]
    buffer_load_dword v24, v22, s[92:95], s39 offen
    s_mov_b64 exec, -1
    s_add_u32 s38, s32, s29
    s_add_u32 s39, s32, s30
    """)
    if fused:
        k(f"""
        v_mov_b32 v28, -1
        v_mov_b32 v29, -1
        v_mov_b32 v30, -1
        v_mov_b32 v31, -1
        v_lshrrev_b32 v25, 6, {v(V16)}      ; lane>>2
        v_and_b32 v26, 48, {v(V16)}
        v_lshl_add_u32 v25, v25, 13, v26
        s_add_u32 s34, s101, {PART_SLOT}
        buffer_store_dwordx4 v[28:31], {v(V16)}, {s(SRD_WS,4)}, s101 offen sc1
        buffer_store_dwordx4 v[28:31], {v(V16)}, {s(SRD_WS,4)}, s101 offen offset:1024 sc1
        buffer_store_dwordx4 v[28:31], {v(V16)}, {s(SRD_WS,4)}, s34 offen sc1
        buffer_store_dwordx4 v[28:31], {v(V16)}, {s(SRD_WS,4)}, s34 offen offset:1024 sc1
        s_mov_b64 exec, 0xfff0
        buffer_store_dwordx4 v[28:31], v25, {s(SRD_WS,4)}, s38 offen sc1
        s_mov_b32 exec_lo, 0xffffff00
        s_mov_b32 exec_hi, -1
        buffer_store_dwordx4 v[28:31], v25, {s(SRD_WS,4)}, s39 offen sc1
        s_mov_b64 exec, -1
        s_mov_b32 s34, s39
        """)
        for i in range(7):
            k(f"s_add_u32 s34, s34, {16*8192}")
            k(f"buffer_store_dwordx4 v[28:31], v25, {s(SRD_WS,4)}, s34 offen sc1")
    k(f"""
    s_xor_b32 s34, s39, 8192
    s_waitcnt vmcnt({13 if fused else 0})
    s_mov_b64 exec, s[6:7]
    v_min_u32 v24, 0xfffffffe, v24
    buffer_store_dword v24, {v(VPUB)}, {s(SRD_WS,4)}, s39 offen sc1
    buffer_store_dword v24, {v(VPUB)}, {s(SRD_WS,4)}, s34 offen sc1
    buffer_store_dword v24, {v(VPUB)}, {s(SRD_WS,4)}, s38 offen sc1
    s_mov_b64 exec, -1
    """)
    k.label(nopub)
    pieces = []
    def grp_pieces(g, d0, d1):
        if g[0] == 'O':
            j = g[1]
            for ke, d in ((0, d0), (1, d1)):
                for u in range(2):
                    pieces.append((SRD_WO, 52, (64*ke + 32*u) * 1280 + j * 128, 21, [(d + 4*u, 23, 0), (d + 4*u + 2, 23, 512)]))
        else:
            loc, i, m = g
            sb = (40 if loc == 'L' else 45) + i
            for u in range(2):
                for vv in range(2):
                    pieces.append((SR[m], sb, (32*u + 2*vv) * 8192, 20, [(d0 + 4*u + 2*vv, VLW, 0), (d1 + 4*u + 2*vv, VLW, 8)]))
    allg = [(l, i, m) for l in 'LR' for i in range(5) for m in range(3)] + [('O', j) for j in range(5)]
    for g in allg:
        if g not in LGRP: grp_pieces(g, WREG[g + (0,)], WREG[g + (1,)])
    nreg = len(pieces)
    pad = (-nreg) % 36
    for g in LGRP: grp_pieces(g, PP, PP + 8)
    NS = 36
    slot = lambda i: (i + pad) % NS
    def issue(i):
        sr, sb, c, vg, _ = pieces[i]
        k(f"s_add_u32 s39, s{sb}, {c}")
        k(f"s_add_u32 m0, s37, {slot(i)*1024}")
        k(f"buffer_load_dwordx4 {v(vg)}, {s(sr,4)}, s39 offen lds")
    n = len(pieces)
    for i in range(NS): issue(i)
    issued = NS; done = 0; G = 4
    while done < n:
        k(f"s_waitcnt vmcnt({issued - done - G})")
        if fused and done == 0:
            k(f"""
            s_barrier
            s_cmp_eq_u32 {s(w)}, 0
            s_cselect_b32 exec_lo, 1, 0
            s_mov_b32 exec_hi, 0
            v_mov_b32 v24, 1
            buffer_atomic_add v24, off, {s(SRD_DBG,4)}, 0 offset:{DB_INIT} sc1
            s_mov_b64 exec, -1
            """)
        for i in range(done, done + G):
            for (reg, va, off) in pieces[i][4]:
                k(f"ds_read_b64_tr_b16 {r(reg,2)}, {v(va)} offset:{slot(i)*1024+off}")
        if issued < n or done >= nreg:
            k("s_waitcnt lgkmcnt(0)")
        if issued < n:
            for i in range(issued, issued + G): issue(i)
            issued += G
        if done >= nreg:
            for q in range(4):
                k(f"ds_write_b128 {v(VLW)}, {v(PP + 4*q, 4)} offset:{slot(done+q)*1024}")
            k("s_waitcnt lgkmcnt(0)")
        done += G
    stamp(k, 1, 20)
    cold = []
    ns = P.get('nosync')
    pend = []
    def lwait(tag):
        if tag not in pend: return
        idx = max(i for i, t in enumerate(pend) if t == tag)
        k(f"s_waitcnt lgkmcnt({min(len(pend) - idx - 1, 15)})")
        del pend[:idx+1]
    def wl(key, reg):
        k(f"ds_read_b128 {v(reg,4)}, {v(VLW)} offset:{WLDS[key]}")
        k(f"ds_read_b128 {v(reg+4,4)}, {v(VLW)} offset:{WLDS[key]+1024}")
        pend.extend([key, key])
    def smf(acc, areg, breg):
        k(f"v_smfmac_f32_16x16x64_bf16 {v(acc,4)}, {v(areg,4)}, {r(breg,8)}, {v(VIDX)}")
    def kx_dma():
        k(f"s_mov_b32 m0, {LK}")
        for i in range(8):
            if i == 4:
                k("s_add_u32 s39, s53, 4096")
                k(f"s_mov_b32 m0, {LK+4096}")
            k(f"buffer_load_dwordx4 {v(V16)}, {s(SRD_WS,4)}, {'s53' if i < 4 else 's39'} offen offset:{1024*(i%4)} sc1 lds")
    def poll_local():
        k(f"buffer_load_dwordx4 {v(A,4)}, {v(VC0)}, {s(SRD_WS,4)}, s35 offen sc1 ;poll")
        k(f"buffer_load_dword {v(A+4)}, {v(VQ)}, {s(SRD_WS,4)}, s36 offen sc1 ;poll")
    def poll_r0(sc='sc1'):
        k(f"buffer_load_dwordx4 {v(A+12,4)}, {v(VC0)}, {s(SRD_WS,4)}, s40 offen {sc} ;poll")
    def poll_r4(sc='sc1'):
        k(f"buffer_load_dword {v(A+16)}, {v(VQ)}, {s(SRD_WS,4)}, s41 offen {sc} ;poll")
    def poll_rr(): poll_r0(); poll_r4()
    rsc = P.get('rsc', 'sc1')
    def set_slots():
        return f"""s_lshl_b32 s19, s33, 13
        s_and_b32 s42, s19, 0x6000
        s_lshl_b32 s19, s33, 14
        s_add_u32 s35, s42, s29
        s_add_u32 s36, s35, 4096
        s_add_u32 s40, s19, s31
        s_add_u32 s41, s40, 4096""".split('\n')
    def cmpsent(x): return f"v_cmp_{'f' if ns else 'eq'}_u32 vcc, -1, {v(x)}"
    def chk(regs):
        out = []; T = VDUM; regs = list(regs)
        if len(regs) == 1: return [cmpsent(regs[0])]
        cur = regs.pop(0)
        while regs:
            if len(regs) >= 2:
                out.append(f"v_max3_u32 {v(T)}, {v(cur)}, {v(regs[0])}, {v(regs[1])}"); regs = regs[2:]
            else:
                out.append(f"v_max_u32 {v(T)}, {v(cur)}, {v(regs[0])}"); regs = []
            cur = T
        out.append(cmpsent(T))
        return out
    def retry(regs, reissue, waits, cnt, post=None):
        c = k.uid('cold'); back = k.uid('back')
        k(f"s_cbranch_vccnz {c}")
        k.label(back)
        def body():
            k.label(c)
            reissue()
            k(f"s_add_u32 s{cnt}, s{cnt}, 1")
            k(f"s_cmp_gt_u32 s{cnt}, {P.get('bound', 20000)}")
            k(f"s_cbranch_scc1 {last}")
            k(f"s_waitcnt {waits} lgkmcnt(0)")
            if post: post()
            for x in chk(regs): k(x)
            k(f"s_cbranch_vccnz {c}")
            k(f"s_branch {back}")
        cold.append(body)
    def tick(i):
        if P.get('tick'):
            k(f"s_memtime s[{64+2*i}:{65+2*i}]")
    def zero(base, n):
        return [f"v_mov_b64 {v(base+i,2)}, 0" for i in range(0, n, 2)] if P.get('mov64', True) else [f"v_mov_b32 {v(base+i)}, 0" for i in range(n)]
    RING = [PP, PP + 8, PP + 16, PP + 24]
    def ring_pre():
        for q, key in enumerate([('L', 0, 1, 0), ('L', 0, 1, 1), ('L', 0, 2, 0), ('L', 0, 2, 1)]): wl(key, RING[q])
    WARM = f"v_mov_b32 {v(V8)}, {v(V8)}"
    def warm():
        if P.get('warm', True): k(WARM)
    if fused:
        top = k.uid('tw'); ok = k.uid('twok')
        k("s_mov_b32 s43, 0")
        k(f"v_lshrrev_b32 v25, 2, {v(V16)}")
        k.label(top)
        k(f"""
        buffer_load_dword v24, v25, {s(SRD_DBG,4)}, 0 offen sc1
        s_waitcnt vmcnt(0)
        v_readlane_b32 s38, v24, {DB_INIT//4}
        v_readlane_b32 s39, v24, {DB_POL//4}
        v_readlane_b32 s90, v24, {DB_SNAP//4}
        s_cmp_eq_u32 s38, 256
        s_cselect_b32 s34, s39, 0
        s_cmp_lg_u32 s34, 0
        s_cbranch_scc1 {ok}
        s_add_u32 s43, s43, 1
        s_cmp_gt_u32 s43, {SPIN_MAX}
        s_cbranch_scc1 {last}
        s_sleep 2
        s_branch {top}
        """)
        k.label(ok)
        k(f"""
        s_and_b32 s39, s39, 1
        s_lshl_b32 s39, s39, 13
        s_add_u32 s30, s30, s39
        s_add_u32 s31, s31, s39
        s_and_b32 s90, s90, 0xffff
        """)
    k(f"""
    s_mov_b32 s33, 0
    s_mov_b32 s43, 0
    s_mov_b32 s44, 0
    s_mov_b32 s45, 0
    s_mov_b32 s46, 0
    s_mov_b32 s49, 0
    s_lshl_b32 s50, {s(h)}, 6
    s_lshl_b32 s39, {s(b)}, 4
    s_add_u32 s50, s50, s39
    s_lshl_b32 s39, {s(w)}, 2
    s_add_u32 s50, s50, s39
    s_add_u32 s50, s50, {WS_SYNC+SY_FLAG+FL_FM}
    s_sub_u32 s52, {s(h)}, {s(w)}
    s_lshl_b32 s52, s52, 8
    s_add_u32 s52, s52, {WS_SYNC+SY_FLAG+FL_G1}
    s_cmp_lt_u32 s28, 80
    s_cselect_b32 s12, s6, 0
    s_mov_b32 s13, s12
    s_mov_b32 s14, {float_hex(128 ** -0.5 * math.log2(math.e))}
    s_lshl_b32 s95, {s(w)}, 10
    s_lshl_b32 s15, {s(b)}, 12
    s_add_u32 s15, s15, s95
    s_mov_b32 s26, {0 if P.get('nofm') else -1}
    s_mov_b32 s16, 0
    s_mov_b32 s17, 0
    s_cmp_eq_u32 {s(b)}, 0
    s_cselect_b32 s92, -1, 0
    s_mov_b32 s93, s92
    s_lshl_b32 s51, {s(w)}, 11
    s_lshl_b32 s99, {s(b)}, 12
    s_add_u32 s99, s99, {WS_SYNC+SY_HINT}
    s_lshl_b32 s98, {s(h)}, 3
    s_add_u32 s98, s98, s99
    s_mov_b32 s27, 0
    s_mov_b32 s37, 0x3c00
    s_mov_b32 s24, 0
    s_mov_b32 s25, 0
    """)
    for x in zero(ACC, 24): k(x)
    for x in set_slots(): k(x)
    ring_pre()
    def kvspin(back):
        top = k.uid('kvs'); k.label(top)
        k(f"""
        buffer_load_dword {v(VSEL)}, {v(VQ)}, {s(SRD_WS,4)}, s52 offen sc1
        s_waitcnt vmcnt(0)
        v_cmp_ge_u32 vcc, s33, {v(VSEL)}
        s_and_b32 s42, vcc_lo, 0xfff
        s_cbranch_scc0 {back}
        s_add_u32 s44, s44, 1
        s_cmp_gt_u32 s44, {SPIN_MAX}
        s_cbranch_scc1 {last}
        s_sleep 1
        s_branch {top}
        """)
    if fused:
        k(f"s_add_u32 s34, s101, {PART_SLOT}")
        for sb in (101, 34):
            for o in (0, 1024): k(f"buffer_load_dwordx4 {v(A+8,4)}, {v(V16)}, {s(SRD_WS,4)}, s{sb} offen offset:{o} sc1")
        k(f"v_lshlrev_b32 {v(VDUM)}, 3, {v(VC0)}")
        k(f"buffer_load_dword {v(A+8)}, {v(VDUM)}, {s(SRD_WS,4)}, s29 offen sc1")
        kok = k.uid('kok'); kvspin(kok); k.label(kok)
    poll_local()
    k("s_waitcnt vmcnt(0) lgkmcnt(0)")
    k("s_barrier")
    if fused:
        slow = k.uid('slow')
        k("s_cmp_lg_u32 s90, 0x2020")
        k(f"s_cbranch_scc1 {slow}")
        team_loop(k, P, '', locals())
        k.label(slow)
        team_loop(k, P, 'sc1', locals())
    else:
        team_loop(k, P, lst, locals())
    k.label(last)
    team_end(k)

def team_loop(k, P, lst, env):
    globals().update({n: env[n] for n in ('cold', 'ns', 'pend', 'lwait', 'wl', 'smf', 'poll_local', 'poll_r0', 'poll_r4', 'poll_rr', 'rsc', 'set_slots',
        'chk', 'retry', 'tick', 'zero', 'RING', 'ring_pre', 'WARM', 'warm', 'last', 'kvspin', 'fused', 'b', 'h', 'w')})
    lastpub = k.uid('lastpub')
    del cold[:]
    loop = k.uid('tloop'); k.label(loop)
    pend[:] = []
    rp_late = P.get('rplate', 3)
    VMC = PP + 32
    if rp_late == 0:
        delay(k, P['lgap'])
        poll_r0(rsc); poll_r4(rsc)
    k(f"s_waitcnt vmcnt({(2 if rp_late == 0 else 0) + (1 if P.get('sc1late') else 0) + (1 if P.get('tick') else 0)})")
    k(f"ds_write_b128 {v(VC0)}, {v(A,4)} offset:{LL}")
    k(f"ds_write_b32 {v(VQ)}, {v(A+4)} offset:{LR}")
    for x in chk(range(A, A+5)): k(x)
    def lre():
        k(f"ds_write_b128 {v(VC0)}, {v(A,4)} offset:{LL}")
        k(f"ds_write_b32 {v(VQ)}, {v(A+4)} offset:{LR}")
    retry(range(A, A+5), poll_local, "vmcnt(0)", 43, lre)
    pend[:] = ['w', 'w']
    tick(0)
    areg = [A, A+8, A+4, A, A+8]
    nxt = [('L', 1, 2, 0), ('L', 1, 2, 1), ('L', 2, 2, 0), ('L', 2, 2, 1), ('L', 3, 2, 0), ('L', 3, 2, 1), ('L', 4, 2, 0), ('L', 4, 2, 1),
           ('R', 0, 1, 0), ('R', 0, 0, 0), ('R', 0, 1, 1), ('R', 0, 0, 1)]
    sal = f"""s_add_u32 s39, s53, s51
    s_add_u32 m0, s51, {LK}
    s_add_u32 s94, s55, s15
    s_xor_b32 s18, s35, 0x4000
    s_add_u32 s18, s18, s32
    s_and_b32 s38, s33, 1
    s_mul_i32 s38, s38, {PART_SLOT}
    s_add_u32 s47, s38, s100
    s_add_u32 s48, s38, s101
    s_bfe_u32 s34, s33, 0x10001
    s_add_u32 s20, s47, 32768
    s_add_u32 s21, s47, 65536
    s_add_u32 s22, s47, 98304
    s_add_u32 s23, s47, 131072""".split('\n')
    kp = P.get('kpos', rp_late + 4)
    vm_ops = {kp: [f"buffer_load_dwordx4 {v(V16)}, {s(SRD_WS,4)}, s39 offen sc1 lds"],
              kp + 2: [f"buffer_load_dwordx4 {v(V16)}, {s(SRD_WS,4)}, s39 offen offset:1024 sc1 lds"],
              kp + 4: [f"buffer_load_dword {v(VSEL)}, {v(VQ)}, {s(SRD_WS,4)}, s52 offen sc1", f"v_add_u32 {v(VDUM)}, -1, s33"],
              kp + 6: ["s_mov_b64 exec, s[16:17]", f"buffer_store_dwordx4 {v(VMC,4)}, {v(V16)}, {s(SRD_WS,4)}, s94 offen sc1", "s_mov_b64 exec, -1"],
              kp + 8: ["s_mov_b64 exec, s[16:17]", f"buffer_store_dword {v(VDUM)}, off, {s(SRD_WS,4)}, s50 sc1", "s_mov_b64 exec, -1", f"v_mov_b32 {v(VDUM)}, -1"],
              kp + 10: ["s_mov_b64 exec, s[12:13]", f"buffer_store_dword {v(VDUM)}, {v(VPUB)}, {s(SRD_WS,4)}, s18 offen {lst}", "s_mov_b64 exec, -1"]}
    assert min(vm_ops) > rp_late + 2
    dsq = []
    def dsop():
        if dsq:
            x, tag = dsq.pop(0); k(x); pend.append(tag)
    def a_rd(i, base, dst):
        if i == 1: return (f"ds_read_b128 {v(dst,4)}, {v(V16)} offset:{LL+LR-base}", 'a1')
        return (f"ds_read_b128 {v(dst,4)}, {v(VC0+i-1)} offset:{base}", f'a{i}')
    qn = 0; cnt = 0
    lb = P.get('lbar', 2)
    for i in range(5):
        order = [(1, 0), (1, 1), (2, 0), (2, 1), (0, 0), (0, 1)] if i == 0 else [(0, 0), (1, 0), (0, 1), (2, 0), (1, 1), (2, 1)]
        for oi, (m, t) in enumerate(order):
            key = ('L', i, m, t)
            assert all(tag not in (key, f'a{i}') for _, tag in dsq), (key, dsq)
            lwait(f'a{i}')
            if key in WREG:
                smf(ACC + 8*m + 4*t, areg[i], WREG[key])
            else:
                lwait(key)
                smf(ACC + 8*m + 4*t, areg[i], RING[qn % 4])
                for hh in range(2):
                    dsq.append((f"ds_read_b128 {v(RING[qn % 4]+4*hh,4)}, {v(VLW)} offset:{WLDS[nxt[qn]]+1024*hh}", nxt[qn]))
                qn += 1
            cnt += 1
            if cnt == lb:
                lwait('w'); k("s_barrier")
                dsq.insert(0, a_rd(1, LL, areg[1]))
            if cnt == 7: dsq.insert(0, a_rd(2, LL, areg[2]))
            if cnt == 12: dsq.insert(0, a_rd(3, LL, areg[3]))
            if cnt == 18: dsq.insert(0, a_rd(4, LL, areg[4]))
            if cnt == 26: k("s_barrier")
            if sal: k(sal.pop(0))
            dsop()
            if cnt == rp_late: poll_r0(rsc)
            if rp_late and cnt == rp_late + 2: poll_r4(rsc)
            for x in vm_ops.get(cnt, []): k(x)
            if cnt > 20: warm()
    while dsq: dsop()
    assert not sal
    tick(1)
    for _ in range(P.get('w1', 0)): k(WARM); k("s_nop 1")
    VX = PP + 28; KR = PP + 16; PF = PP
    rreg = [A+12, A+16, A, A+4, A+8]
    kfr = [KR, KR+4, KR+8, rreg[0], rreg[1], rreg[2], rreg[3], rreg[4]]
    kord = [0, 2, 4, 6, 1, 3, 5, 7]
    def kread(f):
        k(f"ds_read_b128 {v(kfr[f],4)}, {v(V16)} offset:{LK + 1024*kord[f]}"); pend.append(f'k{f}')
    def rs(i, m, t, reg=None):
        if reg is not None: lwait(('R', i, m, t))
        lwait(f'a{i}')
        smf(ACC + 8*m + 4*t, rreg[i], WREG[('R', i, m, t)] if reg is None else reg)
    k("s_waitcnt vmcnt(6)")
    def rre():
        k(f"ds_write_b128 {v(VC0)}, {v(A+12,4)} offset:{LR}")
        k(f"ds_write_b32 {v(VQ)}, {v(A+16)} offset:{LL}")
    rre(); pend.extend(['w', 'w'])
    for x in chk(range(A+12, A+17)): k(x)
    retry(range(A+12, A+17), poll_rr, "vmcnt(0)", 45, rre)
    tick(2)
    vrest = [(i, 2, t) for i in (1, 2, 3, 4) for t in range(2)]
    ap = P.get('ap', 1)
    al = P.get('align', 1)
    for si, (m, t, rg) in enumerate([(1, 0, RING[0]), (0, 0, RING[1]), (1, 1, RING[2]), (0, 1, RING[3]), (2, 0, None), (2, 1, None)]):
        rs(0, m, t, rg)
        if si == ap:
            lwait('w'); k("s_barrier")
            if al: k("s_memtime s[96:97]")
            dsq[:] = [a_rd(ii, LR, rreg[ii]) for ii in (1, 2, 3, 4)]
        dsop()
        warm()
    tick(3)
    def pack(t):
        kq = AK + 4*t; qq = AQ + 4*t
        return [f"v_add_f32 {v(kq)}, {v(kq)}, {v(kq+2)}",
                f"v_add_f32 {v(kq+1)}, {v(kq+1)}, {v(kq+3)}",
                f"v_cvt_pk_bf16_f32 {v(kq+2)}, {v(kq)}, {v(kq+1)}",
                f"v_add_f32 {v(qq)}, {v(qq)}, {v(qq+2)}",
                f"v_add_f32 {v(qq+1)}, {v(qq+1)}, {v(qq+3)}",
                f"v_cvt_pk_bf16_f32 {v(kq+3)}, {v(qq)}, {v(qq+1)}",
                f"ds_write_b64 {v(VFW)}, {v(kq+2,2)} offset:{LL + 512*t}"]
    p0 = pack(0); p1 = pack(1)
    gaps = [
        [f"buffer_load_dwordx4 {v(VX,4)}, {v(V16)}, {s(SRD_WS,4)}, s54 offen sc1", WARM], [WARM],
        [f"buffer_load_dwordx4 {v(VX+4,4)}, {v(V16)}, {s(SRD_WS,4)}, s54 offen offset:1024 sc1", WARM], [WARM], [WARM],
        [p0[0]], ["s_mov_b32 s16, s26", p0[1]], ["s_mov_b32 s17, s26", p0[2]], ["s_barrier", WARM],
        [p0[3]], [f"s_add_u32 s55, s55, {(1 << SS)}", p0[4]], [p0[5]], [p0[6], WARM], [p1[0]], [p1[1]], [p1[2]]]
    n_ = 0
    for (m, t) in [(1, 0), (0, 0), (1, 1), (0, 1)]:
        for i in (1, 2, 3, 4):
            rs(i, m, t)
            dsop()
            for x in gaps[n_]: k(x)
            n_ += 1
    assert not dsq
    rs(*vrest[0]); warm()
    rs(*vrest[1])
    for x in p1[3:]: k(x)
    tick(4)
    vr = vrest[2:]
    for _ in range(min(P.get('vpre', 3), len(vr))):
        rs(*vr.pop(0)); warm()
    k(f"s_waitcnt vmcnt(6) lgkmcnt(0)"); pend[:] = []
    k("s_barrier")
    for i in range(8):
        k(f"ds_read_b64_tr_b16 {v(PF+2*i,2)}, {v(V8)} offset:{LL + 512*i}"); pend.append(f'f{i//2}')
        if i % 2 == 1 and vr: rs(*vr.pop(0))
        if al and i == 0: k("s_add_u32 s96, s96, s25")
        if al and i == 1: k(f"v_mov_b32 {v(VDUM)}, s96")
        if al and i == 3: k(f"buffer_store_dword {v(VDUM)}, off, {s(SRD_WS,4)}, s98 {lst}")
    assert not vr
    tick(5)
    SX0, SX1, SM = AQ, AQ + 4, AK
    T0, T1 = AK + 4, AK + 5; VM = AK + 6
    PK = KR; PM0 = KR + 4; PM1 = KR + 6; ONE = KR + 8
    def sm(which, ks):
        lwait(f'f{ks}')
        if which == 'm': D, Aop = SM, PF + 4*ks
        else:
            f = 4*which + ks
            D = SX0 + 4*which; Aop = kfr[f]; lwait(f'k{f}')
        k(f"v_mfma_f32_16x16x32_bf16 {v(D,4)}, {v(Aop,4)}, {v(PF+4*ks,4)}, {'0' if ks == 0 else v(D,4)}")
    vp = []
    for t in range(2):
        vv = AV + 4*t
        vp += [f"v_add_f32 {v(vv)}, {v(vv)}, {v(vv+2)}", f"v_add_f32 {v(vv+1)}, {v(vv+1)}, {v(vv+3)}", f"v_cvt_pk_bf16_f32 {v(VM+t)}, {v(vv)}, {v(vv+1)}"]
    cst = [f"v_mov_b32 {v(PM0+1)}, 0", f"v_mov_b32 {v(PM1)}, 0"] + [f"v_mov_b32 {v(ONE+i)}, 0x3f803f80" for i in range(4)]
    so = [(wh, ks) for wh in ('m', 0, 1) for ks in range(4)]
    kread(0)
    fl = {0: [WARM], 1: [vp[0]], 2: [vp[1]], 3: [vp[2]], 4: ["s_cmp_eq_u32 s33, 63", vp[3]], 5: [vp[4]],
          6: [vp[5]], 7: [f"v_max_f32 {v(T0)}, {v(SM)}, {v(SM+1)}", cst[0]], 8: cst[1:3],
          9: [cst[3], f"v_max3_f32 {v(T0)}, {v(T0)}, {v(SX0)}, {v(SX0+1)}"], 10: [f"v_max3_f32 {v(T0)}, {v(T0)}, {v(SX0+2)}, {v(SX0+3)}", cst[4]],
          11: [f"s_cbranch_scc1 {lastpub}", cst[5]]}
    for n_, (wh, ks) in enumerate(so):
        sm(wh, ks)
        if n_ < 7: kread(n_ + 1)
        for x in fl.get(n_, []): k(x)
    tick(6)
    zz = zero(A, 20)
    for _ in range(3): k(zz.pop(0))
    k(f"v_max3_f32 {v(T0)}, {v(T0)}, {v(SX1)}, {v(SX1+1)}")
    k(f"v_max3_f32 {v(T1)}, {v(T0)}, {v(SX1+2)}, {v(SX1+3)}")
    k(f"v_max3_f32 {v(T0)}, {v(T0)}, {v(SX1+2)}, {v(SX1+3)}")
    k(zz.pop(0)); k(zz.pop(0))
    k(f"v_permlane32_swap_b32 {v(T0)}, {v(T1)}")
    k(f"v_max_f32 {v(SM+2)}, {v(T0)}, {v(T1)}")
    k(f"v_max_f32 {v(T0)}, {v(T0)}, {v(T1)}")
    k(zz.pop(0)); k(zz.pop(0))
    k(f"v_permlane16_swap_b32 {v(T0)}, {v(SM+2)}")
    k(f"v_max_f32 {v(T0)}, {v(T0)}, {v(SM+2)}")
    k(f"v_mul_f32 {v(T0)}, s14, {v(T0)}")
    fma = lambda x: k(f"v_fma_f32 {v(x)}, {v(x)}, s14, -{v(T0)}")
    ex = lambda x: k(f"v_exp_f32 {v(x)}, {v(x)}")
    O0, O1 = AV, AV + 4; RS = AK; RI = T0; OP = AQ; OA = VX
    fma(SM); fma(SM+1); ex(SM); ex(SM+1)
    fma(SX0); fma(SX0+1)
    k(f"v_cvt_pk_bf16_f32 {v(PM0)}, {v(SM)}, {v(SM+1)}")
    k(f"v_cvt_pk_bf16_f32 {v(PM1+1)}, {v(SM)}, {v(SM+1)}")
    for i in range(2, 8): fma(SX0+i)
    k(f"v_mfma_f32_16x16x16_bf16 {v(O0,4)}, {v(VM,2)}, {v(PM0,2)}, 0")
    hl = f"buffer_load_dword {v(VDUM)}, {v(V8)}, {s(SRD_WS,4)}, s99 offen sc1"
    if al and P.get('hpos', 0) == 0: k(hl)
    ex(SX0); ex(SX0+1)
    k(f"v_mfma_f32_16x16x16_bf16 {v(O1,4)}, {v(VM,2)}, {v(PM1,2)}, 0")
    ex(SX0+2); ex(SX0+3)
    k(f"v_cvt_pk_bf16_f32 {v(PK)}, {v(SX0)}, {v(SX0+1)}")
    ex(SX0+4); ex(SX0+5)
    k(f"v_cvt_pk_bf16_f32 {v(PK+1)}, {v(SX0+2)}, {v(SX0+3)}")
    ex(SX0+6); ex(SX0+7)
    k(f"v_cvt_pk_bf16_f32 {v(PK+2)}, {v(SX0+4)}, {v(SX0+5)}")
    k(f"v_cvt_pk_bf16_f32 {v(PK+3)}, {v(SX0+6)}, {v(SX0+7)}")
    k(zz.pop(0)); k(zz.pop(0))
    tick(7)
    k(f"s_waitcnt vmcnt({2 if al else 0})")
    k(f"v_mfma_f32_16x16x32_bf16 {v(O0,4)}, {v(VX,4)}, {v(PK,4)}, {v(O0,4)}")
    k(zz.pop(0))
    assert not zz
    if al and P.get('hpos', 0) == 1: k(hl)
    k(f"v_mfma_f32_16x16x32_bf16 {v(O1,4)}, {v(VX+4,4)}, {v(PK,4)}, {v(O1,4)}")
    k(f"v_mfma_f32_16x16x32_bf16 {v(RS,4)}, {v(PK,4)}, {v(ONE,4)}, 0")
    k(f"v_cvt_pk_bf16_f32 {v(OP)}, {v(O0)}, {v(O0+1)}")
    k(f"v_cvt_pk_bf16_f32 {v(OP+1)}, {v(O0+2)}, {v(O0+3)}")
    k(f"v_mfma_f32_16x16x16_bf16 {v(RS,4)}, {v(PM0,2)}, {v(ONE,2)}, {v(RS,4)}")
    k(f"v_cvt_pk_bf16_f32 {v(OP+2)}, {v(O1)}, {v(O1+1)}")
    k(f"v_cvt_pk_bf16_f32 {v(OP+3)}, {v(O1+2)}, {v(O1+3)}")
    pend[:] = []
    k(f"ds_write_b128 {v(VOW)}, {v(OP,4)} offset:{LR}"); pend.append('ow')
    WX, WY = KR, AV
    wl(('O', 4, 0), WX); wl(('O', 4, 1), WY)
    k("s_add_u32 s33, s33, 1")
    for x in set_slots(): k(x)
    k(f"v_rcp_f32 {v(RI)}, {v(RS+2)}")
    k(f"v_rcp_f32 {v(RI+1)}, {v(RS+3)}")
    lwait('ow')
    k("s_barrier")
    k(f"ds_read_b128 {v(OA,4)}, {v(V16)} offset:{LR}"); pend.append('oa')
    k(f"ds_read_b128 {v(OA+4,4)}, {v(V16)} offset:{LR+1024}"); pend.append('oa')
    tick(8)
    RD = A + 8; SEL = AK; D = A; T = A + 16
    fil = ["s_add_u32 s38, s35, s32", "s_add_u32 s39, s19, s32", "s_add_u32 s39, s39, s30",
            f"s_add_u32 s53, s53, {(1 << SS)}", f"s_add_u32 s54, s54, {(1 << SS)}"]
    hq = []
    if al:
        hq = ["s_waitcnt vmcnt(0)", f"v_subrev_u32 {v(VDUM)}, s96, {v(VDUM)}"]
        for c in ['row_shr:1', 'row_shr:2', 'row_shr:4', 'row_shr:8']:
            hq.append(f"v_max_i32_dpp {v(VDUM)}, {v(VDUM)}, {v(VDUM)} {c} row_mask:0xf bank_mask:0xf")
        hq.append(f"v_max_i32_dpp {v(VDUM)}, {v(VDUM)}, {v(VDUM)} row_bcast:15 row_mask:0xa bank_mask:0xf")
        hq.append(f"v_readlane_b32 s27, {v(VDUM)}, 31")
    if P.get('hpos', 0) == 0:
        if hq: k(hq.pop(0))
        while len(hq) > 3:
            k(hq.pop(0))
            for _ in range(2):
                if fil: k(fil.pop(0))
    for x in fil: k(x)
    lwait('oa')
    def fin(j, pk):
        d = A + 4*j
        if pk:
            o = [f"v_pk_add_f32 {v(d,2)}, {v(d,2)}, {v(d+2,2)}", f"v_pk_mul_f32 {v(d,2)}, {v(d,2)}, {v(RI,2)}"]
        else:
            o = [f"v_add_f32 {v(d)}, {v(d)}, {v(d+2)}", f"v_add_f32 {v(d+1)}, {v(d+1)}, {v(d+3)}",
                 f"v_mul_f32 {v(d)}, {v(d)}, {v(RI)}", f"v_mul_f32 {v(d+1)}, {v(d+1)}, {v(RI+1)}"]
        return o + [f"v_cvt_pk_f16_f32 {v(d)}, {v(d)}, {v(d+1)}", f"v_bfi_b32 {v(d)}, 1, s34, {v(d)}",
                    f"buffer_store_dword {v(d)}, {v(VPS)}, {s(SRD_WS,4)}, s{[47,20,21,22,23][j]} offen {lst}"]
    npk = P.get('npk', 2)
    fins = []
    for j in range(5): fins += fin(j, j >= npk)
    per = P.get('fper', 2)
    for n_ in range(10):
        j, ke = n_ // 2, n_ % 2
        smf(A + 4*j, OA + 4*ke, WREG.get(('O', j, ke), [WX, WY][ke]))
        if al and n_ < 2: k(["s_sub_u32 s96, s96, s25", f"s_add_u32 s96, s96, {P.get('ltgt', 2500)}"][n_])
        if al and 3 <= n_ < 8:
            k(["s_min_i32 s27, s27, s24", "s_max_i32 s27, s27, 0", "s_add_u32 s97, s96, s27", f"s_mul_i32 s27, s27, {P.get('dmul', 34)}", "s_lshr_b32 s27, s27, 10"][n_ - 3])
        if n_ == 9: k("s_cmp_ge_u32 s28, 80")
        if n_ < 3:
            if hq and P.get('hpos', 0) == 0: k(hq.pop(0))
            else: warm()
        else:
            c = 0
            while c < per and not fins[0].startswith('v_pk'):
                x = fins.pop(0); k(x)
                if not x.startswith('buffer'): c += 1
    for x in fins: k(x)
    tick(9)
    nored = k.uid('nored')
    k(f"s_cbranch_scc1 {nored}")
    delay(k, P['rdelay'])
    if al:
        assert not hq
        dl = k.uid('dl')
        if P.get('tick'): k("s_add_u32 s44, s44, s27"); k("s_mov_b32 s91, s27")
        k.label(dl)
        k("s_sub_u32 s27, s27, 1")
        if P.get('dwarm', 0): k(WARM)
        k(f"s_cbranch_scc0 {dl}")
    def rload():
        k(f"buffer_load_dwordx4 {v(RD,4)}, {v(VPL)}, {s(SRD_WS,4)}, s48 offen sc1 ;poll")
        k(f"buffer_load_dwordx4 {v(RD+4,4)}, {v(VPL)}, {s(SRD_WS,4)}, s48 offen offset:1024 sc1 ;poll")
    rload()
    kvc = [f"v_cmp_ge_u32 vcc, s33, {v(VSEL)}", "s_and_b32 s42, vcc_lo, 0xfff" if fused else "s_mov_b32 s42, 0"]
    for x in kvc: k(x)
    k(f"v_bfe_u32 {v(VSEL)}, {v(V16)}, 6, 1")
    k(f"v_lshlrev_b32 {v(VSEL)}, 4, {v(VSEL)}")
    k(f"v_lshlrev_b32 {v(VSEL)}, {v(VSEL)}, s37")
    for d in range(4): k(f"v_cndmask_b32 {v(SEL+d)}, 0, {v(VSEL)}, s[{56+2*d}:{57+2*d}]")
    def fmget():
        k(f"v_add_u32 {v(VDUM)}, s95, {v(V8)}")
        k(f"v_mov_b64 {v(VMC,2)}, {v(VM,2)}")
        sk = k.uid('fmsk')
        k("s_cmp_eq_u32 s92, 0")
        k(f"s_cbranch_scc1 {sk}")
        k(f"ds_read_b64_tr_b16 {v(VMC,2)}, {v(VDUM)} offset:{LL}")
        k(f"ds_read_b64_tr_b16 {v(VMC+2,2)}, {v(VDUM)} offset:{LL+512}")
        k.label(sk)
    def house():
        fmget()
        for x in zero(AQ, 8) + zero(AV, 8) + zero(AK + 4, 4): k(x)
        ring_pre()
    house()
    for _ in range(P.get('w2', 0)): k(WARM); k("s_nop 1")
    rl = k.uid('rl'); rc = k.uid('rc')
    k.label(rl)
    k("s_waitcnt vmcnt(1)")
    k(f"v_mfma_f32_16x16x32_f16 {v(D,4)}, {v(RD,4)}, {v(SEL,4)}, 0")
    k(f"v_bitop3_b32 {v(T)}, {v(RD)}, {v(RD+1)}, s34 bitop3:0x7e")
    k(f"v_bitop3_b32 {v(T+1)}, {v(RD+2)}, {v(RD+3)}, s34 bitop3:0x7e")
    k("s_waitcnt vmcnt(0)")
    k(f"v_mfma_f32_16x16x32_f16 {v(D,4)}, {v(RD+4,4)}, {v(SEL,4)}, {v(D,4)}")
    k("s_memtime s[36:37]" if 0 else "s_memtime s[22:23]")
    k(f"v_bitop3_b32 {v(T+2)}, {v(RD+4)}, {v(RD+5)}, s34 bitop3:0x7e")
    k(f"v_bitop3_b32 {v(T+3)}, {v(RD+6)}, {v(RD+7)}, s34 bitop3:0x7e")
    k(f"v_or3_b32 {v(T)}, {v(T)}, {v(T+1)}, {v(T+2)}")
    k(f"v_bitop3_b32 {v(T)}, {v(T)}, {v(T+3)}, 1 bitop3:0xa8")
    k(f"v_cmp_{'f' if ns else 'ne'}_u32 vcc, 0, {v(T)}")
    rem = ["s_waitcnt lgkmcnt(0)", "s_sub_u32 s27, s97, s22", "s_min_i32 s27, s27, s24", "s_max_i32 s27, s27, 0", f"s_mul_i32 s27, s27, {P.get('dmul', 34)}", "s_lshr_b32 s27, s27, 10"]
    k(f"""
    v_add_f32 {v(D)}, {v(D)}, {v(D+1)}
    v_add_f32 {v(D+2)}, {v(D+2)}, {v(D+3)}
    v_add_f32 {v(D)}, {v(D)}, {v(D+2)}
    {rem[0]}
    {rem[1]}
    v_mov_b32_dpp {v(D+1)}, {v(D)} quad_perm:[1,1,3,3] row_mask:0xf bank_mask:0xf
    v_cvt_pk_bf16_f32 {v(D)}, {v(D)}, {v(D+1)}
    v_min_u32 {v(T+1)}, 0xfffffffe, {v(D)}
    s_cbranch_vccnz {rc}
    s_mov_b64 exec, s[6:7]
    """)
    late = P.get('sc1late', 0)
    sts = [f"buffer_store_dword {v(T+1)}, {v(VPUB)}, {s(SRD_WS,4)}, s38 offen {lst}"]
    if not late and not P.get('nosc1'): sts.insert(P.get('lfirst', 1), f"buffer_store_dword {v(T+1)}, {v(VPUB)}, {s(SRD_WS,4)}, s39 offen sc1")
    for x in sts: k(x)
    k("s_mov_b64 exec, -1")
    for x in rem[2:]: k(x)
    def rcold():
        k.label(rc)
        rload()
        k("s_add_u32 s49, s49, 1")
        k(f"s_cmp_gt_u32 s49, {P.get('bound', 20000)}")
        k(f"s_cbranch_scc1 {last}")
        k(f"s_branch {rl}")
    cold.append(rcold)
    def nrcold():
        k.label(nored)
        for x in kvc: k(x)
        house()
        k("s_memtime s[22:23]")
        k(f"s_add_i32 s97, s97, {P.get('nrb', -40)}")
        for x in rem: k(x)
        k(f"s_branch {join}")
    join = k.uid('join')
    cold.append(nrcold)
    k.label(join)
    tick(10)
    dl2 = k.uid('dl'); k.label(dl2)
    k("s_sub_u32 s27, s27, 1")
    k(f"s_cbranch_scc0 {dl2}")
    tick(11)
    poll_local()
    k("s_barrier")
    if late:
        k("s_mov_b64 exec, s[12:13]")
        k(f"buffer_store_dword {v(T+1)}, {v(VPUB)}, {s(SRD_WS,4)}, s39 offen sc1")
        k("s_mov_b64 exec, -1")
    for x in zero(AK, 4): k(x)
    tick(12)
    k("s_waitcnt lgkmcnt(0)")
    if al:
        cal = k.uid('cal'); calb = k.uid('calb')
        k(f"s_bitcmp1_b32 {hex(P.get('calm', 0x22))}, s33")
        k(f"s_cbranch_scc1 {cal}")
        k.label(calb)
        def calib():
            k.label(cal)
            k("s_cmp_gt_u32 s33, 31")
            k(f"s_cbranch_scc1 {calb}")
            k("s_memtime s[96:97]")
            for i in range(13):
                k(f"s_memrealtime s[{64+2*i}:{65+2*i}]")
                k("s_nop 0")
            k("s_waitcnt lgkmcnt(0)")
            k("s_lshr_b32 s25, s64, 2")
            k(f"s_mul_i32 s25, s25, {P.get('ratio', 91)}")
            k("s_sub_u32 s25, s25, s96")
            for i in range(1, 13):
                k(f"s_cmp_eq_u32 s64, s{64+2*i}")
                k("s_cselect_b32 s39, 8, 0")
                k("s_sub_u32 s25, s25, s39")
            k(f"s_mov_b32 s24, {P.get('dcap', 1600)}")
            if STAMPS: k("s_mov_b32 s46, s96\ns_mov_b32 s43, 0\ns_mov_b32 s45, 0\ns_mov_b32 s49, 0\ns_mov_b32 s44, 0")
            k(f"s_branch {calb}")
        cold.append(calib)
    if P.get('tick'):
        k(f"""
        s_lshl_b32 s39, {s(S_WG)}, 2
        s_add_u32 s39, s39, {s(w)}
        s_lshl_b32 s39, s39, 12
        s_lshl_b32 s38, s33, 6
        s_add_u32 s39, s39, s38
        s_add_u32 s39, s39, {WS_ST2}
        s_lshl_b32 s38, s45, 10
        s_or_b32 s90, s38, s43
        s_lshl_b32 s38, s49, 20
        s_or_b32 s90, s38, s90
        """)
        for i in range(13):
            k(f"v_writelane_b32 {v(VDUM)}, s{64+2*i}, {i}")
        k(f"v_writelane_b32 {v(VDUM)}, s90, 13")
        k(f"v_writelane_b32 {v(VDUM)}, s25, 14")
        k(f"v_writelane_b32 {v(VDUM)}, s91, 15")
        k("s_mov_b64 exec, 0xffff")
        k(f"v_lshrrev_b32 {v(A+8)}, 2, {v(V16)}")
        k(f"buffer_store_dword {v(VDUM)}, {v(A+8)}, {s(SRD_WS,4)}, s39 offen")
        k("s_mov_b64 exec, -1")
    k("s_cmp_eq_u32 s42, 0")
    k(f"s_cbranch_scc1 {loop}")
    kvspin(loop)
    for c in cold: c()
    k.label(lastpub)
    k("s_add_u32 s39, s55, s15")
    k("s_waitcnt vmcnt(0)")
    fmget()
    k("s_waitcnt lgkmcnt(0)")
    k(f"buffer_store_dwordx4 {v(VMC,4)}, {v(V16)}, {s(SRD_WS,4)}, s39 offen sc1")
    k(f"v_mov_b32 {v(VDUM)}, 64")
    k("s_waitcnt vmcnt(0)")
    k(f"buffer_store_dword {v(VDUM)}, off, {s(SRD_WS,4)}, s50 sc1")
    k(f"s_branch {last}")

def team_end(k):
    stamp(k, 2, 20)
    if STAMPS:
        k(f"""
        s_lshl_b32 s94, {s(S_WG)}, 10
        s_lshl_b32 s95, {s(S_WAVE)}, 8
        s_add_u32 s94, s94, s95
        s_add_u32 s94, s94, {WS_STAMP}
        """)
        for i, sr in enumerate([43, 44, 45, 46, 49, 33]):
            k(f"v_mov_b32 v20, s{sr}")
            k(f"buffer_store_dword v20, off, {s(SRD_WS,4)}, s94 offset:{16+4*i}")

TP = dict(tick=False, rplate=10, sc1late=1, rdelay=120, dmul=33, nrb=40, ltgt=2580, lgap=0)

if __name__ == '__main__':
    ks = build_dev()
    variants = eval(open('tvariants.txt').read())
    for n, d in variants.items():
        P = dict(TP); P.update(d)
        k = Kernel(f"team{n}_kernel"); prologue(k)
        k.timed = True
        k(f"s_cmp_ge_u32 {s(S_X)}, 2")
        k(f"s_cbranch_scc1 {k.name}_exit")
        role_team(k, P)
        epilogue(k); ks.append(k)
    emit(ks, 'dev.s')
```

```python
import sys, math
from gen import *

NEG = float_hex(-1e30)
LOG2E = 1.4426950408889634

def wload(k, pieces, v_lds, s_ldsbase, nslots, s_tmp, group=8):
    n = len(pieces)
    def issue(i):
        sr, sb, c, vg, _ = pieces[i]
        k(f"s_add_u32 {s(s_tmp)}, {s(sb)}, {c}")
        k(f"s_add_u32 m0, {s(s_ldsbase)}, {(i % nslots)*1024}")
        k(f"buffer_load_dwordx4 {v(vg)}, {s(sr,4)}, {s(s_tmp)} offen lds")
    issued = 0
    while issued < min(n, nslots):
        issue(issued); issued += 1
    done = 0
    while done < n:
        g = min(group, n - done)
        k(f"s_waitcnt vmcnt({issued - done - g})")
        for i in range(done, done + g):
            for (reg, off) in pieces[i][4]:
                k(f"ds_read_b64_tr_b16 {r(reg,2)}, {v(v_lds)} offset:{(i % nslots)*1024+off}")
        done += g
        if issued < n:
            k("s_waitcnt lgkmcnt(0)")
            for i in range(issued, min(n, issued + g)): issue(i)
            issued = min(n, issued + g)
    k("s_waitcnt lgkmcnt(0)")

def spin_ge(k, vdst, vaddr, soff, s_thr, s_cnt, exec_mask=None, off=0, sleep=2):
    top = k.uid('spin'); ok = k.uid('spok')
    k.label(top)
    k(f"buffer_load_dword {v(vdst)}, {v(vaddr)}, {s(SRD_WS,4)}, {s(soff)} offen offset:{off} sc1")
    k("s_waitcnt vmcnt(0)")
    k(f"v_cmp_gt_u32 vcc, {s(s_thr)}, {v(vdst)}")
    k(f"s_cbranch_vccz {ok}")
    k(f"s_add_u32 {s(s_cnt)}, {s(s_cnt)}, 1")
    k(f"s_cmp_gt_u32 {s(s_cnt)}, {SPIN_MAX}")
    k(f"s_cbranch_scc1 {k.name}_exit")
    k(f"s_sleep {sleep}")
    k(f"s_branch {top}")
    k.label(ok)

def role_att(k, s_a, fused=False):
    Q = 16; K = 32; V = 64; F = 96; VM = 112; S0 = 120; S1 = 124; SM = 128; C0 = 132; C1 = 136
    PK = 140; PM0 = 144; PM1 = 146; T0 = 148; T1 = 149; RS = 150; O = 160; OP = 192
    w = S_WAVE
    done = k.uid('attdone')
    k(f"""
    v_mbcnt_lo_u32_b32 v0, -1, 0
    v_mbcnt_hi_u32_b32 v0, -1, v0
    s_lshr_b32 s26, {s(s_a)}, 4
    s_and_b32 s27, {s(s_a)}, 15
    s_lshl_b32 s27, s27, 1
    s_lshr_b32 s28, {s(w)}, 1
    s_add_u32 s27, s27, s28              ; head
    s_and_b32 s28, {s(w)}, 1             ; qt
    v_lshrrev_b32 v2, 4, v0              ; g
    v_and_b32 v3, 15, v0                 ; n
    s_lshl_b32 s29, s28, 4
    v_add_u32 v3, s29, v3
    v_lshlrev_b32 v2, 2, v2              ; 4g
    v_sub_u32 v3, v3, v2                 ; q - 4g   (signed)
    v_mov_b32 v4, {NEG}
    """)
    for i in range(4):
        k(f"v_cmp_gt_i32 vcc, {i}, v3")
        k(f"v_cndmask_b32 {v(C0+i)}, 0, v4, vcc")
        k(f"v_cmp_gt_i32 vcc, {16+i}, v3")
        k(f"v_cndmask_b32 {v(C1+i)}, 0, v4, vcc")
    k(f"""
    v_min_u32 v5, 7, v0
    v_lshlrev_b32 v5, 2, v5
    v_min_u32 v6, 17, v0
    v_lshlrev_b32 v6, 2, v6
    v_lshlrev_b32 v1, 3, v0
    v_lshlrev_b32 v0, 4, v0
    v_mov_b32 {v(PM0+1)}, 0
    v_mov_b32 {v(PM1)}, 0
    s_lshl_b32 s30, s27, {HS}
    s_lshl_b32 s31, s26, {SS}
    s_add_u32 s30, s30, s31
    s_lshl_b32 s31, s28, 10              ; qt*1024
    s_lshl_b32 s32, s27, 12
    s_lshl_b32 s33, s28, 17
    s_add_u32 s32, s32, s33
    s_lshl_b32 s33, s26, 18
    s_add_u32 s32, s32, s33
    s_add_u32 s32, s32, {WS_O}
    s_lshl_b32 s34, s27, 6
    s_add_u32 s34, s34, {WS_SYNC+SY_FLAG+FL_FM}
    s_lshl_b32 s35, s27, 8
    s_add_u32 s35, s35, {WS_SYNC+SY_FLAG+FL_G1}
    s_lshl_b32 s36, s26, 8               ; FL_O[rep][qt][h]
    s_lshl_b32 s37, s28, 7
    s_add_u32 s36, s36, s37
    s_lshl_b32 s37, s27, 2
    s_add_u32 s36, s36, s37
    s_add_u32 s36, s36, {WS_SYNC+SY_FLAG+FL_O}
    s_mov_b32 s40, 0
    s_mov_b32 s41, {float_hex(128 ** -0.5 * LOG2E)}
    """)
    def qkv_loads():
        if fused:
            k("s_add_u32 s37, s26, 1")
            spin_ge(k, T0, 6, 35, 37, 40)
        k(f"s_add_u32 s37, s30, {WS_Q}")
        k(f"s_add_u32 s37, s37, s31")
        k(f"s_add_u32 s38, s37, 4096")
        for ks in range(4):
            k(f"buffer_load_dwordx4 {v(Q+4*ks,4)}, v0, {s(SRD_WS,4)}, {'s37' if ks < 2 else 's38'} offen offset:{2048*(ks%2)} sc1")
        for base, reg in ((WS_K, K), (WS_VT, V)):
            k(f"s_add_u32 s37, s30, {base}")
            k(f"s_add_u32 s38, s37, 4096")
            for f in range(8):
                k(f"buffer_load_dwordx4 {v(reg+4*f,4)}, v0, {s(SRD_WS,4)}, {'s37' if f < 4 else 's38'} offen offset:{1024*(f%4)} sc1")
    qkv_loads()
    loop = k.uid('attloop'); k.label(loop)
    k("s_waitcnt vmcnt(8)")
    for ks in range(4):
        for tt, S, C in ((0, S0, C0), (1, S1, C1)):
            k(f"v_mfma_f32_16x16x32_bf16 {v(S,4)}, {v(K+8*ks+4*tt,4)}, {v(Q+4*ks,4)}, {v(C if ks == 0 else S,4)}")
    if fused:
        k("s_add_u32 s37, s26, 1")
        spin_ge(k, T0, 5, 34, 37, 40)
    k(f"s_add_u32 s37, s30, {WS_FM}")
    k(f"s_add_u32 s38, s37, 4096")
    for ks in range(4):
        k(f"buffer_load_dwordx4 {v(F+4*ks,4)}, v0, {s(SRD_WS,4)}, s37 offen offset:{1024*ks} sc1")
    for b in range(4):
        k(f"buffer_load_dwordx2 {v(VM+2*b,2)}, v0, {s(SRD_WS,4)}, s38 offen offset:{1024*b} sc1")
    k(f"v_max3_f32 {v(T0)}, {v(S0)}, {v(S0+1)}, {v(S0+2)}")
    k(f"v_max3_f32 {v(T1)}, {v(S0+3)}, {v(S1)}, {v(S1+1)}")
    k(f"v_max3_f32 {v(T1)}, {v(T1)}, {v(S1+2)}, {v(S1+3)}")
    k(f"v_max_f32 {v(T0)}, {v(T0)}, {v(T1)}")
    for ks in range(4):
        k(f"s_waitcnt vmcnt({7-ks})")
        k(f"v_mfma_f32_16x16x32_bf16 {v(SM,4)}, {v(F+4*ks,4)}, {v(Q+4*ks,4)}, {'0' if ks == 0 else v(SM,4)}")
    k(f"""
    v_max3_f32 {v(T0)}, {v(T0)}, {v(SM)}, {v(SM+1)}
    v_mov_b32 {v(T1)}, {v(T0)}
    v_permlane32_swap_b32 {v(T0)}, {v(T1)}
    v_max_f32 {v(T0)}, {v(T0)}, {v(T1)}
    v_mov_b32 {v(T1)}, {v(T0)}
    v_permlane16_swap_b32 {v(T0)}, {v(T1)}
    v_max_f32 {v(T0)}, {v(T0)}, {v(T1)}
    v_mul_f32 {v(T0)}, s41, {v(T0)}
    """)
    sv = [S0 + i for i in range(10)]
    for x in sv: k(f"v_fma_f32 {v(x)}, {v(x)}, s41, -{v(T0)}")
    for x in sv: k(f"v_exp_f32 {v(x)}, {v(x)}")
    for i in range(4): k(f"v_cvt_pk_bf16_f32 {v(PK+i)}, {v(S0+2*i)}, {v(S0+2*i+1)}")
    k(f"v_cvt_pk_bf16_f32 {v(PM0)}, {v(SM)}, {v(SM+1)}")
    k(f"v_mov_b32 {v(PM1+1)}, {v(PM0)}")
    k("s_waitcnt vmcnt(0)")
    for et in range(8):
        k(f"v_mfma_f32_16x16x32_bf16 {v(O+4*et,4)}, {v(V+4*et,4)}, {v(PK,4)}, 0")
        if et == 0:
            k(f"v_pk_add_f32 {v(S0,2)}, {v(S0,2)}, {v(S0+2,2)}")
            k(f"v_pk_add_f32 {v(S1,2)}, {v(S1,2)}, {v(S1+2,2)}")
        if et == 1:
            k(f"v_pk_add_f32 {v(S0,2)}, {v(S0,2)}, {v(SM,2)}")
        if et == 2:
            k(f"v_pk_add_f32 {v(S0,2)}, {v(S0,2)}, {v(S1,2)}")
        if et == 3:
            k(f"v_add_f32 {v(RS)}, {v(S0)}, {v(S0+1)}")
        if et == 4:
            xsum_g(k, RS, T1)
        if et == 7:
            k(f"v_rcp_f32 {v(RS)}, {v(RS)}")
    for et in range(8):
        k(f"v_mfma_f32_16x16x16_bf16 {v(O+4*et,4)}, {v(VM+2*(et//2),2)}, {v(PM1 if et % 2 else PM0,2)}, {v(O+4*et,4)}")
    k(f"v_mov_b32 {v(RS+1)}, {v(RS)}")
    for b in range(4):
        for i in range(4):
            o = O + 8*b + 2*i
            k(f"v_pk_mul_f32 {v(o,2)}, {v(o,2)}, {v(RS,2)}")
            k(f"v_cvt_pk_bf16_f32 {v(OP+4*b+i)}, {v(o)}, {v(o+1)}")
        k(f"buffer_store_dwordx4 {v(OP+4*b,4)}, v0, {s(SRD_WS,4)}, s32 offen offset:{1024*b} sc1")
    k(f"""
    s_add_u32 s26, s26, 4
    s_add_u32 s30, s30, {4 << SS}
    s_add_u32 s32, s32, {4 << 18}
    """)
    if fused:
        k(f"v_mov_b32 {v(T1)}, s26")
        k("s_waitcnt vmcnt(0)")
        k(f"buffer_store_dword {v(T1)}, off, {s(SRD_WS,4)}, s36 sc1")
    k("s_cmp_ge_u32 s26, 64")
    k(f"s_cbranch_scc1 {done}")
    qkv_loads()
    k(f"s_branch {loop}")
    k.label(done)

def role_out(k, s_x, s_blk, fused=False):
    ACS = 16; ACG = 24; RA = 32; RB = 88; W2 = 144; WO = 256
    w = S_WAVE
    done = k.uid('outdone')
    srd(k, SRD_A, KA_WO, 4096 * 1280); srd(k, SRD_B, KA_W2, 1728 * 1280)
    srd(k, SRD_C, KA_X, 2048 * 1280); srd(k, 28, KA_OUT, 2048 * 1280)
    SRD_O = 28
    k(f"""
    v_mbcnt_lo_u32_b32 v0, -1, 0
    v_mbcnt_hi_u32_b32 v0, -1, v0
    v_lshrrev_b32 v1, 4, v0              ; g
    v_bfe_u32 v2, v0, 2, 2
    v_lshl_add_u32 v2, v1, 3, v2
    v_mul_u32_u24 v2, 1280, v2
    v_and_b32 v3, 3, v0
    v_lshl_add_u32 v2, v3, 4, v2
    v_and_b32 v3, 15, v0
    v_mul_u32_u24 v3, 1280, v3
    v_lshl_add_u32 v3, v1, 4, v3         ; v3 = n*1280 + 16g
    s_lshl_b32 s32, {s(s_blk)}, 6
    s_lshl_b32 s33, {s(w)}, 2
    s_add_u32 s33, s33, s32
    v_add_u32 v3, s33, v3
    v_and_b32 v5, 7, v0
    v_lshlrev_b32 v5, 2, v5
    v_lshlrev_b32 v7, 2, v0
    v_lshlrev_b32 v0, 4, v0
    s_lshl_b32 s34, {s(w)}, 15
    s_add_u32 s34, s34, 32768
    v_add_u32 v4, s34, v0
    s_mul_i32 s35, {s(w)}, {1024*1280}
    s_add_u32 s35, s35, s32
    s_mul_i32 s36, {s(w)}, {32*1280}
    s_add_u32 s36, s36, s32              ; w2 base
    s_lshl_b32 s37, {s(w)}, 12
    v_add_u32 v6, s37, v0
    s_lshr_b32 s37, {s(w)}, 1
    s_lshl_b32 s37, s37, 10
    s_and_b32 s38, {s(w)}, 1
    s_lshl_b32 s38, s38, 3
    s_add_u32 s37, s37, s38
    v_add_u32 v8, s37, v0
    s_barrier
    """)
    pieces = []
    for i in range(14):
        for u in range(2):
            pieces.append((SRD_B, 36, (128*i + 4*u) * 1280, 2, [(W2 + 8*i + 4*t + 2*u, 8*t) for t in range(2)]))
    for ks in range(32):
        for u in range(2):
            pieces.append((SRD_A, 35, (32*ks + 4*u) * 1280, 2, [(WO + 8*ks + 4*t + 2*u, 8*t) for t in range(2)]))
    wload(k, pieces, 4, 34, 32, 39)
    nz = k.uid('nz')
    k(f"s_cmp_lt_u32 {s(w)}, 2")
    k(f"s_cbranch_scc1 {nz}")
    for i in range(8): k(f"v_mov_b32 {v(W2+8*13+i)}, 0")
    k.label(nz)
    k(f"""
    s_mov_b32 s40, {s(s_x)}
    s_mul_i32 s41, s40, {54*1024}
    s_lshl_b32 s39, {s(w)}, 10
    s_add_u32 s41, s41, s39
    s_add_u32 s41, s41, {WS_ACT}
    s_lshl_b32 s42, s40, 17
    s_lshl_b32 s39, {s(w)}, 15
    s_add_u32 s42, s42, s39
    s_add_u32 s42, s42, {WS_O}
    s_cmp_lt_u32 {s(w)}, 2
    s_cselect_b32 s43, {13*4096}, 0
    s_mov_b32 s44, 0
    s_mov_b32 s45, 0
    s_lshl_b32 s46, {s(w)}, 5
    s_add_u32 s46, s46, {WS_SYNC+SY_FLAG+FL_O}
    """)
    if fused:
        k(f"s_mov_b32 s38, {WS_SYNC+SY_FLAG+FL_FF}")
        k("s_mov_b32 s39, 64")
        for i in range(3):
            spin_ge(k, 9, 7, 38, 39, 44, off=256*i)
    def act_load(i):
        if i < 13: k(f"s_add_u32 s39, s41, {4096*i}")
        else: k("s_add_u32 s39, s41, s43")
        k(f"buffer_load_dwordx4 {v(RA+4*i,4)}, v0, {s(SRD_WS,4)}, s39 offen sc1")
    def oreg(f):
        return RB + 4*f if f < 14 else (RA + 4*(f-14) if f < 28 else RB + 4*(f-28))
    def o_load(f):
        if f % 4 == 0: k(f"s_add_u32 s38, s42, {1024*f}")
        k(f"buffer_load_dwordx4 {v(oreg(f),4)}, v0, {s(SRD_WS,4)}, s38 offen offset:{1024*(f%4)} sc1")
    for i in range(14): act_load(i)
    k(f"buffer_load_dword v9, v3, {s(SRD_C,4)}, 0 offen")
    loop = k.uid('outloop'); k.label(loop)
    k("s_mul_i32 s47, s40, 20480")
    for i in range(14):
        k(f"s_waitcnt vmcnt({14-i})")
        for t in range(2):
            k(f"v_mfma_f32_16x16x32_bf16 {v(ACG+4*t,4)}, {v(W2+8*i+4*t,4)}, {v(RA+4*i,4)}, {'0' if i == 0 else v(ACG+4*t,4)}")
    if fused:
        k(f"""
        s_lshr_b32 s38, s40, 1
        s_add_u32 s39, s38, 1
        s_and_b32 s38, s40, 7            ; (seg&3)*2+tt
        s_lshl_b32 s38, s38, 7
        s_add_u32 s38, s38, s46
        """)
        spin_ge(k, 9, 5, 38, 39, 44)
    for f in range(28): o_load(f)
    k(f"buffer_load_dword v9, v3, {s(SRD_C,4)}, s47 offen")
    k("v_add_u32 v10, s45, v6")
    k("v_add_u32 v11, s45, v8")
    for t in range(2):
        k(f"ds_write_b128 v10, {v(ACG+4*t,4)} offset:{2048+1024*t}")
    k(f"s_add_u32 s41, s41, {6*54*1024}")
    k("s_add_u32 s48, s40, 6")
    k("s_cmp_lt_u32 s48, 128")
    k(f"s_cselect_b32 s41, s41, {WS_ACT}")
    q = [f'o{f}' for f in range(28)] + ['x']
    for f in range(32):
        idx = q.index(f'o{f}')
        k(f"s_waitcnt vmcnt({len(q)-idx-1})")
        del q[:idx+1]
        for t in range(2):
            k(f"v_mfma_f32_16x16x32_bf16 {v(ACS+4*t,4)}, {r(WO+8*f+4*t,4)}, {v(oreg(f),4)}, {'0' if f == 0 else v(ACS+4*t,4)}")
        if f < 4:
            o_load(28 + f); q.append(f'o{28+f}')
        if 14 <= f < 28:
            act_load(f - 14); q.append(f'a{f-14}')
    for t in range(2):
        k(f"ds_write_b128 v10, {v(ACS+4*t,4)} offset:{1024*t}")
    k("s_waitcnt lgkmcnt(0)")
    k("s_barrier")
    E = RB
    for p in range(2):
        for ww in range(4):
            k(f"ds_read_b64 {v(E+8*p+2*ww,2)}, v11 offset:{4096*ww+2048*(1-p)}")
    G = E; S = E + 8
    k("s_waitcnt lgkmcnt(4)")
    k(f"v_pk_add_f32 {v(G,2)}, {v(G,2)}, {v(G+2,2)}")
    k(f"v_pk_add_f32 {v(G+4,2)}, {v(G+4,2)}, {v(G+6,2)}")
    k(f"v_pk_add_f32 {v(G,2)}, {v(G,2)}, {v(G+4,2)}")
    def rb2(x, t):
        k(f"v_cvt_pk_bf16_f32 {v(t)}, {v(x)}, {v(x+1)}")
        k(f"v_lshlrev_b32 {v(x)}, 16, {v(t)}")
        k(f"v_and_b32 {v(x+1)}, 0xffff0000, {v(t)}")
    rb2(G, G+2)
    for i in range(2):
        k(f"v_mul_f32 {v(G+2+i)}, {float_hex(-LOG2E)}, {v(G+i)}")
        k(f"v_exp_f32 {v(G+2+i)}, {v(G+2+i)}")
    for i in range(2):
        k(f"v_add_f32 {v(G+2+i)}, 1.0, {v(G+2+i)}")
        k(f"v_rcp_f32 {v(G+2+i)}, {v(G+2+i)}")
    k("s_waitcnt lgkmcnt(0)")
    k(f"v_pk_add_f32 {v(S,2)}, {v(S,2)}, {v(S+2,2)}")
    k(f"v_pk_add_f32 {v(S+4,2)}, {v(S+4,2)}, {v(S+6,2)}")
    k(f"v_pk_add_f32 {v(S,2)}, {v(S,2)}, {v(S+4,2)}")
    k(f"v_pk_mul_f32 {v(G,2)}, {v(G,2)}, {v(G+2,2)}")
    rb2(S, S+2)
    rb2(G, G+2)
    k(f"v_pk_mul_f32 {v(S,2)}, {v(S,2)}, {v(G,2)}")
    k(f"v_lshlrev_b32 {v(G)}, 16, v9")
    k(f"v_and_b32 {v(G+1)}, 0xffff0000, v9")
    rb2(S, S+2)
    k(f"v_pk_add_f32 {v(S,2)}, {v(S,2)}, {v(G,2)}")
    k(f"v_cvt_pk_bf16_f32 v12, {v(S)}, {v(S+1)}")
    k(f"buffer_store_dword v12, v3, {s(SRD_O,4)}, s47 offen")
    k(f"""
    s_mov_b32 s40, s48
    s_add_u32 s42, s42, {6 << 17}
    s_xor_b32 s45, s45, 16384
    s_cmp_lt_u32 s40, 128
    s_cbranch_scc1 {loop}
    """)
    k.label(done)

def dev_att():
    k = Kernel("att_kernel"); prologue(k)
    k(f"""
    s_cmp_lt_u32 {s(S_X)}, 2
    s_cbranch_scc1 {k.name}_exit
    s_cmp_lt_u32 {s(S_T)}, 20
    s_cbranch_scc1 {k.name}_exit
    s_sub_u32 s6, {s(S_X)}, 2
    s_mul_i32 s6, s6, 12
    s_add_u32 s6, s6, {s(S_T)}
    s_sub_u32 s6, s6, 20
    s_cmp_ge_u32 s6, 64
    s_cbranch_scc1 {k.name}_exit
    """)
    role_att(k, 6)
    epilogue(k); return k
def dev_out():
    k = Kernel("out_kernel"); prologue(k)
    k(f"""
    s_cmp_lt_u32 {s(S_X)}, 2
    s_cbranch_scc1 {k.name}_exit
    s_cmp_ge_u32 {s(S_T)}, 20
    s_cbranch_scc1 {k.name}_exit
    s_sub_u32 s6, {s(S_X)}, 2
    """)
    role_out(k, 6, S_T)
    epilogue(k); return k
```

```python
import sys
import gen
DEV = len(sys.argv) > 1 and sys.argv[1] == 'dev'
gen.STAMPS = DEV
from gen import *
import team2, work
team2.STAMPS = DEV

def fprologue(k):
    ex = f"{k.name}_exit"
    k(f"""
    s_load_dwordx16 s[64:79], s[0:1], 0
    s_load_dwordx8 s[80:87], s[0:1], 64
    s_load_dwordx4 s[88:91], s[0:1], 96
    v_lshrrev_b32 v1, 6, v0
    v_and_b32 v0, 63, v0
    v_readfirstlane_b32 {s(S_WAVE)}, v1
    s_getreg_b32 s6, hwreg(HW_REG_XCC_ID)
    s_and_b32 s6, s6, 7
    s_lshl_b32 s7, s6, 3
    s_lshl_b64 s[28:29], 1, s7
    v_mov_b32 v4, 0
    s_waitcnt lgkmcnt(0)
    """)
    srd(k, SRD_WS, KA_WS, WS_SIZE)
    srd(k, SRD_DBG, KA_DBG, 256)
    nt = k.uid('notick')
    k(f"""
    s_cmp_lg_u32 {s(S_WAVE)}, 0
    s_cbranch_scc1 {nt}
    v_mov_b32 v2, s28
    v_mov_b32 v3, s29
    s_mov_b64 exec, 1
    buffer_atomic_add_x2 v[2:3], off, {s(SRD_DBG,4)}, 0 offset:{DB_TICK} sc0 sc1
    s_waitcnt vmcnt(0)
    ds_write_b64 v4, v[2:3]
    s_mov_b64 exec, -1
    s_waitcnt lgkmcnt(0)
    """)
    k.label(nt)
    k(f"""
    s_barrier
    ds_read_b64 v[2:3], v4
    s_waitcnt lgkmcnt(0)
    s_barrier
    v_sad_u8 v5, v2, 0, 0
    v_sad_u8 v5, v3, 0, v5
    v_readfirstlane_b32 s30, v2
    v_readfirstlane_b32 s31, v3
    v_readfirstlane_b32 s32, v5
    s_cmp_ge_u32 s32, 256
    s_cbranch_scc1 {ex}
    s_lshr_b64 s[34:35], s[30:31], s7
    s_and_b32 {s(S_T)}, s34, 255
    s_mov_b32 {s(S_X)}, s6
    """)
    nz = k.uid('nz'); ns = k.uid('nsnap')
    k(f"""
    s_cmp_lg_u32 {s(S_WAVE)}, 0
    s_cbranch_scc1 {nz}
    s_lshl_b32 s33, s32, 6
    s_add_u32 s33, s33, {WS_SYNC+SY_FLAG}
    v_lshlrev_b32 v5, 2, v0
    s_mov_b64 exec, 0xffff
    buffer_store_dword v4, v5, {s(SRD_WS,4)}, s33 offen sc1
    s_mov_b64 exec, -1
    s_cmp_lg_u32 s32, 255
    s_cbranch_scc1 {nz}
    s_add_u32 s34, s30, s28
    s_addc_u32 s35, s31, s29
    v_mov_b32 v2, s34
    v_mov_b32 v3, s35
    buffer_store_dwordx2 v[2:3], off, {s(SRD_DBG,4)}, 0 offset:{DB_SNAP} sc1
    """)
    k.label(nz)
    ok = k.uid('roleok'); sp = k.uid('snsp'); got = k.uid('sngot')
    k(f"""
    s_cmp_lt_u32 {s(S_T)}, 32
    s_cbranch_scc1 {ok}
    s_mov_b32 s36, 0
    """)
    k.label(sp)
    k(f"""
    buffer_load_dwordx2 v[2:3], off, {s(SRD_DBG,4)}, 0 offset:{DB_SNAP} sc1
    s_waitcnt vmcnt(0)
    v_readfirstlane_b32 s34, v2
    v_readfirstlane_b32 s35, v3
    s_cmp_lg_u64 s[34:35], 0
    s_cbranch_scc1 {got}
    s_add_u32 s36, s36, 1
    s_cmp_gt_u32 s36, {SPIN_MAX}
    s_cbranch_scc1 {ex}
    s_sleep 2
    s_branch {sp}
    """)
    k.label(got)
    k(f"s_sub_u32 s37, {s(S_T)}, 32")
    for x in range(7):
        k(f"""
        s_bfe_u32 s38, s{34 + x//4}, {(8 << 16) | (8*(x % 4))}
        s_max_u32 s38, s38, 32
        s_sub_u32 s38, s38, 32
        s_cmp_gt_u32 s6, {x}
        s_cselect_b32 s38, s38, 0
        s_add_u32 s37, s37, s38
        """)
    k(f"s_mov_b32 {s(S_X)}, 7")
    k(f"s_mov_b32 {s(S_T)}, 31")
    k("s_mov_b32 s40, 0")
    for x in range(8):
        k(f"""
        s_bfe_u32 s38, s{34 + x//4}, {(8 << 16) | (8*(x % 4))}
        s_min_u32 s38, s38, 32
        s_add_u32 s39, s38, s37
        s_cmp_lt_u32 s39, 32
        s_cselect_b32 s41, 1, 0
        s_andn2_b32 s41, s41, s40
        s_or_b32 s40, s40, s41
        s_cmp_lg_u32 s41, 0
        s_cselect_b32 {s(S_X)}, {x}, {s(S_X)}
        s_cselect_b32 {s(S_T)}, s39, {s(S_T)}
        s_sub_u32 s37, s39, 32
        """)
    k.label(ok)
    k(f"""
    s_lshl_b32 {s(S_WG)}, {s(S_T)}, 3
    s_add_u32 {s(S_WG)}, {s(S_WG)}, {s(S_X)}
    """)

def role_pol(k):
    k(f"""
    s_mov_b32 s30, -1
    s_mov_b32 s31, -1
    s_mov_b32 s32, {WS_SYNC+SY_MEMR+6144}
    s_mov_b32 s33, 0
    v_lshlrev_b32 v5, 2, v0
    s_mov_b64 exec, 0xffff
    """)
    l = k.uid('pol'); k.label(l)
    for p in range(2):
        k(f"""
        s_memtime s[34:35]
        s_waitcnt lgkmcnt(0)
        buffer_store_dword v5, v5, {s(SRD_WS,4)}, s32 offen sc1
        s_waitcnt vmcnt(0)
        s_memtime s[36:37]
        s_add_u32 s32, s32, 8192
        s_waitcnt lgkmcnt(0)
        s_sub_u32 s36, s36, s34
        s_min_u32 s{30+p}, s{30+p}, s36
        """)
    k(f"""
    s_add_u32 s33, s33, 1
    s_cmp_lt_u32 s33, 8
    s_cbranch_scc1 {l}
    s_cmp_lt_u32 s31, s30
    s_cselect_b32 s33, 3, 2
    v_mov_b32 v6, s33
    buffer_store_dword v6, off, {s(SRD_DBG,4)}, 0 offset:{DB_POL} sc1
    s_mov_b64 exec, -1
    """)
    if DEV:
        k(f"v_mov_b32 v6, s30\nv_mov_b32 v7, s31\nbuffer_store_dwordx2 v[6:7], off, {s(SRD_DBG,4)}, 0 offset:{DB_POL+8} sc1")

def build(name, P):
    k = Kernel(name); k.timed = True
    fprologue(k)
    ex = f"{k.name}_exit"
    wk = k.uid('worker')
    k(f"s_cmp_ge_u32 {s(S_X)}, 2")
    k(f"s_cbranch_scc1 {wk}")
    team2.role_team(k, P, fused=True)
    k("s_endpgm")
    k.label(wk)
    stamp(k, 3, 6)
    noln = k.uid('noln'); nw0 = k.uid('nw0')
    k(f"""
    s_cmp_lg_u32 {s(S_WAVE)}, 0
    s_cbranch_scc1 {nw0}
    v_mov_b32 v6, 1
    s_waitcnt vmcnt(0)
    s_mov_b64 exec, 1
    buffer_atomic_add v6, off, {s(SRD_DBG,4)}, 0 offset:{DB_INIT} sc1
    s_mov_b64 exec, -1
    s_sub_u32 s6, {s(S_X)}, 2
    s_mul_i32 s7, {s(S_T)}, 6
    s_add_u32 s6, s6, s7
    s_cmp_ge_u32 s6, 128
    s_cbranch_scc1 {noln}
    """)
    role_ln(k, 6)
    k(f"""
    v_mov_b32 v6, 1
    s_waitcnt vmcnt(0)
    s_mov_b64 exec, 1
    buffer_atomic_add v6, off, {s(SRD_DBG,4)}, 0 offset:{DB_LN} sc1
    s_mov_b64 exec, -1
    """)
    k.label(noln)
    k(f"s_cmp_lg_u32 {s(S_WG)}, {31*8+2}")
    k(f"s_cbranch_scc1 {nw0}")
    role_pol(k)
    k.label(nw0)
    n31 = k.uid('n31')
    k(f"s_cmp_lg_u32 {s(S_T)}, 31")
    k(f"s_cbranch_scc1 {n31}")
    wait_dbg(k, ln=False)
    k(f"""
    s_barrier
    s_lshl_b32 s49, {s(S_X)}, 5
    s_add_u32 s49, s49, {s(S_WAVE)}
    s_lshl_b32 s49, s49, 2
    s_add_u32 s49, s49, {WS_SYNC+SY_FLAG+FL_FF - 256 + 112}
    v_mov_b32 v6, 64
    buffer_store_dword v6, off, {s(SRD_WS,4)}, s49 sc1
    """)
    k.label(n31)
    role_gemm1(k, fused=True)
    att = k.uid('att')
    k(f"""
    s_sub_u32 s6, {s(S_X)}, 2
    s_cmp_ge_u32 {s(S_T)}, 20
    s_cbranch_scc1 {att}
    """)
    work.role_out(k, 6, S_T, fused=True)
    stamp(k, 4, 6)
    k("s_endpgm")
    k.label(att)
    k(f"""
    s_sub_u32 s7, 31, {s(S_T)}
    s_mul_i32 s7, s7, 6
    s_add_u32 s6, s6, s7
    s_cmp_ge_u32 s6, 64
    s_cbranch_scc1 {ex}
    """)
    work.role_att(k, 6, fused=True)
    stamp(k, 4, 6)
    epilogue(k)
    return k

if __name__ == '__main__':
    if DEV:
        variants = eval(open('fvariants.txt').read())
        ks = []
        for n, d in variants.items():
            P = dict(team2.TP); P.update(d)
            ks.append(build(f"f{n}_kernel", P))
        emit(ks, 'dev.s')
    else:
        k = build(NAME + "_kernel", dict(team2.TP))
        n = k.pad(); wn = k.lint()
        print(k.count(), n, len(wn))
        open('cdna_kernels/' + NAME + '.s', 'w').write("; @launch grid=(256,1,1) block=(256,1,1) lds=163840\n" + '.amdgcn_target "amdgcn-amd-amdhsa--gfx950"\n' + kernel_block(k.name, k.text()))
```

```python
import sys, math
from gen import *

LK, LL, LR, LW, LWS = 0, 8192, 12288, 16384, 36864
ACC = 16; A = 40; PP = 60; WB = 96
AQ, AK, AV = ACC, ACC + 8, ACC + 16
SRD_WO = 96
V16, VIDX, VFW, V8, VOW, VPS, VPL, VPUB, VLW, VC0, VQ, VSEL, VDUM = 0, 1, 2, 3, 4, 5, 6, 7, 8, 9, 13, 14, 15
HINT_OFF = 16384 + 6144

LGRP = [('L', 0, 1), ('L', 0, 2), ('L', 2, 1), ('L', 2, 2), ('L', 3, 2), ('L', 4, 2), ('R', 3, 1), ('R', 4, 1), ('O', 3)]
LKEYS = [g + (t,) for g in LGRP for t in range(2)]
WLDS = {}
WREG = {}
for key in [(l, i, m, t) for l in 'LR' for i in range(5) for m in range(3) for t in range(2)] + [('O', j, ke) for j in range(5) for ke in range(2)]:
    if key not in LKEYS: WREG[key] = WB + 8 * len(WREG)
assert len(WREG) == 52
WS_ST2 = 0x7000000

def delay(k, n):
    n = n // 4
    while n > 0:
        t = min(n, 16); k(f"s_nop {t-1}"); n -= t

def calib(k, P, dst):
    k("s_memtime s[38:39]")
    for i in range(13):
        k(f"s_memrealtime s[{64+2*i}:{65+2*i}]")
        k("s_nop 0")
    k("s_waitcnt lgkmcnt(0)")
    k(f"s_lshr_b32 s{dst}, s64, 2")
    k(f"s_mul_i32 s{dst}, s{dst}, {P.get('ratio', 91)}")
    k(f"s_sub_u32 s{dst}, s{dst}, s38")
    for i in range(1, 13):
        k(f"s_cmp_eq_u32 s64, s{64+2*i}")
        k("s_cselect_b32 s39, 8, 0")
        k(f"s_sub_u32 s{dst}, s{dst}, s39")

def role_team(k, P, fused=False, confirm=None):
    b = S_X; h = S_T; w = S_WAVE
    lst = P.get('lst', '')
    last = k.uid('last')
    srd(k, SRD_A, KA_WQ, 640 * 8192); srd(k, SRD_B, KA_WK, 640 * 8192); srd(k, SRD_C, KA_WV, 640 * 8192)
    srd(k, SRD_WO, KA_WO, 4096 * 1280)
    SR = [SRD_A, SRD_B, SRD_C]
    k(f"""
    v_lshrrev_b32 v16, 3, v0            ; rho
    v_and_b32 v17, 7, v0                ; cc
    v_and_b32 v18, 1, v16
    v_lshlrev_b32 v20, 2, v18           ; 4(rho&1)
    v_and_b32 v19, 2, v16
    v_add_u32 v20, v20, v19             ; + 2((rho>>1)&1)
    v_lshrrev_b32 v21, 2, v16
    v_add_u32 v20, v20, v21             ; + (rho>>2)
    v_lshlrev_b32 v20, 13, v20
    v_lshlrev_b32 v22, 1, v19
    v_xor_b32 v22, v22, v17
    v_lshl_add_u32 v20, v22, 4, v20
    v_lshl_add_u32 v21, v21, 2, v18
    v_lshl_add_u32 v21, v19, 2, v21     ; + 8((rho>>1)&1)
    v_mul_u32_u24 v21, 1280, v21
    v_lshl_add_u32 v21, v17, 4, v21
    s_mul_i32 s37, {s(w)}, {LWS}
    s_add_u32 s37, s37, {LW}
    s_lshl_b32 s38, {s(h)}, 8
    s_lshr_b32 s39, {s(w)}, 1
    s_lshl_b32 s39, s39, 7
    s_add_u32 s38, s38, s39
    s_mul_i32 s39, {s(b)}, {5*64*8192}
    s_add_u32 s50, s38, s39
    s_sub_u32 s39, {5*64*8192}, s39
    s_add_u32 s51, s38, s39
    s_lshl_b32 s39, {s(w)}, 19
    s_add_u32 s40, s50, s39             ; L type A
    s_add_u32 s42, s51, s39             ; R type A
    s_xor_b32 s39, s39, {2 << 19}
    s_add_u32 s41, s50, s39             ; L type B
    s_add_u32 s43, s51, s39             ; R type B
    s_bitcmp1_b32 {s(w)}, 0
    s_cselect_b32 s44, s51, s50
    s_add_u32 s44, s44, {4 << 19}       ; type C
    s_mul_i32 s45, {s(h)}, 163840
    s_mul_i32 s39, {s(b)}, 640
    s_add_u32 s45, s45, s39
    s_mul_i32 s46, {s(w)}, {32*1280}
    s_add_u32 s46, s46, s45
    s_add_u32 s46, s46, 512
    s_lshl_b32 s39, {s(w)}, 7
    s_add_u32 s45, s45, s39
    """)
    VOWN, VPAR, VEVN, VODD, VWO, VT4A, VT4B = 23, 24, 25, 26, 27, 28, 29
    def qkv_batch(sb, m, k0, a0, k1, a1):
        dm = [(SR[m], sb, 8*j*8192, 20) for j in range(8)]
        rd = []
        for kk, va in ((k0, a0), (k1, a1)):
            for t in range(2):
                for u in range(2):
                    for vv in range(2): rd.append((kk + (m, t), 4*u + 2*vv, va, u*4096 + vv*1024 + 8*t))
        return dm, rd
    def wo_batch(ke):
        dm = [(SRD_WO, 45, (64*ke + 32*(j >> 2) + 16*((j >> 1) & 1) + 2*(j & 1)) * 1280, 21) for j in range(8)]
        rd = [(('O', j, ke), 4*u + 2*vv, VWO, u*4096 + vv*1024 + 8*j) for j in range(4) for u in range(2) for vv in range(2)]
        return dm, rd
    B = {}
    for m in range(3):
        B['LA', m] = qkv_batch(40, m, ('L', 0), VOWN, ('L', 2), VPAR)
        B['LB', m] = qkv_batch(41, m, ('L', 3), VOWN, ('L', 4), VPAR)
        B['RA', m] = qkv_batch(42, m, ('R', 0), VOWN, ('R', 2), VPAR)
        B['RB', m] = qkv_batch(43, m, ('R', 3), VOWN, ('R', 4), VPAR)
        B['C', m] = qkv_batch(44, m, ('L', 1), VEVN, ('R', 1), VODD)
    for ke in range(2): B['O', ke] = wo_batch(ke)
    nl = lambda x: len({r[0] for r in B[x][1] if r[0] in LKEYS})
    order = sorted(B, key=nl)
    NB = len(order)
    SPARE = 32768
    vq = []
    def issue(dm, ldsoff, tag):
        for j, (sr, sb, c, vg) in enumerate(dm):
            k(f"s_add_u32 s39, s{sb}, {c}")
            k(f"s_add_u32 m0, s37, {ldsoff + j*1024}")
            k(f"buffer_load_dwordx4 {v(vg)}, {s(sr,4)}, s39 offen lds")
            vq.append(tag)
    def vwait(tag):
        idx = max(i for i, t in enumerate(vq) if t == tag)
        k(f"s_waitcnt vmcnt({len(vq) - idx - 1})")
        del vq[:idx+1]
    issue([(SRD_WO, 46, (16*(j >> 1) + 2*(j & 1)) * 1280, 21) for j in range(4)], SPARE, 'o4')
    for n in range(4): issue(B[order[n]][0], n * 8192, n)
    stamp(k, 0, 30)
    if STAMPS: vq.extend(['st', 'st'])
    k(f"""
    v_lshrrev_b32 v16, 4, v0            ; g
    v_and_b32 v17, 15, v0               ; n
    v_bfe_u32 v18, v0, 1, 1
    v_mov_b32 {v(VIDX)}, 0x4444
    v_mul_u32_u24 v18, 0xaaaa, v18
    v_add_u32 {v(VIDX)}, {v(VIDX)}, v18
    s_lshl_b32 s35, {s(w)}, 10
    v_lshlrev_b32 {v(VFW)}, 5, v17
    v_lshl_add_u32 {v(VFW)}, v16, 3, {v(VFW)}
    v_add_u32 {v(VFW)}, s35, {v(VFW)}
    v_lshlrev_b32 {v(V8)}, 3, v0
    v_lshrrev_b32 v18, 1, v16
    v_lshlrev_b32 {v(VOW)}, 8, v18
    v_and_b32 v18, 1, v16
    v_lshl_add_u32 {v(VOW)}, v18, 5, {v(VOW)}
    v_lshrrev_b32 v18, 2, v17
    v_lshl_add_u32 {v(VOW)}, v18, 6, {v(VOW)}
    v_and_b32 v18, 1, v17
    v_lshl_add_u32 {v(VOW)}, v18, 4, {v(VOW)}
    v_bfe_u32 v18, v17, 1, 1
    v_xor_b32 v18, 1, v18
    v_lshl_add_u32 {v(VOW)}, v18, 11, {v(VOW)}
    s_lshl_b32 s36, {s(w)}, 9
    v_add_u32 {v(VOW)}, s36, {v(VOW)}
    v_and_b32 v18, 12, v17
    v_add_u32 v18, v18, v16
    v_lshlrev_b32 {v(VPS)}, 11, v18
    v_and_b32 v18, 3, v17
    v_lshl_add_u32 {v(VPS)}, v18, 4, {v(VPS)}
    v_lshl_add_u32 v18, v16, 2, v18
    v_lshlrev_b32 {v(VPL)}, 6, v18
    v_lshrrev_b32 v18, 2, v17
    v_lshl_add_u32 {v(VPL)}, v18, 4, {v(VPL)}
    v_lshrrev_b32 v18, 1, v16
    v_lshlrev_b32 {v(VPUB)}, 5, v18
    v_and_b32 v18, 1, v16
    v_lshl_add_u32 {v(VPUB)}, v18, 3, {v(VPUB)}
    v_bfe_u32 v19, v17, 2, 1
    v_lshl_add_u32 {v(VPUB)}, v19, 4, {v(VPUB)}
    v_and_b32 v18, 3, v17
    v_lshl_add_u32 {v(VPUB)}, v18, 1, {v(VPUB)}
    ; mem0 voff (v22) = p*1280 + (4cc+g)*2
    v_mul_u32_u24 v22, 1280, v19
    v_lshl_add_u32 v18, v18, 2, v16
    v_lshl_add_u32 v22, v18, 1, v22
    ; staging read addresses: rows part = (g>>1)*2048 + ((g&1)*4 + r)*128
    v_lshrrev_b32 v18, 1, v16
    v_lshlrev_b32 v19, 11, v18
    v_bfe_u32 v18, v0, 2, 3
    v_lshl_add_u32 v19, v18, 7, v19
    v_and_b32 v18, 3, v0                ; c
    v_lshl_add_u32 {v(VWO)}, v18, 5, v19
    v_add_u32 {v(VWO)}, s37, {v(VWO)}
    v_lshl_add_u32 {v(VT4A)}, v18, 3, v19
    s_lshl_b32 s38, {s(w)}, 5
    s_add_u32 s38, s38, {LW + SPARE}
    v_add_u32 {v(VT4A)}, s38, {v(VT4A)}
    v_add_u32 {v(VT4B)}, {2*LWS}, {v(VT4A)}
    v_lshl_add_u32 v19, v18, 4, v19
    v_bfe_u32 v18, v0, 3, 1             ; r>>1
    s_and_b32 s38, {s(w)}, 1
    v_xor_b32 v18, s38, v18
    v_lshl_add_u32 v19, v18, 6, v19
    v_add_u32 {v(VOWN)}, s37, v19
    s_xor_b32 s38, {s(w)}, 1
    s_mul_i32 s38, s38, {LWS}
    s_add_u32 s38, s38, {LW}
    v_add_u32 {v(VPAR)}, s38, v19
    v_min_u32 {v(VEVN)}, {v(VOWN)}, {v(VPAR)}
    v_max_u32 {v(VODD)}, {v(VOWN)}, {v(VPAR)}
    v_lshlrev_b32 {v(V16)}, 4, v0
    v_add_u32 {v(VLW)}, s37, {v(V16)}
    v_add_u32 {v(VC0)}, s35, {v(V16)}
    v_lshrrev_b32 {v(VQ)}, 2, {v(VC0)}
    v_xor_b32 {v(VC0+1)}, 0x400, {v(VC0)}
    v_xor_b32 {v(VC0+2)}, 0x800, {v(VC0)}
    v_xor_b32 {v(VC0+3)}, 0xc00, {v(VC0)}
    """)
    k(f"""
    s_mul_i32 s39, {s(b)}, {PART_GRP}
    s_add_u32 s39, s39, {WS_SYNC+SY_PART}
    s_lshl_b32 s100, {s(h)}, 6
    s_lshl_b32 s101, {s(w)}, 15
    s_add_u32 s100, s100, s101
    s_add_u32 s100, s100, s39
    s_lshl_b32 s28, {s(w)}, 5
    s_add_u32 s28, s28, {s(h)}           ; rho
    s_lshl_b32 s101, s28, 11
    s_add_u32 s101, s101, s39
    s_lshl_b32 s39, {s(b)}, 15
    s_add_u32 s29, s39, {WS_SYNC+SY_MEML}
    s_lshl_b32 s39, {s(b)}, 20
    s_add_u32 s30, s39, {WS_SYNC+SY_MEMR+8192*P.get('pol',0)}
    s_xor_b32 s39, s39, 0x100000
    s_add_u32 s31, s39, {WS_SYNC+SY_MEMR+8192*P.get('pol',0)}
    s_lshl_b32 s32, s28, 6
    s_mov_b32 s6, 0x00550055
    s_mov_b32 s7, 0x00550055
    """)
    def init_stores():
        k(f"""
        s_cmp_lt_u32 s28, 80
        s_cselect_b32 s56, -1, 0
        s_mov_b32 s57, s56
        s_mov_b32 s92, {s(KA_MEM0)}
        s_and_b32 s93, {s(KA_MEM0+1)}, 0xffff
        s_mov_b32 s94, 10240
        s_mov_b32 s95, 0x20000
        s_and_b32 s39, s28, 3
        s_mul_i32 s39, s39, 2560             ; g*2 rows
        s_lshr_b32 s38, s28, 2
        s_lshl_b32 s38, s38, 5               ; T*16 cols*2B
        s_add_u32 s39, s39, s38
        s_mul_i32 s38, {s(b)}, 640
        s_add_u32 s39, s39, s38
        s_and_b64 exec, s[6:7], s[56:57]
        buffer_load_ushort v16, v22, s[92:95], s39 offen
        buffer_load_ushort v17, v22, s[92:95], s39 offen offset:8
        s_mov_b64 exec, -1
        """)
        vq.extend(['m0', 'm0'])
        if fused:
            k(f"""
            s_add_u32 s38, s32, s29
            s_add_u32 s39, s32, s30
            v_mov_b32 v92, -1
            v_mov_b32 v93, -1
            v_mov_b32 v94, -1
            v_mov_b32 v95, -1
            v_lshrrev_b32 v18, 6, {v(V16)}      ; lane>>2
            v_and_b32 v19, 48, {v(V16)}
            v_lshl_add_u32 v18, v18, 13, v19
            s_add_u32 s34, s101, {PART_SLOT}
            s_mov_b64 exec, s[56:57]
            buffer_store_dwordx4 v[92:95], {v(V16)}, {s(SRD_WS,4)}, s101 offen sc1
            buffer_store_dwordx4 v[92:95], {v(V16)}, {s(SRD_WS,4)}, s101 offen offset:1024 sc1
            buffer_store_dwordx4 v[92:95], {v(V16)}, {s(SRD_WS,4)}, s34 offen sc1
            buffer_store_dwordx4 v[92:95], {v(V16)}, {s(SRD_WS,4)}, s34 offen offset:1024 sc1
            s_and_b32 exec_lo, s56, 0xfff0
            s_mov_b32 exec_hi, 0
            buffer_store_dwordx4 v[92:95], v18, {s(SRD_WS,4)}, s38 offen sc1
            s_and_b32 exec_lo, s56, 0xffffff00
            s_mov_b32 exec_hi, s56
            buffer_store_dwordx4 v[92:95], v18, {s(SRD_WS,4)}, s39 offen sc1
            s_mov_b64 exec, s[56:57]
            s_mov_b32 s34, s39
            """)
            for i in range(7):
                k(f"s_add_u32 s34, s34, {16*8192}")
                k(f"buffer_store_dwordx4 v[92:95], v18, {s(SRD_WS,4)}, s34 offen sc1")
            k("s_mov_b64 exec, -1")
            vq.extend(['in'] * 13)
    def pub0():
        if 'm0' in vq: vwait('m0')
        k(f"""
        s_add_u32 s38, s32, s29
        s_add_u32 s39, s32, s30
        s_xor_b32 s34, s39, 8192
        v_lshl_or_b32 v16, v17, 16, v16
        s_and_b64 exec, s[6:7], s[56:57]
        v_min_u32 v16, 0xfffffffe, v16
        buffer_store_dword v16, {v(VPUB)}, {s(SRD_WS,4)}, s39 offen sc1
        buffer_store_dword v16, {v(VPUB)}, {s(SRD_WS,4)}, s34 offen sc1
        buffer_store_dword v16, {v(VPUB)}, {s(SRD_WS,4)}, s38 offen sc1
        s_mov_b64 exec, -1
        """)
        vq.extend(['p0'] * 3)
    WLDS.clear()
    free = []; held = []; tpool = [32 + 8*i for i in range(8)]
    tmp = {}
    def flush():
        while held and free:
            key = held.pop(0); off = free.pop(0); WLDS[key] = off; t = tmp.pop(key)
            for hh in range(2): k(f"ds_write_b128 {v(VLW)}, {v(t + 4*hh, 4)} offset:{off + 1024*hh}")
            tpool.append(t)
    def consume(rd, base):
        new = []
        for (key, ro, va, off) in rd:
            if key in WREG: reg = WREG[key]
            else:
                if key not in tmp: tmp[key] = tpool.pop(0); new.append(key)
                reg = tmp[key]
            k(f"ds_read_b64_tr_b16 {r(reg + ro, 2)}, {v(va)} offset:{base + off}")
        k("s_waitcnt lgkmcnt(0)")
        held.extend(new)
    for n in range(NB):
        vwait(n)
        if n == 0 and confirm: confirm(0)
        if n == 9 and fused:
            assert 'p0' not in vq and 'in' not in vq
        k("s_barrier")
        if n == 0 and confirm: confirm(1)
        if n == 9 and fused:
            k(f"""
            s_cmp_eq_u32 {s(w)}, 0
            s_cselect_b32 exec_lo, 1, 0
            s_mov_b32 exec_hi, 0
            v_mov_b32 v16, 1
            buffer_atomic_add v16, off, {s(SRD_DBG,4)}, 0 offset:{DB_INIT} sc1
            s_mov_b64 exec, -1
            """)
            vq.append('at')
        if n == 0:
            if confirm: vq.append('fz')
            init_stores()
        if n == 4: pub0()
        if n == 1: free.extend([SPARE, SPARE + 2048])
        if n >= 1:
            if n + 3 < NB: issue(B[order[n+3]][0], ((n - 1) % 4) * 8192, n + 3)
            else: free.extend([((n - 1) % 4) * 8192 + 2048*q for q in range(4)])
        flush()
        rd = B[order[n]][1]
        if n == 0:
            for ke in range(2):
                for u in range(2):
                    for vv in range(2):
                        k(f"ds_read_b64_tr_b16 {r(WREG[('O', 4, ke)] + 4*u + 2*vv, 2)}, {v([VT4A, VT4B][ke])} offset:{u*LWS + vv*1024}")
        consume(rd, (n % 4) * 8192)
    k("s_barrier")
    free.extend([((NB - 1) % 4) * 8192 + 2048*q for q in range(4)])
    flush()
    assert not held and len(WLDS) == 18
    k("s_waitcnt lgkmcnt(0)")
    stamp(k, 1, 20)
    if fused:
        top = k.uid('tw'); ok = k.uid('twok')
        k("s_mov_b32 s43, 0")
        k(f"v_lshrrev_b32 v25, 2, {v(V16)}")
        k.label(top)
        k(f"""
        buffer_load_dword v24, v25, {s(SRD_DBG,4)}, 0 offen sc1
        s_waitcnt vmcnt(0)
        v_readlane_b32 s38, v24, {DB_INIT//4}
        v_readlane_b32 s39, v24, {DB_POL//4}
        v_readlane_b32 s90, v24, {DB_SNAP//4}
        s_cmp_eq_u32 s38, 256
        s_cselect_b32 s34, s39, 0
        s_cmp_lg_u32 s34, 0
        s_cbranch_scc1 {ok}
        s_add_u32 s43, s43, 1
        s_cmp_gt_u32 s43, {SPIN_MAX}
        s_cbranch_scc1 {last}
        s_sleep 2
        s_branch {top}
        """)
        k.label(ok)
        k(f"""
        s_and_b32 s39, s39, 1
        s_lshl_b32 s39, s39, 13
        s_add_u32 s30, s30, s39
        s_add_u32 s31, s31, s39
        s_and_b32 s90, s90, 0xffff
        """)
    k(f"""
    s_lshl_b32 s39, {s(h)}, {HS}
    s_lshl_b32 s54, {s(w)}, 11
    s_add_u32 s51, s54, {LK}             ; K dma lds base
    s_add_u32 s54, s54, s39
    s_add_u32 s53, s54, {WS_K}           ; K quarter (running)
    s_add_u32 s54, s54, {WS_VT}          ; VT(s) wave base (running)
    s_lshl_b32 s95, {s(w)}, 10
    s_lshl_b32 s55, {s(b)}, 12
    s_lshl_b32 s38, {s(w)}, 9
    s_add_u32 s55, s55, s38
    s_add_u32 s55, s55, s39
    s_add_u32 s55, s55, {WS_FM - (1 << SS)}          ; FM(s-1) store address (running)
    s_add_u32 s15, s39, {WS_K + (1 << SS)}           ; prefetch base (running)
    s_mov_b32 s56, 0x11111111
    s_mov_b32 s57, 0x11111111
    s_mov_b32 s58, 0x22222222
    s_mov_b32 s59, 0x22222222
    s_mov_b32 s60, 0x44444444
    s_mov_b32 s61, 0x44444444
    s_mov_b32 s62, 0x88888888
    s_mov_b32 s63, 0x88888888
    s_mov_b32 s33, 0
    s_mov_b32 s43, 0
    s_mov_b32 s44, 0
    s_mov_b32 s45, 0
    s_mov_b32 s46, 0
    s_mov_b32 s49, 0
    s_lshl_b32 s50, {s(h)}, 6
    s_lshl_b32 s39, {s(b)}, 2
    s_add_u32 s50, s50, s39
    s_add_u32 s50, s50, {WS_SYNC+SY_FLAG+FL_FM}
    s_cmp_eq_u32 {s(w)}, 3
    s_cselect_b32 s50, s50, {WS_SIZE}
    s_sub_u32 s52, {s(h)}, {s(w)}
    s_lshl_b32 s52, s52, 8
    s_add_u32 s52, s52, {WS_SYNC+SY_FLAG+FL_G1}   ; K/V flag line (minus the wave part of VQ)
    s_cmp_lt_u32 {s(w)}, 2
    s_cselect_b32 s15, s15, s52
    s_cselect_b32 s21, {1 << SS}, 0      ; prefetch increment
    s_cselect_b32 s93, 4, 0
    s_cselect_b32 s94, 0, 1              ; tag mask of dwords 1..3
    s_cmp_lt_u32 s28, 80
    s_cselect_b32 s12, s6, 0
    s_mov_b32 s13, s12
    s_lshl_b32 s20, s28, 8
    s_cmp_lt_u32 s28, 20
    s_cselect_b32 s20, s20, {WS_SIZE}
    s_mov_b32 s14, {float_hex(128 ** -0.5 * math.log2(math.e))}
    s_mov_b32 s16, {WS_SIZE}
    s_mov_b32 s17, 0
    s_cmp_eq_u32 {s(b)}, 0
    s_cselect_b32 s92, -1, 0
    s_lshl_b32 s99, {s(b)}, 12
    s_add_u32 s99, s99, {WS_SYNC+SY_HINT}
    s_lshl_b32 s91, {s(h)}, 2
    s_add_u32 s91, s91, s99              ; hint store
    s_cmp_eq_u32 {s(w)}, {P.get('stw', 3)}
    s_cselect_b32 s98, s91, s16
    s_add_u32 s91, s91, 128              ; late hint store
    s_lshl_b32 s39, {s(w)}, 8
    s_sub_u32 s99, s99, s39              ; hint load base (minus wave part of VQ)
    s_cmp_eq_u32 s28, {96 + P.get('rep', 0)}
    s_cselect_b32 s16, {5120 - 64 * (96 + P.get('rep', 0))}, s16
    s_mul_i32 s26, {s(w)}, {-(32768 - 8192)}
    s_add_u32 s26, s26, {64*2048}
    s_mov_b32 s27, 0
    s_mov_b32 s37, 0x3c00
    s_mov_b32 s24, 0
    s_mov_b32 s42, 1
    """)
    def kvspin(back):
        top = k.uid('kvs'); k.label(top)
        k(f"""
        buffer_load_dword {v(VSEL)}, {v(VQ)}, {s(SRD_WS,4)}, s52 offen sc1
        s_waitcnt vmcnt(0)
        v_cmp_ge_u32 vcc, s42, {v(VSEL)}
        s_and_b32 s39, vcc_lo, 0xfff
        s_cbranch_scc0 {back}
        s_add_u32 s44, s44, 1
        s_cmp_gt_u32 s44, {SPIN_MAX}
        s_cbranch_scc1 {last}
        s_sleep 1
        s_branch {top}
        """)
    if fused:
        k(f"s_add_u32 s34, s101, {PART_SLOT}")
        for sb in (101, 34):
            for o in (0, 1024): k(f"buffer_load_dwordx4 {v(A+8,4)}, {v(V16)}, {s(SRD_WS,4)}, s{sb} offen offset:{o} sc1")
        k(f"v_lshlrev_b32 {v(VDUM)}, 3, {v(VC0)}")
        k(f"buffer_load_dword {v(A+8)}, {v(VDUM)}, {s(SRD_WS,4)}, s29 offen sc1")
        kok = k.uid('kok'); kvspin(kok); k.label(kok)
    k("s_mov_b32 m0, s51")
    for o in (0, 1024): k(f"buffer_load_dwordx4 {v(V16)}, {s(SRD_WS,4)}, s53 offen offset:{o} sc1 lds")
    k(f"buffer_load_dwordx4 {v(A+8,4)}, {v(V16)}, {s(SRD_WS,4)}, s54 offen sc1")
    k(f"buffer_load_dwordx4 {v(A+8,4)}, {v(V16)}, {s(SRD_WS,4)}, s54 offen offset:1024 sc1")
    calib(k, P, 25)
    k(f"v_mov_b32 {v(VDUM)}, s25")
    k(f"ds_write_b32 {v(VQ)}, {v(VDUM)} offset:{LR+2048}")
    k("s_waitcnt vmcnt(0) lgkmcnt(0)")
    if fused:
        slow = k.uid('slow')
        k("s_cmp_lg_u32 s90, 0x2020")
        k(f"s_cbranch_scc1 {slow}")
        team_loop(k, P, '', last, kvspin, fused)
        k.label(slow)
        team_loop(k, P, 'sc1', last, kvspin, fused)
    else:
        team_loop(k, P, lst, last, kvspin, fused)
    k.label(last)
    team_end(k)

def team_loop(k, P, lst, last, kvspin, fused):
    b = S_X; h = S_T; w = S_WAVE
    cold = []
    ns = P.get('nosync')
    TK = P.get('tick')
    pend = []
    def lwait_s(tag):
        if tag not in pend: return []
        idx = max(i for i, t in enumerate(pend) if t == tag)
        n = min(len(pend) - idx - 1, 15)
        del pend[:idx+1]
        return [f"s_waitcnt lgkmcnt({n})"]
    def lwait(tag):
        for x in lwait_s(tag): k(x)
    def wl_s(key, reg): return [(f"ds_read_b128 {v(reg+4*hh,4)}, {v(VLW)} offset:{WLDS[key]+1024*hh}", key) for hh in range(2)]
    def ds(x, tag): k(x); pend.append(tag)
    def smf(acc, areg, breg):
        k(f"v_smfmac_f32_16x16x64_bf16 {v(acc,4)}, {v(areg,4)}, {r(breg,8)}, {v(VIDX)}")
    def poll_local():
        k(f"buffer_load_dwordx4 {v(A,4)}, {v(VC0)}, {s(SRD_WS,4)}, s35 offen sc1 ;poll")
        k(f"buffer_load_dword {v(A+4)}, {v(VQ)}, {s(SRD_WS,4)}, s36 offen sc1 ;poll")
    pr = [f"buffer_load_dwordx4 {v(A+12,4)}, {v(VC0)}, {s(SRD_WS,4)}, s40 offen sc1 ;poll",
          f"buffer_load_dword {v(A+16)}, {v(VQ)}, {s(SRD_WS,4)}, s41 offen sc1 ;poll"]
    def poll_rr():
        for x in pr: k(x)
    def set_slots():
        return f"""s_lshl_b32 s19, s33, 13
        s_and_b32 s18, s19, 0x6000
        s_lshl_b32 s19, s33, 14
        s_add_u32 s35, s18, s29
        s_add_u32 s36, s35, 4096
        s_add_u32 s40, s19, s31
        s_add_u32 s41, s40, 4096""".split('\n')
    def cmpsent(x): return f"v_cmp_{'f' if ns else 'eq'}_u32 vcc, -1, {v(x)}"
    def chk(b0):
        T = VDUM
        return [f"v_max3_u32 {v(T)}, {v(b0)}, {v(b0+1)}, {v(b0+2)}", f"v_max3_u32 {v(T)}, {v(T)}, {v(b0+3)}, {v(b0+4)}", cmpsent(T)]
    def retry(b0, reissue, cnt, post, fix=None):
        c = k.uid('cold'); back = k.uid('back')
        k(f"s_cbranch_vccnz {c}")
        k.label(back)
        def body():
            k.label(c)
            reissue()
            k(f"s_add_u32 s{cnt}, s{cnt}, 1")
            k(f"s_cmp_gt_u32 s{cnt}, {P.get('bound', 20000)}")
            k(f"s_cbranch_scc1 {last}")
            k(f"s_waitcnt vmcnt(0) lgkmcnt(0)")
            post()
            for x in chk(b0): k(x)
            k(f"s_cbranch_vccnz {c}")
            if fix: fix()
            k("s_waitcnt lgkmcnt(0)")
            k(f"s_branch {back}")
        cold.append(body)
    TK2 = P.get('tk2')
    def tick(i, alt=False):
        if TK2 and 3 <= i <= 8 and not alt: return
        if TK: k(f"s_memtime s[{64+2*i}:{65+2*i}]")
    def zero(base, n): return [f"v_mov_b64 {v(base+i,2)}, 0" for i in range(0, n, 2)]
    RING = [PP + 16, PP + 24, PP, PP + 8]
    WARM = f"v_mov_b32 {v(V8)}, {v(V8)}"
    VMC = PP + 32; VX = PP + 28; KR = PP + 16; PF = PP
    RD = A + 8; SEL = AK; D = A; T = A + 16
    areg = [A, A+8, A+4, A, A+8]
    rreg = [A+12, A+16, A+4, A, A+8]
    seq = [('L', 0, 1, 0), ('L', 0, 1, 1), ('L', 0, 2, 0), ('L', 0, 2, 1), ('L', 0, 0, 0), ('L', 0, 0, 1)]
    for i in range(1, 5): seq += [('L', i, m, t) for m in ((1, 2, 0) if i == 2 else (0, 1, 2)) for t in range(2)]
    seq += [('R', i, m, 0) for i in range(5) for m in (1, 0)]
    seq += [('R', i, m, 1) for m in (1, 0) for i in range(5)]
    seq += [('R', i, 2, t) for i in range(5) for t in range(2)]
    lseq = [x for x in seq if x in WLDS]
    rslot = {x: RING[n % 4] for n, x in enumerate(lseq)}
    def ring_pre():
        for x in lseq[:4]:
            for y, tg in wl_s(x, rslot[x]): ds(y, tg)
    def do_smf(key):
        l, i, m, t = key
        smf(ACC + 8*m + 4*t, (areg if l == 'L' else rreg)[i], WREG.get(key) or rslot[key])
    def a_rd(l, i):
        base = LL if l == 'L' else LR
        dst = (areg if l == 'L' else rreg)[i]
        if i == 1: return (f"ds_read_b128 {v(dst,4)}, {v(V16)} offset:{LL+LR-base}", l + '1')
        return (f"ds_read_b128 {v(dst,4)}, {v(VC0+i-1)} offset:{base}", f'{l}{i}')
    kfr = [KR, KR+4, KR+8] + rreg
    def k_rd(f): return (f"ds_read_b128 {v(kfr[f],4)}, {v(V16)} offset:{LK + 1024*f}", f'k{f}')
    def pack(t):
        kq = AK + 4*t; qq = AQ + 4*t
        return [f"v_add_f32 {v(kq)}, {v(kq)}, {v(kq+2)}",
                f"v_add_f32 {v(kq+1)}, {v(kq+1)}, {v(kq+3)}",
                f"v_cvt_pk_bf16_f32 {v(kq+2)}, {v(kq)}, {v(kq+1)}",
                f"v_add_f32 {v(qq)}, {v(qq)}, {v(qq+2)}",
                f"v_add_f32 {v(qq+1)}, {v(qq+1)}, {v(qq+3)}",
                f"v_cvt_pk_bf16_f32 {v(kq+3)}, {v(qq)}, {v(qq+1)}",
                f"ds_write_b64 {v(VFW)}, {v(kq+2,2)} offset:{LL + 512*t}"]
    def fmget():
        k(f"v_add_u32 {v(VDUM)}, s95, {v(V8)}")
        k(f"v_mov_b64 {v(VMC,2)}, {v(VM,2)}")
        sk = k.uid('fmsk')
        k("s_cmp_eq_u32 s92, 0")
        k(f"s_cbranch_scc1 {sk}")
        k(f"ds_read_b64_tr_b16 {v(VMC,2)}, {v(VDUM)} offset:{LL}")
        k(f"ds_read_b64_tr_b16 {v(VMC+2,2)}, {v(VDUM)} offset:{LL+512}")
        k.label(sk)
    def fmfix():
        sk = k.uid('fmsk')
        k("s_cmp_eq_u32 s92, 0")
        k(f"s_cbranch_scc1 {sk}")
        k("s_or_b64 vcc, s[56:57], s[60:61]")
        for i in range(2): k(f"v_mov_b32_dpp {v(VMC+i)}, {v(VMC+i)} quad_perm:[0,0,1,1] row_mask:0xf bank_mask:0xf")
        for i in range(2): k(f"v_cndmask_b32_dpp {v(VMC+i)}, {v(VMC+2+i)}, {v(VMC+i)}, vcc quad_perm:[0,0,1,1] row_mask:0xf bank_mask:0xf")
        k.label(sk)
    fmst = f"buffer_store_dwordx2 {v(VMC,2)}, {v(V8)}, {s(SRD_WS,4)}, s55 offen sc1"
    SX0, SX1, SM = AQ, AQ + 4, AK
    T0, T1 = AK + 4, AK + 5; VM = AK + 6
    PK = KR; PM0 = KR + 4; PM1 = KR + 6; ONE = KR + 8
    lastpub = k.uid('lastpub'); loop = k.uid('tloop'); entry = k.uid('entry')
    for x in zero(ACC, 24) + set_slots(): k(x)
    ring_pre()
    k("s_memtime s[96:97]")
    k("s_waitcnt lgkmcnt(0)")
    k("s_sub_u32 s97, s96, 1")
    k("s_add_u32 s42, s97, s25")
    k(f"v_mov_b32 {v(VDUM)}, s42")
    k(f"buffer_store_dword {v(VDUM)}, off, {s(SRD_WS,4)}, s91 {lst}")
    k("s_sub_u32 s42, s42, 1000")
    k("s_mov_b32 s22, s96")
    k("s_barrier")
    k(f"s_branch {entry}")
    k.label(loop)
    pend[:] = []
    early = P.get('sc1early', 0)
    tailv = (1 if TK else 0)
    k(f"s_waitcnt vmcnt({(0 if early else 1) + 2 + tailv})")
    tick(0)
    def lre():
        k(f"ds_write_b128 {v(VC0)}, {v(A,4)} offset:{LL}")
        k(f"ds_write_b32 {v(VQ)}, {v(A+4)} offset:{LR}")
    lre()
    for x in chk(A): k(x)
    do_smf(seq[0])
    def lfix():
        for x in zero(AK, 4): k(x)
        do_smf(seq[0])
    retry(A, poll_local, 43, lre, lfix)
    pend[:] = ['w', 'w']
    rc = P.get('rc', 20); bx = P.get('bx', 18)
    pre = {}; val = {}; dsq = []; hook = {}
    def at(c, *xs):
        for x in xs: (val if x.startswith('v_') else pre).setdefault(c, []).append(x)
    sp = P.get('sp', [rc + 4, rc + 3, 34, 36])
    pfa = P.get('pfa', 4)
    at(pfa, f"buffer_load_dword {v(VMC+3)}, {v(VSEL)}, {s(SRD_WS,4)}, s15 offen sc1")
    assert pfa < sp[0]
    npre = (pfa < rc) + sum(x < rc for x in sp)
    pfi = f"buffer_load_dword {v(VSEL)}, {v(VSEL)}, {s(SRD_WS,4)}, s19 offen sc1"
    pfl = P.get('pfl', 0)
    if not pfl: at(sp[0], pfi)
    at(sp[1], fmst)
    at(sp[2] - 1, f"v_mov_b32 {v(VDUM)}, s17")
    at(sp[2], f"buffer_store_dword {v(VDUM)}, off, {s(SRD_WS,4)}, s50 sc1")
    at(sp[3] - 1, f"v_mov_b32 {v(VDUM)}, -1")
    at(sp[3], f"buffer_store_dword {v(VDUM)}, {v(VQ)}, {s(SRD_WS,4)}, s18 offen {lst}")
    rw = [(f"ds_write_b128 {v(VC0)}, {v(A+12,4)} offset:{LR}", 'w'), (f"ds_write_b32 {v(VQ)}, {v(A+16)} offset:{LL}", 'w')]
    ck = chk(A + 12)
    at(rc, f"s_waitcnt vmcnt({tailv + npre})", ck[0]); at(rc + 1, ck[1]); at(rc + 2, ck[2])
    def rre():
        for x, _ in rw: k(x)
    hat = f"buffer_store_dword {v(VDUM)}, off, {s(SRD_WS,4)}, s%d {lst}"
    def rfix():
        k("s_memtime s[96:97]")
        k("s_waitcnt lgkmcnt(0)")
        k("s_add_u32 s39, s96, s25")
        k(f"v_mov_b32 {v(VDUM)}, s39")
        k(hat % 91)
    lb = P.get('lb', 3); rb = rc + P.get('rb', 5)
    def b1():
        lwait('w'); k("s_barrier")
    def b2():
        lwait('w')
        k("s_barrier")
        tick(2)
    hook[lb] = b1
    hook[rc + 3] = lambda: retry(A + 12, poll_rr, 45, rre, rfix)
    hook[rb] = b2
    assert rb > rc + 3
    nods = set(P.get('nods', []))
    at(rc + 2, "s_memtime s[96:97]")
    hs_ = rc + P.get('hs', 7)
    at(hs_, "s_add_u32 s96, s96, s25", f"v_mov_b32 {v(VDUM)}, s96"); at(hs_ + 1, hat % 98)
    p0 = pack(0); p1 = pack(1)
    for j in range(6): at(41 + j, p0[j])
    for j in range(3): at(47 + j, p1[j])
    at(38, "s_barrier")
    hp = P.get('hp', 36)
    vl = P.get('vl', 44)
    at(vl, f"buffer_load_dwordx4 {v(VX,4)}, {v(V16)}, {s(SRD_WS,4)}, s54 offen sc1")
    at(vl + 2, f"buffer_load_dwordx4 {v(VX+4,4)}, {v(V16)}, {s(SRD_WS,4)}, s54 offen offset:1024 sc1")
    assert vl >= 39
    nav = sum(x > vl + 2 for x in sp)
    assert sp[1] < vl + 2
    app_ds = {}
    def rel(c, *ys): app_ds.setdefault(c, []).extend(ys)
    rel(lb, a_rd('L', 1), a_rd('L', 2)); rel(6, a_rd('L', 3)); rel(12, a_rd('L', 4)); rel(rc, *rw); rel(rb, a_rd('R', 1), a_rd('R', 2))
    rel(max(24, rb), a_rd('R', 3)); rel(max(30, rb), a_rd('R', 4)); rel(47, (p0[6], 'fw'))
    rel(hp + 1, *(wl_s(lseq[14], rslot[lseq[14]]) + wl_s(lseq[15], rslot[lseq[15]]))); rel(40, k_rd(0), k_rd(1), k_rd(2)); rel(52, k_rd(3)); rel(54, k_rd(4))
    def dead(tg):
        if tg in ('w', 'fw'): return 0
        if tg == 'L4': return bx
        for n_, x in enumerate(seq):
            if tg == x or tg == f'{x[0]}{x[1]}': return n_
        return 100
    qn = 0
    def gap(cnt, nxt):
        dsq.extend(app_ds.get(cnt, []))
        dsq.sort(key=lambda y: dead(y[1]))
        n0 = len(k.ins)
        def used(): return sum(2 if I.cls == 'ds' else (P.get('vmw', 1) if I.cls == 'vmem' else 1) for I in k.ins[n0:] if I.cls != 'label')
        if cnt == bx: lwait('L4'); k("s_barrier")
        for x in pre.get(cnt, []):
            k(x)
            if 'lgkmcnt(0)' in x: pend[:] = []
        if cnt in hook: hook[cnt]()
        if dsq and (used() < 2 or dead(dsq[0][1]) == 0 or cnt == lb) and cnt not in nods: ds(*dsq.pop(0))
        if nxt:
            need = [nxt, f'{nxt[0]}{nxt[1]}']
            while any(tg in need for _, tg in dsq):
                ds(*dsq.pop(0))
            for tg in need: lwait(tg)
        if TK2 and cnt in TK2: tick(3 + TK2.index(cnt), True)
        vs = val.get(cnt, [])
        for x in vs: k(x)
        if not vs and P.get('warm', True) and used() <= 2: k(WARM)
    def after(n):
        nonlocal qn
        if seq[n] in rslot:
            if qn + 4 < 14: dsq.extend(wl_s(lseq[qn + 4], rslot[lseq[qn + 4]]))
            qn += 1
    after(0); gap(1, seq[1])
    for n in range(1, 52):
        do_smf(seq[n]); after(n)
        if n == 29: tick(1)
        if n == 39: tick(3)
        if n < 51: gap(n + 1, seq[n + 1])
    for x in p1[3:6]: k(x)
    ds(p1[6], 'fw')
    tick(4)
    n = 52
    dsq.extend(app_ds.pop(52))
    for _ in range(P.get('vpre', 3)):
        do_smf(seq[n]); n += 1
        gap(n, None)
    lwait('fw')
    k("s_barrier")
    kq_ = [5, 6, 7]
    for i in range(8):
        ds(f"ds_read_b64_tr_b16 {v(PF+2*i,2)}, {v(V8)} offset:{LL + 512*i}", f'f{i//2}')
        if i % 2 == 1 and n < 60:
            do_smf(seq[n]); n += 1
    while dsq: ds(*dsq.pop(0))
    def kfree():
        while kq_ and n >= 50 + 2 * (kq_[0] - 3) + 2: ds(*k_rd(kq_.pop(0)))
    kfree()
    while n < 60:
        do_smf(seq[n]); n += 1; kfree()
    assert not kq_
    tick(5)
    def smw(which, ks):
        lwait(f'f{ks}')
        if which != 'm': lwait(f'k{2*ks + which}')
    def sm(which, ks):
        smw(which, ks)
        if which == 'm': Dd, Aop = SM, PF + 4*ks
        else: Dd = SX0 + 4*which; Aop = kfr[2*ks + which]
        k(f"v_mfma_f32_16x16x32_bf16 {v(Dd,4)}, {v(Aop,4)}, {v(PF+4*ks,4)}, {'0' if ks == 0 else v(Dd,4)}")
    vp = []
    for t in range(2):
        vv = AV + 4*t
        vp += [f"v_add_f32 {v(vv)}, {v(vv)}, {v(vv+2)}", f"v_add_f32 {v(vv+1)}, {v(vv+1)}, {v(vv+3)}", f"v_cvt_pk_bf16_f32 {v(VM+t)}, {v(vv)}, {v(vv+1)}"]
    cst = [f"v_mov_b32 {v(PM0+1)}, 0", f"v_mov_b32 {v(PM1)}, 0"] + [f"v_mov_b32 {v(ONE+i)}, 0x3f803f80" for i in range(4)]
    so = [('m', 0), (0, 0), (1, 0), ('m', 1), (0, 1), (1, 1), ('m', 2), ('m', 3), (0, 2), (0, 3), (1, 2), (1, 3)]
    hl = f"buffer_load_dword {v(VDUM)}, {v(VQ)}, {s(SRD_WS,4)}, s99 offen sc1"
    fl = {0: [WARM], 1: vp[0:2], 2: vp[2:4], 3: vp[4:6], 4: ["s_cmp_eq_u32 s33, 63"] + cst[0:2], 5: [f"s_cbranch_scc1 {lastpub}", WARM],
          6: cst[2:4], 7: cst[4:6], 8: [WARM], 9: [f"v_max_f32 {v(T0)}, {v(SM)}, {v(SM+1)}"], 10: [WARM],
          11: [f"v_max3_f32 {v(T0)}, {v(T0)}, {v(SX0)}, {v(SX0+1)}", f"v_max3_f32 {v(T0)}, {v(T0)}, {v(SX0+2)}, {v(SX0+3)}"]}
    hpos = P.get('hpos', 8)
    for n_, (wh, ks) in enumerate(so):
        sm(wh, ks)
        if n_ < 11: smw(*so[n_ + 1])
        if n_ == hpos: k(hl)
        if n_ == hpos + 2 and pfl: k(pfi)
        for x in fl.get(n_, []): k(x)
    tick(6)
    zz = zero(A + 12, 8) + zero(A, 12)
    for _ in range(3): k(zz.pop(0))
    k(f"v_max3_f32 {v(T0)}, {v(T0)}, {v(SX1)}, {v(SX1+1)}")
    k(f"v_max3_f32 {v(T1)}, {v(T0)}, {v(SX1+2)}, {v(SX1+3)}")
    k(f"v_max3_f32 {v(T0)}, {v(T0)}, {v(SX1+2)}, {v(SX1+3)}")
    k(zz.pop(0)); k(zz.pop(0))
    k(f"v_permlane32_swap_b32 {v(T0)}, {v(T1)}")
    k(f"v_max_f32 {v(SM+2)}, {v(T0)}, {v(T1)}")
    k(f"v_max_f32 {v(T0)}, {v(T0)}, {v(T1)}")
    k(zz.pop(0)); k(zz.pop(0))
    k(f"v_permlane16_swap_b32 {v(T0)}, {v(SM+2)}")
    k(f"v_max_f32 {v(T0)}, {v(T0)}, {v(SM+2)}")
    k(f"v_mul_f32 {v(T0)}, s14, {v(T0)}")
    fma = lambda x: k(f"v_fma_f32 {v(x)}, {v(x)}, s14, -{v(T0)}")
    ex = lambda x: k(f"v_exp_f32 {v(x)}, {v(x)}")
    O0, O1 = AV, AV + 4; RS = AK; RI = T0; OP = AQ; OA = VX
    fma(SM); fma(SM+1); ex(SM); ex(SM+1)
    fma(SX0); fma(SX0+1)
    k(f"v_cvt_pk_bf16_f32 {v(PM0)}, {v(SM)}, {v(SM+1)}")
    k(f"v_cvt_pk_bf16_f32 {v(PM1+1)}, {v(SM)}, {v(SM+1)}")
    for i in range(2, 8): fma(SX0+i)
    k(f"v_mfma_f32_16x16x16_bf16 {v(O0,4)}, {v(VM,2)}, {v(PM0,2)}, 0")
    if hpos == 20: k(hl)
    ex(SX0); ex(SX0+1)
    k(f"v_mfma_f32_16x16x16_bf16 {v(O1,4)}, {v(VM,2)}, {v(PM1,2)}, 0")
    ex(SX0+2); ex(SX0+3)
    k(f"v_cvt_pk_bf16_f32 {v(PK)}, {v(SX0)}, {v(SX0+1)}")
    k(f"v_mfma_f32_16x16x16_bf16 {v(RS,4)}, {v(PM0,2)}, {v(ONE,2)}, 0")
    ex(SX0+4); ex(SX0+5)
    k(f"v_cvt_pk_bf16_f32 {v(PK+1)}, {v(SX0+2)}, {v(SX0+3)}")
    ex(SX0+6); ex(SX0+7)
    k(f"v_cvt_pk_bf16_f32 {v(PK+2)}, {v(SX0+4)}, {v(SX0+5)}")
    k(f"v_cvt_pk_bf16_f32 {v(PK+3)}, {v(SX0+6)}, {v(SX0+7)}")
    k(f"s_waitcnt vmcnt({nav + 1})")
    k(zz.pop(0))
    tick(7)
    k(f"v_mfma_f32_16x16x32_bf16 {v(O0,4)}, {v(VX,4)}, {v(PK,4)}, {v(O0,4)}")
    k(zz.pop(0)); k(zz.pop(0))
    assert not zz
    k(f"v_mfma_f32_16x16x32_bf16 {v(O1,4)}, {v(VX+4,4)}, {v(PK,4)}, {v(O1,4)}")
    k("s_add_u32 s33, s33, 1")
    k(f"s_add_u32 s53, s53, {(1 << SS)}")
    k(f"v_mfma_f32_16x16x32_bf16 {v(RS,4)}, {v(PK,4)}, {v(ONE,4)}, {v(RS,4)}")
    k(f"v_cvt_pk_bf16_f32 {v(OP)}, {v(O0)}, {v(O0+1)}")
    k(f"v_cvt_pk_bf16_f32 {v(OP+1)}, {v(O0+2)}, {v(O0+3)}")
    k("s_mov_b32 m0, s51")
    k(f"v_cvt_pk_bf16_f32 {v(OP+2)}, {v(O1)}, {v(O1+1)}")
    k(f"v_cvt_pk_bf16_f32 {v(OP+3)}, {v(O1+2)}, {v(O1+3)}")
    pend[:] = []
    ds(f"ds_write_b128 {v(VOW)}, {v(OP,4)} offset:{LR}", 'ow')
    WX, WY = PF, PF + 8
    VP4 = AQ + 4
    k(f"v_rcp_f32 {v(RI)}, {v(RS+2)}")
    k(f"v_rcp_f32 {v(RI+1)}, {v(RS+3)}")
    fil = [f"v_lshrrev_b32 {v(VP4)}, 11, {v(VPS)}", "s_movk_i32 s39, 0x1833", f"v_bfi_b32 {v(VP4)}, s39, {v(VPS)}, {v(VP4)}"] + set_slots()
    for x in fil[:P.get('fil1', 7)]: k(x)
    fil = fil[P.get('fil1', 7):]
    lwait('ow')
    k("s_barrier")
    ds(f"ds_read_b128 {v(OA,4)}, {v(V16)} offset:{LR}", 'oa0')
    ds(f"ds_read_b128 {v(OA+4,4)}, {v(V16)} offset:{LR+1024}", 'oa1')
    tick(8)
    hq = [f"s_waitcnt vmcnt({pfl})", f"v_subrev_u32 {v(VDUM)}, s96, {v(VDUM)}"]
    for c in ['row_shr:1', 'row_shr:2', 'row_shr:4', 'row_shr:8']:
        hq.append(f"v_max_i32_dpp {v(VDUM)}, {v(VDUM)}, {v(VDUM)} {c} row_mask:0xf bank_mask:0xf")
    hq.append(f"v_max_i32_dpp {v(VDUM)}, {v(VDUM)}, {v(VDUM)} row_bcast:15 row_mask:0xa bank_mask:0xf")
    hq.append(f"v_max_i32_dpp {v(VDUM)}, {v(VDUM)}, {v(VDUM)} row_bcast:31 row_mask:0xc bank_mask:0xf")
    hq.append(f"v_readlane_b32 s27, {v(VDUM)}, 63")
    k(hq.pop(0)); k(hq.pop(0))
    for o in (0, 1024):
        k(f"buffer_load_dwordx4 {v(V16)}, {s(SRD_WS,4)}, s53 offen offset:{o} sc1 lds")
        k(hq.pop(0))
    fil = ["s_add_u32 s39, s19, s32", "s_add_u32 s39, s39, s30", "s_add_u32 s18, s39, s16", f"s_add_u32 s96, s96, {P['ltgt']}"] + fil + ["s_add_u32 s38, s35, s32"]
    while len(hq) > 3:
        for _ in range(2):
            if fil: k(fil.pop(0))
        k(hq.pop(0))
    XS = AQ
    def fin(j):
        d = A + 4*j; o = XS + j if j < 4 else d
        x = [f"v_add_f32 {v(d)}, {v(d)}, {v(d+2)}", f"v_add_f32 {v(d+1)}, {v(d+1)}, {v(d+3)}",
             f"v_fma_mixlo_f16 {v(o)}, {v(d)}, {v(RI)}, 0", f"v_fma_mixhi_f16 {v(o)}, {v(d+1)}, {v(RI+1)}, 0"]
        if j in (0, 4): x.append(f"v_bfi_b32 {v(o)}, 1, s34, {v(o)}")
        if j == 4: x.append(f"buffer_store_dword {v(o)}, {v(VP4)}, {s(SRD_WS,4)}, s23 offen {lst}")
        if j == 3: x.append(f"buffer_store_dwordx4 {v(XS,4)}, {v(VPS)}, {s(SRD_WS,4)}, s47 offen {lst}")
        return x
    tiles = [4, 0, 1, 2, 3]
    fins = [(n_, x) for n_, j in enumerate(tiles) for x in fin(j)]
    wq = wl_s(('O', 3, 0), WX) + wl_s(('O', 3, 1), WY)
    sq = ["s_min_i32 s27, s27, s24", "s_max_i32 s27, s27, 0", "s_add_u32 s96, s96, s27", "s_sub_u32 s97, s96, s25"] + fil + ["s_add_u32 s42, s40, 5120"]
    tpub = [f"v_mov_b32 {v(VDUM)}, s96", f"buffer_store_dword {v(VDUM)}, off, {s(SRD_WS,4)}, s18 sc1"]
    per = P.get('fper', [1, 1, 1, 2, 2, 1, 1, 2, 2, 9])
    for n_ in range(10):
        j, ke = tiles[n_ // 2], n_ % 2
        lwait(f'oa{ke}')
        smf(A + 4*j, OA + 4*ke, WREG.get(('O', j, ke), [WX, WY][ke]))
        if wq: ds(*wq.pop(0))
        else:
            for _ in range(2):
                if sq: k(sq.pop(0))
        if n_ == 0: lwait('oa1')
        if n_ in (7, 8): lwait(('O', 3, n_ - 7))
        if n_ == 9: k("s_memtime s[22:23]"); k("s_cmp_ge_u32 s28, 80")
        if n_ == 6: k(tpub[1])
        if n_ == 5: k(tpub[0])
        if n_ < 3: k(hq.pop(0))
        else:
            c = 0
            while c < per[n_] and fins and 2 * fins[0][0] + 3 <= n_:
                x = fins.pop(0)[1]; k(x)
                if not x.startswith('buffer'): c += 1
    assert not sq
    for _, x in fins: k(x)
    tick(9)
    nored = k.uid('nored')
    k(f"s_cbranch_scc1 {nored}")
    rem = ["s_waitcnt lgkmcnt(0)", "s_sub_u32 s27, s97, s22", "s_min_i32 s27, s27, s24", "s_max_i32 s27, s27, 0", f"s_mul_i32 s27, s27, {P['dmul']}", "s_lshr_b32 s27, s27, 10"]
    k(f"s_sub_u32 s96, s97, {P['ltgt'] - P['rtgt']}")
    for x in rem: k(x.replace('s97', 's96'))
    dl = k.uid('dl')
    k(".p2align 3")
    k.label(dl)
    k("s_sub_u32 s27, s27, 1")
    k(f"s_cbranch_scc0 {dl}")
    def rload():
        k(f"buffer_load_dwordx4 {v(RD,4)}, {v(VPL)}, {s(SRD_WS,4)}, s48 offen sc1 ;poll")
        k(f"buffer_load_dwordx4 {v(RD+4,4)}, {v(VPL)}, {s(SRD_WS,4)}, s48 offen offset:1024 sc1 ;poll")
    k(f"s_buffer_load_dword s42, {s(SRD_WS,4)}, s42")
    if TK2 == [99]: tick(3, True)
    rload()
    k(f"v_bfe_u32 {v(VDUM)}, {v(V16)}, 6, 1")
    k(f"v_lshlrev_b32 {v(VDUM)}, 4, {v(VDUM)}")
    k(f"v_lshlrev_b32 {v(VDUM)}, {v(VDUM)}, s37")
    for d in range(4): k(f"v_cndmask_b32 {v(SEL+d)}, 0, {v(VDUM)}, s[{56+2*d}:{57+2*d}]")
    def house():
        fmget()
        for x in zero(AQ, 8) + zero(AV, 8) + zero(AK + 4, 4): k(x)
        ring_pre()
        k(f"""
        s_sub_u32 s17, s33, 1
        s_mov_b32 s24, {P.get('dcap', 1600)}
        s_add_u32 s54, s54, {1 << SS}
        s_add_u32 s55, s55, {1 << SS}
        s_add_u32 s15, s15, s21
        """)
    house()
    rl = k.uid('rl'); rcl = k.uid('rc')
    k.label(rl)
    if TK2 == [99]: tick(4, True); k("s_waitcnt vmcnt(2)"); tick(5, True)
    k("s_waitcnt vmcnt(1)")
    if TK2 == [99]: tick(6, True)
    k(f"v_mfma_f32_16x16x32_f16 {v(D,4)}, {v(RD,4)}, {v(SEL,4)}, 0")
    k(f"v_bitop3_b32 {v(T)}, {v(RD+1)}, {v(RD+2)}, s34 bitop3:0x7e")
    k("s_waitcnt vmcnt(0)")
    k(f"v_mfma_f32_16x16x32_f16 {v(D,4)}, {v(RD+4,4)}, {v(SEL,4)}, {v(D,4)}")
    if TK2 == [99]: tick(7, True)
    k(f"v_bitop3_b32 {v(T+2)}, {v(RD+3)}, {v(RD+5)}, s34 bitop3:0x7e")
    k(f"v_bitop3_b32 {v(T+3)}, {v(RD+6)}, {v(RD+7)}, s34 bitop3:0x7e")
    k(f"v_bitop3_b32 {v(A+4)}, {v(RD)}, {v(RD+4)}, s34 bitop3:0x7e")
    k(f"v_or3_b32 {v(T)}, {v(T)}, {v(T+2)}, {v(T+3)}")
    k(f"v_and_or_b32 {v(T)}, {v(T)}, s94, {v(A+4)}")
    k(f"v_and_b32 {v(T)}, 1, {v(T)}")
    k(f"v_cmp_{'f' if ns else 'ne'}_u32 vcc, 0, {v(T)}")
    PB = A + 5
    k(f"""
    v_add_f32 {v(D)}, {v(D)}, {v(D+1)}
    v_add_f32 {v(D+2)}, {v(D+2)}, {v(D+3)}
    v_add_f32 {v(D)}, {v(D)}, {v(D+2)}
    s_nop 1
    v_mov_b32_dpp {v(D+1)}, {v(D)} quad_perm:[1,1,3,3] row_mask:0xf bank_mask:0xf
    v_cvt_pk_bf16_f32 {v(D)}, {v(D)}, {v(D+1)}
    v_min_u32 {v(PB)}, 0xfffffffe, {v(D)}
    s_cbranch_vccnz {rcl}
    s_mov_b64 exec, s[6:7]
    buffer_store_dword {v(PB)}, {v(VPUB)}, {s(SRD_WS,4)}, s38 offen {lst}
    """)
    if early: k(f"buffer_store_dword {v(PB)}, {v(VPUB)}, {s(SRD_WS,4)}, s39 offen sc1")
    k("s_mov_b64 exec, -1")
    if TK2 == [99]: tick(8, True)
    k("s_waitcnt lgkmcnt(0)")
    k("s_memtime s[22:23]")
    for x in rem: k(x)
    def rcold():
        k.label(rcl)
        rload()
        k("s_add_u32 s49, s49, 1")
        k(f"s_cmp_gt_u32 s49, {P.get('bound', 20000)}")
        k(f"s_cbranch_scc1 {last}")
        k(f"s_branch {rl}")
    cold.append(rcold)
    join = k.uid('join')
    def nrcold():
        k.label(nored)
        kb = k.uid('kvb')
        k("s_add_u32 s42, s33, 1")
        k("s_min_u32 s42, s42, 63")
        if fused:
            k("s_waitcnt vmcnt(5)")
            k(f"v_cmp_ge_u32 vcc, s42, {v(VSEL)}")
            k("s_and_b32 s39, vcc_lo, 0xfff")
            k(f"s_cbranch_scc0 {kb}")
            kvspin(kb)
            k.label(kb)
        house()
        nc = k.uid('nocal')
        k(f"s_cmp_lg_u32 {s(w)}, 3")
        k(f"s_cbranch_scc1 {nc}")
        if TK:
            k("s_waitcnt lgkmcnt(0)")
            for i in range(10): k(f"v_writelane_b32 {v(A+6)}, s{64+2*i}, {i}")
        calib(k, P, 27)
        k(f"v_mov_b32 {v(VDUM)}, s27")
        k(f"ds_write_b32 {v(VQ)}, {v(VDUM)} offset:{LR+2048}")
        if TK:
            for i in range(10): k(f"v_readlane_b32 s{64+2*i}, {v(A+6)}, {i}")
        k.label(nc)
        k("s_memtime s[22:23]")
        k(f"s_add_i32 s97, s97, {P['nrb']}")
        for x in rem: k(x)
        k("s_sub_u32 s42, s96, 1000")
        k(f"s_branch {join}")
    cold.append(nrcold)
    k.label(join)
    tick(10)
    d0 = k.uid('dl'); k(".p2align 3"); k.label(d0)
    k("s_sub_u32 s27, s27, 1")
    k(f"s_cbranch_scc0 {d0}")
    k.label(entry)
    tick(11)
    poll_local()
    assert early
    tc = k.uid('tc'); dl3 = k.uid('dl')
    k(f"""
    s_sub_u32 s42, s42, s25
    s_sub_u32 s18, s42, s97
    s_add_u32 s19, s18, 1500
    s_cmp_gt_u32 s19, 4500
    s_cbranch_scc1 {tc}
    s_sub_u32 s42, s42, s22
    s_min_i32 s18, s18, s42
    s_add_i32 s18, s18, {P['rgap']}
    s_max_i32 s18, s18, 0
    s_mul_i32 s18, s18, {P['dmul']}
    s_lshr_b32 s18, s18, 10
    """)
    if TK: k("s_mov_b32 s27, s18")
    k(".p2align 3")
    k.label(dl3)
    k("s_sub_u32 s18, s18, 1")
    k(f"s_cbranch_scc0 {dl3}")
    k("s_barrier")
    tick(12)
    poll_rr()
    def tcold():
        k.label(tc)
        k(f"""
        s_add_u32 s44, s44, 1
        s_add_u32 s38, s40, 5120
        buffer_load_dword {v(VDUM)}, off, {s(SRD_WS,4)}, s38 sc1
        s_waitcnt vmcnt(0)
        s_memtime s[22:23]
        v_readfirstlane_b32 s42, {v(VDUM)}
        s_mov_b32 s18, 0
        s_sub_u32 s42, s42, s25
        s_sub_u32 s19, s42, s97
        s_add_u32 s19, s19, 1500
        s_waitcnt lgkmcnt(0)
        s_sub_u32 s38, s22, s97
        s_cmp_gt_i32 s38, s24
        s_cbranch_scc1 {dl3}
        s_cmp_gt_u32 s19, 4500
        s_cbranch_scc1 {tc}
        s_sub_u32 s18, s42, s22
        s_add_i32 s18, s18, {P['rgap']}
        s_max_i32 s18, s18, 0
        s_mul_i32 s18, s18, {P['dmul']}
        s_lshr_b32 s18, s18, 10
        s_branch {dl3}
        """)
    cold.append(tcold)
    k(f"""
    v_mov_b32 {v(VDUM)}, {LR + 2048 + 768}
    ds_read_b32 {v(A+7)}, {v(VDUM)}
    s_and_b32 s38, s33, 1
    s_mul_i32 s38, s38, {PART_SLOT}
    s_add_u32 s47, s38, s100
    s_add_u32 s48, s38, s101
    s_bfe_u32 s34, s33, 0x10001
    s_add_u32 s23, s47, s26
    """)
    for x in zero(AK, 4): k(x)
    if TK: k(f"v_writelane_b32 {v(A+8)}, s25, 14")
    if STAMPS:
        sk = k.uid('stc')
        k("s_cmp_lg_u32 s33, 5")
        k(f"s_cbranch_scc1 {sk}")
        k("s_mov_b32 s46, s22\ns_mov_b32 s43, 0\ns_mov_b32 s45, 0\ns_mov_b32 s49, 0\ns_mov_b32 s44, 0")
        k.label(sk)
    if TK:
        k(f"""
        s_lshl_b32 s39, {s(S_WG)}, 2
        s_add_u32 s39, s39, {s(w)}
        s_lshl_b32 s39, s39, 12
        s_lshl_b32 s38, s33, 6
        s_add_u32 s39, s39, s38
        s_add_u32 s39, s39, {WS_ST2}
        s_lshl_b32 s38, s45, 10
        s_or_b32 s90, s38, s43
        s_lshl_b32 s38, s49, 20
        s_or_b32 s90, s38, s90
        """)
        for i in range(10):
            k(f"v_writelane_b32 {v(A+8)}, s{64+2*i}, {i}")
        k(f"v_writelane_b32 {v(A+8)}, s90, 13")
        k(f"v_lshrrev_b32 {v(A+9)}, 2, {v(V16)}")
    if TK: k(f"v_writelane_b32 {v(A+8)}, s27, 15")
    k("s_waitcnt lgkmcnt(0)")
    k("s_xor_b32 s18, s35, 0x4000")
    k("s_add_u32 s18, s18, s20")
    k("s_lshr_b32 s19, s21, 2")
    k("s_add_u32 s19, s19, s15")
    k(f"v_lshlrev_b32 {v(VSEL)}, s93, {v(VQ)}")
    fmfix()
    k(f"v_readfirstlane_b32 s25, {v(A+7)}")
    if TK:
        if P.get('rmeas'):
            k("s_waitcnt vmcnt(2)"); tick(3); k("s_waitcnt vmcnt(0)"); tick(1)
        k("s_waitcnt lgkmcnt(0)")
        for i in [10, 11, 12] + ([1, 3] if P.get('rmeas') else []): k(f"v_writelane_b32 {v(A+8)}, s{64+2*i}, {i}")
        k("s_mov_b64 exec, 0xffff")
        k(f"buffer_store_dword {v(A+8)}, {v(A+9)}, {s(SRD_WS,4)}, s39 offen")
        k("s_mov_b64 exec, -1")
    k(f"s_branch {loop}")
    for c in cold: c()
    k.label(lastpub)
    k(f"s_add_u32 s55, s55, {1 << SS}")
    k("s_waitcnt vmcnt(0)")
    fmget()
    k("s_waitcnt lgkmcnt(0)")
    fmfix()
    k(fmst)
    k(f"v_mov_b32 {v(VDUM)}, 64")
    k("s_waitcnt vmcnt(0)")
    k("s_barrier")
    k(f"buffer_store_dword {v(VDUM)}, off, {s(SRD_WS,4)}, s50 sc1")
    k(f"s_branch {last}")

def team_end(k):
    stamp(k, 2, 20)
    if STAMPS:
        k(f"""
        s_lshl_b32 s94, {s(S_WG)}, 10
        s_lshl_b32 s95, {s(S_WAVE)}, 8
        s_add_u32 s94, s94, s95
        s_add_u32 s94, s94, {WS_STAMP}
        """)
        for i, sr in enumerate([43, 44, 45, 46, 49, 33]):
            k(f"v_mov_b32 v20, s{sr}")
            k(f"buffer_store_dword v20, off, {s(SRD_WS,4)}, s94 offset:{16+4*i}")

TP = dict(tick=False, dmul=36, nrb=0, rtgt=2130, ltgt=2830, rgap=0, sp=[6,31,34,36], sc1early=1)

if __name__ == '__main__':
    ks = build_dev()
    variants = eval(open('tvariants.txt').read())
    for n, d in variants.items():
        P = dict(TP); P.update(d)
        k = Kernel(f"team{n}_kernel"); prologue(k)
        k.timed = True
        k(f"s_cmp_ge_u32 {s(S_X)}, 2")
        k(f"s_cbranch_scc1 {k.name}_exit")
        role_team(k, P)
        epilogue(k); ks.append(k)
    emit(ks, 'dev.s')
```

```python
import sys, math
from gen import *

NEG = float_hex(-1e30)
LOG2E = 1.4426950408889634

def wload(k, pieces, v_lds, s_ldsbase, nslots, s_tmp, group=8):
    n = len(pieces)
    def issue(i):
        sr, sb, c, vg, _ = pieces[i]
        k(f"s_add_u32 {s(s_tmp)}, {s(sb)}, {c}")
        k(f"s_add_u32 m0, {s(s_ldsbase)}, {(i % nslots)*1024}")
        k(f"buffer_load_dwordx4 {v(vg)}, {s(sr,4)}, {s(s_tmp)} offen lds")
    issued = 0
    while issued < min(n, nslots):
        issue(issued); issued += 1
    done = 0
    while done < n:
        g = min(group, n - done)
        k(f"s_waitcnt vmcnt({issued - done - g})")
        for i in range(done, done + g):
            for (reg, off) in pieces[i][4]:
                k(f"ds_read_b64_tr_b16 {r(reg,2)}, {v(v_lds)} offset:{(i % nslots)*1024+off}")
        done += g
        if issued < n:
            k("s_waitcnt lgkmcnt(0)")
            for i in range(issued, min(n, issued + g)): issue(i)
            issued = min(n, issued + g)
    k("s_waitcnt lgkmcnt(0)")

def spin_ge(k, vdst, vaddr, soff, s_thr, s_cnt, exec_mask=None, off=0, sleep=2):
    top = k.uid('spin'); ok = k.uid('spok')
    k.label(top)
    k(f"buffer_load_dword {v(vdst)}, {v(vaddr)}, {s(SRD_WS,4)}, {s(soff)} offen offset:{off} sc1")
    k("s_waitcnt vmcnt(0)")
    k(f"v_cmp_gt_u32 vcc, {s(s_thr)}, {v(vdst)}")
    k(f"s_cbranch_vccz {ok}")
    k(f"s_add_u32 {s(s_cnt)}, {s(s_cnt)}, 1")
    k(f"s_cmp_gt_u32 {s(s_cnt)}, {SPIN_MAX}")
    k(f"s_cbranch_scc1 {k.name}_exit")
    k(f"s_sleep {sleep}")
    k(f"s_branch {top}")
    k.label(ok)

def role_att(k, s_a, fused=False):
    Q = 16; K = 32; V = 64; F = 96; VM = 112; S0 = 120; S1 = 124; SM = 128; C0 = 132; C1 = 136
    PK = 140; PM0 = 144; PM1 = 146; T0 = 148; T1 = 149; RS = 150; O = 160; OP = 192
    w = S_WAVE
    done = k.uid('attdone')
    k(f"""
    v_mbcnt_lo_u32_b32 v0, -1, 0
    v_mbcnt_hi_u32_b32 v0, -1, v0
    s_lshr_b32 s26, {s(s_a)}, 4
    s_and_b32 s27, {s(s_a)}, 15
    s_lshl_b32 s27, s27, 1
    s_lshr_b32 s28, {s(w)}, 1
    s_add_u32 s27, s27, s28              ; head
    s_and_b32 s28, {s(w)}, 1             ; qt
    v_lshrrev_b32 v2, 4, v0              ; g
    v_and_b32 v3, 15, v0                 ; n
    s_lshl_b32 s29, s28, 4
    v_add_u32 v3, s29, v3
    v_lshlrev_b32 v2, 2, v2              ; 4g
    v_sub_u32 v3, v3, v2                 ; q - 4g   (signed)
    v_mov_b32 v4, {NEG}
    """)
    for i in range(4):
        k(f"v_cmp_gt_i32 vcc, {i}, v3")
        k(f"v_cndmask_b32 {v(C0+i)}, 0, v4, vcc")
        k(f"v_cmp_gt_i32 vcc, {16+i}, v3")
        k(f"v_cndmask_b32 {v(C1+i)}, 0, v4, vcc")
    k(f"""
    v_min_u32 v5, 1, v0
    v_lshlrev_b32 v5, 2, v5
    v_lshrrev_b32 v7, 2, v0
    v_lshlrev_b32 v7, 5, v7
    v_and_b32 v8, 1, v0
    v_lshl_add_u32 v7, v8, 4, v7
    v_min_u32 v6, 17, v0
    v_lshlrev_b32 v6, 2, v6
    v_lshlrev_b32 v1, 3, v0
    v_lshlrev_b32 v0, 4, v0
    v_mov_b32 {v(PM0+1)}, 0
    v_mov_b32 {v(PM1)}, 0
    s_mul_i32 s30, s27, {(1 << HS) + SKEW[0]}
    s_lshl_b32 s31, s26, {SS}
    s_add_u32 s30, s30, s31
    s_lshl_b32 s31, s28, 10              ; qt*1024
    s_lshl_b32 s32, s27, 12
    s_lshl_b32 s33, s28, 17
    s_add_u32 s32, s32, s33
    s_lshl_b32 s33, s26, 18
    s_add_u32 s32, s32, s33
    s_add_u32 s32, s32, {WS_O}
    s_lshl_b32 s34, s27, 6
    s_add_u32 s34, s34, {WS_SYNC+SY_FLAG+FL_FM}
    s_lshl_b32 s35, s27, 8
    s_add_u32 s35, s35, {WS_SYNC+SY_FLAG+FL_G1}
    s_lshl_b32 s36, s26, 8               ; FL_O[rep][qt][h]
    s_lshl_b32 s37, s28, 7
    s_add_u32 s36, s36, s37
    s_lshl_b32 s37, s27, 2
    s_add_u32 s36, s36, s37
    s_add_u32 s36, s36, {WS_SYNC+SY_FLAG+FL_O}
    s_mov_b32 s40, 0
    s_mov_b32 s41, {float_hex(128 ** -0.5 * LOG2E)}
    """)
    def qkv_loads():
        if fused:
            k("s_add_u32 s37, s26, 1")
            spin_ge(k, T0, 6, 35, 37, 40)
        k(f"s_add_u32 s37, s30, {WS_Q}")
        k(f"s_add_u32 s37, s37, s31")
        k(f"s_add_u32 s38, s37, 4096")
        for ks in range(4):
            k(f"buffer_load_dwordx4 {v(Q+4*ks,4)}, v0, {s(SRD_WS,4)}, {'s37' if ks < 2 else 's38'} offen offset:{2048*(ks%2)} sc1")
        for base, reg in ((WS_K, K), (WS_VT, V)):
            k(f"s_add_u32 s37, s30, {base}")
            k(f"s_add_u32 s38, s37, 4096")
            for f in range(8):
                k(f"buffer_load_dwordx4 {v(reg+4*f,4)}, v0, {s(SRD_WS,4)}, {'s37' if f < 4 else 's38'} offen offset:{1024*(f%4)} {OPT['att']}")
    qkv_loads()
    loop = k.uid('attloop'); k.label(loop)
    k("s_waitcnt vmcnt(8)")
    for ks in range(4):
        for tt, S, C in ((0, S0, C0), (1, S1, C1)):
            k(f"v_mfma_f32_16x16x32_bf16 {v(S,4)}, {v(K+8*ks+4*tt,4)}, {v(Q+4*ks,4)}, {v(C if ks == 0 else S,4)}")
    if fused:
        k("s_add_u32 s37, s26, 1")
        spin_ge(k, T0, 5, 34, 37, 40)
    k(f"s_add_u32 s37, s30, {WS_FM}")
    k(f"s_add_u32 s38, s37, 4096")
    for ks in range(4):
        k(f"buffer_load_dwordx4 {v(F+4*ks,4)}, v7, {s(SRD_WS,4)}, s37 offen offset:{512*ks} sc1")
    for b in range(4):
        k(f"buffer_load_dwordx2 {v(VM+2*b,2)}, v1, {s(SRD_WS,4)}, s38 offen offset:{512*b} sc1")
    k(f"v_max3_f32 {v(T0)}, {v(S0)}, {v(S0+1)}, {v(S0+2)}")
    k(f"v_max3_f32 {v(T1)}, {v(S0+3)}, {v(S1)}, {v(S1+1)}")
    k(f"v_max3_f32 {v(T1)}, {v(T1)}, {v(S1+2)}, {v(S1+3)}")
    k(f"v_max_f32 {v(T0)}, {v(T0)}, {v(T1)}")
    for ks in range(4):
        k(f"s_waitcnt vmcnt({7-ks})")
        k(f"v_mfma_f32_16x16x32_bf16 {v(SM,4)}, {v(F+4*ks,4)}, {v(Q+4*ks,4)}, {'0' if ks == 0 else v(SM,4)}")
    k(f"""
    v_max3_f32 {v(T0)}, {v(T0)}, {v(SM)}, {v(SM+1)}
    v_mov_b32 {v(T1)}, {v(T0)}
    v_permlane32_swap_b32 {v(T0)}, {v(T1)}
    v_max_f32 {v(T0)}, {v(T0)}, {v(T1)}
    v_mov_b32 {v(T1)}, {v(T0)}
    v_permlane16_swap_b32 {v(T0)}, {v(T1)}
    v_max_f32 {v(T0)}, {v(T0)}, {v(T1)}
    v_mul_f32 {v(T0)}, s41, {v(T0)}
    """)
    sv = [S0 + i for i in range(10)]
    for x in sv: k(f"v_fma_f32 {v(x)}, {v(x)}, s41, -{v(T0)}")
    for x in sv: k(f"v_exp_f32 {v(x)}, {v(x)}")
    for i in range(4): k(f"v_cvt_pk_bf16_f32 {v(PK+i)}, {v(S0+2*i)}, {v(S0+2*i+1)}")
    k(f"v_cvt_pk_bf16_f32 {v(PM0)}, {v(SM)}, {v(SM+1)}")
    k(f"v_mov_b32 {v(PM1+1)}, {v(PM0)}")
    k("s_waitcnt vmcnt(0)")
    for et in range(8):
        k(f"v_mfma_f32_16x16x32_bf16 {v(O+4*et,4)}, {v(V+4*et,4)}, {v(PK,4)}, 0")
        if et == 0:
            k(f"v_pk_add_f32 {v(S0,2)}, {v(S0,2)}, {v(S0+2,2)}")
            k(f"v_pk_add_f32 {v(S1,2)}, {v(S1,2)}, {v(S1+2,2)}")
        if et == 1:
            k(f"v_pk_add_f32 {v(S0,2)}, {v(S0,2)}, {v(SM,2)}")
        if et == 2:
            k(f"v_pk_add_f32 {v(S0,2)}, {v(S0,2)}, {v(S1,2)}")
        if et == 3:
            k(f"v_add_f32 {v(RS)}, {v(S0)}, {v(S0+1)}")
        if et == 4:
            xsum_g(k, RS, T1)
        if et == 7:
            k(f"v_rcp_f32 {v(RS)}, {v(RS)}")
    for et in range(8):
        k(f"v_mfma_f32_16x16x16_bf16 {v(O+4*et,4)}, {v(VM+2*(et//2),2)}, {v(PM1 if et % 2 else PM0,2)}, {v(O+4*et,4)}")
    k(f"v_mov_b32 {v(RS+1)}, {v(RS)}")
    for b in range(4):
        for i in range(4):
            o = O + 8*b + 2*i
            k(f"v_pk_mul_f32 {v(o,2)}, {v(o,2)}, {v(RS,2)}")
            k(f"v_cvt_pk_bf16_f32 {v(OP+4*b+i)}, {v(o)}, {v(o+1)}")
        k(f"buffer_store_dwordx4 {v(OP+4*b,4)}, v0, {s(SRD_WS,4)}, s32 offen offset:{1024*b} sc1")
    k(f"""
    s_add_u32 s26, s26, 4
    s_add_u32 s30, s30, {4 << SS}
    s_add_u32 s32, s32, {4 << 18}
    """)
    if fused:
        k(f"v_mov_b32 {v(T1)}, s26")
        k("s_waitcnt vmcnt(0)")
        k(f"buffer_store_dword {v(T1)}, off, {s(SRD_WS,4)}, s36 sc1")
    k("s_cmp_ge_u32 s26, 64")
    k(f"s_cbranch_scc1 {done}")
    qkv_loads()
    k(f"s_branch {loop}")
    k.label(done)

def role_out(k, s_x, s_blk, fused=False):
    ACS = 16; ACG = 24; RA = 32; RB = 88; W2 = 144; WO = 256
    w = S_WAVE
    done = k.uid('outdone')
    srd(k, SRD_A, KA_WO, 4096 * 1280); srd(k, SRD_B, KA_W2, 1728 * 1280)
    srd(k, SRD_C, KA_X, 2048 * 1280); srd(k, 28, KA_OUT, 2048 * 1280)
    SRD_O = 28
    k(f"""
    v_mbcnt_lo_u32_b32 v0, -1, 0
    v_mbcnt_hi_u32_b32 v0, -1, v0
    v_lshrrev_b32 v1, 4, v0              ; g
    v_bfe_u32 v2, v0, 2, 2
    v_lshl_add_u32 v2, v1, 3, v2
    v_mul_u32_u24 v2, 1280, v2
    v_and_b32 v3, 3, v0
    v_lshl_add_u32 v2, v3, 4, v2
    v_and_b32 v3, 15, v0
    v_mul_u32_u24 v3, 1280, v3
    v_lshl_add_u32 v3, v1, 4, v3         ; v3 = n*1280 + 16g
    s_lshl_b32 s32, {s(s_blk)}, 6
    s_lshl_b32 s33, {s(w)}, 2
    s_add_u32 s33, s33, s32
    v_add_u32 v3, s33, v3
    v_and_b32 v5, 7, v0
    v_lshlrev_b32 v5, 2, v5
    v_lshlrev_b32 v7, 2, v0
    v_lshlrev_b32 v0, 4, v0
    s_lshl_b32 s34, {s(w)}, 15
    s_add_u32 s34, s34, 32768
    v_add_u32 v4, s34, v0
    s_mul_i32 s35, {s(w)}, {1024*1280}
    s_add_u32 s35, s35, s32
    s_mul_i32 s36, {s(w)}, {32*1280}
    s_add_u32 s36, s36, s32              ; w2 base
    s_lshl_b32 s37, {s(w)}, 12
    v_add_u32 v6, s37, v0
    s_lshr_b32 s37, {s(w)}, 1
    s_lshl_b32 s37, s37, 10
    s_and_b32 s38, {s(w)}, 1
    s_lshl_b32 s38, s38, 3
    s_add_u32 s37, s37, s38
    v_add_u32 v8, s37, v0
    s_barrier
    """)
    pieces = []
    for i in range(14):
        for u in range(2):
            pieces.append((SRD_B, 36, (128*i + 4*u) * 1280, 2, [(W2 + 8*i + 4*t + 2*u, 8*t) for t in range(2)]))
    for ks in range(32):
        for u in range(2):
            pieces.append((SRD_A, 35, (32*ks + 4*u) * 1280, 2, [(WO + 8*ks + 4*t + 2*u, 8*t) for t in range(2)]))
    wload(k, pieces, 4, 34, 32, 39)
    nz = k.uid('nz')
    k(f"s_cmp_lt_u32 {s(w)}, 2")
    k(f"s_cbranch_scc1 {nz}")
    for i in range(8): k(f"v_mov_b32 {v(W2+8*13+i)}, 0")
    k.label(nz)
    k(f"""
    s_mov_b32 s40, {s(s_x)}
    s_mul_i32 s41, s40, {54*1024}
    s_lshl_b32 s39, {s(w)}, 10
    s_add_u32 s41, s41, s39
    s_add_u32 s41, s41, {WS_ACT}
    s_lshl_b32 s42, s40, 17
    s_lshl_b32 s39, {s(w)}, 15
    s_add_u32 s42, s42, s39
    s_add_u32 s42, s42, {WS_O}
    s_cmp_lt_u32 {s(w)}, 2
    s_cselect_b32 s43, {13*4096}, 0
    s_mov_b32 s44, 0
    s_mov_b32 s45, 0
    s_lshl_b32 s46, {s(w)}, 5
    s_add_u32 s46, s46, {WS_SYNC+SY_FLAG+FL_O}
    """)
    if fused:
        k(f"s_mov_b32 s38, {WS_SYNC+SY_FLAG+FL_FF}")
        k("s_mov_b32 s39, 64")
        for i in range(3):
            spin_ge(k, 9, 7, 38, 39, 44, off=256*i)
    def act_load(i):
        if i < 13: k(f"s_add_u32 s39, s41, {4096*i}")
        else: k("s_add_u32 s39, s41, s43")
        k(f"buffer_load_dwordx4 {v(RA+4*i,4)}, v0, {s(SRD_WS,4)}, s39 offen {OPT['o']}")
    def oreg(f):
        return RB + 4*f if f < 14 else (RA + 4*(f-14) if f < 28 else RB + 4*(f-28))
    def o_load(f):
        if f % 4 == 0: k(f"s_add_u32 s38, s42, {1024*f}")
        k(f"buffer_load_dwordx4 {v(oreg(f),4)}, v0, {s(SRD_WS,4)}, s38 offen offset:{1024*(f%4)} {OPT['o']}")
    for i in range(14): act_load(i)
    k(f"buffer_load_dword v9, v3, {s(SRD_C,4)}, 0 offen")
    loop = k.uid('outloop'); k.label(loop)
    k("s_mul_i32 s47, s40, 20480")
    for i in range(14):
        k(f"s_waitcnt vmcnt({14-i})")
        for t in range(2):
            k(f"v_mfma_f32_16x16x32_bf16 {v(ACG+4*t,4)}, {v(W2+8*i+4*t,4)}, {v(RA+4*i,4)}, {'0' if i == 0 else v(ACG+4*t,4)}")
    if fused:
        k(f"""
        s_lshr_b32 s38, s40, 1
        s_add_u32 s39, s38, 1
        s_and_b32 s38, s40, 7            ; (seg&3)*2+tt
        s_lshl_b32 s38, s38, 7
        s_add_u32 s38, s38, s46
        """)
        spin_ge(k, 9, 5, 38, 39, 44)
    for f in range(28): o_load(f)
    k(f"buffer_load_dword v9, v3, {s(SRD_C,4)}, s47 offen")
    k("v_add_u32 v10, s45, v6")
    k("v_add_u32 v11, s45, v8")
    for t in range(2):
        k(f"ds_write_b128 v10, {v(ACG+4*t,4)} offset:{2048+1024*t}")
    k(f"s_add_u32 s41, s41, {6*54*1024}")
    k("s_add_u32 s48, s40, 6")
    k("s_cmp_lt_u32 s48, 128")
    k(f"s_cselect_b32 s41, s41, {WS_ACT}")
    q = [f'o{f}' for f in range(28)] + ['x']
    for f in range(32):
        idx = q.index(f'o{f}')
        k(f"s_waitcnt vmcnt({len(q)-idx-1})")
        del q[:idx+1]
        for t in range(2):
            k(f"v_mfma_f32_16x16x32_bf16 {v(ACS+4*t,4)}, {r(WO+8*f+4*t,4)}, {v(oreg(f),4)}, {'0' if f == 0 else v(ACS+4*t,4)}")
        if f < 4:
            o_load(28 + f); q.append(f'o{28+f}')
        if 14 <= f < 28:
            act_load(f - 14); q.append(f'a{f-14}')
    for t in range(2):
        k(f"ds_write_b128 v10, {v(ACS+4*t,4)} offset:{1024*t}")
    k("s_waitcnt lgkmcnt(0)")
    k("s_barrier")
    E = RB
    for p in range(2):
        for ww in range(4):
            k(f"ds_read_b64 {v(E+8*p+2*ww,2)}, v11 offset:{4096*ww+2048*(1-p)}")
    G = E; S = E + 8
    k("s_waitcnt lgkmcnt(4)")
    k(f"v_pk_add_f32 {v(G,2)}, {v(G,2)}, {v(G+2,2)}")
    k(f"v_pk_add_f32 {v(G+4,2)}, {v(G+4,2)}, {v(G+6,2)}")
    k(f"v_pk_add_f32 {v(G,2)}, {v(G,2)}, {v(G+4,2)}")
    def rb2(x, t):
        k(f"v_cvt_pk_bf16_f32 {v(t)}, {v(x)}, {v(x+1)}")
        k(f"v_lshlrev_b32 {v(x)}, 16, {v(t)}")
        k(f"v_and_b32 {v(x+1)}, 0xffff0000, {v(t)}")
    rb2(G, G+2)
    for i in range(2):
        k(f"v_mul_f32 {v(G+2+i)}, {float_hex(-LOG2E)}, {v(G+i)}")
        k(f"v_exp_f32 {v(G+2+i)}, {v(G+2+i)}")
    for i in range(2):
        k(f"v_add_f32 {v(G+2+i)}, 1.0, {v(G+2+i)}")
        k(f"v_rcp_f32 {v(G+2+i)}, {v(G+2+i)}")
    k("s_waitcnt lgkmcnt(0)")
    k(f"v_pk_add_f32 {v(S,2)}, {v(S,2)}, {v(S+2,2)}")
    k(f"v_pk_add_f32 {v(S+4,2)}, {v(S+4,2)}, {v(S+6,2)}")
    k(f"v_pk_add_f32 {v(S,2)}, {v(S,2)}, {v(S+4,2)}")
    k(f"v_pk_mul_f32 {v(G,2)}, {v(G,2)}, {v(G+2,2)}")
    rb2(S, S+2)
    rb2(G, G+2)
    k(f"v_pk_mul_f32 {v(S,2)}, {v(S,2)}, {v(G,2)}")
    k(f"v_lshlrev_b32 {v(G)}, 16, v9")
    k(f"v_and_b32 {v(G+1)}, 0xffff0000, v9")
    rb2(S, S+2)
    k(f"v_pk_add_f32 {v(S,2)}, {v(S,2)}, {v(G,2)}")
    k(f"v_cvt_pk_bf16_f32 v12, {v(S)}, {v(S+1)}")
    k(f"buffer_store_dword v12, v3, {s(SRD_O,4)}, s47 offen")
    k(f"""
    s_mov_b32 s40, s48
    s_add_u32 s42, s42, {6 << 17}
    s_xor_b32 s45, s45, 16384
    s_cmp_lt_u32 s40, 128
    s_cbranch_scc1 {loop}
    """)
    k.label(done)

def dev_att():
    k = Kernel("att_kernel"); prologue(k)
    k(f"""
    s_cmp_lt_u32 {s(S_X)}, 2
    s_cbranch_scc1 {k.name}_exit
    s_cmp_lt_u32 {s(S_T)}, 20
    s_cbranch_scc1 {k.name}_exit
    s_sub_u32 s6, {s(S_X)}, 2
    s_mul_i32 s6, s6, 12
    s_add_u32 s6, s6, {s(S_T)}
    s_sub_u32 s6, s6, 20
    s_cmp_ge_u32 s6, 64
    s_cbranch_scc1 {k.name}_exit
    """)
    role_att(k, 6)
    epilogue(k); return k
def dev_out():
    k = Kernel("out_kernel"); prologue(k)
    k(f"""
    s_cmp_lt_u32 {s(S_X)}, 2
    s_cbranch_scc1 {k.name}_exit
    s_cmp_ge_u32 {s(S_T)}, 20
    s_cbranch_scc1 {k.name}_exit
    s_sub_u32 s6, {s(S_X)}, 2
    """)
    role_out(k, 6, S_T)
    epilogue(k); return k
```

```python
import sys
import gen
DEV = len(sys.argv) > 1 and sys.argv[1] == 'dev'
gen.STAMPS = DEV
from gen import *
import team3, work
team3.STAMPS = DEV

def fprologue(k):
    ex = f"{k.name}_exit"
    k(f"""
    s_load_dwordx16 s[64:79], s[0:1], 0
    s_load_dwordx8 s[80:87], s[0:1], 64
    s_load_dwordx4 s[88:91], s[0:1], 96
    v_lshrrev_b32 v1, 6, v0
    v_and_b32 v0, 63, v0
    v_readfirstlane_b32 {s(S_WAVE)}, v1
    s_getreg_b32 s6, hwreg(HW_REG_XCC_ID)
    s_and_b32 s6, s6, 7
    s_lshl_b32 s7, s6, 3
    s_lshl_b64 s[28:29], 1, s7
    v_mov_b32 v4, 0
    s_waitcnt lgkmcnt(0)
    """)
    srd(k, SRD_WS, KA_WS, WS_SIZE)
    srd(k, SRD_DBG, KA_DBG, 256)
    nt = k.uid('notick')
    k(f"""
    s_cmp_lg_u32 {s(S_WAVE)}, 0
    s_cbranch_scc1 {nt}
    v_mov_b32 v2, s28
    v_mov_b32 v3, s29
    s_mov_b64 exec, 1
    buffer_atomic_add_x2 v[2:3], off, {s(SRD_DBG,4)}, 0 offset:{DB_TICK} sc0 sc1
    s_waitcnt vmcnt(0)
    ds_write_b64 v4, v[2:3]
    s_mov_b64 exec, -1
    s_waitcnt lgkmcnt(0)
    """)
    k.label(nt)
    k(f"""
    s_barrier
    ds_read_b64 v[2:3], v4
    s_waitcnt lgkmcnt(0)
    s_barrier
    v_sad_u8 v5, v2, 0, 0
    v_sad_u8 v5, v3, 0, v5
    v_readfirstlane_b32 s30, v2
    v_readfirstlane_b32 s31, v3
    v_readfirstlane_b32 s32, v5
    s_cmp_ge_u32 s32, 256
    s_cbranch_scc1 {ex}
    s_lshr_b64 s[34:35], s[30:31], s7
    s_and_b32 {s(S_T)}, s34, 255
    s_mov_b32 {s(S_X)}, s6
    """)
    nz = k.uid('nz'); ns = k.uid('nsnap')
    k(f"""
    s_cmp_lg_u32 {s(S_WAVE)}, 0
    s_cbranch_scc1 {nz}
    s_lshl_b32 s33, s32, 6
    s_add_u32 s33, s33, {WS_SYNC+SY_FLAG}
    v_lshlrev_b32 v5, 2, v0
    s_mov_b64 exec, 0xffff
    buffer_store_dword v4, v5, {s(SRD_WS,4)}, s33 offen sc1
    s_mov_b64 exec, -1
    s_cmp_lg_u32 s32, 255
    s_cbranch_scc1 {nz}
    s_add_u32 s34, s30, s28
    s_addc_u32 s35, s31, s29
    v_mov_b32 v2, s34
    v_mov_b32 v3, s35
    buffer_store_dwordx2 v[2:3], off, {s(SRD_DBG,4)}, 0 offset:{DB_SNAP} sc1
    """)
    k.label(nz)
    ok = k.uid('roleok'); sp = k.uid('snsp'); got = k.uid('sngot')
    k(f"""
    s_cmp_lt_u32 {s(S_T)}, 32
    s_cbranch_scc1 {ok}
    s_mov_b32 s36, 0
    """)
    k.label(sp)
    k(f"""
    buffer_load_dwordx2 v[2:3], off, {s(SRD_DBG,4)}, 0 offset:{DB_SNAP} sc1
    s_waitcnt vmcnt(0)
    v_readfirstlane_b32 s34, v2
    v_readfirstlane_b32 s35, v3
    s_cmp_lg_u64 s[34:35], 0
    s_cbranch_scc1 {got}
    s_add_u32 s36, s36, 1
    s_cmp_gt_u32 s36, {SPIN_MAX}
    s_cbranch_scc1 {ex}
    s_sleep 2
    s_branch {sp}
    """)
    k.label(got)
    k(f"s_sub_u32 s37, {s(S_T)}, 32")
    for x in range(7):
        k(f"""
        s_bfe_u32 s38, s{34 + x//4}, {(8 << 16) | (8*(x % 4))}
        s_max_u32 s38, s38, 32
        s_sub_u32 s38, s38, 32
        s_cmp_gt_u32 s6, {x}
        s_cselect_b32 s38, s38, 0
        s_add_u32 s37, s37, s38
        """)
    k(f"s_mov_b32 {s(S_X)}, 7")
    k(f"s_mov_b32 {s(S_T)}, 31")
    k("s_mov_b32 s40, 0")
    for x in range(8):
        k(f"""
        s_bfe_u32 s38, s{34 + x//4}, {(8 << 16) | (8*(x % 4))}
        s_min_u32 s38, s38, 32
        s_add_u32 s39, s38, s37
        s_cmp_lt_u32 s39, 32
        s_cselect_b32 s41, 1, 0
        s_andn2_b32 s41, s41, s40
        s_or_b32 s40, s40, s41
        s_cmp_lg_u32 s41, 0
        s_cselect_b32 {s(S_X)}, {x}, {s(S_X)}
        s_cselect_b32 {s(S_T)}, s39, {s(S_T)}
        s_sub_u32 s37, s39, 32
        """)
    k.label(ok)
    k(f"""
    s_lshl_b32 {s(S_WG)}, {s(S_T)}, 3
    s_add_u32 {s(S_WG)}, {s(S_WG)}, {s(S_X)}
    """)

def role_pol(k):
    k(f"""
    s_mov_b32 s30, -1
    s_mov_b32 s31, -1
    s_mov_b32 s32, {WS_SYNC+SY_MEMR+6144}
    s_mov_b32 s33, 0
    v_lshlrev_b32 v5, 2, v0
    s_mov_b64 exec, 0xffff
    """)
    l = k.uid('pol'); k.label(l)
    for p in range(2):
        k(f"""
        s_memtime s[34:35]
        s_waitcnt lgkmcnt(0)
        buffer_store_dword v5, v5, {s(SRD_WS,4)}, s32 offen sc1
        s_waitcnt vmcnt(0)
        s_memtime s[36:37]
        s_add_u32 s32, s32, 8192
        s_waitcnt lgkmcnt(0)
        s_sub_u32 s36, s36, s34
        s_min_u32 s{30+p}, s{30+p}, s36
        """)
    k(f"""
    s_add_u32 s33, s33, 1
    s_cmp_lt_u32 s33, 8
    s_cbranch_scc1 {l}
    s_cmp_lt_u32 s31, s30
    s_cselect_b32 s33, 3, 2
    v_mov_b32 v6, s33
    buffer_store_dword v6, off, {s(SRD_DBG,4)}, 0 offset:{DB_POL} sc1
    s_mov_b64 exec, -1
    """)
    if DEV:
        k(f"v_mov_b32 v6, s30\nv_mov_b32 v7, s31\nbuffer_store_dwordx2 v[6:7], off, {s(SRD_DBG,4)}, 0 offset:{DB_POL+8} sc1")

def build(name, P):
    k = Kernel(name); k.timed = True
    fprologue(k)
    ex = f"{k.name}_exit"
    wk = k.uid('worker')
    k(f"s_cmp_ge_u32 {s(S_X)}, 2")
    k(f"s_cbranch_scc1 {wk}")
    team3.role_team(k, P, fused=True)
    k("s_endpgm")
    k.label(wk)
    stamp(k, 3, 6)
    noln = k.uid('noln'); nw0 = k.uid('nw0')
    k(f"""
    s_cmp_lg_u32 {s(S_WAVE)}, 0
    s_cbranch_scc1 {nw0}
    v_mov_b32 v6, 1
    s_waitcnt vmcnt(0)
    s_mov_b64 exec, 1
    buffer_atomic_add v6, off, {s(SRD_DBG,4)}, 0 offset:{DB_INIT} sc1
    s_mov_b64 exec, -1
    s_sub_u32 s6, {s(S_X)}, 2
    s_mul_i32 s7, {s(S_T)}, 6
    s_add_u32 s6, s6, s7
    s_cmp_ge_u32 s6, 128
    s_cbranch_scc1 {noln}
    """)
    role_ln(k, 6)
    k(f"""
    v_mov_b32 v6, 1
    s_waitcnt vmcnt(0)
    s_mov_b64 exec, 1
    buffer_atomic_add v6, off, {s(SRD_DBG,4)}, 0 offset:{DB_LN} sc1
    s_mov_b64 exec, -1
    """)
    k.label(noln)
    k(f"s_cmp_lg_u32 {s(S_WG)}, {31*8+2}")
    k(f"s_cbranch_scc1 {nw0}")
    role_pol(k)
    k.label(nw0)
    n31 = k.uid('n31')
    k(f"s_cmp_lg_u32 {s(S_T)}, 31")
    k(f"s_cbranch_scc1 {n31}")
    wait_dbg(k, ln=False)
    k(f"""
    s_barrier
    s_lshl_b32 s49, {s(S_X)}, 5
    s_add_u32 s49, s49, {s(S_WAVE)}
    s_lshl_b32 s49, s49, 2
    s_add_u32 s49, s49, {WS_SYNC+SY_FLAG+FL_FF - 256 + 112}
    v_mov_b32 v6, 64
    buffer_store_dword v6, off, {s(SRD_WS,4)}, s49 sc1
    """)
    k.label(n31)
    role_gemm1(k, fused=True)
    att = k.uid('att')
    k(f"""
    s_sub_u32 s6, {s(S_X)}, 2
    s_cmp_ge_u32 {s(S_T)}, 20
    s_cbranch_scc1 {att}
    """)
    work.role_out(k, 6, S_T, fused=True)
    stamp(k, 4, 6)
    k("s_endpgm")
    k.label(att)
    k(f"""
    s_sub_u32 s7, 31, {s(S_T)}
    s_mul_i32 s7, s7, 6
    s_add_u32 s6, s6, s7
    s_cmp_ge_u32 s6, 64
    s_cbranch_scc1 {ex}
    """)
    work.role_att(k, 6, fused=True)
    stamp(k, 4, 6)
    epilogue(k)
    return k

if __name__ == '__main__':
    if DEV:
        variants = eval(open('fvariants.txt').read())
        ks = []
        for n, d in variants.items():
            P = dict(team3.TP); P.update(d)
            ks.append(build(f"f{n}_kernel", P))
        emit(ks, 'dev.s')
    else:
        P = dict(team3.TP); P.update(eval(sys.argv[2]) if len(sys.argv) > 2 else {})
        k = build(NAME + "_kernel", P)
        n = k.pad(); wn = k.lint()
        print(k.count(), n, len(wn))
        open(sys.argv[1] if len(sys.argv) > 1 else 'cdna_kernels/' + NAME + '.s', 'w').write("; @launch grid=(256,1,1) block=(256,1,1) lds=163840\n" + '.amdgcn_target "amdgcn-amd-amdhsa--gfx950"\n' + kernel_block(k.name, k.text()))
```

```python
import sys, math
from gen import *

LK, LL, LR, LW, LWS = 0, 8192, 12288, 16384, 36864
ACC = 16; A = 40; PP = 60; WB = 96
AQ, AK, AV = ACC, ACC + 8, ACC + 16
SRD_WO = 96
V16, VIDX, VFW, V8, VOW, VPS, VPL, VPUB, VLW, VC0, VQ, VSEL, VDUM = 0, 1, 2, 3, 4, 5, 6, 7, 8, 9, 13, 14, 15
HINT_OFF = 16384 + 6144

LGRP = [('L', 0, 1), ('L', 1, 2), ('L', 2, 2), ('L', 3, 2), ('L', 4, 2), ('R', 3, 1), ('R', 4, 1), ('O', 3)]
LKEYS = [g + (t,) for g in LGRP for t in range(2)] + [('L', 0, 2, 0), ('L', 1, 1, 1)]
WLDS = {}
WREG = {}
for key in [(l, i, m, t) for l in 'LR' for i in range(5) for m in range(3) for t in range(2)] + [('O', j, ke) for j in range(5) for ke in range(2)]:
    if key not in LKEYS: WREG[key] = WB + 8 * len(WREG)
assert len(WREG) == 52
WS_ST2 = 0x7000000

def delay(k, n):
    n = n // 4
    while n > 0:
        t = min(n, 16); k(f"s_nop {t-1}"); n -= t

def calib(k, P, dst, mid=None):
    k("s_memtime s[38:39]")
    for i in range(11):
        k(f"s_memrealtime s[{64+2*i}:{65+2*i}]")
        k("s_nop 0")
    k("s_waitcnt lgkmcnt(0)")
    if mid: k(mid)
    k(f"s_add_u32 s{dst}, s64, s66")
    for i in range(2, 11): k(f"s_add_u32 s{dst}, s{dst}, s{64+2*i}")
    k(f"s_lshl_b32 s{dst}, s{dst}, 1")
    k(f"s_sub_u32 s{dst}, s{dst}, s38")

def role_team(k, P, fused=False, confirm=None):
    b = S_X; h = S_T; w = S_WAVE
    lst = P.get('lst', '')
    last = k.uid('last')
    srd(k, SRD_A, KA_WQ, 640 * 8192); srd(k, SRD_B, KA_WK, 640 * 8192); srd(k, SRD_C, KA_WV, 640 * 8192)
    srd(k, SRD_WO, KA_WO, 4096 * 1280)
    SR = [SRD_A, SRD_B, SRD_C]
    k(f"""
    v_lshrrev_b32 v16, 3, v0            ; rho
    v_and_b32 v17, 7, v0                ; cc
    v_and_b32 v18, 1, v16
    v_lshlrev_b32 v20, 2, v18           ; 4(rho&1)
    v_and_b32 v19, 2, v16
    v_add_u32 v20, v20, v19             ; + 2((rho>>1)&1)
    v_lshrrev_b32 v21, 2, v16
    v_add_u32 v20, v20, v21             ; + (rho>>2)
    v_lshlrev_b32 v20, 13, v20
    v_lshlrev_b32 v22, 1, v19
    v_xor_b32 v22, v22, v17
    v_lshl_add_u32 v20, v22, 4, v20
    v_lshl_add_u32 v21, v21, 2, v18
    v_lshl_add_u32 v21, v19, 2, v21     ; + 8((rho>>1)&1)
    v_mul_u32_u24 v21, 1280, v21
    v_lshl_add_u32 v21, v17, 4, v21
    s_mul_i32 s37, {s(w)}, {LWS}
    s_add_u32 s37, s37, {LW}
    s_lshl_b32 s38, {s(h)}, 8
    s_lshr_b32 s39, {s(w)}, 1
    s_lshl_b32 s39, s39, 7
    s_add_u32 s38, s38, s39
    s_mul_i32 s39, {s(b)}, {5*64*8192}
    s_add_u32 s50, s38, s39
    s_sub_u32 s39, {5*64*8192}, s39
    s_add_u32 s51, s38, s39
    s_lshl_b32 s39, {s(w)}, 19
    s_add_u32 s40, s50, s39             ; L type A
    s_add_u32 s42, s51, s39             ; R type A
    s_xor_b32 s39, s39, {2 << 19}
    s_add_u32 s41, s50, s39             ; L type B
    s_add_u32 s43, s51, s39             ; R type B
    s_bitcmp1_b32 {s(w)}, 0
    s_cselect_b32 s44, s51, s50
    s_add_u32 s44, s44, {4 << 19}       ; type C
    s_mul_i32 s45, {s(h)}, 163840
    s_mul_i32 s39, {s(b)}, 640
    s_add_u32 s45, s45, s39
    s_mul_i32 s46, {s(w)}, {32*1280}
    s_add_u32 s46, s46, s45
    s_add_u32 s46, s46, 512
    s_lshl_b32 s39, {s(w)}, 7
    s_add_u32 s45, s45, s39
    """)
    VOWN, VPAR, VEVN, VODD, VWO, VT4A, VT4B = 23, 24, 25, 26, 27, 28, 29
    def qkv_batch(sb, m, k0, a0, k1, a1):
        dm = [(SR[m], sb, 8*j*8192, 20) for j in range(8)]
        rd = []
        for kk, va in ((k0, a0), (k1, a1)):
            for t in range(2):
                for u in range(2):
                    for vv in range(2): rd.append((kk + (m, t), 4*u + 2*vv, va, u*4096 + vv*1024 + 8*t))
        return dm, rd
    def wo_batch(ke):
        dm = [(SRD_WO, 45, (64*ke + 32*(j >> 2) + 16*((j >> 1) & 1) + 2*(j & 1)) * 1280, 21) for j in range(8)]
        rd = [(('O', j, ke), 4*u + 2*vv, VWO, u*4096 + vv*1024 + 8*j) for j in range(4) for u in range(2) for vv in range(2)]
        return dm, rd
    B = {}
    for m in range(3):
        B['LA', m] = qkv_batch(40, m, ('L', 0), VOWN, ('L', 2), VPAR)
        B['LB', m] = qkv_batch(41, m, ('L', 3), VOWN, ('L', 4), VPAR)
        B['RA', m] = qkv_batch(42, m, ('R', 0), VOWN, ('R', 2), VPAR)
        B['RB', m] = qkv_batch(43, m, ('R', 3), VOWN, ('R', 4), VPAR)
        B['C', m] = qkv_batch(44, m, ('L', 1), VEVN, ('R', 1), VODD)
    for ke in range(2): B['O', ke] = wo_batch(ke)
    nl = lambda x: len({r[0] for r in B[x][1] if r[0] in LKEYS})
    order = sorted(B, key=nl)
    NB = len(order)
    SPARE = 32768
    vq = []
    def issue(dm, ldsoff, tag):
        for j, (sr, sb, c, vg) in enumerate(dm):
            k(f"s_add_u32 s39, s{sb}, {c}")
            k(f"s_add_u32 m0, s37, {ldsoff + j*1024}")
            k(f"buffer_load_dwordx4 {v(vg)}, {s(sr,4)}, s39 offen lds")
            vq.append(tag)
    def vwait(tag):
        idx = max(i for i, t in enumerate(vq) if t == tag)
        k(f"s_waitcnt vmcnt({len(vq) - idx - 1})")
        del vq[:idx+1]
    issue([(SRD_WO, 46, (16*(j >> 1) + 2*(j & 1)) * 1280, 21) for j in range(4)], SPARE, 'o4')
    for n in range(4): issue(B[order[n]][0], n * 8192, n)
    stamp(k, 0, 30)
    if STAMPS: vq.extend(['st', 'st'])
    k(f"""
    v_lshrrev_b32 v16, 4, v0            ; g
    v_and_b32 v17, 15, v0               ; n
    v_bfe_u32 v18, v0, 1, 1
    v_mov_b32 {v(VIDX)}, 0x4444
    v_mul_u32_u24 v18, 0xaaaa, v18
    v_add_u32 {v(VIDX)}, {v(VIDX)}, v18
    s_lshl_b32 s35, {s(w)}, 10
    v_lshlrev_b32 {v(VFW)}, 5, v17
    v_lshl_add_u32 {v(VFW)}, v16, 3, {v(VFW)}
    v_add_u32 {v(VFW)}, s35, {v(VFW)}
    v_lshlrev_b32 {v(V8)}, 3, v0
    v_lshrrev_b32 v18, 1, v16
    v_lshlrev_b32 {v(VOW)}, 8, v18
    v_and_b32 v18, 1, v16
    v_lshl_add_u32 {v(VOW)}, v18, 5, {v(VOW)}
    v_lshrrev_b32 v18, 2, v17
    v_lshl_add_u32 {v(VOW)}, v18, 6, {v(VOW)}
    v_and_b32 v18, 1, v17
    v_lshl_add_u32 {v(VOW)}, v18, 4, {v(VOW)}
    v_bfe_u32 v18, v17, 1, 1
    v_xor_b32 v18, 1, v18
    v_lshl_add_u32 {v(VOW)}, v18, 11, {v(VOW)}
    s_lshl_b32 s36, {s(w)}, 9
    v_add_u32 {v(VOW)}, s36, {v(VOW)}
    v_and_b32 v18, 12, v17
    v_add_u32 v18, v18, v16
    v_lshlrev_b32 {v(VPS)}, 11, v18
    v_and_b32 v18, 3, v17
    v_lshl_add_u32 {v(VPS)}, v18, 4, {v(VPS)}
    v_bfe_u32 v19, v17, 1, 1
    v_lshlrev_b32 {v(VPUB)}, 5, v19
    v_and_b32 v19, 1, v17
    v_lshl_add_u32 {v(VPUB)}, v19, 3, {v(VPUB)}
    v_lshrrev_b32 v19, 1, v16
    v_lshl_add_u32 {v(VPUB)}, v19, 4, {v(VPUB)}
    v_mul_u32_u24 v22, 1280, v19
    v_and_b32 v19, 1, v16
    v_lshl_add_u32 {v(VPUB)}, v19, 2, {v(VPUB)}
    ; mem0 voff (v22) = p*1280 + (8a+i)*2
    v_lshl_add_u32 v18, v19, 3, v18
    v_lshl_add_u32 v22, v18, 1, v22
    v_bfe_u32 v18, v17, 3, 1
    v_lshlrev_b32 v18, 4, v18
    v_mov_b32 v19, 0x3c00
    v_lshlrev_b32 {v(VPL)}, v18, v19
    ; staging read addresses: rows part = (g>>1)*2048 + ((g&1)*4 + r)*128
    v_lshrrev_b32 v18, 1, v16
    v_lshlrev_b32 v19, 11, v18
    v_bfe_u32 v18, v0, 2, 3
    v_lshl_add_u32 v19, v18, 7, v19
    v_and_b32 v18, 3, v0                ; c
    v_lshl_add_u32 {v(VWO)}, v18, 5, v19
    v_add_u32 {v(VWO)}, s37, {v(VWO)}
    v_lshl_add_u32 {v(VT4A)}, v18, 3, v19
    s_lshl_b32 s38, {s(w)}, 5
    s_add_u32 s38, s38, {LW + SPARE}
    v_add_u32 {v(VT4A)}, s38, {v(VT4A)}
    v_add_u32 {v(VT4B)}, {2*LWS}, {v(VT4A)}
    v_lshl_add_u32 v19, v18, 4, v19
    v_bfe_u32 v18, v0, 3, 1             ; r>>1
    s_and_b32 s38, {s(w)}, 1
    v_xor_b32 v18, s38, v18
    v_lshl_add_u32 v19, v18, 6, v19
    v_add_u32 {v(VOWN)}, s37, v19
    s_xor_b32 s38, {s(w)}, 1
    s_mul_i32 s38, s38, {LWS}
    s_add_u32 s38, s38, {LW}
    v_add_u32 {v(VPAR)}, s38, v19
    v_min_u32 {v(VEVN)}, {v(VOWN)}, {v(VPAR)}
    v_max_u32 {v(VODD)}, {v(VOWN)}, {v(VPAR)}
    v_lshlrev_b32 {v(V16)}, 4, v0
    v_add_u32 {v(VLW)}, s37, {v(V16)}
    v_add_u32 {v(VC0)}, s35, {v(V16)}
    v_lshrrev_b32 {v(VQ)}, 2, {v(VC0)}
    v_xor_b32 {v(VC0+1)}, 0x400, {v(VC0)}
    v_xor_b32 {v(VC0+2)}, 0x800, {v(VC0)}
    v_xor_b32 {v(VC0+3)}, 0xc00, {v(VC0)}
    """)
    k(f"""
    s_mul_i32 s39, {s(b)}, {PART_GRP}
    s_add_u32 s39, s39, {WS_SYNC+SY_PART}
    s_lshl_b32 s100, {s(h)}, 6
    s_lshl_b32 s101, {s(w)}, 15
    s_add_u32 s100, s100, s101
    s_add_u32 s100, s100, s39
    s_lshl_b32 s28, {s(w)}, 5
    s_add_u32 s28, s28, {s(h)}           ; rho
    s_lshl_b32 s101, s28, 11
    s_add_u32 s101, s101, s39
    s_lshl_b32 s39, {s(b)}, 15
    s_add_u32 s29, s39, {WS_SYNC+SY_MEML}
    s_lshl_b32 s39, {s(b)}, 20
    s_add_u32 s30, s39, {WS_SYNC+SY_MEMR+8192*P.get('pol',0)}
    s_xor_b32 s39, s39, 0x100000
    s_add_u32 s31, s39, {WS_SYNC+SY_MEMR+8192*P.get('pol',0)}
    s_lshl_b32 s32, s28, 6
    s_mov_b32 s6, 0xf000f000
    s_mov_b32 s7, 0xf000f000
    """)
    def init_stores():
        k(f"""
        s_cmp_lt_u32 s28, 80
        s_cselect_b32 s56, -1, 0
        s_mov_b32 s57, s56
        s_mov_b32 s92, {s(KA_MEM0)}
        s_and_b32 s93, {s(KA_MEM0+1)}, 0xffff
        s_mov_b32 s94, 10240
        s_mov_b32 s95, 0x20000
        s_and_b32 s39, s28, 3
        s_mul_i32 s39, s39, 2560             ; g*2 rows
        s_lshr_b32 s38, s28, 2
        s_lshl_b32 s38, s38, 5               ; T*16 cols*2B
        s_add_u32 s39, s39, s38
        s_mul_i32 s38, {s(b)}, 640
        s_add_u32 s39, s39, s38
        s_and_b64 exec, s[6:7], s[56:57]
        buffer_load_ushort v16, v22, s[92:95], s39 offen
        buffer_load_ushort v17, v22, s[92:95], s39 offen offset:8
        s_mov_b64 exec, -1
        """)
        vq.extend(['m0', 'm0'])
        if fused:
            k(f"""
            s_add_u32 s38, s32, s29
            s_add_u32 s39, s32, s30
            v_mov_b32 v92, -1
            v_mov_b32 v93, -1
            v_mov_b32 v94, -1
            v_mov_b32 v95, -1
            v_lshrrev_b32 v18, 6, {v(V16)}      ; lane>>2
            v_and_b32 v19, 48, {v(V16)}
            v_lshl_add_u32 v18, v18, 13, v19
            s_add_u32 s34, s101, {PART_SLOT}
            s_mov_b64 exec, s[56:57]
            buffer_store_dwordx4 v[92:95], {v(V16)}, {s(SRD_WS,4)}, s101 offen sc1
            buffer_store_dwordx4 v[92:95], {v(V16)}, {s(SRD_WS,4)}, s101 offen offset:1024 sc1
            buffer_store_dwordx4 v[92:95], {v(V16)}, {s(SRD_WS,4)}, s34 offen sc1
            buffer_store_dwordx4 v[92:95], {v(V16)}, {s(SRD_WS,4)}, s34 offen offset:1024 sc1
            s_and_b32 exec_lo, s56, 0xfff0
            s_mov_b32 exec_hi, 0
            buffer_store_dwordx4 v[92:95], v18, {s(SRD_WS,4)}, s38 offen sc1
            s_and_b32 exec_lo, s56, 0xffffff00
            s_mov_b32 exec_hi, s56
            buffer_store_dwordx4 v[92:95], v18, {s(SRD_WS,4)}, s39 offen sc1
            s_mov_b64 exec, s[56:57]
            s_mov_b32 s34, s39
            """)
            for i in range(7):
                k(f"s_add_u32 s34, s34, {16*8192}")
                k(f"buffer_store_dwordx4 v[92:95], v18, {s(SRD_WS,4)}, s34 offen sc1")
            k("s_mov_b64 exec, -1")
            vq.extend(['in'] * 13)
    def pub0():
        if 'm0' in vq: vwait('m0')
        k(f"""
        s_add_u32 s38, s32, s29
        s_add_u32 s39, s32, s30
        s_xor_b32 s34, s39, 8192
        v_lshl_or_b32 v16, v17, 16, v16
        s_and_b64 exec, s[6:7], s[56:57]
        v_min_u32 v16, 0xfffffffe, v16
        buffer_store_dword v16, {v(VPUB)}, {s(SRD_WS,4)}, s39 offen sc1
        buffer_store_dword v16, {v(VPUB)}, {s(SRD_WS,4)}, s34 offen sc1
        buffer_store_dword v16, {v(VPUB)}, {s(SRD_WS,4)}, s38 offen sc1
        s_mov_b64 exec, -1
        """)
        vq.extend(['p0'] * 3)
    WLDS.clear()
    free = []; held = []; tpool = [32 + 8*i for i in range(8)]
    tmp = {}
    def flush():
        while held and free:
            key = held.pop(0); off = free.pop(0); WLDS[key] = off; t = tmp.pop(key)
            for hh in range(2): k(f"ds_write_b128 {v(VLW)}, {v(t + 4*hh, 4)} offset:{off + 1024*hh}")
            tpool.append(t)
    def consume(rd, base):
        new = []
        for (key, ro, va, off) in rd:
            if key in WREG: reg = WREG[key]
            else:
                if key not in tmp: tmp[key] = tpool.pop(0); new.append(key)
                reg = tmp[key]
            k(f"ds_read_b64_tr_b16 {r(reg + ro, 2)}, {v(va)} offset:{base + off}")
        k("s_waitcnt lgkmcnt(0)")
        held.extend(new)
    for n in range(NB):
        vwait(n)
        if n == 0 and confirm: confirm(0)
        if n == 9 and fused:
            assert 'p0' not in vq and 'in' not in vq
        k("s_barrier")
        if n == 0 and confirm: confirm(1)
        if n == 9 and fused:
            k(f"""
            s_cmp_eq_u32 {s(w)}, 0
            s_cselect_b32 exec_lo, 1, 0
            s_mov_b32 exec_hi, 0
            v_mov_b32 v16, 1
            buffer_atomic_add v16, off, {s(SRD_DBG,4)}, 0 offset:{DB_INIT} sc1
            s_mov_b64 exec, -1
            """)
            vq.append('at')
        if n == 0:
            if confirm: vq.append('fz')
            init_stores()
        if n == 4: pub0()
        if n == 1: free.extend([SPARE, SPARE + 2048])
        if n >= 1:
            if n + 3 < NB: issue(B[order[n+3]][0], ((n - 1) % 4) * 8192, n + 3)
            else: free.extend([((n - 1) % 4) * 8192 + 2048*q for q in range(4)])
        flush()
        rd = B[order[n]][1]
        if n == 0:
            for ke in range(2):
                for u in range(2):
                    for vv in range(2):
                        k(f"ds_read_b64_tr_b16 {r(WREG[('O', 4, ke)] + 4*u + 2*vv, 2)}, {v([VT4A, VT4B][ke])} offset:{u*LWS + vv*1024}")
        consume(rd, (n % 4) * 8192)
    k("s_barrier")
    free.extend([((NB - 1) % 4) * 8192 + 2048*q for q in range(4)])
    flush()
    assert not held and len(WLDS) == 18
    k("s_waitcnt lgkmcnt(0)")
    stamp(k, 1, 20)
    if fused:
        top = k.uid('tw'); ok = k.uid('twok')
        k("s_mov_b32 s43, 0")
        k(f"v_lshrrev_b32 v25, 2, {v(V16)}")
        k.label(top)
        k(f"""
        buffer_load_dword v24, v25, {s(SRD_DBG,4)}, 0 offen sc1
        s_waitcnt vmcnt(0)
        v_readlane_b32 s38, v24, {DB_INIT//4}
        v_readlane_b32 s39, v24, {DB_POL//4}
        v_readlane_b32 s90, v24, {DB_SNAP//4}
        s_cmp_eq_u32 s38, 256
        s_cselect_b32 s34, s39, 0
        s_cmp_lg_u32 s34, 0
        s_cbranch_scc1 {ok}
        s_add_u32 s43, s43, 1
        s_cmp_gt_u32 s43, {SPIN_MAX}
        s_cbranch_scc1 {last}
        s_sleep 2
        s_branch {top}
        """)
        k.label(ok)
        k(f"""
        s_and_b32 s39, s39, 1
        s_lshl_b32 s39, s39, 13
        s_add_u32 s30, s30, s39
        s_add_u32 s31, s31, s39
        s_and_b32 s90, s90, 0xffff
        """)
    k(f"""
    s_lshl_b32 s39, {s(h)}, {HS}
    s_lshl_b32 s54, {s(w)}, 11
    s_add_u32 s51, s54, {LK}             ; K dma lds base
    s_add_u32 s54, s54, s39
    s_add_u32 s53, s54, {WS_K}           ; K quarter (running)
    s_add_u32 s54, s54, {WS_VT}          ; VT(s) wave base (running)
    s_lshl_b32 s95, {s(w)}, 10
    s_lshl_b32 s55, {s(b)}, 12
    s_lshl_b32 s38, {s(w)}, 9
    s_add_u32 s55, s55, s38
    s_add_u32 s55, s55, s39
    s_add_u32 s55, s55, {WS_FM - (1 << SS)}          ; FM(s-1) store address (running)
    s_add_u32 s15, s39, {WS_K + (1 << SS)}           ; prefetch base (running)
    s_mov_b32 s56, 0x05050505
    s_mov_b32 s57, 0x05050505
    s_mov_b32 s58, 0x0a0a0a0a
    s_mov_b32 s59, 0x0a0a0a0a
    s_mov_b32 s60, 0x50505050
    s_mov_b32 s61, 0x50505050
    s_mov_b32 s62, 0xa0a0a0a0
    s_mov_b32 s63, 0xa0a0a0a0
    s_mov_b32 s33, 0
    s_mov_b32 s43, 0
    s_mov_b32 s44, 0
    s_mov_b32 s45, 0
    s_mov_b32 s46, 0
    s_mov_b32 s49, 0
    s_lshl_b32 s50, {s(h)}, 6
    s_lshl_b32 s39, {s(b)}, 2
    s_add_u32 s50, s50, s39
    s_add_u32 s50, s50, {WS_SYNC+SY_FLAG+FL_FM}
    s_cmp_eq_u32 {s(w)}, 3
    s_cselect_b32 s50, s50, {WS_SIZE}
    s_sub_u32 s52, {s(h)}, {s(w)}
    s_lshl_b32 s52, s52, 8
    s_add_u32 s52, s52, {WS_SYNC+SY_FLAG+FL_G1}   ; K/V flag line (minus the wave part of VQ)
    s_cmp_lt_u32 {s(w)}, 2
    s_cselect_b32 s15, s15, s52
    s_cselect_b32 s21, {1 << SS}, 0      ; prefetch increment
    s_cselect_b32 s93, 5, 0
    s_cselect_b32 s94, 0, 1              ; tag mask of dwords 1..3
    s_lshl_b32 s20, s28, 8
    s_cmp_lt_u32 s28, 20
    s_cselect_b32 s20, s20, {WS_SIZE}
    s_mov_b32 s14, {float_hex(128 ** -0.5 * math.log2(math.e))}
    s_mov_b32 s16, {WS_SIZE}
    s_mov_b32 s17, 0
    s_cmp_eq_u32 {s(b)}, 0
    s_cselect_b32 s92, -1, 0
    s_add_u32 s99, s30, 7168             ; hint lines of the step (running)
    s_and_b32 s91, {s(h)}, 3
    s_lshl_b32 s91, s91, 8
    s_add_u32 s91, s91, s99
    s_cmp_eq_u32 {s(w)}, 3
    s_cselect_b32 s98, s91, s16          ; hint update (running)
    s_add_u32 s91, s98, {16384 - 768}
    s_cmp_lt_u32 {s(h)}, 4
    s_cselect_b32 s91, s91, s16          ; hint reset (running)
    s_cmp_eq_u32 s28, {96 + P.get('rep', 0)}
    s_cselect_b32 s16, {5120 - 64 * (96 + P.get('rep', 0))}, s16
    s_mul_i32 s26, {s(w)}, {-(32768 - 8192)}
    s_add_u32 s26, s26, {64*2048}
    s_mov_b32 s27, 0
    s_mov_b32 s22, 0
    s_mov_b32 s24, 0
    s_mov_b32 s19, 1
    s_cmp_eq_u32 {s(w)}, 3
    s_movk_i32 s37, {P['ltgt'] - P['rtgt']}
    s_cselect_b32 s37, {P['tlead']}, s37
    """)
    def kvspin(back):
        top = k.uid('kvs'); k.label(top)
        k(f"""
        buffer_load_dword {v(VSEL)}, {v(VQ)}, {s(SRD_WS,4)}, s52 offen sc1
        s_waitcnt vmcnt(0)
        v_cmp_ge_u32 vcc, s19, {v(VSEL)}
        s_and_b32 s39, vcc_lo, 0xfff
        s_cbranch_scc0 {back}
        s_add_u32 s44, s44, 1
        s_cmp_gt_u32 s44, {SPIN_MAX}
        s_cbranch_scc1 {last}
        s_sleep 1
        s_branch {top}
        """)
    if fused:
        k(f"s_add_u32 s34, s101, {PART_SLOT}")
        for sb in (101, 34):
            for o in (0, 1024): k(f"buffer_load_dwordx4 {v(A+8,4)}, {v(V16)}, {s(SRD_WS,4)}, s{sb} offen offset:{o} sc1")
        k(f"v_lshlrev_b32 {v(VDUM)}, 3, {v(VC0)}")
        k(f"buffer_load_dword {v(A+8)}, {v(VDUM)}, {s(SRD_WS,4)}, s29 offen sc1")
        kok = k.uid('kok'); kvspin(kok); k.label(kok)
    k("s_mov_b32 m0, s51")
    for o in (0, 1024): k(f"buffer_load_dwordx4 {v(V16)}, {s(SRD_WS,4)}, s53 offen offset:{o} sc1 lds")
    k(f"buffer_load_dwordx4 {v(A+8,4)}, {v(V16)}, {s(SRD_WS,4)}, s54 offen sc1")
    k(f"buffer_load_dwordx4 {v(A+8,4)}, {v(V16)}, {s(SRD_WS,4)}, s54 offen offset:1024 sc1")
    calib(k, P, 25)
    k(f"v_mov_b32 {v(VDUM)}, s25")
    k(f"ds_write_b32 {v(VQ)}, {v(VDUM)} offset:{LR+2048}")
    k("s_waitcnt vmcnt(0) lgkmcnt(0)")
    if fused:
        slow = k.uid('slow')
        k("s_cmp_lg_u32 s90, 0x2020")
        k(f"s_cbranch_scc1 {slow}")
        team_loop(k, P, '', last, kvspin, fused)
        k.label(slow)
        team_loop(k, P, 'sc1', last, kvspin, fused)
    else:
        team_loop(k, P, lst, last, kvspin, fused)
    k.label(last)
    team_end(k)

def team_loop(k, P, lst, last, kvspin, fused):
    b = S_X; h = S_T; w = S_WAVE
    cold = []
    ns = P.get('nosync')
    TK = P.get('tick')
    pend = []
    def lwait_s(tag):
        if tag not in pend: return []
        idx = max(i for i, t in enumerate(pend) if t == tag)
        n = min(len(pend) - idx - 1, 15)
        del pend[:idx+1]
        return [f"s_waitcnt lgkmcnt({n})"]
    def lwait(tag):
        for x in lwait_s(tag): k(x)
    def wl_s(key, reg): return [(f"ds_read_b128 {v(reg+4*hh,4)}, {v(VLW)} offset:{WLDS[key]+1024*hh}", key) for hh in range(2)]
    dslog = []
    def ds(x, tag): k(x); pend.append(tag); dslog.append((x, tag))
    def smf(acc, areg, breg):
        k(f"v_smfmac_f32_16x16x64_bf16 {v(acc,4)}, {v(areg,4)}, {r(breg,8)}, {v(VIDX)}")
    pl = [f"buffer_load_dword {v(A+4)}, {v(VQ)}, {s(SRD_WS,4)}, s36 offen sc1 ;poll",
          f"buffer_load_dwordx4 {v(A,4)}, {v(VC0)}, {s(SRD_WS,4)}, s35 offen sc1 ;poll"]
    def poll_local():
        for x in pl: k(x)
    pr = [f"buffer_load_dwordx4 {v(A+12,4)}, {v(VC0)}, {s(SRD_WS,4)}, s40 offen sc1 ;poll",
          f"buffer_load_dword {v(A+16)}, {v(VQ)}, {s(SRD_WS,4)}, s41 offen sc1 ;poll"]
    def poll_rr():
        for x in pr: k(x)
    def dloop(sr):
        l = k.uid('dl'); k(".p2align 3"); k.label(l)
        k(f"s_sub_u32 s{sr}, s{sr}, {P['dit']}")
        k(f"s_cbranch_scc0 {l}")
    def set_slots():
        return f"""s_lshl_b32 s19, s33, 13
        s_and_b32 s18, s19, 0x6000
        s_lshl_b32 s19, s33, 14
        s_add_u32 s35, s18, s29
        s_add_u32 s36, s35, 4096
        s_add_u32 s40, s19, s31
        s_add_u32 s41, s40, 4096""".split('\n')
    def cmpsent(x): return f"v_cmp_{'f' if ns else 'eq'}_u32 vcc, -1, {v(x)}"
    def chk(b0, n=5):
        T = VDUM
        if n == 1: return [cmpsent(b0)]
        return [f"v_max3_u32 {v(T)}, {v(b0)}, {v(b0+1)}, {v(b0+2)}", f"v_max3_u32 {v(T)}, {v(T)}, {v(b0+3)}, {v(b0+n-1)}", cmpsent(T)]
    def retry(b0, reissue, cnt, post, fix=None, n=5):
        c = k.uid('cold'); back = k.uid('back')
        k(f"s_cbranch_vccnz {c}")
        k.label(back)
        def body():
            k.label(c)
            reissue()
            k(f"s_add_u32 s{cnt}, s{cnt}, 1")
            k(f"s_cmp_gt_u32 s{cnt}, {P.get('bound', 20000)}")
            k(f"s_cbranch_scc1 {last}")
            k(f"s_waitcnt vmcnt(0) lgkmcnt(0)")
            post()
            for x in chk(b0, n): k(x)
            k(f"s_cbranch_vccnz {c}")
            if fix: fix()
            k("s_waitcnt lgkmcnt(0)")
            k(f"s_branch {back}")
        cold.append(body)
    TK2 = P.get('tk2')
    def tick(i, alt=False):
        if TK2 and 3 <= i <= 8 and not alt: return
        if TK: k(f"s_memtime s[{64+2*i}:{65+2*i}]")
    def zero(base, n): return [f"v_mov_b64 {v(base+i,2)}, 0" for i in range(0, n, 2)]
    RING = [PP + 16, PP + 24, PP, PP + 8]
    WARM = f"v_mov_b32 {v(V8)}, {v(V8)}"
    VMC = PP + 32; VX = PP + 24; KR = PP + 16; PF = PP
    RD = A + 8; SEL = AK; D = A; T = A + 16
    areg = [A, A+8, A+4, A, A+8]
    rreg = [A+12, A+16, A+4, A, A+8]
    seq = [('L', 0, 1, 0), ('L', 0, 1, 1), ('L', 0, 2, 0), ('L', 0, 2, 1), ('L', 0, 0, 0), ('L', 0, 0, 1)]
    for i in range(1, 5): seq += [('L', i, m, t) for m in (0, 1, 2) for t in range(2)]
    rin = P.get('rin', 0)
    if rin:
        seq += [('R', 0, m, t) for t in range(2) for m in (1, 0)]
        seq += [('R', i, m, 0) for i in range(1, 5) for m in (1, 0)]
        seq += [('R', i, m, 1) for m in (1, 0) for i in range(1, 5)]
    else:
        seq += [('R', i, m, 0) for i in range(5) for m in (1, 0)]
        seq += [('R', i, m, 1) for m in (1, 0) for i in range(5)]
    seq += [('R', i, 2, t) for i in range(5) for t in range(2)]
    lseq = [x for x in seq if x in WLDS]
    sl = [0, 2, 3] * 5 + [0 if rin else 2]
    rslot = {x: RING[sl[n]] for n, x in enumerate(lseq)}
    def ring_pre():
        for x in lseq[:3]:
            for y, tg in wl_s(x, rslot[x]): ds(y, tg)
    def do_smf(key):
        l, i, m, t = key
        smf(ACC + 8*m + 4*t, (areg if l == 'L' else rreg)[i], WREG.get(key) or rslot[key])
    def a_rd(l, i):
        base = LL if l == 'L' else LR
        dst = (areg if l == 'L' else rreg)[i]
        if i == 1: return (f"ds_read_b128 {v(dst,4)}, {v(V16)} offset:{LR + 3072 if l == 'L' else LL}", l + '1')
        return (f"ds_read_b128 {v(dst,4)}, {v(VC0+i-1)} offset:{base}", f'{l}{i}')
    kfr = [KR, KR+4, VMC] + rreg
    def k_rd(f): return (f"ds_read_b128 {v(kfr[f],4)}, {v(V16)} offset:{LK + 1024*f}", f'k{f}')
    def pack(t):
        kq = AK + 4*t; qq = AQ + 4*t
        return [f"v_add_f32 {v(kq)}, {v(kq)}, {v(kq+2)}",
                f"v_add_f32 {v(kq+1)}, {v(kq+1)}, {v(kq+3)}",
                f"v_cvt_pk_bf16_f32 {v(kq+2)}, {v(kq)}, {v(kq+1)}",
                f"v_add_f32 {v(qq)}, {v(qq)}, {v(qq+2)}",
                f"v_add_f32 {v(qq+1)}, {v(qq+1)}, {v(qq+3)}",
                f"v_cvt_pk_bf16_f32 {v(kq+3)}, {v(qq)}, {v(qq+1)}",
                f"ds_write_b64 {v(VFW)}, {v(kq+2,2)} offset:{LL + 512*t}"]
    def fmget():
        k(f"v_add_u32 {v(VDUM)}, s95, {v(V8)}")
        k(f"v_mov_b64 {v(VMC,2)}, {v(VM,2)}")
        sk = k.uid('fmsk')
        k("s_cmp_eq_u32 s92, 0")
        k(f"s_cbranch_scc1 {sk}")
        k(f"ds_read_b64_tr_b16 {v(VMC,2)}, {v(VDUM)} offset:{LL}")
        k(f"ds_read_b64_tr_b16 {v(VMC+2,2)}, {v(VDUM)} offset:{LL+512}")
        k.label(sk)
    def fmfix():
        sk = k.uid('fmsk')
        k("s_cmp_eq_u32 s92, 0")
        k(f"s_cbranch_scc1 {sk}")
        k("s_or_b64 vcc, s[56:57], s[60:61]")
        for i in range(2): k(f"v_mov_b32_dpp {v(VMC+i)}, {v(VMC+i)} quad_perm:[0,0,1,1] row_mask:0xf bank_mask:0xf")
        for i in range(2): k(f"v_cndmask_b32_dpp {v(VMC+i)}, {v(VMC+2+i)}, {v(VMC+i)}, vcc quad_perm:[0,0,1,1] row_mask:0xf bank_mask:0xf")
        k.label(sk)
    def tail():
        k(f"""
        s_and_b32 s19, s33, 1
        s_mul_i32 s19, s19, {PART_SLOT}
        s_add_u32 s47, s19, s100
        s_add_u32 s48, s19, s101
        s_bfe_u32 s34, s33, 0x10001
        s_add_u32 s23, s47, s26
        s_xor_b32 s18, s35, 0x4000
        s_add_u32 s18, s18, s20
        v_lshlrev_b32 {v(VSEL)}, s93, {v(VQ)}
        """)
        for x in zero(AK, 4): k(x)
    def tail2():
        if TK: k(f"v_writelane_b32 {v(A+8)}, s25, 14")
        if STAMPS:
            sk = k.uid('stc')
            k("s_cmp_lg_u32 s33, 5")
            k(f"s_cbranch_scc1 {sk}")
            k("s_mov_b32 s46, s97\ns_mov_b32 s43, 0\ns_mov_b32 s45, 0\ns_mov_b32 s49, 0\ns_mov_b32 s44, 0")
            k.label(sk)
        if TK:
            k(f"""
            s_lshl_b32 s39, {s(S_WG)}, 2
            s_add_u32 s39, s39, {s(w)}
            s_lshl_b32 s39, s39, 12
            s_lshl_b32 s38, s33, 6
            s_add_u32 s39, s39, s38
            s_add_u32 s39, s39, {WS_ST2}
            s_lshl_b32 s38, s45, 10
            s_or_b32 s90, s38, s43
            s_lshl_b32 s38, s49, 20
            s_or_b32 s90, s38, s90
            """)
            for i in range(10):
                k(f"v_writelane_b32 {v(A+8)}, s{64+2*i}, {i}")
            k(f"v_writelane_b32 {v(A+8)}, s90, 13")
            k(f"v_lshrrev_b32 {v(A+9)}, 2, {v(V16)}")
    fmst = f"buffer_store_dwordx2 {v(VMC,2)}, {v(V8)}, {s(SRD_WS,4)}, s55 offen sc1"
    SX0, SX1, SM = AQ, AQ + 4, AK
    T0, T1 = AK + 4, AK + 5; VM = AK + 6
    PK = KR; PM0 = KR + 4; PM1 = KR + 6; ONE = VMC
    lastpub = k.uid('lastpub'); loop = k.uid('tloop'); entry = k.uid('entry')
    for x in zero(ACC, 24) + set_slots(): k(x)
    ring_pre()
    k("s_memtime s[96:97]")
    k("s_waitcnt lgkmcnt(0)")
    k("s_sub_u32 s97, s96, 1")
    k("s_add_u32 s42, s97, s25")
    k("s_sub_u32 s42, s42, 1000")
    tail()
    k(f"s_mov_b32 s39, {WS_SIZE}")
    k("s_barrier")
    k(f"s_branch {entry}")
    k.label(loop)
    pend[:] = []
    early = P.get('sc1early', 0)
    tailv = (1 if TK else 0)
    n0log = len(dslog)
    nt = (0 if rin else 2) + tailv + (0 if early else 1)
    lw = [(f"ds_write_b32 {v(VQ)}, {v(A+4)} offset:{LR + 3072}", 'w1'), (f"ds_write_b128 {v(VC0)}, {v(A,4)} offset:{LL}", 'w')]
    k(f"s_waitcnt vmcnt({nt + 1})")
    tick(0)
    ds(*lw[0])
    k(chk(A + 4, 1)[0])
    k(f"s_waitcnt vmcnt({nt})")
    do_smf(seq[0])
    def lfix(n):
        again = [x for x, tg in dslog[n0log:] if tg in rslot]
        def f():
            if again:
                for kk in lseq[:3]:
                    for x, _ in wl_s(kk, rslot[kk]): k(x)
                k("s_waitcnt lgkmcnt(0)")
            for kk in seq[:n]:
                for x in zero(ACC + 8*kk[2] + 4*kk[3], 4): k(x)
            for kk in seq[:n]: do_smf(kk)
            for x in again: k(x)
        return f
    rc = P.get('rc', 20); bx = P.get('bx', 18)
    pre = {}; val = {}; dsq = []; hook = {}
    def at(c, *xs):
        for x in xs: (val if x.startswith('v_') else pre).setdefault(c, []).append(x)
    lb = P.get('lb', 2); lc = P.get('lc', 5); lb2 = P.get('lb2', 6); rb = rc + P.get('rb', 5)
    sp = P['sp']
    sx = P.get('sx', rb)
    if sx > rb: at(sx, "s_memtime s[96:97]")
    hs_ = sx + P.get('hs', 4)
    vl = P.get('vl', [4, 5])
    npre = sum(x < rc for x in sp + vl)
    for o in (0, 1): at(vl[o], f"buffer_load_dwordx4 {v(VX+4*o,4)}, {v(V16)}, {s(SRD_WS,4)}, s54 offen offset:{1024*o} sc1")
    assert max(vl) < min(sp) and rc not in vl
    pfi = f"buffer_load_dword {v(VSEL)}, {v(VSEL)}, {s(SRD_WS,4)}, s15 offen sc1"
    at(sp[0], pfi)
    at(sp[1], fmst)
    at(sp[2] - 1, f"v_mov_b32 {v(VDUM)}, s17")
    at(sp[2], f"buffer_store_dword {v(VDUM)}, off, {s(SRD_WS,4)}, s50 sc1")
    at(sp[3] - 1, f"v_mov_b32 {v(VDUM)}, -1")
    at(sp[3], f"buffer_store_dword {v(VDUM)}, {v(VQ)}, {s(SRD_WS,4)}, s18 offen {lst}")
    rw = [(f"ds_write_b128 {v(VC0)}, {v(A+12,4)} offset:{LR}", 'w'), (f"ds_write_b32 {v(VQ)}, {v(A+16)} offset:{LL}", 'w')]
    ck = chk(A + 12)
    at(rc, f"s_waitcnt vmcnt({(0 if rin else tailv) + npre})", ck[0]); at(rc + 1, ck[1]); at(rc + 2, ck[2])
    def rre():
        for x, _ in rw: k(x)
    def h1():
        ds(*lw[1])
        retry(A + 4, poll_local, 43, lambda: [k(x) for x, _ in lw], lfix(1), 1)
    def b1():
        lwait('w1'); k("s_barrier")
        if rin == lb:
            ds(*dsq.pop(0)); poll_rr()
    def b1b():
        lwait('w'); k("s_barrier")
    for j, x in enumerate(chk(A, 4)): at(1 + j, x)
    def b2():
        lwait('w')
        k("s_barrier")
        if sx == rb: k("s_memtime s[96:97]")
        tick(2)
    hook[1] = h1; hook[lb] = b1; hook[lb2] = b1b
    hook[lc] = lambda: retry(A, lambda: k(pl[1]), 43, lambda: k(lw[1][0]), lfix(lc), 4)
    assert 1 < lb < lc < lb2 and 4 <= lc <= 6
    at(bx + 1 if rin else lc, f"v_readfirstlane_b32 s25, {v(VMC+2)}")
    if rin > lb: at(rin, *pr)
    assert rin < min(vl)
    hook[rc + P.get('rr', 3)] = lambda: retry(A + 12, poll_rr, 45, rre)
    hook[rb] = b2
    assert rb > rc + P.get('rr', 3)
    nods = set(P.get('nods', [1] + ([lb] if rin == lb else [])))
    at(hs_, "s_add_u32 s27, s96, s25", f"v_not_b32 {v(VDUM)}, s27")
    at(hs_ + 1, "s_mov_b64 exec, 1", f"buffer_atomic_umin {v(VDUM)}, off, {s(SRD_WS,4)}, s98 {lst}", "s_mov_b64 exec, -1")
    assert len({hs_, sp[2] - 1, sp[3] - 1, rc, rc + 1, rc + 2}) == 6
    p0 = pack(0); p1 = pack(1)
    po = 2 if rin else 0; b3 = 38 + 2*po
    for j in range(6): at(41 + po + j, p0[j])
    for j in range(3): at(47 + po + j, p1[j])
    at(b3, f"s_waitcnt vmcnt({sum(x < b3 for x in sp + [hs_ + 1])})", "s_barrier")
    assert b3 not in sp and max(sp[2:] + [hs_ + 1]) <= 41 + po
    app_ds = {}
    def rel(c, *ys): app_ds.setdefault(c, []).extend(ys)
    if rin: rel(lb2, (f"ds_read_b32 {v(VMC+2)}, {v(VMC+3)}", 'L3'))
    rel(lb, a_rd('L', 1)); rel(lb2, a_rd('L', 2), a_rd('L', 3)); rel(12, a_rd('L', 4)); rel(rc, *rw); rel(rb, a_rd('R', 1), a_rd('R', 2))
    rel(max(24, rb), a_rd('R', 3)); rel(max(30, rb), a_rd('R', 4)); rel(47 + po, (p0[6], 'fw'))
    rel(46 if rin else 40, k_rd(0), k_rd(1)); rel(max(sp[1] + 2, 40), k_rd(2)); rel(52, k_rd(3)); rel(54, k_rd(4))
    def dead(tg):
        if tg in ('w', 'fw'): return 0
        if tg == 'L4': return bx
        for n_, x in enumerate(seq):
            if tg == x or tg == f'{x[0]}{x[1]}': return n_
        return 100
    qn = 0
    def gap(cnt, nxt):
        dsq.extend(app_ds.get(cnt, []))
        dsq.sort(key=lambda y: dead(y[1]))
        n0 = len(k.ins)
        def used(): return sum(2 if I.cls == 'ds' else (P.get('vmw', 1) if I.cls == 'vmem' else 1) for I in k.ins[n0:] if I.cls != 'label')
        if cnt == bx: lwait('L4'); k("s_barrier")
        for x in pre.get(cnt, []):
            k(x)
            if 'lgkmcnt(0)' in x: pend[:] = []
        if cnt in hook: hook[cnt]()
        if dsq and (used() < 2 or dead(dsq[0][1]) == 0 or cnt == lb) and cnt not in nods: ds(*dsq.pop(0))
        if dsq and cnt in P.get('ds2', [3, 4, 5]): ds(*dsq.pop(0))
        if nxt:
            need = [nxt, f'{nxt[0]}{nxt[1]}']
            while any(tg in need for _, tg in dsq):
                ds(*dsq.pop(0))
            for tg in need: lwait(tg)
        if TK2 and cnt in TK2: tick(3 + TK2.index(cnt), True)
        vs = val.get(cnt, [])
        for x in vs: k(x)
        if not vs and P.get('warm', True) and used() <= 2: k(WARM)
    def after(n):
        if seq[n] in rslot:
            q = lseq.index(seq[n])
            nx = [j for j in range(q + 1, 16) if sl[j] == sl[q]]
            if nx: dsq.extend(wl_s(lseq[nx[0]], rslot[lseq[nx[0]]]))
    after(0); gap(1, seq[1])
    for n in range(1, 52):
        do_smf(seq[n]); after(n)
        if n == 29: tick(1)
        if n == 39: tick(3)
        if n < 51: gap(n + 1, seq[n + 1])
    for x in p1[3:6]: k(x)
    ds(p1[6], 'fw')
    tick(4)
    n = 52
    dsq.extend(app_ds.pop(52))
    for _ in range(P.get('vpre', 3)):
        do_smf(seq[n]); n += 1
        gap(n, None)
    lwait('fw')
    k("s_barrier")
    kq_ = [5, 6, 7]
    for i in range(8):
        ds(f"ds_read_b64_tr_b16 {v(PF+2*i,2)}, {v(V8)} offset:{LL + 512*i}", f'f{i//2}')
        if i % 2 == 1 and n < 60:
            do_smf(seq[n]); n += 1
    while dsq: ds(*dsq.pop(0))
    def kfree():
        while kq_ and n >= 50 + 2 * (kq_[0] - 3) + 2: ds(*k_rd(kq_.pop(0)))
    kfree()
    while n < 60:
        do_smf(seq[n]); n += 1; kfree()
    assert not kq_
    tick(5)
    def smw(which, ks):
        lwait(f'f{ks}')
        if which != 'm': lwait(f'k{2*ks + which}')
    def sm(which, ks):
        smw(which, ks)
        if which == 'm': Dd, Aop = SM, PF + 4*ks
        else: Dd = SX0 + 4*which; Aop = kfr[2*ks + which]
        k(f"v_mfma_f32_16x16x32_bf16 {v(Dd,4)}, {v(Aop,4)}, {v(PF+4*ks,4)}, {'0' if ks == 0 else v(Dd,4)}")
    vp = []
    for t in range(2):
        vv = AV + 4*t
        vp += [f"v_add_f32 {v(vv)}, {v(vv)}, {v(vv+2)}", f"v_add_f32 {v(vv+1)}, {v(vv+1)}, {v(vv+3)}", f"v_cvt_pk_bf16_f32 {v(VM+t)}, {v(vv)}, {v(vv+1)}"]
    cst = [f"v_mov_b32 {v(PM0+1)}, 0", f"v_mov_b32 {v(PM1)}, 0"] + [f"v_mov_b32 {v(ONE+i)}, 0x3f803f80" for i in range(4)]
    so = [('m', 0), (0, 0), (1, 0), ('m', 1), (0, 1), (1, 1), ('m', 2), ('m', 3), (0, 2), (0, 3), (1, 2), (1, 3)]
    hl = [f"s_buffer_load_dword s{x}, {s(SRD_WS,4)}, s99 offset:{256*i}" for i, x in enumerate([0, 1, 12, 13])]
    fl = {0: [WARM], 1: vp[0:2], 2: vp[2:4], 3: vp[4:6], 4: ["s_cmp_eq_u32 s33, 63"] + cst[0:2], 5: [f"s_cbranch_scc1 {lastpub}", WARM],
          6: cst[2:4], 7: cst[4:6], 8: [WARM], 9: [f"v_max_f32 {v(T0)}, {v(SM)}, {v(SM+1)}"], 10: [WARM],
          11: [f"v_max3_f32 {v(T0)}, {v(T0)}, {v(SX0)}, {v(SX0+1)}", f"v_max3_f32 {v(T0)}, {v(T0)}, {v(SX0+2)}, {v(SX0+3)}"]}
    hpos = P.get('hpos', 2)
    WX, WY = PF, PF + 8
    wq = wl_s(('O', 3, 0), WX) + wl_s(('O', 3, 1), WY)
    for n_, (wh, ks) in enumerate(so):
        sm(wh, ks)
        if n_ < 11: smw(*so[n_ + 1])
        if n_ in (7, 8): ds(*wq.pop(0))
        for x in fl.get(n_, []): k(x)
        if hpos == 2 and n_ >= 10: k(hl[2*n_ - 20]); k(hl[2*n_ - 19])
    tick(6)
    zz = zero(A + 12, 8) + zero(A, 12)
    for _ in range(3): k(zz.pop(0))
    k(f"v_max3_f32 {v(T0)}, {v(T0)}, {v(SX1)}, {v(SX1+1)}")
    k(f"v_max3_f32 {v(T1)}, {v(T0)}, {v(SX1+2)}, {v(SX1+3)}")
    k(f"v_max3_f32 {v(T0)}, {v(T0)}, {v(SX1+2)}, {v(SX1+3)}")
    k(zz.pop(0)); k(zz.pop(0))
    k(f"v_permlane32_swap_b32 {v(T0)}, {v(T1)}")
    k(f"v_max_f32 {v(SM+2)}, {v(T0)}, {v(T1)}")
    k(f"v_max_f32 {v(T0)}, {v(T0)}, {v(T1)}")
    k(zz.pop(0)); k(zz.pop(0))
    k(f"v_permlane16_swap_b32 {v(T0)}, {v(SM+2)}")
    k(f"v_max_f32 {v(T0)}, {v(T0)}, {v(SM+2)}")
    k(f"v_mul_f32 {v(T0)}, s14, {v(T0)}")
    fma = lambda x: k(f"v_fma_f32 {v(x)}, {v(x)}, s14, -{v(T0)}")
    ex = lambda x: k(f"v_exp_f32 {v(x)}, {v(x)}")
    O0, O1 = AV, AV + 4; RS = AK; RI = T0; OP = AQ; OA = VX
    fma(SM); fma(SM+1); ex(SM); ex(SM+1)
    fma(SX0); fma(SX0+1)
    k(f"v_cvt_pk_bf16_f32 {v(PM0)}, {v(SM)}, {v(SM+1)}")
    k(f"v_cvt_pk_bf16_f32 {v(PM1+1)}, {v(SM)}, {v(SM+1)}")
    for i in range(2, 8): fma(SX0+i)
    k(f"v_mfma_f32_16x16x16_bf16 {v(O0,4)}, {v(VM,2)}, {v(PM0,2)}, 0")
    ds(*wq.pop(0))
    ex(SX0); ex(SX0+1)
    k(f"v_mfma_f32_16x16x16_bf16 {v(O1,4)}, {v(VM,2)}, {v(PM1,2)}, 0")
    ds(*wq.pop(0))
    ex(SX0+2); ex(SX0+3)
    k(f"v_cvt_pk_bf16_f32 {v(PK)}, {v(SX0)}, {v(SX0+1)}")
    k(f"v_mfma_f32_16x16x16_bf16 {v(RS,4)}, {v(PM0,2)}, {v(ONE,2)}, 0")
    ex(SX0+4); ex(SX0+5)
    k(f"v_cvt_pk_bf16_f32 {v(PK+1)}, {v(SX0+2)}, {v(SX0+3)}")
    ex(SX0+6); ex(SX0+7)
    k(f"v_cvt_pk_bf16_f32 {v(PK+2)}, {v(SX0+4)}, {v(SX0+5)}")
    k(f"v_cvt_pk_bf16_f32 {v(PK+3)}, {v(SX0+6)}, {v(SX0+7)}")
    k(zz.pop(0))
    tick(7)
    k(f"v_mfma_f32_16x16x32_bf16 {v(O0,4)}, {v(VX,4)}, {v(PK,4)}, {v(O0,4)}")
    k(zz.pop(0)); k(zz.pop(0))
    assert not zz
    k(f"v_mfma_f32_16x16x32_bf16 {v(O1,4)}, {v(VX+4,4)}, {v(PK,4)}, {v(O1,4)}")
    k("s_add_u32 s33, s33, 1")
    k("s_movk_i32 s39, 0x1833")
    k(f"s_add_u32 s53, s53, {(1 << SS)}")
    k(f"v_mfma_f32_16x16x32_bf16 {v(RS,4)}, {v(PK,4)}, {v(ONE,4)}, {v(RS,4)}")
    k(f"v_cvt_pk_bf16_f32 {v(OP)}, {v(O0)}, {v(O0+1)}")
    k(f"v_cvt_pk_bf16_f32 {v(OP+1)}, {v(O0+2)}, {v(O0+3)}")
    k(f"v_cvt_pk_bf16_f32 {v(OP+2)}, {v(O1)}, {v(O1+1)}")
    k(f"v_cvt_pk_bf16_f32 {v(OP+3)}, {v(O1+2)}, {v(O1+3)}")
    pend[:] = []
    ds(f"ds_write_b128 {v(VOW)}, {v(OP,4)} offset:{LR}", 'ow')
    VP4 = AQ + 4
    k(f"v_rcp_f32 {v(RI)}, {v(RS+2)}")
    k(f"v_rcp_f32 {v(RI+1)}, {v(RS+3)}")
    fil = [f"v_lshrrev_b32 {v(VP4)}, 11, {v(VPS)}", f"v_bfi_b32 {v(VP4)}, s39, {v(VPS)}, {v(VP4)}"] + set_slots()
    for x in fil[:P.get('fil1', 7)]: k(x)
    fil = fil[P.get('fil1', 7):]
    lwait('ow')
    k("s_barrier")
    ds(f"ds_read_b128 {v(OA,4)}, {v(V16)} offset:{LR}", 'oa0')
    ds(f"ds_read_b128 {v(OA+4,4)}, {v(V16)} offset:{LR+1024}", 'oa1')
    tick(8)
    for o in (0, 1024): k(f"buffer_load_dwordx4 {v(V16)}, {s(SRD_WS,4)}, s53 offen offset:{o} sc1 lds")
    fil = ["s_min_u32 s0, s0, s1", "s_min_u32 s12, s12, s13", "s_min_u32 s0, s0, s12", "s_not_b32 s0, s0", "s_add_u32 s96, s96, s25", "s_sub_u32 s27, s0, s96",
           f"s_add_u32 s96, s96, {P['ltgt']}", "s_min_i32 s27, s27, s24", "s_max_i32 s27, s27, 0", "s_add_u32 s96, s96, s27",
           "s_add_u32 s39, s19, s32", "s_add_u32 s39, s39, s30", "s_add_u32 s18, s39, s16", "s_add_u32 s0, s96, s22", f"v_mov_b32 {v(VDUM)}, s0",
           f"buffer_store_dword {v(VDUM)}, off, {s(SRD_WS,4)}, s18 sc1", "s_sub_u32 s97, s96, s25"] + fil + ["s_add_u32 s38, s35, s32", "s_sub_u32 s42, s96, 1000", "s_sub_u32 s96, s97, s37"]
    for _ in range(P.get('fil2', 16)): k(fil.pop(0))
    XS = AQ
    def fin(j):
        d = A + 4*j; o = XS + j if j < 4 else d
        x = [f"v_add_f32 {v(d)}, {v(d)}, {v(d+2)}", f"v_add_f32 {v(d+1)}, {v(d+1)}, {v(d+3)}",
             f"v_fma_mixlo_f16 {v(o)}, {v(d)}, {v(RI)}, 0", f"v_fma_mixhi_f16 {v(o)}, {v(d+1)}, {v(RI+1)}, 0"]
        if j in (0, 4): x.append(f"v_bfi_b32 {v(o)}, 1, s34, {v(o)}")
        if j == 4: x.append(f"buffer_store_dword {v(o)}, {v(VP4)}, {s(SRD_WS,4)}, s23 offen {lst}")
        if j == 2: x.append(f"buffer_store_dwordx4 {v(XS,4)}, {v(VPS)}, {s(SRD_WS,4)}, s47 offen {lst}")
        return x
    tiles = [4, 3, 0, 1, 2]
    fins = [(n_, x) for n_, j in enumerate(tiles) for x in fin(j)]
    rp = [wl_s(x, rslot[x]) for x in lseq[:3]]
    wq = dict(zip(P.get('rpos', [0, 1, 3, 4, 5, 7]), rp[0] + rp[1] + rp[2]))
    sq = fil
    per = P.get('fper', [1, 1, 1, 2, 2, 1, 1, 2, 2, 9])
    for n_ in range(10):
        j, ke = tiles[n_ // 2], n_ % 2
        lwait(f'oa{ke}')
        smf(A + 4*j, OA + 4*ke, WREG.get(('O', j, ke), [WX, WY][ke]))
        if n_ in wq: ds(*wq[n_])
        else:
            for _ in range(2):
                if sq: k(sq.pop(0))
        if n_ == 0: lwait('oa1')
        if n_ < 3: k(WARM)
        else:
            c = 0
            while c < per[n_] and fins and 2 * fins[0][0] + 3 <= n_:
                x = fins.pop(0)[1]; k(x)
                if not x.startswith('buffer'): c += 1
    assert not sq
    for _, x in fins: k(x)
    tick(9)
    nored = k.uid('nored')
    def rem(tgt, now): return [f"s_sub_u32 s27, s{tgt}, s{now}", "s_cmpk_lt_u32 s27, 4000", "s_cselect_b32 s27, s27, 0"]
    ptr = f"""s_sub_u32 s17, s33, 1
        s_add_u32 s54, s54, {1 << SS}
        s_add_u32 s55, s55, {1 << SS}
        s_add_u32 s15, s15, s21
        s_add_u32 s98, s98, 16384
        s_add_u32 s99, s99, 16384""".split('\n')
    k("s_memtime s[0:1]")
    for d in range(4): k(f"v_cndmask_b32 {v(SEL+d)}, 0, {v(VPL)}, s[{56+2*d}:{57+2*d}]")
    w1 = P.get('w1', 3)
    for x in ptr[:w1]: k(x)
    k("s_waitcnt lgkmcnt(0)")
    for x in rem(96, 0): k(x)
    k("s_cmp_ge_u32 s28, 80")
    k(f"s_cbranch_scc1 {nored}")
    dloop(27)
    def rload(d):
        k(f"buffer_load_dwordx4 {v(d,4)}, {v(V16)}, {s(SRD_WS,4)}, s48 offen sc1 ;poll")
        k(f"buffer_load_dwordx4 {v(d+4,4)}, {v(V16)}, {s(SRD_WS,4)}, s48 offen offset:1024 sc1 ;poll")
    if TK2 == [99]: tick(3, True)
    rload(RD)
    def house(fm=True):
        if fm: fmget()
        for x in zero(AQ, 8) + zero(AK + 4, 4) + ptr[w1:]: k(x)
    house()
    delay(k, P.get('bdel', 0))
    rl = k.uid('rl'); rcl = k.uid('rc')
    k.label(rl)
    if TK2 == [99]: tick(4, True)
    dbl = P.get('dbl', 1)
    if dbl: rload(AV)
    if TK2 == [99]: tick(5, True)
    k(f"s_waitcnt vmcnt({1 + 2*dbl})")
    if TK2 == [99]: tick(6, True)
    k(f"v_mfma_f32_16x16x32_f16 {v(D,4)}, {v(SEL,4)}, {v(RD,4)}, 0")
    k(f"v_bitop3_b32 {v(T)}, {v(RD+1)}, {v(RD+2)}, s34 bitop3:0x7e")
    k(f"s_waitcnt vmcnt({2*dbl})")
    k(f"v_mfma_f32_16x16x32_f16 {v(D,4)}, {v(SEL,4)}, {v(RD+4,4)}, {v(D,4)}")
    if TK2 == [99]: tick(7, True)
    k(f"v_bitop3_b32 {v(T+2)}, {v(RD+3)}, {v(RD+5)}, s34 bitop3:0x7e")
    k(f"v_bitop3_b32 {v(T+3)}, {v(RD+6)}, {v(RD+7)}, s34 bitop3:0x7e")
    k(f"v_bitop3_b32 {v(A+4)}, {v(RD)}, {v(RD+4)}, s34 bitop3:0x7e")
    k(f"v_or3_b32 {v(T)}, {v(T)}, {v(T+2)}, {v(T+3)}")
    k(f"v_and_or_b32 {v(T)}, {v(T)}, s94, {v(A+4)}")
    k(f"v_and_b32 {v(T)}, 1, {v(T)}")
    k(f"v_cmp_{'f' if ns else 'ne'}_u32 vcc, 0, {v(T)}")
    PB = A + 5
    k(f"""
    v_add_f32_dpp {v(D)}, {v(D)}, {v(D)} row_ror:4 row_mask:0xf bank_mask:0xf
    v_add_f32_dpp {v(D+1)}, {v(D+1)}, {v(D+1)} row_ror:4 row_mask:0xf bank_mask:0xf
    s_cbranch_vccnz {rcl}
    v_add_f32_dpp {v(D)}, {v(D)}, {v(D)} row_ror:8 row_mask:0xf bank_mask:0xf
    v_add_f32_dpp {v(D+1)}, {v(D+1)}, {v(D+1)} row_ror:8 row_mask:0xf bank_mask:0xf
    v_cvt_pk_bf16_f32 {v(D)}, {v(D)}, {v(D+1)}
    v_min_u32 {v(PB)}, 0xfffffffe, {v(D)}
    buffer_store_dword {v(PB)}, {v(VPUB)}, {s(SRD_WS,4)}, s38 offen {lst}
    """)
    if early: k(f"buffer_store_dword {v(PB)}, {v(VPUB)}, {s(SRD_WS,4)}, s39 offen sc1")
    if TK2 == [99]: tick(8, True)
    post = k.uid('post'); k.label(post)
    if early:
        tail()
        k("s_waitcnt lgkmcnt(0)")
    k("s_memtime s[0:1]")
    if early: fmfix()
    k("s_waitcnt lgkmcnt(0)")
    for x in rem(97, 0): k(x)
    def rcold():
        k.label(rcl)
        if dbl:
            k("s_waitcnt vmcnt(0)")
            for i in range(0, 8, 2): k(f"v_mov_b64 {v(RD+i,2)}, {v(AV+i,2)}")
        else: rload(RD)
        k("s_add_u32 s49, s49, 1")
        k(f"s_cmp_gt_u32 s49, {P.get('bound', 20000)}")
        k(f"s_cbranch_scc1 {last}")
        k(f"s_branch {rl}")
    cold.append(rcold)
    join = k.uid('join')
    def nrcold():
        k.label(nored)
        kb = k.uid('kvb'); nc = k.uid('nocal')
        k(f"s_cmp_lg_u32 {s(w)}, 3")
        k(f"s_cbranch_scc1 {nc}")
        k("s_add_u32 s42, s40, 5120")
        if TK:
            for i in range(10): k(f"v_writelane_b32 {v(A+6)}, s{64+2*i}, {i}")
        fmget()
        dloop(27)
        calib(k, P, 27, f"s_buffer_load_dword s42, {s(SRD_WS,4)}, s42")
        k(f"v_mov_b32 {v(VDUM)}, s27")
        k(f"ds_write_b32 {v(VQ)}, {v(VDUM)} offset:{LR+2048}")
        if P.get('dc', 1): k("s_sub_u32 s22, s27, s25"); k("s_mov_b32 s25, s27")
        if TK:
            for i in range(10): k(f"v_readlane_b32 s{64+2*i}, {v(A+6)}, {i}")
        k(f"v_mov_b32 {v(VDUM)}, -1")
        k(f"buffer_store_dword {v(VDUM)}, {v(VQ)}, {s(SRD_WS,4)}, s91 offen {lst}")
        k("s_add_u32 s91, s91, 16384")
        house(False)
        if early: fmfix()
        k(f"s_add_u32 s38, s38, {P['cdur']}")
        for x in rem(97, 38): k(x)
        if fused:
            k("s_add_u32 s19, s33, 1")
            k("s_min_u32 s19, s19, 63")
            k("s_waitcnt vmcnt(6)")
            k(f"v_cmp_ge_u32 vcc, s19, {v(VSEL)}")
            k("s_and_b32 s39, vcc_lo, 0xfff")
            k(f"s_cbranch_scc0 {kb}")
            kvspin(kb)
            k.label(kb)
        else: k("s_waitcnt vmcnt(6)")
        if early: tail()
        else: k(f"s_mov_b32 s39, {WS_SIZE}")
        k(f"s_branch {join}")
        k.label(nc)
        house()
        k(f"s_mov_b32 s39, {WS_SIZE}")
        k("s_waitcnt vmcnt(5)")
        k(f"s_branch {post}")
    cold.append(nrcold)
    k.label(join)
    tick(10)
    dloop(27)
    k.label(entry)
    tick(11)
    poll_local()
    tc = k.uid('tc'); dl3 = k.uid('dl')
    if not early:
        k(f"buffer_store_dword {v(PB)}, {v(VPUB)}, {s(SRD_WS,4)}, s39 offen sc1")
        tail(); fmfix()
        k("s_waitcnt vmcnt(4)")
        for x in zero(AV, 8): k(x)
        tail2()
    k("s_waitcnt lgkmcnt(0)")
    k("s_memtime s[0:1]")
    k(f"""
    s_cmp_lg_u32 s33, 0
    s_cselect_b32 s24, {P.get('dcap', 1600)}, 0
    s_sub_u32 s42, s42, s25
    s_sub_u32 s19, s42, s97
    s_add_u32 s19, s19, 1500
    s_cmp_gt_u32 s19, 4500
    s_cbranch_scc1 {tc}
    s_add_i32 s42, s42, {P['rgap']}
    s_waitcnt lgkmcnt(0)
    s_sub_u32 s27, s42, s0
    s_cmpk_lt_u32 s27, 4000
    s_cselect_b32 s27, s27, 0
    """)
    k(".p2align 3")
    k.label(dl3)
    k(f"s_sub_u32 s27, s27, {P['dit']}")
    k(f"s_cbranch_scc0 {dl3}")
    if not rin: k("s_barrier")
    tick(12)
    if not rin: poll_rr()
    def tcold():
        k.label(tc)
        k(f"""
        s_add_u32 s44, s44, 1
        s_add_u32 s38, s40, 5120
        buffer_load_dword {v(VDUM)}, off, {s(SRD_WS,4)}, s38 sc1
        s_waitcnt vmcnt(0)
        s_memtime s[0:1]
        v_readfirstlane_b32 s42, {v(VDUM)}
        s_mov_b32 s27, 0
        s_sub_u32 s42, s42, s25
        s_sub_u32 s19, s42, s97
        s_add_u32 s19, s19, 1500
        s_waitcnt lgkmcnt(0)
        s_sub_u32 s38, s0, s97
        s_cmp_gt_u32 s38, s24
        s_cbranch_scc1 {dl3}
        s_cmp_gt_u32 s19, 4500
        s_cbranch_scc1 {tc}
        s_sub_u32 s27, s42, s0
        s_add_i32 s27, s27, {P['rgap']}
        s_cmpk_lt_u32 s27, 4000
        s_cselect_b32 s27, s27, 0
        s_branch {dl3}
        """)
    cold.append(tcold)
    if early:
        k("s_waitcnt vmcnt(6)")
        for x in zero(AV, 8): k(x)
        tail2()
    k(f"v_mov_b32 {v(VMC+3)}, {LR + 2048 + 768}")
    if not rin: k(f"ds_read_b32 {v(VMC+2)}, {v(VMC+3)}")
    if TK:
        if P.get('rmeas'):
            k("s_waitcnt vmcnt(2)"); tick(3); k("s_waitcnt vmcnt(0)"); tick(1)
        k("s_waitcnt lgkmcnt(0)")
        for i in [10, 11, 12] + ([1, 3] if P.get('rmeas') else []): k(f"v_writelane_b32 {v(A+8)}, s{64+2*i}, {i}")
        k("s_mov_b64 exec, 0xffff")
        k(f"buffer_store_dword {v(A+8)}, {v(A+9)}, {s(SRD_WS,4)}, s39 offen")
        k("s_mov_b64 exec, -1")
    k(f"s_branch {loop}")
    for c in cold: c()
    k.label(lastpub)
    k(f"s_add_u32 s55, s55, {1 << SS}")
    k("s_waitcnt vmcnt(0)")
    fmget()
    k("s_waitcnt lgkmcnt(0)")
    fmfix()
    k(fmst)
    k(f"v_mov_b32 {v(VDUM)}, 64")
    k("s_waitcnt vmcnt(0)")
    k("s_barrier")
    k(f"buffer_store_dword {v(VDUM)}, off, {s(SRD_WS,4)}, s50 sc1")
    k(f"s_branch {last}")

def team_end(k):
    stamp(k, 2, 20)
    if STAMPS:
        k(f"""
        s_lshl_b32 s94, {s(S_WG)}, 10
        s_lshl_b32 s95, {s(S_WAVE)}, 8
        s_add_u32 s94, s94, s95
        s_add_u32 s94, s94, {WS_STAMP}
        """)
        for i, sr in enumerate([43, 44, 45, 46, 49, 33]):
            k(f"v_mov_b32 v20, s{sr}")
            k(f"buffer_store_dword v20, off, {s(SRD_WS,4)}, s94 offset:{16+4*i}")

TP = dict(tick=False, dit=28, sc1early=0, dbl=0, rgap=240, cdur=300, tlead=700, vl=[6,6], rin=2, rc=24, rb=4, sx=30, hs=3, sp=[8,10,14,40], rtgt=1960, ltgt=2560)

if __name__ == '__main__':
    ks = build_dev()
    variants = eval(open('tvariants.txt').read())
    for n, d in variants.items():
        P = dict(TP); P.update(d)
        k = Kernel(f"team{n}_kernel"); prologue(k)
        k.timed = True
        k(f"s_cmp_ge_u32 {s(S_X)}, 2")
        k(f"s_cbranch_scc1 {k.name}_exit")
        role_team(k, P)
        epilogue(k); ks.append(k)
    emit(ks, 'dev.s')
```

```python
NAME = "recurrent_scan__memory_aug_recurrent_mem_tr__dense_activation_mish__prompt"
WS_SIZE = 256 << 20
WS_XN   = 0x0000000
WS_Q    = 0x0400000
WS_K    = WS_Q + 8192
WS_VT   = WS_Q + 16384
WS_FM   = WS_Q + 24576
HS = 21; SS = 15
SKEW = [0]
WS_ACT  = 0x4400000
WS_O    = 0x4C00000
WS_SYNC = 0x5C00000
SY_PART = 0x00000
PART_SLOT = 80 * 2048
PART_GRP = 2 * PART_SLOT
SY_MEML = 0x140000
SY_MEMR = 0x200000
SY_FLAG = 0x160000
SY_HINT = 0x170000
FL_G1   = 0x0000
FL_FF   = 0x2000
FL_FM   = 0x2400
FL_O    = 0x3000
AN = [0x3800]
FL_AN   = 0x3800
FL_LN   = 0x3a00
N_INIT  = 1
DB_MI   = 80
FL_END  = 0x4000
DB_TICK, DB_SNAP, DB_INIT, DB_LN, DB_POL = 0, 72, 64, 128, 68
SY_END  = SY_FLAG + FL_END
SPIN_MAX = 100000
```

```python
import sys
from asmlib import *
from cfg import *

S_WG = 2
EARLY = 1
OPT = dict(xn='sc1', o='sc1', att='sc1')
HOLD = [0]
S_WAVE = 3
S_X = 4
S_T = 5
SRD_WS = 8
SRD_A = 12
SRD_B = 16
SRD_C = 20
SRD_DBG = 24
KA = 64
KA_X, KA_MEM0, KA_WQ, KA_WK, KA_WV, KA_WO, KA_W1, KA_B1, KA_W2, KA_OUT, KA_DBG, KA_WS = 64, 66, 68, 70, 72, 74, 80, 82, 84, 86, 88, 90
V_LANE = 0

def srd(k, dst, ka, size):
    k(f"s_mov_b32 {s(dst)}, {s(ka)}")
    k(f"s_and_b32 {s(dst+1)}, {s(ka+1)}, 0xffff")
    k(f"s_mov_b32 {s(dst+2)}, {size}")
    k(f"s_mov_b32 {s(dst+3)}, 0x20000")

def prologue(k, ngrid=256):
    k(f"""
    s_load_dwordx16 s[64:79], s[0:1], 0
    s_load_dwordx8 s[80:87], s[0:1], 64
    s_load_dwordx4 s[88:91], s[0:1], 96
    v_lshrrev_b32 v1, 6, v0
    v_and_b32 v0, 63, v0
    v_readfirstlane_b32 {s(S_WAVE)}, v1
    s_and_b32 {s(S_X)}, {s(S_WG)}, 7
    s_lshr_b32 {s(S_T)}, {s(S_WG)}, 3
    s_waitcnt lgkmcnt(0)
    """)
    srd(k, SRD_WS, KA_WS, WS_SIZE)
    srd(k, SRD_DBG, KA_DBG, 256)
    k(f"s_cmp_ge_u32 {s(S_WG)}, {ngrid}")
    k(f"s_cbranch_scc1 {k.name}_exit")

STAMPS = True
WS_STAMP = 0x6000000
def stamp(k, idx, vt=254):
    if not STAMPS: return
    k(f"""
    s_memrealtime s[92:93]
    s_lshl_b32 s94, {s(S_WG)}, 10
    s_lshl_b32 s95, {s(S_WAVE)}, 8
    s_add_u32 s94, s94, s95
    s_add_u32 s94, s94, {WS_STAMP + 4*idx}
    s_waitcnt lgkmcnt(0)
    v_mov_b32 {v(vt)}, s92
    buffer_store_dword {v(vt)}, off, {s(SRD_WS,4)}, s94
    s_memtime s[92:93]
    s_waitcnt lgkmcnt(0)
    v_mov_b32 {v(vt+1)}, s92
    buffer_store_dword {v(vt+1)}, off, {s(SRD_WS,4)}, s94 offset:128
    """)

def epilogue(k):
    k.label(f"{k.name}_exit")
    k("s_endpgm")

def xsum_g(k, x, t):
    k(f"v_mov_b32 {v(t)}, {v(x)}")
    k(f"v_permlane32_swap_b32 {v(x)}, {v(t)}")
    k(f"v_add_f32 {v(x)}, {v(x)}, {v(t)}")
    k(f"v_mov_b32 {v(t)}, {v(x)}")
    k(f"v_permlane16_swap_b32 {v(x)}, {v(t)}")
    k(f"v_add_f32 {v(x)}, {v(x)}, {v(t)}")

def rbf(k, x):
    k(f"v_cvt_pk_bf16_f32 {v(x)}, {v(x)}, {v(x)}")
    k(f"v_lshlrev_b32 {v(x)}, 16, {v(x)}")

def role_ln(k, s_tile, fused=False):
    srd(k, SRD_A, KA_X, 2048 * 1280)
    RAW = 16; F = 96
    k(f"""
    v_and_b32 v1, 15, v0
    v_lshrrev_b32 v2, 4, v0
    v_mul_u32_u24 v1, 1280, v1
    v_lshl_add_u32 v1, v2, 4, v1
    s_mul_i32 s30, {s(s_tile)}, 20480
    v_lshlrev_b32 v2, 4, v0
    """)
    for ks in range(20):
        k(f"buffer_load_dwordx4 {v(RAW+4*ks,4)}, v1, {s(SRD_A,4)}, s30 offen offset:{64*ks}")
    k(f"""
    s_lshr_b32 s31, {s(s_tile)}, 1
    s_mul_i32 s31, s31, 40960
    s_and_b32 s32, {s(s_tile)}, 1
    s_lshl_b32 s32, s32, 10
    s_add_u32 s31, s31, s32
    s_add_u32 s31, s31, {WS_XN}
    v_mov_b32 v4, 0
    v_mov_b32 v5, 0
    v_mov_b32 v6, 0
    v_mov_b32 v7, 0
    """)
    for ks in range(20):
        k(f"s_waitcnt vmcnt({19-ks})")
        for j in range(4):
            rr = RAW + 4*ks + j; f = F + 8*ks + 2*j
            k(f"v_lshlrev_b32 {v(f)}, 16, {v(rr)}")
            k(f"v_and_b32 {v(f+1)}, 0xffff0000, {v(rr)}")
        for j in range(4):
            f = F + 8*ks + 2*j
            acc = 4 + 2*(j & 1)
            k(f"v_pk_add_f32 {v(acc,2)}, {v(acc,2)}, {v(f,2)}")
    k("v_pk_add_f32 v[4:5], v[4:5], v[6:7]")
    k("v_add_f32 v4, v4, v5")
    xsum_g(k, 4, 5)
    k(f"v_mul_f32 v4, {float_hex(1.0/640)}, v4")
    k("v_mov_b32 v5, v4")
    k("v_mov_b32 v8, 0\nv_mov_b32 v9, 0\nv_mov_b32 v10, 0\nv_mov_b32 v11, 0")
    for j in range(80):
        f = F + 2*j
        t = 12 + 2*(j & 1)
        acc = 8 + 2*(j & 1)
        k(f"v_pk_add_f32 {v(t,2)}, {v(f,2)}, v[4:5] neg_lo:[0,1] neg_hi:[0,1]")
        k(f"v_pk_fma_f32 {v(acc,2)}, {v(t,2)}, {v(t,2)}, {v(acc,2)}")
    k("v_pk_add_f32 v[8:9], v[8:9], v[10:11]")
    k("v_add_f32 v8, v8, v9")
    xsum_g(k, 8, 9)
    k(f"v_mul_f32 v8, {float_hex(1.0/640)}, v8")
    rbf(k, 8)
    k(f"v_add_f32 v8, {float_hex(1e-5)}, v8")
    rbf(k, 8)
    k("v_sqrt_f32 v8, v8")
    rbf(k, 8)
    k("v_rcp_f32 v8, v8")
    rbf(k, 4)
    k("v_mov_b32 v5, v4")
    k("v_mov_b32 v9, v8")
    for ks in range(20):
        for j in range(4):
            f = F + 8*ks + 2*j; o = RAW + 4*ks + j
            k(f"v_pk_add_f32 {v(f,2)}, {v(f,2)}, v[4:5] neg_lo:[0,1] neg_hi:[0,1]")
            k(f"v_cvt_pk_bf16_f32 {v(o)}, {v(f)}, {v(f+1)}")
            k(f"v_lshlrev_b32 {v(f)}, 16, {v(o)}")
            k(f"v_and_b32 {v(f+1)}, 0xffff0000, {v(o)}")
            k(f"v_pk_mul_f32 {v(f,2)}, {v(f,2)}, v[8:9]")
            k(f"v_cvt_pk_bf16_f32 {v(o)}, {v(f)}, {v(f+1)}")
        if ks % 2 == 0 and ks:
            k("s_add_u32 s31, s31, 4096")
        k(f"buffer_store_dwordx4 {v(RAW+4*ks,4)}, v2, {s(SRD_WS,4)}, s31 offen offset:{2048*(ks%2)} sc1")

import struct
def float_hex(x):
    return hex(struct.unpack('<I', struct.pack('<f', x))[0])

def load_weights(k, pieces, srd_w, v_goff, v_lds, lds_base_s, nslots, s_tmp, group=8):
    n = len(pieces)
    def issue(i):
        (sb, c), _ = pieces[i]
        slot = i % nslots
        k(f"s_add_u32 {s(s_tmp)}, {s(sb)}, {c}")
        k(f"s_add_u32 m0, {s(lds_base_s)}, {slot*1024}")
        k(f"buffer_load_dwordx4 {v(v_goff)}, {s(srd_w,4)}, {s(s_tmp)} offen lds")
    issued = 0
    while issued < min(n, nslots):
        issue(issued); issued += 1
    done = 0
    while done < n:
        g = min(group, n - done)
        k(f"s_waitcnt vmcnt({issued - done - g})")
        for i in range(done, done + g):
            slot = i % nslots
            for (reg, off) in pieces[i][1]:
                k(f"ds_read_b64_tr_b16 {r(reg,2)}, {v(v_lds)} offset:{slot*1024+off}")
        done += g
        if issued < n:
            k("s_waitcnt lgkmcnt(0)")
            for i in range(issued, min(n, issued + g)):
                issue(i)
            issued = min(n, issued + g)
    k("s_waitcnt lgkmcnt(0)")

def wait_dbg(k, ln, pre=False):
    top = k.uid('dw'); ok = k.uid('dwok'); iok = k.uid('dwi')
    k(f"""
    s_cmp_lg_u32 {s(S_WAVE)}, 0
    s_cbranch_scc1 {ok}
    s_mov_b32 s52, 0
    """)
    if pre:
        k(f"s_cmp_eq_u32 s50, {N_INIT}")
        k(f"s_cbranch_scc1 {iok}")
    srd(k, 56, KA_DBG, 256)
    k.label(top)
    k(f"""
    buffer_load_dword v6, off, s[56:59], 0 offset:{DB_INIT} sc1
    s_waitcnt vmcnt(0)
    v_readfirstlane_b32 s50, v6
    s_cmp_eq_u32 s50, {N_INIT}
    s_cbranch_scc1 {iok}
    s_add_u32 s52, s52, 1
    s_cmp_gt_u32 s52, {SPIN_MAX}
    s_cbranch_scc1 {ok}
    s_sleep 8
    s_branch {top}
    """)
    k.label(iok)
    if ln:
        t2 = k.uid('dl')
        k(f"""
        v_mbcnt_lo_u32_b32 v7, -1, 0
        v_min_u32 v7, 31, v7
        v_lshlrev_b32 v7, 2, v7
        s_lshl_b32 s51, {s(S_X)}, 8
        s_add_u32 s51, s51, {WS_SYNC+SY_FLAG+FL_LN-512}
        """)
        k.label(t2)
        k(f"""
        buffer_load_dword v6, v7, {s(SRD_WS,4)}, s51 offen sc1
        s_waitcnt vmcnt(0)
        v_cmp_eq_u32 vcc, 0, v6
        s_cbranch_vccz {ok}
        s_add_u32 s52, s52, 1
        s_cmp_gt_u32 s52, {SPIN_MAX}
        s_cbranch_scc1 {ok}
        s_sleep 4
        s_branch {t2}
        """)
    k.label(ok)

G1_ACC = 16; G1_X = 48; G1_PK = 80; G1_BIAS = 96; G1_T = 112
def g1_wreg(ks, blk, t):
    f = (ks * 2 + blk) * 2 + t
    return 256 + 4 * f if f < 64 else 192 + 4 * (f - 64)

def role_gemm1(k, fused=False):
    L = k.uid
    l_ffn = L('g1ffn'); l_common = L('g1common'); l_done = L('g1done'); l_fin = L('g1fin')
    k(f"s_cmp_ge_u32 {s(S_T)}, 31")
    k(f"s_cbranch_scc1 {l_done}")
    k(f"s_sub_u32 s33, {s(S_X)}, 2")
    k(f"s_cmp_ge_u32 {s(S_T)}, 24")
    k(f"s_cbranch_scc1 {l_ffn}")
    k(f"""
    s_mul_i32 s34, {s(S_T)}, 43
    s_lshr_b32 s34, s34, 7          ; t/3
    s_mul_i32 s35, s34, 3
    s_sub_u32 s26, {s(S_T)}, s35    ; replica
    s_mov_b32 s27, 3
    s_lshl_b32 s35, s33, 3
    s_add_u32 s34, s34, s35         ; slice 0..47
    s_lshr_b32 s28, s34, 4          ; kind
    s_and_b32 s34, s34, 15
    s_lshl_b32 s34, s34, 2
    s_add_u32 s34, s34, {s(S_WAVE)}
    s_lshl_b32 s30, s34, 7
    s_mov_b32 s29, 8192
    s_lshr_b32 s31, s34, 1
    s_lshl_b32 s31, s31, {HS}
    s_and_b32 s35, s34, 1
    s_lshl_b32 s35, s35, 12
    s_add_u32 s31, s31, s35
    s_lshl_b32 s35, s28, 13
    s_add_u32 s31, s31, s35
    s_add_u32 s31, s31, {WS_Q}
    s_mov_b32 s32, {1 << SS}
    s_add_u32 s35, s28, 2
    s_cmp_ge_u32 s35, 3
    s_cselect_b32 s49, 3, 0
    s_sub_u32 s35, s35, s49         ; K0 V1 Q2
    s_mul_i32 s35, s35, 3
    s_add_u32 s35, s35, s26
    s_lshl_b32 s35, s35, 3
    s_and_b32 s49, s34, 1
    s_lshl_b32 s49, s49, 2
    s_add_u32 s35, s35, s49
    s_lshr_b32 s49, s34, 1
    s_lshl_b32 s49, s49, 8
    s_add_u32 s49, s49, s35
    s_add_u32 s49, s49, {WS_SYNC+SY_FLAG+FL_G1}
    s_cmp_eq_u32 s28, 0
    s_cselect_b32 {s(SRD_A)}, {s(KA_WQ)}, {s(KA_WK)}
    s_cselect_b32 {s(SRD_A+1)}, {s(KA_WQ+1)}, {s(KA_WK+1)}
    s_cmp_eq_u32 s28, 2
    s_cselect_b32 {s(SRD_A)}, {s(KA_WV)}, {s(SRD_A)}
    s_cselect_b32 {s(SRD_A+1)}, {s(KA_WV+1)}, {s(SRD_A+1)}
    s_and_b32 {s(SRD_A+1)}, {s(SRD_A+1)}, 0xffff
    s_mov_b32 {s(SRD_A+2)}, {640*8192}
    s_mov_b32 {s(SRD_A+3)}, 0x20000
    s_branch {l_common}
    """)
    k.label(l_ffn)
    k(f"""
    s_mov_b32 s26, s33
    s_mov_b32 s27, 6
    s_mov_b32 s28, 3
    s_sub_u32 s34, {s(S_T)}, 24
    s_lshl_b32 s34, s34, 2
    s_add_u32 s34, s34, {s(S_WAVE)}
    s_lshl_b32 s49, s33, 5
    s_add_u32 s49, s49, s34
    s_lshl_b32 s49, s49, 2
    s_add_u32 s49, s49, {WS_SYNC+SY_FLAG+FL_FF}
    s_min_u32 s34, s34, 26
    s_lshl_b32 s30, s34, 7
    s_mov_b32 s29, 3456
    s_lshl_b32 s31, s34, 11
    s_add_u32 s31, s31, {WS_ACT}
    s_mov_b32 s32, {108*1024}
    """)
    srd(k, SRD_A, KA_W1, 640 * 3456)
    k.label(l_common)
    srd(k, SRD_B, KA_B1, 3456)
    def hold():
        go = L('hold'); top = L('holdp'); bar = L('holdb')
        k(f"""
        s_sub_u32 s50, s28, 1
        s_cmp_lt_u32 s50, 2
        s_cbranch_scc1 {go}
        """)
        wait_dbg(k, ln=False)
        k(f"""
        s_cmp_lg_u32 {s(S_WAVE)}, 0
        s_cbranch_scc1 {bar}
        v_lshlrev_b32 v7, 2, v0
        s_mov_b32 s51, {WS_SYNC+SY_FLAG+FL_AN}
        """)
        k.label(top)
        k(f"""
        buffer_load_dword v6, v7, {s(SRD_WS,4)}, s51 offen sc1
        s_waitcnt vmcnt(0)
        v_cmp_ne_u32 vcc, 0, v6
        s_bcnt1_i32_b64 s50, vcc
        s_cmp_ge_u32 s50, {HOLD[1]}
        s_cbranch_scc1 {bar}
        s_add_u32 s52, s52, 1
        s_cmp_gt_u32 s52, {SPIN_MAX}
        s_cbranch_scc1 {bar}
        s_sleep 32
        s_branch {top}
        """)
        k.label(bar)
        k("s_barrier")
        k.label(go)
    if fused and HOLD[0] == 1: hold()
    stamp(k, 0, 6)
    k(f"""
    v_lshrrev_b32 v1, 4, v0
    v_bfe_u32 v2, v0, 2, 2
    v_lshl_add_u32 v2, v1, 3, v2
    v_mul_lo_u32 v2, v2, s29
    v_and_b32 v3, 3, v0
    v_lshl_add_u32 v2, v3, 4, v2
    s_mul_i32 s36, {s(S_WAVE)}, 40960
    v_lshlrev_b32 v3, 4, v0              ; v3 = lane*16
    v_add_u32 v4, s36, v3
    v_lshlrev_b32 v5, 4, v1
    buffer_load_dwordx4 v[8:11], v5, {s(SRD_B,4)}, s30 offen
    buffer_load_dwordx4 v[12:15], v5, {s(SRD_B,4)}, s30 offen offset:64
    s_waitcnt vmcnt(0)
    """)
    for blk in range(2):
        for j in range(4):
            k(f"v_lshlrev_b32 {v(G1_BIAS+8*blk+2*j)}, 16, {v(8+4*blk+j)}")
            k(f"v_and_b32 {v(G1_BIAS+8*blk+2*j+1)}, 0xffff0000, {v(8+4*blk+j)}")
    k("s_lshl_b32 s38, s29, 2")
    k("s_mul_i32 s39, s29, 28")
    k("s_mov_b32 s37, s30")
    pieces = []
    for ks in range(20):
        for u in range(2):
            for blk in range(2):
                pieces.append((ks, u, blk))
    nsl = 40
    def issue(i):
        ks, u, blk = pieces[i]
        if blk == 0 and i > 0:
            k(f"s_add_u32 s37, s37, {'s38' if u == 1 else 's39'}")
        k(f"s_add_u32 m0, s36, {(i % nsl)*1024 - 64*blk}")
        k(f"buffer_load_dwordx4 v2, {s(SRD_A,4)}, s37 offen offset:{64*blk} lds")
    issued = 0
    for i in range(nsl): issue(i)
    issued = nsl; done = 0
    while done < 80:
        k(f"s_waitcnt vmcnt({issued - done - 8})")
        for i in range(done, done + 8):
            ks, u, blk = pieces[i]
            for t in range(2):
                k(f"ds_read_b64_tr_b16 {r(g1_wreg(ks,blk,t)+2*u,2)}, v4 offset:{(i%nsl)*1024+8*t}")
        done += 8
        if fused and done == 64: k(f"s_load_dword s50, {s(KA_DBG,2)}, {DB_INIT}")
        if issued < 80:
            k("s_waitcnt lgkmcnt(0)")
            for i in range(issued, issued + 8): issue(i)
            issued += 8
    k("s_waitcnt lgkmcnt(0)")
    stamp(k, 1, 6)
    if fused: wait_dbg(k, ln=True, pre=True)
    if fused and HOLD[0] == 2: hold()
    k("s_barrier")
    def dma_xn(s_seg, s_slot):
        k(f"s_min_u32 s44, {s(s_seg)}, 63")
        k(f"s_mul_i32 s44, s44, 40960")
        k(f"s_add_u32 s44, s44, s45")
        k(f"s_add_u32 m0, {s(s_slot)}, s46")
        for i in range(10):
            if i in (4, 8):
                k("s_add_u32 s44, s44, 4096")
                k("s_add_u32 m0, m0, 4096")
            k(f"buffer_load_dwordx4 v3, {s(SRD_WS,4)}, s44 offen offset:{1024*(i%4)} {OPT['xn']} lds")
    k(f"""
    s_mul_i32 s46, {s(S_WAVE)}, 10240
    s_add_u32 s45, s46, {WS_XN}
    s_mov_b32 s40, s26
    s_mov_b32 s41, 0
    s_mov_b32 s43, 40960
    s_add_u32 s42, s26, s27
    """)
    dma_xn(40, 41)
    dma_xn(42, 43)
    k("s_add_u32 s42, s42, s27")
    k("s_mov_b32 s43, 81920")
    k("s_waitcnt vmcnt(10)")
    loops = {}
    for kind in ('qk', 'v', 'ffn'):
        loops[kind] = L('g1loop_' + kind)
    k("s_cmp_eq_u32 s28, 2")
    k(f"s_cbranch_scc1 {loops['v']}")
    k("s_cmp_eq_u32 s28, 3")
    k(f"s_cbranch_scc1 {loops['ffn']}")
    for kind in ('qk', 'v', 'ffn'):
        k.label(loops[kind])
        k("s_barrier")
        dma_xn(42, 43)
        k("v_add_u32 v5, s41, v3")
        NB = 4
        def rd(ks):
            for tt in range(2):
                k(f"ds_read_b128 {v(G1_X + 8*(ks % NB) + 4*tt, 4)}, v5 offset:{ks*2048 + tt*1024}")
        for ks in range(NB - 1): rd(ks)
        for ks in range(20):
            if ks + NB - 1 < 20:
                rd(ks + NB - 1)
                k(f"s_waitcnt lgkmcnt({2*(NB-1)})")
            else:
                k(f"s_waitcnt lgkmcnt({2*(19-ks)})")
            for blk in range(2):
                for t in range(2):
                    for tt in range(2):
                        acc = G1_ACC + 4 * ((blk * 2 + t) * 2 + tt)
                        w = r(g1_wreg(ks, blk, t), 4)
                        x = v(G1_X + 8*(ks % NB) + 4*tt, 4)
                        if ks == 0:
                            c = v(G1_BIAS + 8*blk + 4*t, 4) if kind == 'ffn' else '0'
                        else:
                            c = v(acc, 4)
                        if kind == 'v':
                            k(f"v_mfma_f32_16x16x32_bf16 {v(acc,4)}, {x}, {w}, {c}")
                        else:
                            k(f"v_mfma_f32_16x16x32_bf16 {v(acc,4)}, {w}, {x}, {c}")
        k("s_mul_i32 s47, s40, s32")
        k("s_add_u32 s47, s47, s31")
        if kind == 'ffn':
            k(f"s_add_u32 s48, s47, {54*1024}")
            LOG2E = float_hex(1.4426950408889634)
            for i in range(32):
                h = G1_ACC + i; t0 = G1_T + 2*i; t1 = t0 + 1
                k(f"v_mul_f32 {v(t0)}, {LOG2E}, {v(h)}")
                k(f"v_min_f32 {v(t0)}, {float_hex(30.0)}, {v(t0)}")
                k(f"v_exp_f32 {v(t0)}, {v(t0)}")
            for i in range(32):
                h = G1_ACC + i; t0 = G1_T + 2*i; t1 = t0 + 1
                k(f"v_add_f32 {v(t1)}, 2.0, {v(t0)}")
                k(f"v_mul_f32 {v(t0)}, {v(t0)}, {v(t1)}")
                k(f"v_add_f32 {v(t1)}, 2.0, {v(t0)}")
                k(f"v_rcp_f32 {v(t1)}, {v(t1)}")
                k(f"v_mul_f32 {v(h)}, {v(h)}, {v(t0)}")
            for i in range(32):
                h = G1_ACC + i; t1 = G1_T + 2*i + 1
                k(f"v_mul_f32 {v(h)}, {v(h)}, {v(t1)}")
        for blk in range(2):
            for o in range(2):
                pk = G1_PK + 4 * (blk * 2 + o)
                for i2 in range(2):
                    if kind == 'v':
                        acc = G1_ACC + 4 * ((blk * 2 + o) * 2 + i2)
                    else:
                        acc = G1_ACC + 4 * ((blk * 2 + i2) * 2 + o)
                    k(f"v_cvt_pk_bf16_f32 {v(pk+2*i2)}, {v(acc)}, {v(acc+1)}")
                    k(f"v_cvt_pk_bf16_f32 {v(pk+2*i2+1)}, {v(acc+2)}, {v(acc+3)}")
                if kind == 'ffn':
                    k(f"buffer_store_dwordx4 {v(pk,4)}, v3, {s(SRD_WS,4)}, {'s47' if o == 0 else 's48'} offen offset:{1024*blk} sc1")
                else:
                    k(f"buffer_store_dwordx4 {v(pk,4)}, v3, {s(SRD_WS,4)}, s47 offen offset:{(blk*2+o)*1024} sc1")
        if fused: k("v_mov_b32 v6, s40")
        k(f"""
        s_add_u32 s40, s40, s27
        s_add_u32 s42, s42, s27
        s_mov_b32 s43, s41
        s_add_u32 s41, s41, 40960
        s_cmp_eq_u32 s41, {3*40960}
        s_cselect_b32 s41, 0, s41
        """)
        if fused and kind != 'ffn' and EARLY:
            ne = L('g1ne')
            k(f"""
            s_cmp_ge_u32 s40, 9
            s_cbranch_scc1 {ne}
            v_mov_b32 v6, s40
            s_waitcnt vmcnt(0)
            """)
            if len(HOLD) > 2:
                top = L('h3')
                k(f"""
                buffer_store_dword v6, off, {s(SRD_WS,4)}, s49 sc1
                s_cmp_lg_u32 {s(S_WAVE)}, 0
                s_cbranch_scc1 {ne}
                s_cmp_lt_u32 s40, {HOLD[2]}
                s_cbranch_scc1 {ne}
                v_lshlrev_b32 v7, 2, v0
                s_mov_b32 s51, {WS_SYNC+SY_FLAG+FL_AN}
                """)
                k.label(top)
                k(f"""
                s_sleep 32
                buffer_load_dword v8, v7, {s(SRD_WS,4)}, s51 offen sc1
                s_waitcnt vmcnt(0)
                v_cmp_ne_u32 vcc, 0, v8
                s_bcnt1_i32_b64 s50, vcc
                s_add_u32 s52, s52, 1
                s_cmp_gt_u32 s52, {SPIN_MAX}
                s_cbranch_scc1 {ne}
                s_cmp_lt_u32 s50, {HOLD[1]}
                s_cbranch_scc1 {top}
                """)
            k.label(ne)
        k("s_cmp_lt_u32 s40, 64")
        k("s_waitcnt vmcnt(14)")
        if fused and kind != 'ffn': k(f"buffer_store_dword v6, off, {s(SRD_WS,4)}, s49 sc1")
        k(f"s_cbranch_scc1 {loops[kind]}")
        k(f"s_branch {l_fin}")
    k.label(l_fin)
    if fused:
        k("v_mov_b32 v6, 64")
        k("s_waitcnt vmcnt(0)")
        k(f"buffer_store_dword v6, off, {s(SRD_WS,4)}, s49 sc1")
    k.label(l_done)
    stamp(k, 2, 6)

def build_dev():
    kernels = []
    k = Kernel("ln_kernel"); prologue(k)
    k(f"s_cmp_lt_u32 {s(S_X)}, 2")
    k(f"s_cbranch_scc1 {k.name}_exit")
    k(f"s_cmp_lg_u32 {s(S_WAVE)}, 0")
    k(f"s_cbranch_scc1 {k.name}_exit")
    k(f"s_sub_u32 s6, {s(S_X)}, 2")
    k(f"s_mul_i32 s7, {s(S_T)}, 6")
    k(f"s_add_u32 s6, s6, s7")
    k(f"s_cmp_ge_u32 s6, 128")
    k(f"s_cbranch_scc1 {k.name}_exit")
    role_ln(k, 6)
    epilogue(k); kernels.append(k)
    k = Kernel("g1_kernel"); prologue(k)
    k(f"s_cmp_lt_u32 {s(S_X)}, 2")
    k(f"s_cbranch_scc1 g1_idle")
    role_gemm1(k)
    k(f"s_branch {k.name}_exit")
    k.label("g1_idle")
    stamp(k, 0, 6)
    for part in (1, 2):
        k("s_mov_b32 s30, 0")
        k.label(f"g1_idle_l{part}")
        k("s_nop 15\ns_nop 15\ns_add_u32 s30, s30, 1\ns_cmp_lt_u32 s30, 300")
        k(f"s_cbranch_scc1 g1_idle_l{part}")
        stamp(k, part, 6)
    epilogue(k); kernels.append(k)
    return kernels

def emit(kernels, path):
    hdr = ""
    for k in kernels:
        hdr += f"; @launch kernel={k.name} grid=(256,1,1) block=(256,1,1) lds=163840\n"
    hdr += '.amdgcn_target "amdgcn-amd-amdhsa--gfx950"\n'
    body = ""
    for k in kernels:
        n = k.pad()
        w = k.lint()
        print(f"{k.name}: {k.count()} instrs, {n} pad states, {len(w)} lint warnings")
        for x in w[:6]: print("   LINT", str(x)[:200])
        body += kernel_block(k.name, k.text())
    open(path, 'w').write(hdr + body)

if __name__ == '__main__':
    emit(build_dev(), sys.argv[1] if len(sys.argv) > 1 else 'dev.s')
```

```python
import sys, math
from gen import *

LK, LL, LR, LW, LWS = 0, 8192, 12288, 16384, 36864
ACC = 16; A = 40; PP = 60; WB = 96
AQ, AK, AV = ACC, ACC + 8, ACC + 16
SRD_WO = 96
V16, VIDX, VFW, V8, VOW, VPS, VPL, VPUB, VLW, VC0, VQ, VSEL, VDUM = 0, 1, 2, 3, 4, 5, 6, 7, 8, 9, 13, 14, 15
HINT_OFF = 16384 + 6144

LGRP = [('L', 0, 1), ('L', 1, 2), ('L', 2, 2), ('L', 3, 2), ('L', 4, 2), ('R', 3, 1), ('R', 4, 1), ('O', 3)]
LKEYS = [g + (t,) for g in LGRP for t in range(2)] + [('L', 0, 2, 0), ('L', 1, 1, 1)]
WLDS = {}
WREG = {}
for key in [(l, i, m, t) for l in 'LR' for i in range(5) for m in range(3) for t in range(2)] + [('O', j, ke) for j in range(5) for ke in range(2)]:
    if key not in LKEYS: WREG[key] = WB + 8 * len(WREG)
assert len(WREG) == 52
WS_ST2 = 0x7000000

def delay(k, n):
    n = n // 4
    while n > 0:
        t = min(n, 16); k(f"s_nop {t-1}"); n -= t

def calib(k, P, dst, mid=None):
    k("s_memtime s[38:39]")
    for i in range(11):
        k(f"s_memrealtime s[{64+2*i}:{65+2*i}]")
        k("s_nop 0")
    k("s_waitcnt lgkmcnt(0)")
    if mid: k(mid)
    k(f"s_add_u32 s{dst}, s64, s66")
    for i in range(2, 11): k(f"s_add_u32 s{dst}, s{dst}, s{64+2*i}")
    k(f"s_lshl_b32 s{dst}, s{dst}, 1")
    k(f"s_sub_u32 s{dst}, s{dst}, s38")

def role_team(k, P, fused=False, confirm=None):
    b = S_X; h = S_T; w = S_WAVE
    lst = P.get('lst', '')
    last = k.uid('last')
    srd(k, SRD_A, KA_WQ, 640 * 8192); srd(k, SRD_B, KA_WK, 640 * 8192); srd(k, SRD_C, KA_WV, 640 * 8192)
    srd(k, SRD_WO, KA_WO, 4096 * 1280)
    SR = [SRD_A, SRD_B, SRD_C]
    k(f"""
    v_lshrrev_b32 v16, 3, v0            ; rho
    v_and_b32 v17, 7, v0                ; cc
    v_and_b32 v18, 1, v16
    v_lshlrev_b32 v20, 2, v18           ; 4(rho&1)
    v_and_b32 v19, 2, v16
    v_add_u32 v20, v20, v19             ; + 2((rho>>1)&1)
    v_lshrrev_b32 v21, 2, v16
    v_add_u32 v20, v20, v21             ; + (rho>>2)
    v_lshlrev_b32 v20, 13, v20
    v_lshlrev_b32 v22, 1, v19
    v_xor_b32 v22, v22, v17
    v_lshl_add_u32 v20, v22, 4, v20
    v_lshl_add_u32 v21, v21, 2, v18
    v_lshl_add_u32 v21, v19, 2, v21     ; + 8((rho>>1)&1)
    v_mul_u32_u24 v21, 1280, v21
    v_lshl_add_u32 v21, v17, 4, v21
    s_mul_i32 s37, {s(w)}, {LWS}
    s_add_u32 s37, s37, {LW}
    s_lshl_b32 s38, {s(h)}, 8
    s_lshr_b32 s39, {s(w)}, 1
    s_lshl_b32 s39, s39, 7
    s_add_u32 s38, s38, s39
    s_mul_i32 s39, {s(b)}, {5*64*8192}
    s_add_u32 s50, s38, s39
    s_sub_u32 s39, {5*64*8192}, s39
    s_add_u32 s51, s38, s39
    s_lshl_b32 s39, {s(w)}, 19
    s_add_u32 s40, s50, s39             ; L type A
    s_add_u32 s42, s51, s39             ; R type A
    s_xor_b32 s39, s39, {2 << 19}
    s_add_u32 s41, s50, s39             ; L type B
    s_add_u32 s43, s51, s39             ; R type B
    s_bitcmp1_b32 {s(w)}, 0
    s_cselect_b32 s44, s51, s50
    s_add_u32 s44, s44, {4 << 19}       ; type C
    s_mul_i32 s45, {s(h)}, 163840
    s_mul_i32 s39, {s(b)}, 640
    s_add_u32 s45, s45, s39
    s_mul_i32 s46, {s(w)}, {32*1280}
    s_add_u32 s46, s46, s45
    s_add_u32 s46, s46, 512
    s_lshl_b32 s39, {s(w)}, 7
    s_add_u32 s45, s45, s39
    """)
    VOWN, VPAR, VEVN, VODD, VWO, VT4A, VT4B = 23, 24, 25, 26, 27, 28, 29
    def qkv_batch(sb, m, k0, a0, k1, a1):
        dm = [(SR[m], sb, 8*j*8192, 20) for j in range(8)]
        rd = []
        for kk, va in ((k0, a0), (k1, a1)):
            for t in range(2):
                for u in range(2):
                    for vv in range(2): rd.append((kk + (m, t), 4*u + 2*vv, va, u*4096 + vv*1024 + 8*t))
        return dm, rd
    def wo_batch(ke):
        dm = [(SRD_WO, 45, (64*ke + 32*(j >> 2) + 16*((j >> 1) & 1) + 2*(j & 1)) * 1280, 21) for j in range(8)]
        rd = [(('O', j, ke), 4*u + 2*vv, VWO, u*4096 + vv*1024 + 8*j) for j in range(4) for u in range(2) for vv in range(2)]
        return dm, rd
    B = {}
    for m in range(3):
        B['LA', m] = qkv_batch(40, m, ('L', 0), VOWN, ('L', 2), VPAR)
        B['LB', m] = qkv_batch(41, m, ('L', 3), VOWN, ('L', 4), VPAR)
        B['RA', m] = qkv_batch(42, m, ('R', 0), VOWN, ('R', 2), VPAR)
        B['RB', m] = qkv_batch(43, m, ('R', 3), VOWN, ('R', 4), VPAR)
        B['C', m] = qkv_batch(44, m, ('L', 1), VEVN, ('R', 1), VODD)
    for ke in range(2): B['O', ke] = wo_batch(ke)
    nl = lambda x: len({r[0] for r in B[x][1] if r[0] in LKEYS})
    order = sorted(B, key=nl)
    NB = len(order)
    SPARE = 32768
    vq = []
    def issue(dm, ldsoff, tag):
        for j, (sr, sb, c, vg) in enumerate(dm):
            k(f"s_add_u32 s39, s{sb}, {c}")
            k(f"s_add_u32 m0, s37, {ldsoff + j*1024}")
            k(f"buffer_load_dwordx4 {v(vg)}, {s(sr,4)}, s39 offen lds")
            vq.append(tag)
    def vwait(tag):
        idx = max(i for i, t in enumerate(vq) if t == tag)
        k(f"s_waitcnt vmcnt({len(vq) - idx - 1})")
        del vq[:idx+1]
    issue([(SRD_WO, 46, (16*(j >> 1) + 2*(j & 1)) * 1280, 21) for j in range(4)], SPARE, 'o4')
    for n in range(4): issue(B[order[n]][0], n * 8192, n)
    stamp(k, 0, 30)
    if STAMPS: vq.extend(['st', 'st'])
    k(f"""
    v_lshrrev_b32 v16, 4, v0            ; g
    v_and_b32 v17, 15, v0               ; n
    v_bfe_u32 v18, v0, 1, 1
    v_mov_b32 {v(VIDX)}, 0x4444
    v_mul_u32_u24 v18, 0xaaaa, v18
    v_add_u32 {v(VIDX)}, {v(VIDX)}, v18
    s_lshl_b32 s35, {s(w)}, 10
    v_lshlrev_b32 {v(VFW)}, 5, v17
    v_lshl_add_u32 {v(VFW)}, v16, 3, {v(VFW)}
    v_add_u32 {v(VFW)}, s35, {v(VFW)}
    v_lshlrev_b32 {v(V8)}, 3, v0
    v_lshrrev_b32 v18, 1, v16
    v_lshlrev_b32 {v(VOW)}, 8, v18
    v_and_b32 v18, 1, v16
    v_lshl_add_u32 {v(VOW)}, v18, 5, {v(VOW)}
    v_lshrrev_b32 v18, 2, v17
    v_lshl_add_u32 {v(VOW)}, v18, 6, {v(VOW)}
    v_and_b32 v18, 1, v17
    v_lshl_add_u32 {v(VOW)}, v18, 4, {v(VOW)}
    v_bfe_u32 v18, v17, 1, 1
    v_xor_b32 v18, 1, v18
    v_lshl_add_u32 {v(VOW)}, v18, 11, {v(VOW)}
    s_lshl_b32 s36, {s(w)}, 9
    v_add_u32 {v(VOW)}, s36, {v(VOW)}
    v_and_b32 v18, 12, v17
    v_add_u32 v18, v18, v16
    v_lshlrev_b32 {v(VPS)}, 11, v18
    v_and_b32 v18, 3, v17
    v_lshl_add_u32 {v(VPS)}, v18, 4, {v(VPS)}
    v_bfe_u32 v19, v17, 1, 1
    v_lshlrev_b32 {v(VPUB)}, 5, v19
    v_and_b32 v19, 1, v17
    v_lshl_add_u32 {v(VPUB)}, v19, 3, {v(VPUB)}
    v_lshrrev_b32 v19, 1, v16
    v_lshl_add_u32 {v(VPUB)}, v19, 4, {v(VPUB)}
    v_mul_u32_u24 v22, 1280, v19
    v_and_b32 v19, 1, v16
    v_lshl_add_u32 {v(VPUB)}, v19, 2, {v(VPUB)}
    ; mem0 voff (v22) = p*1280 + (8a+i)*2
    v_lshl_add_u32 v18, v19, 3, v18
    v_lshl_add_u32 v22, v18, 1, v22
    v_bfe_u32 v18, v17, 3, 1
    v_lshlrev_b32 v18, 4, v18
    v_mov_b32 v19, 0x3c00
    v_lshlrev_b32 {v(VPL)}, v18, v19
    ; staging read addresses: rows part = (g>>1)*2048 + ((g&1)*4 + r)*128
    v_lshrrev_b32 v18, 1, v16
    v_lshlrev_b32 v19, 11, v18
    v_bfe_u32 v18, v0, 2, 3
    v_lshl_add_u32 v19, v18, 7, v19
    v_and_b32 v18, 3, v0                ; c
    v_lshl_add_u32 {v(VWO)}, v18, 5, v19
    v_add_u32 {v(VWO)}, s37, {v(VWO)}
    v_lshl_add_u32 {v(VT4A)}, v18, 3, v19
    s_lshl_b32 s38, {s(w)}, 5
    s_add_u32 s38, s38, {LW + SPARE}
    v_add_u32 {v(VT4A)}, s38, {v(VT4A)}
    v_add_u32 {v(VT4B)}, {2*LWS}, {v(VT4A)}
    v_lshl_add_u32 v19, v18, 4, v19
    v_bfe_u32 v18, v0, 3, 1             ; r>>1
    s_and_b32 s38, {s(w)}, 1
    v_xor_b32 v18, s38, v18
    v_lshl_add_u32 v19, v18, 6, v19
    v_add_u32 {v(VOWN)}, s37, v19
    s_xor_b32 s38, {s(w)}, 1
    s_mul_i32 s38, s38, {LWS}
    s_add_u32 s38, s38, {LW}
    v_add_u32 {v(VPAR)}, s38, v19
    v_min_u32 {v(VEVN)}, {v(VOWN)}, {v(VPAR)}
    v_max_u32 {v(VODD)}, {v(VOWN)}, {v(VPAR)}
    v_lshlrev_b32 {v(V16)}, 4, v0
    v_add_u32 {v(VLW)}, s37, {v(V16)}
    v_add_u32 {v(VC0)}, s35, {v(V16)}
    v_lshrrev_b32 {v(VQ)}, 2, {v(VC0)}
    v_xor_b32 {v(VC0+1)}, 0x400, {v(VC0)}
    v_xor_b32 {v(VC0+2)}, 0x800, {v(VC0)}
    v_xor_b32 {v(VC0+3)}, 0xc00, {v(VC0)}
    """)
    k(f"""
    s_mul_i32 s39, {s(b)}, {PART_GRP}
    s_add_u32 s39, s39, {WS_SYNC+SY_PART}
    s_lshl_b32 s100, {s(h)}, 6
    s_lshl_b32 s101, {s(w)}, 15
    s_add_u32 s100, s100, s101
    s_add_u32 s100, s100, s39
    s_lshl_b32 s28, {s(w)}, 5
    s_add_u32 s28, s28, {s(h)}           ; rho
    s_lshl_b32 s101, s28, 11
    s_add_u32 s101, s101, s39
    s_lshl_b32 s39, {s(b)}, 15
    s_add_u32 s29, s39, {WS_SYNC+SY_MEML}
    s_lshl_b32 s39, {s(b)}, 20
    s_add_u32 s30, s39, {WS_SYNC+SY_MEMR+8192*P.get('pol',0)}
    s_xor_b32 s39, s39, 0x100000
    s_add_u32 s31, s39, {WS_SYNC+SY_MEMR+8192*P.get('pol',0)}
    s_lshl_b32 s32, s28, 6
    s_mov_b32 s6, 0xf000f000
    s_mov_b32 s7, 0xf000f000
    """)
    def init_stores():
        k(f"""
        s_cmp_lt_u32 s28, 80
        s_cselect_b32 s56, -1, 0
        s_mov_b32 s57, s56
        s_mov_b32 s92, {s(KA_MEM0)}
        s_and_b32 s93, {s(KA_MEM0+1)}, 0xffff
        s_mov_b32 s94, 10240
        s_mov_b32 s95, 0x20000
        s_and_b32 s39, s28, 3
        s_mul_i32 s39, s39, 2560             ; g*2 rows
        s_lshr_b32 s38, s28, 2
        s_lshl_b32 s38, s38, 5               ; T*16 cols*2B
        s_add_u32 s39, s39, s38
        s_mul_i32 s38, {s(b)}, 640
        s_add_u32 s39, s39, s38
        s_and_b64 exec, s[6:7], s[56:57]
        buffer_load_ushort v16, v22, s[92:95], s39 offen
        buffer_load_ushort v17, v22, s[92:95], s39 offen offset:8
        s_mov_b64 exec, -1
        """)
        vq.extend(['m0', 'm0'])
        if fused:
            k(f"""
            s_add_u32 s38, s32, s29
            s_add_u32 s39, s32, s30
            v_mov_b32 v92, -1
            v_mov_b32 v93, -1
            v_mov_b32 v94, -1
            v_mov_b32 v95, -1
            v_lshrrev_b32 v18, 6, {v(V16)}      ; lane>>2
            v_and_b32 v19, 48, {v(V16)}
            v_lshl_add_u32 v18, v18, 13, v19
            s_add_u32 s34, s101, {PART_SLOT}
            s_mov_b64 exec, s[56:57]
            buffer_store_dwordx4 v[92:95], {v(V16)}, {s(SRD_WS,4)}, s101 offen sc1
            buffer_store_dwordx4 v[92:95], {v(V16)}, {s(SRD_WS,4)}, s101 offen offset:1024 sc1
            buffer_store_dwordx4 v[92:95], {v(V16)}, {s(SRD_WS,4)}, s34 offen sc1
            buffer_store_dwordx4 v[92:95], {v(V16)}, {s(SRD_WS,4)}, s34 offen offset:1024 sc1
            s_and_b32 exec_lo, s56, 0xfff0
            s_mov_b32 exec_hi, 0
            buffer_store_dwordx4 v[92:95], v18, {s(SRD_WS,4)}, s38 offen sc1
            s_mov_b64 exec, -1
            """)
            vq.extend(['in'] * 5)
    def pub0():
        if 'm0' in vq: vwait('m0')
        k(f"""
        s_add_u32 s38, s32, s29
        s_add_u32 s39, s32, s30
        s_xor_b32 s34, s39, 8192
        v_lshl_or_b32 v16, v17, 16, v16
        s_and_b64 exec, s[6:7], s[56:57]
        v_min_u32 v16, 0xfffffffe, v16
        buffer_store_dword v16, {v(VPUB)}, {s(SRD_WS,4)}, s39 offen sc1
        buffer_store_dword v16, {v(VPUB)}, {s(SRD_WS,4)}, s34 offen sc1
        buffer_store_dword v16, {v(VPUB)}, {s(SRD_WS,4)}, s38 offen sc1
        s_mov_b64 exec, -1
        """)
        vq.extend(['p0'] * 3)
    WLDS.clear()
    free = []; held = []; tpool = [32 + 8*i for i in range(8)]
    tmp = {}
    def flush():
        while held and free:
            key = held.pop(0); off = free.pop(0); WLDS[key] = off; t = tmp.pop(key)
            for hh in range(2): k(f"ds_write_b128 {v(VLW)}, {v(t + 4*hh, 4)} offset:{off + 1024*hh}")
            tpool.append(t)
    def consume(rd, base):
        new = []
        for (key, ro, va, off) in rd:
            if key in WREG: reg = WREG[key]
            else:
                if key not in tmp: tmp[key] = tpool.pop(0); new.append(key)
                reg = tmp[key]
            k(f"ds_read_b64_tr_b16 {r(reg + ro, 2)}, {v(va)} offset:{base + off}")
        k("s_waitcnt lgkmcnt(0)")
        held.extend(new)
    init_stores()
    def cnt_add(val):
        k(f"""
        s_cmp_eq_u32 {s(w)}, 0
        s_cselect_b32 exec_lo, 1, 0
        s_mov_b32 exec_hi, 0
        v_mov_b32 v30, {val}
        buffer_atomic_add v30, off, {s(SRD_DBG,4)}, 0 offset:{DB_INIT} sc1
        s_mov_b64 exec, -1
        """)
        vq.append('at')
    def dbg_eval():
        k(f"""
        s_cmp_eq_u32 s92, {N_INIT}
        s_cselect_b32 s47, s93, 0
        s_cmp_lg_u64 s[94:95], 0
        s_cselect_b32 s47, s47, 0
        s_cmp_eq_u32 s91, 32
        s_cselect_b32 s47, s47, 0
        s_and_b32 s90, s94, 0xffff
        """)
    k(f"""
    s_sub_u32 s52, {s(h)}, {s(w)}
    s_lshl_b32 s52, s52, 8
    s_add_u32 s52, s52, {WS_SYNC+SY_FLAG+FL_G1}   ; K/V flag line (minus the wave part of VQ)
    s_lshl_b32 s39, {s(h)}, {HS}
    s_lshl_b32 s54, {s(w)}, 11
    s_add_u32 s51, s54, {LK}             ; K dma lds base
    s_add_u32 s54, s54, s39
    s_add_u32 s53, s54, {WS_K}           ; K quarter (running)
    s_add_u32 s54, s54, {WS_VT}          ; VT(s) wave base (running)
    """)
    NP0, NTI, NDB = 3, 6, P.get('ndb', 14)
    def kv_first():
        k(f"s_add_u32 m0, s35, {LL}")
        k(f"v_lshlrev_b32 v17, 1, {v(V16)}")
        k(f"buffer_load_dword v17, {s(SRD_WS,4)}, s54 offen sc1 lds")
        k("s_mov_b32 m0, s51")
        for o in (0, 1024): k(f"buffer_load_dwordx4 {v(V16)}, {s(SRD_WS,4)}, s53 offen offset:{o} sc1 lds")
    def announce(x, sr):
        k(f"""
        s_memtime s[38:39]
        s_waitcnt lgkmcnt(0)
        s_add_u32 s38, s38, s48
        s_add_u32 s38, s38, {x}
        s_or_b32 s38, s38, 1
        v_mov_b32 v30, s38
        buffer_store_dword v30, off, {s(SRD_WS,4)}, s{sr} sc1
        s_and_b32 s39, s{sr}, -256
        v_lshrrev_b32 v19, 2, {v(V16)}
        buffer_load_dword v31, v19, {s(SRD_WS,4)}, s39 offen sc1
        """)
    for n in range(NB):
        if n == NB - 2: calib(k, P, 48)
        vwait(n)
        if STAMPS and n in P.get('stn', (1, 5, 9, 13)) and not P.get('st2'): k(f"s_memrealtime s[{[58,60,62,0][P.get('stn', (1, 5, 9, 13)).index(n)]}:{[59,61,63,1][P.get('stn', (1, 5, 9, 13)).index(n)]}]")
        if n == NB - 1 and fused:
            na = k.uid('na')
            k(f"""
            s_lshl_b32 s33, {s(h)}, 1
            s_add_u32 s33, s33, {s(b)}
            s_lshl_b32 s33, s33, 2
            s_add_u32 s33, s33, {WS_SYNC+SY_FLAG+FL_AN}
            s_cmp_eq_u32 {s(w)}, 3
            s_cselect_b32 s36, s33, {WS_SIZE}
            s_waitcnt vmcnt(0)
            v_cmp_ge_u32 vcc, 1, v31
            s_and_b32 s39, vcc_lo, 0xfff
            s_cselect_b32 s47, 0, s47
            s_cmp_eq_u32 s47, 0
            s_cbranch_scc1 {na}
            """)
            announce(P.get('ann', 700), 36)
            kv_first()
            k.label(na)
        if n == NTI and fused:
            assert 'p0' not in vq and 'in' not in vq
        k("s_barrier")
        if n == NP0: pub0()
        if n == 1: free.extend([SPARE, SPARE + 2048])
        if n >= 1:
            if n + 3 < NB: issue(B[order[n+3]][0], ((n - 1) % 4) * 8192, n + 3)
            else: free.extend([((n - 1) % 4) * 8192 + 2048*q for q in range(4)])
        if n == P.get('npl', 14) and fused:
            k(f"""
            v_lshlrev_b32 v17, 1, {v(V16)}
            s_add_u32 s34, s101, {PART_SLOT}
            s_mov_b64 exec, s[56:57]
            buffer_load_dword v16, v17, {s(SRD_WS,4)}, s101 offen {P.get('plc', '')}
            buffer_load_dword v16, v17, {s(SRD_WS,4)}, s34 offen {P.get('plc', '')}
            s_lshl_b32 s34, {s(w)}, 6
            s_add_u32 s34, s34, {s(h)}
            s_lshl_b32 s34, s34, 7
            s_add_u32 s34, s34, s29
            s_mov_b64 exec, 3
            v_lshlrev_b32 v18, 8, {v(V16)}
            buffer_load_dword v16, v18, {s(SRD_WS,4)}, s34 offen {P.get('plc', '')}
            s_mov_b64 exec, -1
            """)
            vq.extend(['pl', 'pl', 'pl'])
        if n == NDB - 1 and fused: k(f"s_load_dwordx4 s[92:95], {s(KA_DBG,2)}, {DB_INIT}\ns_load_dword s91, {s(KA_DBG,2)}, {DB_MI}")
        if n == NDB and fused:
            dbg_eval()
            k(f"buffer_load_dword v31, {v(VQ)}, {s(SRD_WS,4)}, s52 offen sc1")
            vq.append('kv')
        flush()
        rd = B[order[n]][1]
        if n == 0:
            for ke in range(2):
                for u in range(2):
                    for vv in range(2):
                        k(f"ds_read_b64_tr_b16 {r(WREG[('O', 4, ke)] + 4*u + 2*vv, 2)}, {v([VT4A, VT4B][ke])} offset:{u*LWS + vv*1024}")
        consume(rd, (n % 4) * 8192)
    k("s_barrier")
    free.extend([((NB - 1) % 4) * 8192 + 2048*q for q in range(4)])
    flush()
    assert not held and len(WLDS) == 18
    k("s_waitcnt lgkmcnt(0)")
    stamp(k, 1, 20)
    if STAMPS:
        for i, sr in enumerate([58, 60, 62, 0]):
            k(f"v_mov_b32 v20, s{sr}")
            k(f"buffer_store_dword v20, off, {s(SRD_WS,4)}, s94 offset:{36+4*i}")
    def kvspin(back):
        top = k.uid('kvs'); k.label(top)
        k(f"""
        buffer_load_dword {v(VSEL)}, {v(VQ)}, {s(SRD_WS,4)}, s52 offen sc1
        s_waitcnt vmcnt(0)
        v_cmp_ge_u32 vcc, s19, {v(VSEL)}
        s_and_b32 s39, vcc_lo, 0xfff
        s_cbranch_scc0 {back}
        s_add_u32 s44, s44, 1
        s_cmp_gt_u32 s44, {SPIN_MAX}
        s_cbranch_scc1 {last}
        s_sleep {P.get('psl', 1)}
        s_branch {top}
        """)
    if fused:
        top = k.uid('tw'); ok = k.uid('twok')
        k("s_mov_b32 s44, 0")
        k("s_mov_b32 s19, 1")
        k("s_cmp_lg_u32 s47, 0")
        k(f"s_cbranch_scc1 {ok}")
        k.label(top)
        k(f"""
        buffer_load_dwordx4 v[24:27], off, {s(SRD_DBG,4)}, 0 offset:{DB_INIT} sc1
        buffer_load_dword v28, off, {s(SRD_DBG,4)}, 0 offset:{DB_MI} sc1
        s_waitcnt vmcnt(0)
        """)
        for i in range(4): k(f"v_readfirstlane_b32 s{92+i}, v{24+i}")
        k("v_readfirstlane_b32 s91, v28")
        dbg_eval()
        k(f"""
        s_add_u32 s44, s44, 1
        s_cmp_gt_u32 s44, {SPIN_MAX}
        s_cbranch_scc1 {last}
        s_sleep 2
        s_cmp_eq_u32 s47, 0
        s_cbranch_scc1 {top}
        """)
        kok = k.uid('kok'); kvspin(kok); k.label(kok)
        announce(P.get('ann2', 500), 36)
        kv_first()
        k.label(ok)
        k(f"""
        s_and_b32 s39, s47, 1
        s_lshl_b32 s39, s39, 13
        s_add_u32 s30, s30, s39
        s_add_u32 s31, s31, s39
        """)
    k(f"""
    s_lshl_b32 s39, {s(h)}, {HS}
    s_lshl_b32 s95, {s(w)}, 10
    s_lshl_b32 s55, {s(b)}, 12
    s_lshl_b32 s38, {s(w)}, 9
    s_add_u32 s55, s55, s38
    s_add_u32 s55, s55, s39
    s_add_u32 s55, s55, {WS_FM - (1 << SS)}          ; FM(s-1) store address (running)
    s_add_u32 s15, s39, {WS_K + (1 << SS)}           ; prefetch base (running)
    s_mov_b32 s56, 0x05050505
    s_mov_b32 s57, 0x05050505
    s_mov_b32 s58, 0x0a0a0a0a
    s_mov_b32 s59, 0x0a0a0a0a
    s_mov_b32 s60, 0x50505050
    s_mov_b32 s61, 0x50505050
    s_mov_b32 s62, 0xa0a0a0a0
    s_mov_b32 s63, 0xa0a0a0a0
    s_mov_b32 s33, 0
    s_mov_b32 s43, 0
    s_mov_b32 s44, 0
    s_mov_b32 s45, 0
    s_mov_b32 s46, 0
    s_mov_b32 s49, 0
    s_lshl_b32 s50, {s(h)}, 6
    s_lshl_b32 s39, {s(b)}, 2
    s_add_u32 s50, s50, s39
    s_add_u32 s50, s50, {WS_SYNC+SY_FLAG+FL_FM}
    s_cmp_eq_u32 {s(w)}, 3
    s_cselect_b32 s50, s50, {WS_SIZE}
    s_cmp_lt_u32 {s(w)}, 2
    s_cselect_b32 s15, s15, s52
    s_cselect_b32 s21, {1 << SS}, 0      ; prefetch increment
    s_cselect_b32 s93, 5, 0
    s_cselect_b32 s94, 0, 1              ; tag mask of dwords 1..3
    s_lshl_b32 s20, s28, 8
    s_cmp_lt_u32 s28, 20
    s_cselect_b32 s20, s20, {WS_SIZE}
    s_mov_b32 s14, {float_hex(128 ** -0.5 * math.log2(math.e))}
    s_mov_b32 s16, {WS_SIZE}
    s_mov_b32 s17, 0
    s_cmp_eq_u32 {s(b)}, 0
    s_cselect_b32 s92, -1, 0
    s_add_u32 s99, s30, 7168             ; hint lines of the step (running)
    s_and_b32 s91, {s(h)}, 3
    s_lshl_b32 s91, s91, 8
    s_add_u32 s91, s91, s99
    s_cmp_eq_u32 {s(w)}, 3
    s_cselect_b32 s98, s91, s16          ; hint update (running)
    s_add_u32 s91, s98, {16384 - 768}
    s_cmp_lt_u32 {s(h)}, 4
    s_cselect_b32 s91, s91, s16          ; hint reset (running)
    s_cmp_eq_u32 s28, {96 + P.get('rep', 0)}
    s_cselect_b32 s16, {5120 - 64 * (96 + P.get('rep', 0))}, s16
    s_mul_i32 s26, {s(w)}, {-(32768 - 8192)}
    s_add_u32 s26, s26, {64*2048}
    s_mov_b32 s27, 0
    s_mov_b32 s22, 0
    s_mov_b32 s24, 0
    s_mov_b32 s19, 1
    s_cmp_eq_u32 {s(w)}, 3
    s_movk_i32 s37, {P['ltgt'] - P['rtgt']}
    s_cselect_b32 s7, {P['tlead']}, s37
    s_add_u32 s37, s7, {P.get('m2', 0)}
    s_movk_i32 s6, {P['ltgt'] + P.get('m1', 0)}
    """)
    if not fused: kv_first()
    k("s_mov_b32 s25, s48")
    k(f"v_mov_b32 {v(VDUM)}, s25")
    k(f"ds_write_b32 {v(VQ)}, {v(VDUM)} offset:{LR+2048}")
    k("s_waitcnt lgkmcnt(0)")
    if fused:
        slow = k.uid('slow')
        k("s_cmp_lg_u32 s90, 0x2020")
        k(f"s_cbranch_scc1 {slow}")
        team_loop(k, P, '', last, kvspin, fused)
        k.label(slow)
        team_loop(k, P, 'sc1', last, kvspin, fused)
    else:
        team_loop(k, P, lst, last, kvspin, fused)
    k.label(last)
    team_end(k)

def team_loop(k, P, lst, last, kvspin, fused):
    b = S_X; h = S_T; w = S_WAVE
    cold = []
    ns = P.get('nosync')
    TK = P.get('tick')
    pend = []
    def lwait_s(tag):
        if tag not in pend: return []
        idx = max(i for i, t in enumerate(pend) if t == tag)
        n = min(len(pend) - idx - 1, 15)
        del pend[:idx+1]
        return [f"s_waitcnt lgkmcnt({n})"]
    def lwait(tag):
        for x in lwait_s(tag): k(x)
    def wl_s(key, reg): return [(f"ds_read_b128 {v(reg+4*hh,4)}, {v(VLW)} offset:{WLDS[key]+1024*hh}", key) for hh in range(2)]
    dslog = []
    def ds(x, tag): k(x); pend.append(tag); dslog.append((x, tag))
    def smf(acc, areg, breg):
        k(f"v_smfmac_f32_16x16x64_bf16 {v(acc,4)}, {v(areg,4)}, {r(breg,8)}, {v(VIDX)}")
    pl = [f"buffer_load_dword {v(A+4)}, {v(VQ)}, {s(SRD_WS,4)}, s36 offen sc1 ;poll",
          f"buffer_load_dwordx4 {v(A,4)}, {v(VC0)}, {s(SRD_WS,4)}, s35 offen sc1 ;poll"]
    def poll_local():
        for x in pl: k(x)
    pr = [f"buffer_load_dwordx4 {v(A+12,4)}, {v(VC0)}, {s(SRD_WS,4)}, s40 offen sc1 ;poll",
          f"buffer_load_dword {v(A+16)}, {v(VQ)}, {s(SRD_WS,4)}, s41 offen sc1 ;poll"]
    def poll_rr():
        for x in pr: k(x)
    def dloop(sr):
        l = k.uid('dl'); k(".p2align 3"); k.label(l)
        k(f"s_sub_u32 s{sr}, s{sr}, {P['dit']}")
        k(f"s_cbranch_scc0 {l}")
    def rem(tgt, now): return [f"s_sub_u32 s27, s{tgt}, s{now}", "s_cmpk_lt_u32 s27, 4000", "s_cselect_b32 s27, s27, 0"]
    def set_slots():
        return f"""s_lshl_b32 s19, s33, 13
        s_and_b32 s18, s19, 0x6000
        s_lshl_b32 s19, s33, 14
        s_add_u32 s35, s18, s29
        s_add_u32 s36, s35, 4096
        s_add_u32 s40, s19, s31
        s_add_u32 s41, s40, 4096""".split('\n')
    def cmpsent(x): return f"v_cmp_{'f' if ns else 'eq'}_u32 vcc, -1, {v(x)}"
    def chk(b0, n=5):
        T = VDUM
        if n == 1: return [cmpsent(b0)]
        return [f"v_max3_u32 {v(T)}, {v(b0)}, {v(b0+1)}, {v(b0+2)}", f"v_max3_u32 {v(T)}, {v(T)}, {v(b0+3)}, {v(b0+n-1)}", cmpsent(T)]
    def retry(b0, reissue, cnt, post, fix=None, n=5):
        c = k.uid('cold'); back = k.uid('back')
        k(f"s_cbranch_vccnz {c}")
        k.label(back)
        def body():
            k.label(c)
            reissue()
            k(f"s_add_u32 s{cnt}, s{cnt}, 1")
            k(f"s_cmp_gt_u32 s{cnt}, {P.get('bound', 20000)}")
            k(f"s_cbranch_scc1 {last}")
            k(f"s_waitcnt vmcnt(0) lgkmcnt(0)")
            post()
            for x in chk(b0, n): k(x)
            k(f"s_cbranch_vccnz {c}")
            if fix: fix()
            k("s_waitcnt lgkmcnt(0)")
            k(f"s_branch {back}")
        cold.append(body)
    TK2 = P.get('tk2')
    def tick(i, alt=False):
        if TK2 and 3 <= i <= 8 and not alt: return
        if TK: k(f"s_memtime s[{64+2*i}:{65+2*i}]")
    def zero(base, n): return [f"v_mov_b64 {v(base+i,2)}, 0" for i in range(0, n, 2)]
    RING = [PP + 16, PP + 24, PP, PP + 8]
    WARM = f"v_mov_b32 {v(V8)}, {v(V8)}"
    VMC = PP + 32; VX = PP + 24; KR = PP + 16; PF = PP
    RD = A + 8; SEL = AK; D = A; T = A + 16
    areg = [A, A+8, A+4, A, A+8]
    rreg = [A+12, A+16, A+4, A, A+8]
    seq = [('L', 0, 1, 0), ('L', 0, 1, 1), ('L', 0, 2, 0), ('L', 0, 2, 1), ('L', 0, 0, 0), ('L', 0, 0, 1)]
    for i in range(1, 5): seq += [('L', i, m, t) for m in (0, 1, 2) for t in range(2)]
    rin = P.get('rin', 0)
    if rin:
        seq += [('R', 0, m, t) for t in range(2) for m in (1, 0)]
        seq += [('R', i, m, 0) for i in range(1, 5) for m in (1, 0)]
        seq += [('R', i, m, 1) for m in (1, 0) for i in range(1, 5)]
    else:
        seq += [('R', i, m, 0) for i in range(5) for m in (1, 0)]
        seq += [('R', i, m, 1) for m in (1, 0) for i in range(5)]
    seq += [('R', i, 2, t) for i in range(5) for t in range(2)]
    lseq = [x for x in seq if x in WLDS]
    sl = [0, 2, 3] * 5 + [0 if rin else 2]
    rslot = {x: RING[sl[n]] for n, x in enumerate(lseq)}
    def ring_pre():
        for x in lseq[:3]:
            for y, tg in wl_s(x, rslot[x]): ds(y, tg)
    def do_smf(key):
        l, i, m, t = key
        smf(ACC + 8*m + 4*t, (areg if l == 'L' else rreg)[i], WREG.get(key) or rslot[key])
    def a_rd(l, i):
        base = LL if l == 'L' else LR
        dst = (areg if l == 'L' else rreg)[i]
        if i == 1: return (f"ds_read_b128 {v(dst,4)}, {v(V16)} offset:{LR + 3072 if l == 'L' else LL}", l + '1')
        return (f"ds_read_b128 {v(dst,4)}, {v(VC0+i-1)} offset:{base}", f'{l}{i}')
    kfr = [KR, KR+4, VMC] + rreg
    def k_rd(f): return (f"ds_read_b128 {v(kfr[f],4)}, {v(V16)} offset:{LK + 1024*f}", f'k{f}')
    def pack(t):
        kq = AK + 4*t; qq = AQ + 4*t
        return [f"v_add_f32 {v(kq)}, {v(kq)}, {v(kq+2)}",
                f"v_add_f32 {v(kq+1)}, {v(kq+1)}, {v(kq+3)}",
                f"v_cvt_pk_bf16_f32 {v(kq+2)}, {v(kq)}, {v(kq+1)}",
                f"v_add_f32 {v(qq)}, {v(qq)}, {v(qq+2)}",
                f"v_add_f32 {v(qq+1)}, {v(qq+1)}, {v(qq+3)}",
                f"v_cvt_pk_bf16_f32 {v(kq+3)}, {v(qq)}, {v(qq+1)}",
                f"ds_write_b64 {v(VFW)}, {v(kq+2,2)} offset:{LL + 512*t}"]
    def fmget():
        k(f"v_add_u32 {v(VDUM)}, s95, {v(V8)}")
        k(f"v_mov_b64 {v(VMC,2)}, {v(VM,2)}")
        sk = k.uid('fmsk')
        k("s_cmp_eq_u32 s92, 0")
        k(f"s_cbranch_scc1 {sk}")
        k(f"ds_read_b64_tr_b16 {v(VMC,2)}, {v(VDUM)} offset:{LL}")
        k(f"ds_read_b64_tr_b16 {v(VMC+2,2)}, {v(VDUM)} offset:{LL+512}")
        k.label(sk)
    def fmfix():
        sk = k.uid('fmsk')
        k("s_cmp_eq_u32 s92, 0")
        k(f"s_cbranch_scc1 {sk}")
        k("s_or_b64 vcc, s[56:57], s[60:61]")
        for i in range(2): k(f"v_mov_b32_dpp {v(VMC+i)}, {v(VMC+i)} quad_perm:[0,0,1,1] row_mask:0xf bank_mask:0xf")
        for i in range(2): k(f"v_cndmask_b32_dpp {v(VMC+i)}, {v(VMC+2+i)}, {v(VMC+i)}, vcc quad_perm:[0,0,1,1] row_mask:0xf bank_mask:0xf")
        k.label(sk)
    def tail():
        k(f"""
        s_and_b32 s19, s33, 1
        s_mul_i32 s19, s19, {PART_SLOT}
        s_add_u32 s47, s19, s100
        s_add_u32 s48, s19, s101
        s_bfe_u32 s34, s33, 0x10001
        s_add_u32 s23, s47, s26
        s_xor_b32 s18, s35, 0x4000
        s_add_u32 s18, s18, s20
        v_lshlrev_b32 {v(VSEL)}, s93, {v(VQ)}
        """)
        for x in zero(AK, 4): k(x)
    def tail2():
        if TK: k(f"v_writelane_b32 {v(A+8)}, s25, 14")
        if STAMPS:
            sk = k.uid('stc')
            k("s_cmp_lg_u32 s33, 5")
            k(f"s_cbranch_scc1 {sk}")
            k("s_mov_b32 s46, s97\ns_mov_b32 s43, 0\ns_mov_b32 s45, 0\ns_mov_b32 s49, 0\ns_mov_b32 s44, 0")
            k.label(sk)
        if TK:
            k(f"""
            s_lshl_b32 s39, {s(S_WG)}, 2
            s_add_u32 s39, s39, {s(w)}
            s_lshl_b32 s39, s39, 12
            s_lshl_b32 s38, s33, 6
            s_add_u32 s39, s39, s38
            s_add_u32 s39, s39, {WS_ST2}
            s_lshl_b32 s38, s45, 10
            s_or_b32 s90, s38, s43
            s_lshl_b32 s38, s49, 20
            s_or_b32 s90, s38, s90
            """)
            for i in range(10):
                k(f"v_writelane_b32 {v(A+8)}, s{64+2*i}, {i}")
            k(f"v_writelane_b32 {v(A+8)}, s90, 13")
            k(f"v_lshrrev_b32 {v(A+9)}, 2, {v(V16)}")
    fmst = f"buffer_store_dwordx2 {v(VMC,2)}, {v(V8)}, {s(SRD_WS,4)}, s55 offen sc1"
    SX0, SX1, SM = AQ, AQ + 4, AK
    T0, T1 = AK + 4, AK + 5; VM = AK + 6
    PK = KR; PM0 = KR + 4; PM1 = KR + 6; ONE = VMC
    lastpub = k.uid('lastpub'); loop = k.uid('tloop'); entry = k.uid('entry')
    if fused:
        k(f"""
        s_lshl_b32 s39, {s(h)}, 5
        s_lshl_b32 s38, {s(b)}, 4
        s_add_u32 s39, s39, s38
        v_cmp_eq_u32 vcc, s39, {v(V16)}
        s_waitcnt vmcnt(3)
        v_cndmask_b32 {v(A+1)}, v31, v30, vcc
        """)
    for x in zero(ACC, 24) + set_slots(): k(x)
    ring_pre()
    k("s_memtime s[96:97]")
    k("s_waitcnt lgkmcnt(0)")
    k("s_sub_u32 s97, s96, 1")
    k("s_add_u32 s42, s97, s25")
    k("s_sub_u32 s42, s42, 1000")
    tail()
    if fused:
        st = k.uid('st'); go = k.uid('go')
        k(f"""
        s_cmp_lg_u32 {s(w)}, 3
        s_cbranch_scc1 {go}
        v_lshrrev_b32 {v(A)}, 2, {v(V16)}
        s_mov_b32 s39, {WS_SYNC+SY_FLAG+FL_AN}
        s_branch {st}c
        """)
        k.label(st)
        k(f"""
        s_sleep {P.get('psl2', 0)}
        buffer_load_dword {v(A+1)}, {v(A)}, {s(SRD_WS,4)}, s39 offen sc1
        s_add_u32 s44, s44, 1
        s_cmp_gt_u32 s44, {SPIN_MAX}
        s_cbranch_scc1 {last}
        s_waitcnt vmcnt(0)
        """)
        k.label(st + 'c')
        k(f"""
        v_cmp_eq_u32 vcc, 0, {v(A+1)}
        s_cbranch_vccnz {st}
        v_subrev_u32 {v(A+1)}, s42, {v(A+1)}
        """)
        for x in (1, 2, 4, 8): k(f"v_max_i32_dpp {v(A+1)}, {v(A+1)}, {v(A+1)} row_ror:{x} row_mask:0xf bank_mask:0xf")
        for i in range(4): k(f"v_readlane_b32 s{[0,1,12,13][i]}, {v(A+1)}, {16*i}")
        k(f"""
        s_max_i32 s0, s0, s1
        s_max_i32 s12, s12, s13
        s_max_i32 s0, s0, s12
        s_add_u32 s96, s0, s42
        s_add_u32 s0, s96, {P.get('e0', 2100)}
        s_not_b32 s0, s0
        v_mov_b32 {v(VDUM)}, s0
        buffer_store_dword {v(VDUM)}, off, {s(SRD_WS,4)}, s98 {lst}
        s_sub_u32 s96, s96, s25
        s_memtime s[0:1]
        s_waitcnt lgkmcnt(0)
        """)
        for x in rem(96, 0): k(x)
        dloop(27)
        k.label(go)
        k("s_sub_u32 s97, s96, 1")
        k("s_add_u32 s42, s97, s25")
        k("s_sub_u32 s42, s42, 1000")
    k(f"s_mov_b32 s39, {WS_SIZE}")
    k("s_barrier")
    k(f"s_branch {entry}")
    k.label(loop)
    pend[:] = []
    early = P.get('sc1early', 0)
    tailv = (1 if TK else 0)
    n0log = len(dslog)
    nt = (0 if rin else 2) + tailv + (0 if early else 1)
    lw = [(f"ds_write_b32 {v(VQ)}, {v(A+4)} offset:{LR + 3072}", 'w1'), (f"ds_write_b128 {v(VC0)}, {v(A,4)} offset:{LL}", 'w')]
    k(f"s_waitcnt vmcnt({nt + 1})")
    tick(0)
    ds(*lw[0])
    k(chk(A + 4, 1)[0])
    k(f"s_waitcnt vmcnt({nt})")
    do_smf(seq[0])
    def lfix(n):
        again = [x for x, tg in dslog[n0log:] if tg in rslot]
        def f():
            if again:
                for kk in lseq[:3]:
                    for x, _ in wl_s(kk, rslot[kk]): k(x)
                k("s_waitcnt lgkmcnt(0)")
            for kk in seq[:n]:
                for x in zero(ACC + 8*kk[2] + 4*kk[3], 4): k(x)
            for kk in seq[:n]: do_smf(kk)
            for x in again: k(x)
        return f
    rc = P.get('rc', 20); bx = P.get('bx', 18)
    pre = {}; val = {}; dsq = []; hook = {}
    def at(c, *xs):
        for x in xs: (val if x.startswith('v_') else pre).setdefault(c, []).append(x)
    lb = P.get('lb', 2); lc = P.get('lc', 5); lb2 = P.get('lb2', 6); rb = rc + P.get('rb', 5)
    sp = P['sp']
    sx = P.get('sx', rb)
    if sx > rb: at(sx, "s_memtime s[96:97]")
    hs_ = sx + P.get('hs', 4)
    vl = P.get('vl', [4, 5])
    npre = sum(x < rc for x in sp + vl)
    for o in (0, 1): at(vl[o], f"buffer_load_dwordx4 {v(VX+4*o,4)}, {v(V16)}, {s(SRD_WS,4)}, s54 offen offset:{1024*o} sc1")
    assert max(vl) < min(sp) and rc not in vl
    pfi = f"buffer_load_dword {v(VSEL)}, {v(VSEL)}, {s(SRD_WS,4)}, s15 offen sc1"
    at(sp[0], pfi)
    at(sp[1], fmst)
    at(sp[2] - 1, f"v_mov_b32 {v(VDUM)}, s17")
    at(sp[2], f"buffer_store_dword {v(VDUM)}, off, {s(SRD_WS,4)}, s50 sc1")
    at(sp[3] - 1, f"v_mov_b32 {v(VDUM)}, -1")
    at(sp[3], f"buffer_store_dword {v(VDUM)}, {v(VQ)}, {s(SRD_WS,4)}, s18 offen {lst}")
    rw = [(f"ds_write_b128 {v(VC0)}, {v(A+12,4)} offset:{LR}", 'w'), (f"ds_write_b32 {v(VQ)}, {v(A+16)} offset:{LL}", 'w')]
    ck = chk(A + 12)
    at(rc, f"s_waitcnt vmcnt({(0 if rin else tailv) + npre})", ck[0]); at(rc + 1, ck[1]); at(rc + 2, ck[2])
    def rre():
        for x, _ in rw: k(x)
    def h1():
        ds(*lw[1])
        retry(A + 4, poll_local, 43, lambda: [k(x) for x, _ in lw], lfix(1), 1)
    def b1():
        lwait('w1'); k("s_barrier")
        if rin == lb:
            ds(*dsq.pop(0)); poll_rr()
    def b1b():
        lwait('w'); k("s_barrier")
    for j, x in enumerate(chk(A, 4)): at(1 + j, x)
    def b2():
        lwait('w')
        k("s_barrier")
        if sx == rb: k("s_memtime s[96:97]")
        tick(2)
    hook[1] = h1; hook[lb] = b1; hook[lb2] = b1b
    hook[lc] = lambda: retry(A, lambda: k(pl[1]), 43, lambda: k(lw[1][0]), lfix(lc), 4)
    assert 1 < lb < lc < lb2 and 4 <= lc <= 6
    at(bx + 1 if rin else lc, f"v_readfirstlane_b32 s25, {v(VMC+2)}")
    if rin > lb: at(rin, *pr)
    assert rin < min(vl)
    hook[rc + P.get('rr', 3)] = lambda: retry(A + 12, poll_rr, 45, rre)
    hook[rb] = b2
    assert rb > rc + P.get('rr', 3)
    nods = set(P.get('nods', [1] + ([lb] if rin == lb else [])))
    at(hs_, "s_add_u32 s27, s96, s25", f"v_not_b32 {v(VDUM)}, s27")
    at(hs_ + 1, "s_mov_b64 exec, 1", f"buffer_atomic_umin {v(VDUM)}, off, {s(SRD_WS,4)}, s98 {lst}", "s_mov_b64 exec, -1")
    assert len({hs_, sp[2] - 1, sp[3] - 1, rc, rc + 1, rc + 2}) == 6
    p0 = pack(0); p1 = pack(1)
    po = 2 if rin else 0; b3 = 38 + 2*po
    for j in range(6): at(41 + po + j, p0[j])
    for j in range(3): at(47 + po + j, p1[j])
    at(b3, f"s_waitcnt vmcnt({sum(x < b3 for x in sp + [hs_ + 1])})", "s_barrier")
    assert b3 not in sp and max(sp[2:] + [hs_ + 1]) <= 41 + po
    app_ds = {}
    def rel(c, *ys): app_ds.setdefault(c, []).extend(ys)
    if rin: rel(lb2, (f"ds_read_b32 {v(VMC+2)}, {v(VMC+3)}", 'L3'))
    rel(lb, a_rd('L', 1)); rel(lb2, a_rd('L', 2), a_rd('L', 3)); rel(12, a_rd('L', 4)); rel(rc, *rw); rel(rb, a_rd('R', 1), a_rd('R', 2))
    rel(max(24, rb), a_rd('R', 3)); rel(max(30, rb), a_rd('R', 4)); rel(47 + po, (p0[6], 'fw'))
    rel(46 if rin else 40, k_rd(0), k_rd(1)); rel(max(sp[1] + 2, 40), k_rd(2)); rel(52, k_rd(3)); rel(54, k_rd(4))
    def dead(tg):
        if tg in ('w', 'fw'): return 0
        if tg == 'L4': return bx
        for n_, x in enumerate(seq):
            if tg == x or tg == f'{x[0]}{x[1]}': return n_
        return 100
    qn = 0
    def gap(cnt, nxt):
        dsq.extend(app_ds.get(cnt, []))
        dsq.sort(key=lambda y: dead(y[1]))
        n0 = len(k.ins)
        def used(): return sum(2 if I.cls == 'ds' else (P.get('vmw', 1) if I.cls == 'vmem' else 1) for I in k.ins[n0:] if I.cls != 'label')
        if cnt == bx: lwait('L4'); k("s_barrier")
        for x in pre.get(cnt, []):
            k(x)
            if 'lgkmcnt(0)' in x: pend[:] = []
        if cnt in hook: hook[cnt]()
        if dsq and (used() < 2 or dead(dsq[0][1]) == 0 or cnt == lb) and cnt not in nods: ds(*dsq.pop(0))
        if dsq and cnt in P.get('ds2', [3, 4, 5]): ds(*dsq.pop(0))
        if nxt:
            need = [nxt, f'{nxt[0]}{nxt[1]}']
            while any(tg in need for _, tg in dsq):
                ds(*dsq.pop(0))
            for tg in need: lwait(tg)
        if TK2 and cnt in TK2: tick(3 + TK2.index(cnt), True)
        vs = val.get(cnt, [])
        for x in vs: k(x)
        if not vs and P.get('warm', True) and used() <= 2: k(WARM)
    def after(n):
        if seq[n] in rslot:
            q = lseq.index(seq[n])
            nx = [j for j in range(q + 1, 16) if sl[j] == sl[q]]
            if nx: dsq.extend(wl_s(lseq[nx[0]], rslot[lseq[nx[0]]]))
    after(0); gap(1, seq[1])
    for n in range(1, 52):
        do_smf(seq[n]); after(n)
        if n == 29: tick(1)
        if n == 39: tick(3)
        if n < 51: gap(n + 1, seq[n + 1])
    for x in p1[3:6]: k(x)
    ds(p1[6], 'fw')
    tick(4)
    n = 52
    dsq.extend(app_ds.pop(52))
    for _ in range(P.get('vpre', 3)):
        do_smf(seq[n]); n += 1
        gap(n, None)
    lwait('fw')
    k("s_barrier")
    kq_ = [5, 6, 7]
    for i in range(8):
        ds(f"ds_read_b64_tr_b16 {v(PF+2*i,2)}, {v(V8)} offset:{LL + 512*i}", f'f{i//2}')
        if i % 2 == 1 and n < 60:
            do_smf(seq[n]); n += 1
    while dsq: ds(*dsq.pop(0))
    def kfree():
        while kq_ and n >= 50 + 2 * (kq_[0] - 3) + 2: ds(*k_rd(kq_.pop(0)))
    kfree()
    while n < 60:
        do_smf(seq[n]); n += 1; kfree()
    assert not kq_
    tick(5)
    def smw(which, ks):
        lwait(f'f{ks}')
        if which != 'm': lwait(f'k{2*ks + which}')
    def sm(which, ks):
        smw(which, ks)
        if which == 'm': Dd, Aop = SM, PF + 4*ks
        else: Dd = SX0 + 4*which; Aop = kfr[2*ks + which]
        k(f"v_mfma_f32_16x16x32_bf16 {v(Dd,4)}, {v(Aop,4)}, {v(PF+4*ks,4)}, {'0' if ks == 0 else v(Dd,4)}")
    vp = []
    for t in range(2):
        vv = AV + 4*t
        vp += [f"v_add_f32 {v(vv)}, {v(vv)}, {v(vv+2)}", f"v_add_f32 {v(vv+1)}, {v(vv+1)}, {v(vv+3)}", f"v_cvt_pk_bf16_f32 {v(VM+t)}, {v(vv)}, {v(vv+1)}"]
    cst = [f"v_mov_b32 {v(PM0+1)}, 0", f"v_mov_b32 {v(PM1)}, 0"] + [f"v_mov_b32 {v(ONE+i)}, 0x3f803f80" for i in range(4)]
    so = [('m', 0), (0, 0), (1, 0), ('m', 1), (0, 1), (1, 1), ('m', 2), ('m', 3), (0, 2), (0, 3), (1, 2), (1, 3)]
    hl = [f"s_buffer_load_dword s{x}, {s(SRD_WS,4)}, s99 offset:{256*i}" for i, x in enumerate([0, 1, 12, 13])]
    fl = {0: [WARM], 1: vp[0:2], 2: vp[2:4], 3: vp[4:6], 4: ["s_cmp_eq_u32 s33, 63"] + cst[0:2], 5: [f"s_cbranch_scc1 {lastpub}", WARM],
          6: cst[2:4], 7: cst[4:6], 8: [WARM], 9: [f"v_max_f32 {v(T0)}, {v(SM)}, {v(SM+1)}"], 10: [WARM],
          11: [f"v_max3_f32 {v(T0)}, {v(T0)}, {v(SX0)}, {v(SX0+1)}", f"v_max3_f32 {v(T0)}, {v(T0)}, {v(SX0+2)}, {v(SX0+3)}"]}
    hpos = P.get('hpos', 2)
    WX, WY = PF, PF + 8
    wq = wl_s(('O', 3, 0), WX) + wl_s(('O', 3, 1), WY)
    for n_, (wh, ks) in enumerate(so):
        sm(wh, ks)
        if n_ < 11: smw(*so[n_ + 1])
        if n_ in (7, 8): ds(*wq.pop(0))
        for x in fl.get(n_, []): k(x)
        if hpos == 2 and n_ >= 10: k(hl[2*n_ - 20]); k(hl[2*n_ - 19])
    tick(6)
    zz = zero(A + 12, 8) + zero(A, 12)
    for _ in range(3): k(zz.pop(0))
    k(f"v_max3_f32 {v(T0)}, {v(T0)}, {v(SX1)}, {v(SX1+1)}")
    k(f"v_max3_f32 {v(T1)}, {v(T0)}, {v(SX1+2)}, {v(SX1+3)}")
    k(f"v_max3_f32 {v(T0)}, {v(T0)}, {v(SX1+2)}, {v(SX1+3)}")
    k(zz.pop(0)); k(zz.pop(0))
    k(f"v_permlane32_swap_b32 {v(T0)}, {v(T1)}")
    k(f"v_max_f32 {v(SM+2)}, {v(T0)}, {v(T1)}")
    k(f"v_max_f32 {v(T0)}, {v(T0)}, {v(T1)}")
    k(zz.pop(0)); k(zz.pop(0))
    k(f"v_permlane16_swap_b32 {v(T0)}, {v(SM+2)}")
    k(f"v_max_f32 {v(T0)}, {v(T0)}, {v(SM+2)}")
    k(f"v_mul_f32 {v(T0)}, s14, {v(T0)}")
    fma = lambda x: k(f"v_fma_f32 {v(x)}, {v(x)}, s14, -{v(T0)}")
    ex = lambda x: k(f"v_exp_f32 {v(x)}, {v(x)}")
    O0, O1 = AV, AV + 4; RS = AK; RI = T0; OP = AQ; OA = VX
    fma(SM); fma(SM+1); ex(SM); ex(SM+1)
    fma(SX0); fma(SX0+1)
    k(f"v_cvt_pk_bf16_f32 {v(PM0)}, {v(SM)}, {v(SM+1)}")
    k(f"v_cvt_pk_bf16_f32 {v(PM1+1)}, {v(SM)}, {v(SM+1)}")
    for i in range(2, 8): fma(SX0+i)
    k(f"v_mfma_f32_16x16x16_bf16 {v(O0,4)}, {v(VM,2)}, {v(PM0,2)}, 0")
    ds(*wq.pop(0))
    ex(SX0); ex(SX0+1)
    k(f"v_mfma_f32_16x16x16_bf16 {v(O1,4)}, {v(VM,2)}, {v(PM1,2)}, 0")
    ds(*wq.pop(0))
    ex(SX0+2); ex(SX0+3)
    k(f"v_cvt_pk_bf16_f32 {v(PK)}, {v(SX0)}, {v(SX0+1)}")
    k(f"v_mfma_f32_16x16x16_bf16 {v(RS,4)}, {v(PM0,2)}, {v(ONE,2)}, 0")
    ex(SX0+4); ex(SX0+5)
    k(f"v_cvt_pk_bf16_f32 {v(PK+1)}, {v(SX0+2)}, {v(SX0+3)}")
    ex(SX0+6); ex(SX0+7)
    k(f"v_cvt_pk_bf16_f32 {v(PK+2)}, {v(SX0+4)}, {v(SX0+5)}")
    k(f"v_cvt_pk_bf16_f32 {v(PK+3)}, {v(SX0+6)}, {v(SX0+7)}")
    k(zz.pop(0))
    tick(7)
    k(f"v_mfma_f32_16x16x32_bf16 {v(O0,4)}, {v(VX,4)}, {v(PK,4)}, {v(O0,4)}")
    k(zz.pop(0)); k(zz.pop(0))
    assert not zz
    k(f"v_mfma_f32_16x16x32_bf16 {v(O1,4)}, {v(VX+4,4)}, {v(PK,4)}, {v(O1,4)}")
    k("s_add_u32 s33, s33, 1")
    k("s_movk_i32 s39, 0x1833")
    k(f"s_add_u32 s53, s53, {(1 << SS)}")
    k(f"v_mfma_f32_16x16x32_bf16 {v(RS,4)}, {v(PK,4)}, {v(ONE,4)}, {v(RS,4)}")
    k(f"v_cvt_pk_bf16_f32 {v(OP)}, {v(O0)}, {v(O0+1)}")
    k(f"v_cvt_pk_bf16_f32 {v(OP+1)}, {v(O0+2)}, {v(O0+3)}")
    k(f"v_cvt_pk_bf16_f32 {v(OP+2)}, {v(O1)}, {v(O1+1)}")
    k(f"v_cvt_pk_bf16_f32 {v(OP+3)}, {v(O1+2)}, {v(O1+3)}")
    pend[:] = []
    ds(f"ds_write_b128 {v(VOW)}, {v(OP,4)} offset:{LR}", 'ow')
    VP4 = AQ + 4
    k(f"v_rcp_f32 {v(RI)}, {v(RS+2)}")
    k(f"v_rcp_f32 {v(RI+1)}, {v(RS+3)}")
    fil = [f"v_lshrrev_b32 {v(VP4)}, 11, {v(VPS)}", f"v_bfi_b32 {v(VP4)}, s39, {v(VPS)}, {v(VP4)}"] + set_slots()
    for x in fil[:P.get('fil1', 7)]: k(x)
    fil = fil[P.get('fil1', 7):]
    lwait('ow')
    k("s_barrier")
    ds(f"ds_read_b128 {v(OA,4)}, {v(V16)} offset:{LR}", 'oa0')
    ds(f"ds_read_b128 {v(OA+4,4)}, {v(V16)} offset:{LR+1024}", 'oa1')
    tick(8)
    for o in (0, 1024): k(f"buffer_load_dwordx4 {v(V16)}, {s(SRD_WS,4)}, s53 offen offset:{o} sc1 lds")
    fil = ["s_min_u32 s0, s0, s1", "s_min_u32 s12, s12, s13", "s_min_u32 s0, s0, s12", "s_not_b32 s0, s0", "s_add_u32 s96, s96, s25", "s_sub_u32 s27, s0, s96",
           "s_add_u32 s96, s96, s6", "s_min_i32 s27, s27, s24", "s_max_i32 s27, s27, 0", "s_add_u32 s96, s96, s27",
           "s_add_u32 s39, s19, s32", "s_add_u32 s39, s39, s30", "s_add_u32 s18, s39, s16", "s_add_u32 s0, s96, s22", f"v_and_b32 {v(VDUM)}, s0, -2",
           f"buffer_store_dword {v(VDUM)}, off, {s(SRD_WS,4)}, s18 sc1", "s_sub_u32 s97, s96, s25"] + fil + ["s_add_u32 s38, s35, s32", "s_sub_u32 s42, s96, 1000", "s_sub_u32 s96, s97, s37"]
    for _ in range(P.get('fil2', 16)): k(fil.pop(0))
    XS = AQ
    def fin(j):
        d = A + 4*j; o = XS + j if j < 4 else d
        x = [f"v_add_f32 {v(d)}, {v(d)}, {v(d+2)}", f"v_add_f32 {v(d+1)}, {v(d+1)}, {v(d+3)}",
             f"v_fma_mixlo_f16 {v(o)}, {v(d)}, {v(RI)}, 0", f"v_fma_mixhi_f16 {v(o)}, {v(d+1)}, {v(RI+1)}, 0"]
        if j in (0, 4): x.append(f"v_bfi_b32 {v(o)}, 1, s34, {v(o)}")
        if j == 4: x.append(f"buffer_store_dword {v(o)}, {v(VP4)}, {s(SRD_WS,4)}, s23 offen {lst}")
        if j == 2: x.append(f"buffer_store_dwordx4 {v(XS,4)}, {v(VPS)}, {s(SRD_WS,4)}, s47 offen {lst}")
        return x
    tiles = [4, 3, 0, 1, 2]
    fins = [(n_, x) for n_, j in enumerate(tiles) for x in fin(j)]
    rp = [wl_s(x, rslot[x]) for x in lseq[:3]]
    wq = dict(zip(P.get('rpos', [0, 1, 3, 4, 5, 7]), rp[0] + rp[1] + rp[2]))
    sq = fil
    per = P.get('fper', [1, 1, 1, 2, 2, 1, 1, 2, 2, 9])
    for n_ in range(10):
        j, ke = tiles[n_ // 2], n_ % 2
        lwait(f'oa{ke}')
        smf(A + 4*j, OA + 4*ke, WREG.get(('O', j, ke), [WX, WY][ke]))
        if n_ in wq: ds(*wq[n_])
        else:
            for _ in range(2):
                if sq: k(sq.pop(0))
        if n_ == 0: lwait('oa1')
        if n_ < 3: k(WARM)
        else:
            c = 0
            while c < per[n_] and fins and 2 * fins[0][0] + 3 <= n_:
                x = fins.pop(0)[1]; k(x)
                if not x.startswith('buffer'): c += 1
    assert not sq
    for _, x in fins: k(x)
    tick(9)
    nored = k.uid('nored')
    ptr = f"""s_sub_u32 s17, s33, 1
        s_add_u32 s54, s54, {1 << SS}
        s_add_u32 s55, s55, {1 << SS}
        s_add_u32 s15, s15, s21
        s_add_u32 s98, s98, 16384
        s_add_u32 s99, s99, 16384
        s_sub_u32 s6, s6, {P.get('d1', 100)}
        s_max_u32 s6, s6, {P['ltgt']}
        s_sub_u32 s37, s37, {P.get('d2', 100)}
        s_max_u32 s37, s37, s7""".split('\n')
    k("s_memtime s[0:1]")
    for d in range(4): k(f"v_cndmask_b32 {v(SEL+d)}, 0, {v(VPL)}, s[{56+2*d}:{57+2*d}]")
    w1 = P.get('w1', 3)
    for x in ptr[:w1]: k(x)
    k("s_waitcnt lgkmcnt(0)")
    for x in rem(96, 0): k(x)
    k("s_cmp_ge_u32 s28, 80")
    k(f"s_cbranch_scc1 {nored}")
    dloop(27)
    def rload(d):
        k(f"buffer_load_dwordx4 {v(d,4)}, {v(V16)}, {s(SRD_WS,4)}, s48 offen sc1 ;poll")
        k(f"buffer_load_dwordx4 {v(d+4,4)}, {v(V16)}, {s(SRD_WS,4)}, s48 offen offset:1024 sc1 ;poll")
    if TK2 == [99]: tick(3, True)
    rload(RD)
    def house(fm=True):
        if fm: fmget()
        for x in zero(AQ, 8) + zero(AK + 4, 4) + ptr[w1:]: k(x)
    house()
    delay(k, P.get('bdel', 0))
    rl = k.uid('rl'); rcl = k.uid('rc')
    k.label(rl)
    if TK2 == [99]: tick(4, True)
    dbl = P.get('dbl', 1)
    if dbl: rload(AV)
    if TK2 == [99]: tick(5, True)
    k(f"s_waitcnt vmcnt({1 + 2*dbl})")
    if TK2 == [99]: tick(6, True)
    k(f"v_mfma_f32_16x16x32_f16 {v(D,4)}, {v(SEL,4)}, {v(RD,4)}, 0")
    k(f"v_bitop3_b32 {v(T)}, {v(RD+1)}, {v(RD+2)}, s34 bitop3:0x7e")
    k(f"s_waitcnt vmcnt({2*dbl})")
    k(f"v_mfma_f32_16x16x32_f16 {v(D,4)}, {v(SEL,4)}, {v(RD+4,4)}, {v(D,4)}")
    if TK2 == [99]: tick(7, True)
    k(f"v_bitop3_b32 {v(T+2)}, {v(RD+3)}, {v(RD+5)}, s34 bitop3:0x7e")
    k(f"v_bitop3_b32 {v(T+3)}, {v(RD+6)}, {v(RD+7)}, s34 bitop3:0x7e")
    k(f"v_bitop3_b32 {v(A+4)}, {v(RD)}, {v(RD+4)}, s34 bitop3:0x7e")
    k(f"v_or3_b32 {v(T)}, {v(T)}, {v(T+2)}, {v(T+3)}")
    k(f"v_and_or_b32 {v(T)}, {v(T)}, s94, {v(A+4)}")
    k(f"v_and_b32 {v(T)}, 1, {v(T)}")
    k(f"v_cmp_{'f' if ns else 'ne'}_u32 vcc, 0, {v(T)}")
    PB = A + 5
    k(f"""
    v_add_f32_dpp {v(D)}, {v(D)}, {v(D)} row_ror:4 row_mask:0xf bank_mask:0xf
    v_add_f32_dpp {v(D+1)}, {v(D+1)}, {v(D+1)} row_ror:4 row_mask:0xf bank_mask:0xf
    s_cbranch_vccnz {rcl}
    v_add_f32_dpp {v(D)}, {v(D)}, {v(D)} row_ror:8 row_mask:0xf bank_mask:0xf
    v_add_f32_dpp {v(D+1)}, {v(D+1)}, {v(D+1)} row_ror:8 row_mask:0xf bank_mask:0xf
    v_cvt_pk_bf16_f32 {v(D)}, {v(D)}, {v(D+1)}
    v_min_u32 {v(PB)}, 0xfffffffe, {v(D)}
    buffer_store_dword {v(PB)}, {v(VPUB)}, {s(SRD_WS,4)}, s38 offen {lst}
    """)
    if early: k(f"buffer_store_dword {v(PB)}, {v(VPUB)}, {s(SRD_WS,4)}, s39 offen sc1")
    if TK2 == [99]: tick(8, True)
    post = k.uid('post'); k.label(post)
    if early:
        tail()
        k("s_waitcnt lgkmcnt(0)")
    k("s_memtime s[0:1]")
    if early: fmfix()
    k("s_waitcnt lgkmcnt(0)")
    for x in rem(97, 0): k(x)
    def rcold():
        k.label(rcl)
        if dbl:
            k("s_waitcnt vmcnt(0)")
            for i in range(0, 8, 2): k(f"v_mov_b64 {v(RD+i,2)}, {v(AV+i,2)}")
        else: rload(RD)
        k("s_add_u32 s49, s49, 1")
        k(f"s_cmp_gt_u32 s49, {P.get('bound', 20000)}")
        k(f"s_cbranch_scc1 {last}")
        k(f"s_branch {rl}")
    cold.append(rcold)
    join = k.uid('join')
    def nrcold():
        k.label(nored)
        kb = k.uid('kvb'); nc = k.uid('nocal')
        k(f"s_cmp_lg_u32 {s(w)}, 3")
        k(f"s_cbranch_scc1 {nc}")
        k("s_add_u32 s42, s40, 5120")
        if TK:
            for i in range(10): k(f"v_writelane_b32 {v(A+6)}, s{64+2*i}, {i}")
        fmget()
        dloop(27)
        calib(k, P, 27, f"s_buffer_load_dword s42, {s(SRD_WS,4)}, s42")
        k(f"v_mov_b32 {v(VDUM)}, s27")
        k(f"ds_write_b32 {v(VQ)}, {v(VDUM)} offset:{LR+2048}")
        if P.get('dc', 1): k("s_sub_u32 s22, s27, s25"); k("s_mov_b32 s25, s27")
        if TK:
            for i in range(10): k(f"v_readlane_b32 s{64+2*i}, {v(A+6)}, {i}")
        k(f"v_mov_b32 {v(VDUM)}, -1")
        k(f"buffer_store_dword {v(VDUM)}, {v(VQ)}, {s(SRD_WS,4)}, s91 offen {lst}")
        k("s_add_u32 s91, s91, 16384")
        house(False)
        if early: fmfix()
        k(f"s_add_u32 s38, s38, {P['cdur']}")
        for x in rem(97, 38): k(x)
        if fused:
            k("s_add_u32 s19, s33, 1")
            k("s_min_u32 s19, s19, 63")
            k("s_waitcnt vmcnt(6)")
            k(f"v_cmp_ge_u32 vcc, s19, {v(VSEL)}")
            k("s_and_b32 s39, vcc_lo, 0xfff")
            k(f"s_cbranch_scc0 {kb}")
            kvspin(kb)
            k.label(kb)
        else: k("s_waitcnt vmcnt(6)")
        if early: tail()
        else: k(f"s_mov_b32 s39, {WS_SIZE}")
        k(f"s_branch {join}")
        k.label(nc)
        house()
        k(f"s_mov_b32 s39, {WS_SIZE}")
        k("s_waitcnt vmcnt(5)")
        k(f"s_branch {post}")
    cold.append(nrcold)
    k.label(join)
    tick(10)
    dloop(27)
    k.label(entry)
    tick(11)
    poll_local()
    tc = k.uid('tc'); dl3 = k.uid('dl')
    if not early:
        k(f"buffer_store_dword {v(PB)}, {v(VPUB)}, {s(SRD_WS,4)}, s39 offen sc1")
        tail(); fmfix()
        k("s_waitcnt vmcnt(4)")
        for x in zero(AV, 8): k(x)
        tail2()
    k("s_waitcnt lgkmcnt(0)")
    k("s_memtime s[0:1]")
    k(f"""
    s_cmp_lg_u32 s33, {-1 if fused else 0}
    s_cselect_b32 s24, {P.get('dcap', 1600)}, 0
    s_cmp_eq_u32 s42, -1
    s_cbranch_scc1 {tc}
    s_sub_u32 s42, s42, s25
    s_add_i32 s42, s42, {P['rgap']}
    s_waitcnt lgkmcnt(0)
    s_sub_u32 s27, s42, s0
    s_cmpk_lt_u32 s27, 4000
    s_cselect_b32 s27, s27, 0
    """)
    k(".p2align 3")
    k.label(dl3)
    k(f"s_sub_u32 s27, s27, {P['dit']}")
    k(f"s_cbranch_scc0 {dl3}")
    if not rin: k("s_barrier")
    tick(12)
    if not rin: poll_rr()
    def tcold():
        k.label(tc)
        k(f"""
        s_add_u32 s44, s44, 1
        s_add_u32 s38, s40, 5120
        buffer_load_dword {v(VDUM)}, off, {s(SRD_WS,4)}, s38 sc1
        s_waitcnt vmcnt(0)
        s_memtime s[0:1]
        v_readfirstlane_b32 s42, {v(VDUM)}
        s_mov_b32 s27, 0
        s_waitcnt lgkmcnt(0)
        s_sub_u32 s38, s0, s97
        s_cmp_gt_u32 s38, {P.get('tcap', 3000)}
        s_cbranch_scc1 {dl3}
        s_cmp_eq_u32 s42, -1
        s_cbranch_scc1 {tc}
        s_sub_u32 s42, s42, s25
        s_sub_u32 s27, s42, s0
        s_add_i32 s27, s27, {P['rgap']}
        s_cmpk_lt_u32 s27, 4000
        s_cselect_b32 s27, s27, 0
        s_branch {dl3}
        """)
    cold.append(tcold)
    if early:
        k("s_waitcnt vmcnt(6)")
        for x in zero(AV, 8): k(x)
        tail2()
    k(f"v_mov_b32 {v(VMC+3)}, {LR + 2048 + 768}")
    if not rin: k(f"ds_read_b32 {v(VMC+2)}, {v(VMC+3)}")
    if TK:
        if P.get('rmeas'):
            k("s_waitcnt vmcnt(2)"); tick(3); k("s_waitcnt vmcnt(0)"); tick(1)
        k("s_waitcnt lgkmcnt(0)")
        for i in [10, 11, 12] + ([1, 3] if P.get('rmeas') else []): k(f"v_writelane_b32 {v(A+8)}, s{64+2*i}, {i}")
        k("s_mov_b64 exec, 0xffff")
        k(f"buffer_store_dword {v(A+8)}, {v(A+9)}, {s(SRD_WS,4)}, s39 offen")
        k("s_mov_b64 exec, -1")
    k(f"s_branch {loop}")
    for c in cold: c()
    k.label(lastpub)
    k(f"s_add_u32 s55, s55, {1 << SS}")
    k("s_waitcnt vmcnt(0)")
    fmget()
    k("s_waitcnt lgkmcnt(0)")
    fmfix()
    k(fmst)
    k(f"v_mov_b32 {v(VDUM)}, 64")
    k("s_waitcnt vmcnt(0)")
    k("s_barrier")
    k(f"buffer_store_dword {v(VDUM)}, off, {s(SRD_WS,4)}, s50 sc1")
    k(f"s_branch {last}")

def team_end(k):
    stamp(k, 2, 20)
    if STAMPS:
        k(f"""
        s_lshl_b32 s94, {s(S_WG)}, 10
        s_lshl_b32 s95, {s(S_WAVE)}, 8
        s_add_u32 s94, s94, s95
        s_add_u32 s94, s94, {WS_STAMP}
        """)
        for i, sr in enumerate([43, 44, 45, 46, 49, 33]):
            k(f"v_mov_b32 v20, s{sr}")
            k(f"buffer_store_dword v20, off, {s(SRD_WS,4)}, s94 offset:{16+4*i}")

TP = dict(tick=False, dit=28, sc1early=0, dbl=0, rgap=240, cdur=300, tlead=700, vl=[6,6], rin=2, rc=24, rb=4, sx=30, hs=3, sp=[8,10,14,40], rtgt=1960, ltgt=2560)

if __name__ == '__main__':
    ks = build_dev()
    variants = eval(open('tvariants.txt').read())
    for n, d in variants.items():
        P = dict(TP); P.update(d)
        k = Kernel(f"team{n}_kernel"); prologue(k)
        k.timed = True
        k(f"s_cmp_ge_u32 {s(S_X)}, 2")
        k(f"s_cbranch_scc1 {k.name}_exit")
        role_team(k, P)
        epilogue(k); ks.append(k)
    emit(ks, 'dev.s')
```

```python
import sys
import gen
DEV = len(sys.argv) > 1 and sys.argv[1] == 'dev'
gen.STAMPS = DEV
from gen import *
import team3, work
team3.STAMPS = DEV

def fprologue(k):
    ex = f"{k.name}_exit"
    k(f"""
    s_load_dwordx16 s[64:79], s[0:1], 0
    s_load_dwordx8 s[80:87], s[0:1], 64
    s_load_dwordx4 s[88:91], s[0:1], 96
    v_lshrrev_b32 v1, 6, v0
    v_and_b32 v0, 63, v0
    v_readfirstlane_b32 {s(S_WAVE)}, v1
    s_getreg_b32 s6, hwreg(HW_REG_XCC_ID)
    s_and_b32 s6, s6, 7
    s_lshl_b32 s7, s6, 3
    s_lshl_b64 s[28:29], 1, s7
    v_mov_b32 v4, 0
    s_waitcnt lgkmcnt(0)
    """)
    srd(k, SRD_WS, KA_WS, WS_SIZE)
    srd(k, SRD_DBG, KA_DBG, 256)
    nt = k.uid('notick')
    k(f"""
    s_cmp_lg_u32 {s(S_WAVE)}, 0
    s_cbranch_scc1 {nt}
    v_mov_b32 v2, s28
    v_mov_b32 v3, s29
    s_mov_b64 exec, 1
    buffer_atomic_add_x2 v[2:3], off, {s(SRD_DBG,4)}, 0 offset:{DB_TICK} sc0 sc1
    s_waitcnt vmcnt(0)
    ds_write_b64 v4, v[2:3]
    s_mov_b64 exec, -1
    s_waitcnt lgkmcnt(0)
    """)
    k.label(nt)
    k(f"""
    s_barrier
    ds_read_b64 v[2:3], v4
    s_waitcnt lgkmcnt(0)
    s_barrier
    v_sad_u8 v5, v2, 0, 0
    v_sad_u8 v5, v3, 0, v5
    v_readfirstlane_b32 s30, v2
    v_readfirstlane_b32 s31, v3
    v_readfirstlane_b32 s32, v5
    s_cmp_ge_u32 s32, 256
    s_cbranch_scc1 {ex}
    s_lshr_b64 s[34:35], s[30:31], s7
    s_and_b32 {s(S_T)}, s34, 255
    s_mov_b32 {s(S_X)}, s6
    """)
    nz = k.uid('nz'); ns = k.uid('nsnap')
    k(f"""
    s_cmp_lg_u32 {s(S_WAVE)}, 0
    s_cbranch_scc1 {nz}
    s_cmp_lg_u32 s32, 255
    s_cbranch_scc1 {nz}
    s_add_u32 s34, s30, s28
    s_addc_u32 s35, s31, s29
    v_mov_b32 v2, s34
    v_mov_b32 v3, s35
    buffer_store_dwordx2 v[2:3], off, {s(SRD_DBG,4)}, 0 offset:{DB_SNAP} sc1
    """)
    k.label(nz)
    ok = k.uid('roleok'); sp = k.uid('snsp'); got = k.uid('sngot')
    k(f"""
    s_cmp_lt_u32 {s(S_T)}, 32
    s_cbranch_scc1 {ok}
    s_mov_b32 s36, 0
    """)
    k.label(sp)
    k(f"""
    buffer_load_dwordx2 v[2:3], off, {s(SRD_DBG,4)}, 0 offset:{DB_SNAP} sc1
    s_waitcnt vmcnt(0)
    v_readfirstlane_b32 s34, v2
    v_readfirstlane_b32 s35, v3
    s_cmp_lg_u64 s[34:35], 0
    s_cbranch_scc1 {got}
    s_add_u32 s36, s36, 1
    s_cmp_gt_u32 s36, {SPIN_MAX}
    s_cbranch_scc1 {ex}
    s_sleep 2
    s_branch {sp}
    """)
    k.label(got)
    k(f"s_sub_u32 s37, {s(S_T)}, 32")
    for x in range(7):
        k(f"""
        s_bfe_u32 s38, s{34 + x//4}, {(8 << 16) | (8*(x % 4))}
        s_max_u32 s38, s38, 32
        s_sub_u32 s38, s38, 32
        s_cmp_gt_u32 s6, {x}
        s_cselect_b32 s38, s38, 0
        s_add_u32 s37, s37, s38
        """)
    k(f"s_mov_b32 {s(S_X)}, 7")
    k(f"s_mov_b32 {s(S_T)}, 31")
    k("s_mov_b32 s40, 0")
    for x in range(8):
        k(f"""
        s_bfe_u32 s38, s{34 + x//4}, {(8 << 16) | (8*(x % 4))}
        s_min_u32 s38, s38, 32
        s_add_u32 s39, s38, s37
        s_cmp_lt_u32 s39, 32
        s_cselect_b32 s41, 1, 0
        s_andn2_b32 s41, s41, s40
        s_or_b32 s40, s40, s41
        s_cmp_lg_u32 s41, 0
        s_cselect_b32 {s(S_X)}, {x}, {s(S_X)}
        s_cselect_b32 {s(S_T)}, s39, {s(S_T)}
        s_sub_u32 s37, s39, 32
        """)
    k.label(ok)
    k(f"""
    s_lshl_b32 {s(S_WG)}, {s(S_T)}, 3
    s_add_u32 {s(S_WG)}, {s(S_WG)}, {s(S_X)}
    """)

def role_pol(k):
    k(f"""
    s_mov_b32 s30, -1
    s_mov_b32 s31, -1
    s_mov_b32 s32, {WS_SYNC+SY_MEMR+6144}
    s_mov_b32 s33, 0
    v_lshlrev_b32 v5, 2, v0
    s_mov_b64 exec, 0xffff
    """)
    l = k.uid('pol'); k.label(l)
    for p in range(2):
        k(f"""
        s_memtime s[34:35]
        s_waitcnt lgkmcnt(0)
        buffer_store_dword v5, v5, {s(SRD_WS,4)}, s32 offen sc1
        s_waitcnt vmcnt(0)
        s_memtime s[36:37]
        s_add_u32 s32, s32, 8192
        s_waitcnt lgkmcnt(0)
        s_sub_u32 s36, s36, s34
        s_min_u32 s{30+p}, s{30+p}, s36
        """)
    k(f"""
    s_add_u32 s33, s33, 1
    s_cmp_lt_u32 s33, 8
    s_cbranch_scc1 {l}
    s_cmp_lt_u32 s31, s30
    s_cselect_b32 s33, 3, 2
    v_mov_b32 v6, s33
    buffer_store_dword v6, off, {s(SRD_DBG,4)}, 0 offset:{DB_POL} sc1
    s_mov_b64 exec, -1
    """)
    if DEV:
        k(f"v_mov_b32 v6, s30\nv_mov_b32 v7, s31\nbuffer_store_dwordx2 v[6:7], off, {s(SRD_DBG,4)}, 0 offset:200 sc1")

def build(name, P):
    k = Kernel(name); k.timed = True
    HOLD[:] = P.get('hold', [0])
    for x in OPT: OPT[x] = P.get('c_' + x, 'sc1')
    fprologue(k)
    ex = f"{k.name}_exit"
    wk = k.uid('worker')
    k(f"s_cmp_ge_u32 {s(S_X)}, 2")
    k(f"s_cbranch_scc1 {wk}")
    team3.role_team(k, P, fused=True)
    k("s_endpgm")
    k.label(wk)
    k(f"""
    s_sub_u32 {s(S_T)}, 31, {s(S_T)}
    s_lshl_b32 {s(S_WG)}, {s(S_T)}, 3
    s_add_u32 {s(S_WG)}, {s(S_WG)}, {s(S_X)}
    """)
    stamp(k, 3, 6)
    noln = k.uid('noln'); nw0 = k.uid('nw0'); nz = k.uid('nzero'); nf = k.uid('nlf')
    k(f"""
    s_cmp_lg_u32 {s(S_WG)}, {31*8+2}
    s_cbranch_scc1 {nw0}
    s_cmp_lg_u32 {s(S_WAVE)}, 0
    s_cbranch_scc1 {nw0}
    s_mov_b32 s6, {WS_SYNC+SY_FLAG}
    v_mov_b32 v4, 0
    v_mov_b32 v5, 0
    v_mov_b32 v6, 0
    v_mov_b32 v7, 0
    v_lshlrev_b32 v8, 4, v0
    """)
    for i in range(16):
        if i and i % 4 == 0: k("s_add_u32 s6, s6, 4096")
        k(f"buffer_store_dwordx4 v[4:7], v8, {s(SRD_WS,4)}, s6 offen offset:{1024*(i%4)} sc1")
    k(f"""
    v_mov_b32 v9, {N_INIT}
    s_waitcnt vmcnt(0)
    buffer_store_dword v9, off, {s(SRD_DBG,4)}, 0 offset:{DB_INIT} sc1
    """)
    role_pol(k)
    k.label(nw0)
    k(f"""
    s_sub_u32 s7, 31, {s(S_T)}
    s_mul_i32 s7, s7, 6
    s_add_u32 s7, s7, {s(S_X)}
    s_sub_u32 s7, s7, 3
    s_cmp_ge_u32 s7, 32
    s_cbranch_scc1 {noln}
    s_lshl_b32 s6, {s(S_WAVE)}, 5
    s_add_u32 s6, s6, s7
    """)
    role_ln(k, 6)
    wait_dbg(k, ln=False)
    k(f"""
    s_waitcnt vmcnt(0)
    s_barrier
    s_cmp_lg_u32 {s(S_WAVE)}, 0
    s_cbranch_scc1 {noln}
    s_lshl_b32 s7, s7, 2
    s_add_u32 s7, s7, {WS_SYNC+SY_FLAG+FL_LN}
    v_lshlrev_b32 v8, 8, v0
    v_mov_b32 v9, 1
    s_mov_b64 exec, 63
    buffer_store_dword v9, v8, {s(SRD_WS,4)}, s7 offen sc1
    s_mov_b64 exec, -1
    """)
    k.label(noln)
    nmi = k.uid('nmi')
    k(f"""
    s_cmp_ge_u32 {s(S_X)}, 4
    s_cbranch_scc1 {nmi}
    s_sub_u32 s6, {s(S_T)}, 8
    s_cmp_ge_u32 s6, 16
    s_cbranch_scc1 {nmi}
    s_lshl_b32 s6, s6, 2
    s_add_u32 s6, s6, {s(S_WAVE)}          ; slot
    s_lshl_b32 s7, {s(S_X)}, 20
    s_add_u32 s7, s7, {WS_SYNC+SY_MEMR-(2<<20)}
    s_cmp_eq_u32 s6, 0
    s_cselect_b32 s7, {WS_SIZE}, s7
    s_lshl_b32 s6, s6, 14
    s_add_u32 s6, s6, s7
    v_mov_b32 v4, -1
    v_mov_b32 v5, -1
    v_mov_b32 v6, -1
    v_mov_b32 v7, -1
    v_lshlrev_b32 v8, 4, v0
    """)
    for hf in range(2):
        for i in range(4): k(f"buffer_store_dwordx4 v[4:7], v8, {s(SRD_WS,4)}, s6 offen offset:{1024*i} sc1")
        k("s_add_u32 s6, s6, 4096")
        k(f"buffer_store_dwordx4 v[4:7], v8, {s(SRD_WS,4)}, s6 offen sc1")
        k("s_mov_b64 exec, 0xff")
        k(f"buffer_store_dwordx4 v[4:7], v8, {s(SRD_WS,4)}, s6 offen offset:1024 sc1")
        k("s_mov_b64 exec, -1")
        k("s_add_u32 s6, s6, 4096")
    k(f"""
    v_mov_b32 v9, 1
    s_waitcnt vmcnt(0)
    s_barrier
    s_cmp_lg_u32 {s(S_WAVE)}, 0
    s_cbranch_scc1 {nmi}
    s_mov_b64 exec, 1
    buffer_atomic_add v9, off, {s(SRD_DBG,4)}, 0 offset:{DB_MI} sc1
    s_mov_b64 exec, -1
    """)
    k.label(nmi)
    n31 = k.uid('n31')
    k(f"s_cmp_lg_u32 {s(S_T)}, 31")
    k(f"s_cbranch_scc1 {n31}")
    wait_dbg(k, ln=False)
    k(f"""
    s_barrier
    s_lshl_b32 s49, {s(S_X)}, 5
    s_add_u32 s49, s49, {s(S_WAVE)}
    s_lshl_b32 s49, s49, 2
    s_add_u32 s49, s49, {WS_SYNC+SY_FLAG+FL_FF - 256 + 112}
    v_mov_b32 v6, 64
    buffer_store_dword v6, off, {s(SRD_WS,4)}, s49 sc1
    """)
    k.label(n31)
    role_gemm1(k, fused=True)
    att = k.uid('att')
    k(f"""
    s_sub_u32 s6, {s(S_X)}, 2
    s_cmp_ge_u32 {s(S_T)}, 20
    s_cbranch_scc1 {att}
    """)
    work.role_out(k, 6, S_T, fused=True)
    stamp(k, 4, 6)
    k("s_endpgm")
    k.label(att)
    k(f"""
    s_sub_u32 s7, 31, {s(S_T)}
    s_mul_i32 s7, s7, 6
    s_add_u32 s6, s6, s7
    s_cmp_ge_u32 s6, 64
    s_cbranch_scc1 {ex}
    """)
    work.role_att(k, 6, fused=True)
    stamp(k, 4, 6)
    epilogue(k)
    return k

if __name__ == '__main__':
    if DEV:
        variants = eval(open('fvariants.txt').read())
        ks = []
        for n, d in variants.items():
            P = dict(team3.TP); P.update(d)
            ks.append(build(f"f{n}_kernel", P))
        emit(ks, 'dev.s')
    else:
        P = dict(team3.TP); P.update(eval(sys.argv[2]) if len(sys.argv) > 2 else {})
        k = build(NAME + "_kernel", P)
        n = k.pad(); wn = k.lint()
        print(k.count(), n, len(wn))
        open(sys.argv[1] if len(sys.argv) > 1 else 'cdna_kernels/' + NAME + '.s', 'w').write("; @launch grid=(256,1,1) block=(256,1,1) lds=163840\n" + '.amdgcn_target "amdgcn-amd-amdhsa--gfx950"\n' + kernel_block(k.name, k.text()))
```

```python
import sys
from asmlib import *
from cfg import *

S_WG = 2
EARLY = 1
OPT = dict(xn='sc1', o='sc1', att='sc1')
HOLD = [0]
S_WAVE = 3
S_X = 4
S_T = 5
SRD_WS = 8
SRD_A = 12
SRD_B = 16
SRD_C = 20
SRD_DBG = 24
KA = 64
KA_X, KA_MEM0, KA_WQ, KA_WK, KA_WV, KA_WO, KA_W1, KA_B1, KA_W2, KA_OUT, KA_DBG, KA_WS = 64, 66, 68, 70, 72, 74, 80, 82, 84, 86, 88, 90
V_LANE = 0

def srd(k, dst, ka, size):
    k(f"s_mov_b32 {s(dst)}, {s(ka)}")
    k(f"s_and_b32 {s(dst+1)}, {s(ka+1)}, 0xffff")
    k(f"s_mov_b32 {s(dst+2)}, {size}")
    k(f"s_mov_b32 {s(dst+3)}, 0x20000")

def prologue(k, ngrid=256):
    k(f"""
    s_load_dwordx16 s[64:79], s[0:1], 0
    s_load_dwordx8 s[80:87], s[0:1], 64
    s_load_dwordx4 s[88:91], s[0:1], 96
    v_lshrrev_b32 v1, 6, v0
    v_and_b32 v0, 63, v0
    v_readfirstlane_b32 {s(S_WAVE)}, v1
    s_and_b32 {s(S_X)}, {s(S_WG)}, 7
    s_lshr_b32 {s(S_T)}, {s(S_WG)}, 3
    s_waitcnt lgkmcnt(0)
    """)
    srd(k, SRD_WS, KA_WS, WS_SIZE)
    srd(k, SRD_DBG, KA_DBG, 256)
    k(f"s_cmp_ge_u32 {s(S_WG)}, {ngrid}")
    k(f"s_cbranch_scc1 {k.name}_exit")

STAMPS = True
WS_STAMP = 0x6000000
def stamp(k, idx, vt=254):
    if not STAMPS: return
    k(f"""
    s_memrealtime s[92:93]
    s_lshl_b32 s94, {s(S_WG)}, 10
    s_lshl_b32 s95, {s(S_WAVE)}, 8
    s_add_u32 s94, s94, s95
    s_add_u32 s94, s94, {WS_STAMP + 4*idx}
    s_waitcnt lgkmcnt(0)
    v_mov_b32 {v(vt)}, s92
    buffer_store_dword {v(vt)}, off, {s(SRD_WS,4)}, s94
    s_memtime s[92:93]
    s_waitcnt lgkmcnt(0)
    v_mov_b32 {v(vt+1)}, s92
    buffer_store_dword {v(vt+1)}, off, {s(SRD_WS,4)}, s94 offset:128
    """)

def epilogue(k):
    k.label(f"{k.name}_exit")
    k("s_endpgm")

def xsum_g(k, x, t):
    k(f"v_mov_b32 {v(t)}, {v(x)}")
    k(f"v_permlane32_swap_b32 {v(x)}, {v(t)}")
    k(f"v_add_f32 {v(x)}, {v(x)}, {v(t)}")
    k(f"v_mov_b32 {v(t)}, {v(x)}")
    k(f"v_permlane16_swap_b32 {v(x)}, {v(t)}")
    k(f"v_add_f32 {v(x)}, {v(x)}, {v(t)}")

def rbf(k, x):
    k(f"v_cvt_pk_bf16_f32 {v(x)}, {v(x)}, {v(x)}")
    k(f"v_lshlrev_b32 {v(x)}, 16, {v(x)}")

def role_ln(k, s_tile, fused=False):
    srd(k, SRD_A, KA_X, 2048 * 1280)
    RAW = 16; F = 96
    k(f"""
    v_and_b32 v1, 15, v0
    v_lshrrev_b32 v2, 4, v0
    v_mul_u32_u24 v1, 1280, v1
    v_lshl_add_u32 v1, v2, 4, v1
    s_mul_i32 s30, {s(s_tile)}, 20480
    v_lshlrev_b32 v2, 4, v0
    """)
    for ks in range(20):
        k(f"buffer_load_dwordx4 {v(RAW+4*ks,4)}, v1, {s(SRD_A,4)}, s30 offen offset:{64*ks}")
    k(f"""
    s_lshr_b32 s31, {s(s_tile)}, 1
    s_mul_i32 s31, s31, 40960
    s_and_b32 s32, {s(s_tile)}, 1
    s_lshl_b32 s32, s32, 10
    s_add_u32 s31, s31, s32
    s_add_u32 s31, s31, {WS_XN}
    v_mov_b32 v4, 0
    v_mov_b32 v5, 0
    v_mov_b32 v6, 0
    v_mov_b32 v7, 0
    """)
    for ks in range(20):
        k(f"s_waitcnt vmcnt({19-ks})")
        for j in range(4):
            rr = RAW + 4*ks + j; f = F + 8*ks + 2*j
            k(f"v_lshlrev_b32 {v(f)}, 16, {v(rr)}")
            k(f"v_and_b32 {v(f+1)}, 0xffff0000, {v(rr)}")
        for j in range(4):
            f = F + 8*ks + 2*j
            acc = 4 + 2*(j & 1)
            k(f"v_pk_add_f32 {v(acc,2)}, {v(acc,2)}, {v(f,2)}")
    k("v_pk_add_f32 v[4:5], v[4:5], v[6:7]")
    k("v_add_f32 v4, v4, v5")
    xsum_g(k, 4, 5)
    k(f"v_mul_f32 v4, {float_hex(1.0/640)}, v4")
    k("v_mov_b32 v5, v4")
    k("v_mov_b32 v8, 0\nv_mov_b32 v9, 0\nv_mov_b32 v10, 0\nv_mov_b32 v11, 0")
    for j in range(80):
        f = F + 2*j
        t = 12 + 2*(j & 1)
        acc = 8 + 2*(j & 1)
        k(f"v_pk_add_f32 {v(t,2)}, {v(f,2)}, v[4:5] neg_lo:[0,1] neg_hi:[0,1]")
        k(f"v_pk_fma_f32 {v(acc,2)}, {v(t,2)}, {v(t,2)}, {v(acc,2)}")
    k("v_pk_add_f32 v[8:9], v[8:9], v[10:11]")
    k("v_add_f32 v8, v8, v9")
    xsum_g(k, 8, 9)
    k(f"v_mul_f32 v8, {float_hex(1.0/640)}, v8")
    rbf(k, 8)
    k(f"v_add_f32 v8, {float_hex(1e-5)}, v8")
    rbf(k, 8)
    k("v_sqrt_f32 v8, v8")
    rbf(k, 8)
    k("v_rcp_f32 v8, v8")
    rbf(k, 4)
    k("v_mov_b32 v5, v4")
    k("v_mov_b32 v9, v8")
    for ks in range(20):
        for j in range(4):
            f = F + 8*ks + 2*j; o = RAW + 4*ks + j
            k(f"v_pk_add_f32 {v(f,2)}, {v(f,2)}, v[4:5] neg_lo:[0,1] neg_hi:[0,1]")
            k(f"v_cvt_pk_bf16_f32 {v(o)}, {v(f)}, {v(f+1)}")
            k(f"v_lshlrev_b32 {v(f)}, 16, {v(o)}")
            k(f"v_and_b32 {v(f+1)}, 0xffff0000, {v(o)}")
            k(f"v_pk_mul_f32 {v(f,2)}, {v(f,2)}, v[8:9]")
            k(f"v_cvt_pk_bf16_f32 {v(o)}, {v(f)}, {v(f+1)}")
        if ks % 2 == 0 and ks:
            k("s_add_u32 s31, s31, 4096")
        k(f"buffer_store_dwordx4 {v(RAW+4*ks,4)}, v2, {s(SRD_WS,4)}, s31 offen offset:{2048*(ks%2)} sc1")

import struct
def float_hex(x):
    return hex(struct.unpack('<I', struct.pack('<f', x))[0])

def load_weights(k, pieces, srd_w, v_goff, v_lds, lds_base_s, nslots, s_tmp, group=8):
    n = len(pieces)
    def issue(i):
        (sb, c), _ = pieces[i]
        slot = i % nslots
        k(f"s_add_u32 {s(s_tmp)}, {s(sb)}, {c}")
        k(f"s_add_u32 m0, {s(lds_base_s)}, {slot*1024}")
        k(f"buffer_load_dwordx4 {v(v_goff)}, {s(srd_w,4)}, {s(s_tmp)} offen lds")
    issued = 0
    while issued < min(n, nslots):
        issue(issued); issued += 1
    done = 0
    while done < n:
        g = min(group, n - done)
        k(f"s_waitcnt vmcnt({issued - done - g})")
        for i in range(done, done + g):
            slot = i % nslots
            for (reg, off) in pieces[i][1]:
                k(f"ds_read_b64_tr_b16 {r(reg,2)}, {v(v_lds)} offset:{slot*1024+off}")
        done += g
        if issued < n:
            k("s_waitcnt lgkmcnt(0)")
            for i in range(issued, min(n, issued + g)):
                issue(i)
            issued = min(n, issued + g)
    k("s_waitcnt lgkmcnt(0)")

def wait_dbg(k, ln, pre=False):
    top = k.uid('dw'); ok = k.uid('dwok'); iok = k.uid('dwi')
    k(f"""
    s_cmp_lg_u32 {s(S_WAVE)}, 0
    s_cbranch_scc1 {ok}
    s_mov_b32 s52, 0
    """)
    if pre:
        k(f"s_cmp_eq_u32 s50, {N_INIT}")
        k(f"s_cbranch_scc1 {iok}")
    srd(k, 56, KA_DBG, 256)
    k.label(top)
    k(f"""
    buffer_load_dword v6, off, s[56:59], 0 offset:{DB_INIT} sc1
    s_waitcnt vmcnt(0)
    v_readfirstlane_b32 s50, v6
    s_cmp_eq_u32 s50, {N_INIT}
    s_cbranch_scc1 {iok}
    s_add_u32 s52, s52, 1
    s_cmp_gt_u32 s52, {SPIN_MAX}
    s_cbranch_scc1 {ok}
    s_sleep 8
    s_branch {top}
    """)
    k.label(iok)
    if ln:
        t2 = k.uid('dl')
        k(f"""
        v_mbcnt_lo_u32_b32 v7, -1, 0
        v_min_u32 v7, 31, v7
        v_lshlrev_b32 v7, 2, v7
        s_lshl_b32 s51, {s(S_X)}, 8
        s_add_u32 s51, s51, {WS_SYNC+SY_FLAG+FL_LN-512}
        """)
        k.label(t2)
        k(f"""
        buffer_load_dword v6, v7, {s(SRD_WS,4)}, s51 offen sc1
        s_waitcnt vmcnt(0)
        v_cmp_eq_u32 vcc, 0, v6
        s_cbranch_vccz {ok}
        s_add_u32 s52, s52, 1
        s_cmp_gt_u32 s52, {SPIN_MAX}
        s_cbranch_scc1 {ok}
        s_sleep 4
        s_branch {t2}
        """)
    k.label(ok)

G1_ACC = 16; G1_X = 48; G1_PK = 80; G1_BIAS = 96; G1_T = 112
def g1_wreg(ks, blk, t):
    f = (ks * 2 + blk) * 2 + t
    return 256 + 4 * f if f < 64 else 192 + 4 * (f - 64)

def role_gemm1(k, fused=False):
    L = k.uid
    l_ffn = L('g1ffn'); l_common = L('g1common'); l_done = L('g1done'); l_fin = L('g1fin')
    k(f"s_cmp_ge_u32 {s(S_T)}, 31")
    k(f"s_cbranch_scc1 {l_done}")
    k(f"s_sub_u32 s33, {s(S_X)}, 2")
    k(f"s_cmp_ge_u32 {s(S_T)}, 24")
    k(f"s_cbranch_scc1 {l_ffn}")
    k(f"""
    s_mul_i32 s34, {s(S_T)}, 43
    s_lshr_b32 s34, s34, 7          ; t/3
    s_mul_i32 s35, s34, 3
    s_sub_u32 s26, {s(S_T)}, s35    ; replica
    s_mov_b32 s27, 3
    s_lshl_b32 s35, s33, 3
    s_add_u32 s34, s34, s35         ; slice 0..47
    s_lshr_b32 s28, s34, 4          ; kind
    s_and_b32 s34, s34, 15
    s_lshl_b32 s34, s34, 2
    s_add_u32 s34, s34, {s(S_WAVE)}
    s_lshl_b32 s30, s34, 7
    s_mov_b32 s29, 8192
    s_lshr_b32 s31, s34, 1
    s_mul_i32 s31, s31, {(1 << HS) + SKEW[0]}
    s_and_b32 s35, s34, 1
    s_lshl_b32 s35, s35, 12
    s_add_u32 s31, s31, s35
    s_lshl_b32 s35, s28, 13
    s_add_u32 s31, s31, s35
    s_add_u32 s31, s31, {WS_Q}
    s_mov_b32 s32, {1 << SS}
    s_add_u32 s35, s28, 2
    s_cmp_ge_u32 s35, 3
    s_cselect_b32 s49, 3, 0
    s_sub_u32 s35, s35, s49         ; K0 V1 Q2
    s_mul_i32 s35, s35, 3
    s_add_u32 s35, s35, s26
    s_lshl_b32 s35, s35, 3
    s_and_b32 s49, s34, 1
    s_lshl_b32 s49, s49, 2
    s_add_u32 s35, s35, s49
    s_lshr_b32 s49, s34, 1
    s_lshl_b32 s49, s49, 8
    s_add_u32 s49, s49, s35
    s_add_u32 s49, s49, {WS_SYNC+SY_FLAG+FL_G1}
    s_cmp_eq_u32 s28, 0
    s_cselect_b32 {s(SRD_A)}, {s(KA_WQ)}, {s(KA_WK)}
    s_cselect_b32 {s(SRD_A+1)}, {s(KA_WQ+1)}, {s(KA_WK+1)}
    s_cmp_eq_u32 s28, 2
    s_cselect_b32 {s(SRD_A)}, {s(KA_WV)}, {s(SRD_A)}
    s_cselect_b32 {s(SRD_A+1)}, {s(KA_WV+1)}, {s(SRD_A+1)}
    s_and_b32 {s(SRD_A+1)}, {s(SRD_A+1)}, 0xffff
    s_mov_b32 {s(SRD_A+2)}, {640*8192}
    s_mov_b32 {s(SRD_A+3)}, 0x20000
    s_branch {l_common}
    """)
    k.label(l_ffn)
    k(f"""
    s_mov_b32 s26, s33
    s_mov_b32 s27, 6
    s_mov_b32 s28, 3
    s_sub_u32 s34, {s(S_T)}, 24
    s_lshl_b32 s34, s34, 2
    s_add_u32 s34, s34, {s(S_WAVE)}
    s_lshl_b32 s49, s33, 5
    s_add_u32 s49, s49, s34
    s_lshl_b32 s49, s49, 2
    s_add_u32 s49, s49, {WS_SYNC+SY_FLAG+FL_FF}
    s_min_u32 s34, s34, 26
    s_lshl_b32 s30, s34, 7
    s_mov_b32 s29, 3456
    s_lshl_b32 s31, s34, 11
    s_add_u32 s31, s31, {WS_ACT}
    s_mov_b32 s32, {108*1024}
    """)
    srd(k, SRD_A, KA_W1, 640 * 3456)
    k.label(l_common)
    srd(k, SRD_B, KA_B1, 3456)
    def hold():
        go = L('hold'); top = L('holdp'); bar = L('holdb')
        k(f"""
        s_sub_u32 s50, s28, 1
        s_cmp_lt_u32 s50, 2
        s_cbranch_scc1 {go}
        """)
        wait_dbg(k, ln=False)
        k(f"""
        s_cmp_lg_u32 {s(S_WAVE)}, 0
        s_cbranch_scc1 {bar}
        v_lshlrev_b32 v7, 2, v0
        s_mov_b32 s51, {WS_SYNC+SY_FLAG+AN[0]}
        """)
        k.label(top)
        k(f"""
        buffer_load_dword v6, v7, {s(SRD_WS,4)}, s51 offen sc1
        s_waitcnt vmcnt(0)
        v_cmp_ne_u32 vcc, 0, v6
        s_bcnt1_i32_b64 s50, vcc
        s_cmp_ge_u32 s50, {HOLD[1]}
        s_cbranch_scc1 {bar}
        s_add_u32 s52, s52, 1
        s_cmp_gt_u32 s52, {SPIN_MAX}
        s_cbranch_scc1 {bar}
        s_sleep 32
        s_branch {top}
        """)
        k.label(bar)
        k("s_barrier")
        k.label(go)
    if fused and HOLD[0] == 1: hold()
    stamp(k, 0, 6)
    k(f"""
    v_lshrrev_b32 v1, 4, v0
    v_bfe_u32 v2, v0, 2, 2
    v_lshl_add_u32 v2, v1, 3, v2
    v_mul_lo_u32 v2, v2, s29
    v_and_b32 v3, 3, v0
    v_lshl_add_u32 v2, v3, 4, v2
    s_mul_i32 s36, {s(S_WAVE)}, 40960
    v_lshlrev_b32 v3, 4, v0              ; v3 = lane*16
    v_add_u32 v4, s36, v3
    v_lshlrev_b32 v5, 4, v1
    buffer_load_dwordx4 v[8:11], v5, {s(SRD_B,4)}, s30 offen
    buffer_load_dwordx4 v[12:15], v5, {s(SRD_B,4)}, s30 offen offset:64
    s_waitcnt vmcnt(0)
    """)
    for blk in range(2):
        for j in range(4):
            k(f"v_lshlrev_b32 {v(G1_BIAS+8*blk+2*j)}, 16, {v(8+4*blk+j)}")
            k(f"v_and_b32 {v(G1_BIAS+8*blk+2*j+1)}, 0xffff0000, {v(8+4*blk+j)}")
    if fused and OPT.get('touch'):
        k(f"buffer_load_dword v176, off, {s(SRD_WS,4)}, s31 sc1")
        k(f"buffer_load_dword v176, off, {s(SRD_WS,4)}, 0 sc1")
    k("s_lshl_b32 s38, s29, 2")
    k("s_mul_i32 s39, s29, 28")
    k("s_mov_b32 s37, s30")
    pieces = []
    for ks in range(20):
        for u in range(2):
            for blk in range(2):
                pieces.append((ks, u, blk))
    nsl = 40
    def issue(i):
        ks, u, blk = pieces[i]
        if blk == 0 and i > 0:
            k(f"s_add_u32 s37, s37, {'s38' if u == 1 else 's39'}")
        k(f"s_add_u32 m0, s36, {(i % nsl)*1024 - 64*blk}")
        k(f"buffer_load_dwordx4 v2, {s(SRD_A,4)}, s37 offen offset:{64*blk} lds")
    issued = 0
    for i in range(nsl): issue(i)
    issued = nsl; done = 0
    while done < 80:
        k(f"s_waitcnt vmcnt({issued - done - 8})")
        for i in range(done, done + 8):
            ks, u, blk = pieces[i]
            for t in range(2):
                k(f"ds_read_b64_tr_b16 {r(g1_wreg(ks,blk,t)+2*u,2)}, v4 offset:{(i%nsl)*1024+8*t}")
        done += 8
        if fused and done == 64: k(f"s_load_dword s50, {s(KA_DBG,2)}, {DB_INIT}")
        if issued < 80:
            k("s_waitcnt lgkmcnt(0)")
            for i in range(issued, issued + 8): issue(i)
            issued += 8
    k("s_waitcnt lgkmcnt(0)")
    stamp(k, 1, 6)
    if fused: wait_dbg(k, ln=True, pre=True)
    if fused and HOLD[0] == 2: hold()
    k("s_barrier")
    def dma_xn(s_seg, s_slot):
        k(f"s_min_u32 s44, {s(s_seg)}, 63")
        k(f"s_mul_i32 s44, s44, 40960")
        k(f"s_add_u32 s44, s44, s45")
        k(f"s_add_u32 m0, {s(s_slot)}, s46")
        for i in range(10):
            if i in (4, 8):
                k("s_add_u32 s44, s44, 4096")
                k("s_add_u32 m0, m0, 4096")
            k(f"buffer_load_dwordx4 v3, {s(SRD_WS,4)}, s44 offen offset:{1024*(i%4)} {OPT['xn']} lds")
    k(f"""
    s_mul_i32 s46, {s(S_WAVE)}, 10240
    s_add_u32 s45, s46, {WS_XN}
    s_mov_b32 s40, s26
    s_mov_b32 s41, 0
    s_mov_b32 s43, 40960
    s_add_u32 s42, s26, s27
    """)
    dma_xn(40, 41)
    dma_xn(42, 43)
    k("s_add_u32 s42, s42, s27")
    k("s_mov_b32 s43, 81920")
    k("s_waitcnt vmcnt(10)")
    loops = {}
    for kind in ('qk', 'v', 'ffn'):
        loops[kind] = L('g1loop_' + kind)
    k("s_cmp_eq_u32 s28, 2")
    k(f"s_cbranch_scc1 {loops['v']}")
    k("s_cmp_eq_u32 s28, 3")
    k(f"s_cbranch_scc1 {loops['ffn']}")
    for kind in ('qk', 'v', 'ffn'):
        k.label(loops[kind])
        k("s_barrier")
        dma_xn(42, 43)
        k("v_add_u32 v5, s41, v3")
        NB = 4
        def rd(ks):
            for tt in range(2):
                k(f"ds_read_b128 {v(G1_X + 8*(ks % NB) + 4*tt, 4)}, v5 offset:{ks*2048 + tt*1024}")
        for ks in range(NB - 1): rd(ks)
        for ks in range(20):
            if ks + NB - 1 < 20:
                rd(ks + NB - 1)
                k(f"s_waitcnt lgkmcnt({2*(NB-1)})")
            else:
                k(f"s_waitcnt lgkmcnt({2*(19-ks)})")
            for blk in range(2):
                for t in range(2):
                    for tt in range(2):
                        acc = G1_ACC + 4 * ((blk * 2 + t) * 2 + tt)
                        w = r(g1_wreg(ks, blk, t), 4)
                        x = v(G1_X + 8*(ks % NB) + 4*tt, 4)
                        if ks == 0:
                            c = v(G1_BIAS + 8*blk + 4*t, 4) if kind == 'ffn' else '0'
                        else:
                            c = v(acc, 4)
                        if kind == 'v':
                            k(f"v_mfma_f32_16x16x32_bf16 {v(acc,4)}, {x}, {w}, {c}")
                        else:
                            k(f"v_mfma_f32_16x16x32_bf16 {v(acc,4)}, {w}, {x}, {c}")
        k("s_mul_i32 s47, s40, s32")
        k("s_add_u32 s47, s47, s31")
        if kind == 'ffn':
            k(f"s_add_u32 s48, s47, {54*1024}")
            LOG2E = float_hex(1.4426950408889634)
            for i in range(32):
                h = G1_ACC + i; t0 = G1_T + 2*i; t1 = t0 + 1
                k(f"v_mul_f32 {v(t0)}, {LOG2E}, {v(h)}")
                k(f"v_min_f32 {v(t0)}, {float_hex(30.0)}, {v(t0)}")
                k(f"v_exp_f32 {v(t0)}, {v(t0)}")
            for i in range(32):
                h = G1_ACC + i; t0 = G1_T + 2*i; t1 = t0 + 1
                k(f"v_add_f32 {v(t1)}, 2.0, {v(t0)}")
                k(f"v_mul_f32 {v(t0)}, {v(t0)}, {v(t1)}")
                k(f"v_add_f32 {v(t1)}, 2.0, {v(t0)}")
                k(f"v_rcp_f32 {v(t1)}, {v(t1)}")
                k(f"v_mul_f32 {v(h)}, {v(h)}, {v(t0)}")
            for i in range(32):
                h = G1_ACC + i; t1 = G1_T + 2*i + 1
                k(f"v_mul_f32 {v(h)}, {v(h)}, {v(t1)}")
        for blk in range(2):
            for o in range(2):
                pk = G1_PK + 4 * (blk * 2 + o)
                for i2 in range(2):
                    if kind == 'v':
                        acc = G1_ACC + 4 * ((blk * 2 + o) * 2 + i2)
                    else:
                        acc = G1_ACC + 4 * ((blk * 2 + i2) * 2 + o)
                    k(f"v_cvt_pk_bf16_f32 {v(pk+2*i2)}, {v(acc)}, {v(acc+1)}")
                    k(f"v_cvt_pk_bf16_f32 {v(pk+2*i2+1)}, {v(acc+2)}, {v(acc+3)}")
                if kind == 'ffn':
                    k(f"buffer_store_dwordx4 {v(pk,4)}, v3, {s(SRD_WS,4)}, {'s47' if o == 0 else 's48'} offen offset:{1024*blk} sc1")
                else:
                    k(f"buffer_store_dwordx4 {v(pk,4)}, v3, {s(SRD_WS,4)}, s47 offen offset:{(blk*2+o)*1024} sc1")
        if fused: k("v_mov_b32 v6, s40")
        k(f"""
        s_add_u32 s40, s40, s27
        s_add_u32 s42, s42, s27
        s_mov_b32 s43, s41
        s_add_u32 s41, s41, 40960
        s_cmp_eq_u32 s41, {3*40960}
        s_cselect_b32 s41, 0, s41
        """)
        if fused and kind != 'ffn' and EARLY:
            ne = L('g1ne')
            k(f"""
            s_cmp_ge_u32 s40, 9
            s_cbranch_scc1 {ne}
            v_mov_b32 v6, s40
            s_waitcnt vmcnt(0)
            """)
            if len(HOLD) > 2:
                top = L('h3')
                k(f"""
                buffer_store_dword v6, off, {s(SRD_WS,4)}, s49 sc1
                s_cmp_lg_u32 {s(S_WAVE)}, 0
                s_cbranch_scc1 {ne}
                s_cmp_lt_u32 s40, {HOLD[2]}
                s_cbranch_scc1 {ne}
                v_lshlrev_b32 v7, 2, v0
                s_mov_b32 s51, {WS_SYNC+SY_FLAG+AN[0]}
                """)
                k.label(top)
                k(f"""
                s_sleep 32
                buffer_load_dword v8, v7, {s(SRD_WS,4)}, s51 offen sc1
                s_waitcnt vmcnt(0)
                v_cmp_ne_u32 vcc, 0, v8
                s_bcnt1_i32_b64 s50, vcc
                s_add_u32 s52, s52, 1
                s_cmp_gt_u32 s52, {SPIN_MAX}
                s_cbranch_scc1 {ne}
                s_cmp_lt_u32 s50, {HOLD[1]}
                s_cbranch_scc1 {top}
                """)
            k.label(ne)
        k("s_cmp_lt_u32 s40, 64")
        k("s_waitcnt vmcnt(14)")
        if fused and kind != 'ffn': k(f"buffer_store_dword v6, off, {s(SRD_WS,4)}, s49 sc1")
        k(f"s_cbranch_scc1 {loops[kind]}")
        k(f"s_branch {l_fin}")
    k.label(l_fin)
    if fused:
        k("v_mov_b32 v6, 64")
        k("s_waitcnt vmcnt(0)")
        k(f"buffer_store_dword v6, off, {s(SRD_WS,4)}, s49 sc1")
    k.label(l_done)
    stamp(k, 2, 6)

def build_dev():
    kernels = []
    k = Kernel("ln_kernel"); prologue(k)
    k(f"s_cmp_lt_u32 {s(S_X)}, 2")
    k(f"s_cbranch_scc1 {k.name}_exit")
    k(f"s_cmp_lg_u32 {s(S_WAVE)}, 0")
    k(f"s_cbranch_scc1 {k.name}_exit")
    k(f"s_sub_u32 s6, {s(S_X)}, 2")
    k(f"s_mul_i32 s7, {s(S_T)}, 6")
    k(f"s_add_u32 s6, s6, s7")
    k(f"s_cmp_ge_u32 s6, 128")
    k(f"s_cbranch_scc1 {k.name}_exit")
    role_ln(k, 6)
    epilogue(k); kernels.append(k)
    k = Kernel("g1_kernel"); prologue(k)
    k(f"s_cmp_lt_u32 {s(S_X)}, 2")
    k(f"s_cbranch_scc1 g1_idle")
    role_gemm1(k)
    k(f"s_branch {k.name}_exit")
    k.label("g1_idle")
    stamp(k, 0, 6)
    for part in (1, 2):
        k("s_mov_b32 s30, 0")
        k.label(f"g1_idle_l{part}")
        k("s_nop 15\ns_nop 15\ns_add_u32 s30, s30, 1\ns_cmp_lt_u32 s30, 300")
        k(f"s_cbranch_scc1 g1_idle_l{part}")
        stamp(k, part, 6)
    epilogue(k); kernels.append(k)
    return kernels

def emit(kernels, path):
    hdr = ""
    for k in kernels:
        hdr += f"; @launch kernel={k.name} grid=(256,1,1) block=(256,1,1) lds=163840\n"
    hdr += '.amdgcn_target "amdgcn-amd-amdhsa--gfx950"\n'
    body = ""
    for k in kernels:
        n = k.pad()
        w = k.lint()
        print(f"{k.name}: {k.count()} instrs, {n} pad states, {len(w)} lint warnings")
        for x in w[:6]: print("   LINT", str(x)[:200])
        body += kernel_block(k.name, k.text())
    open(path, 'w').write(hdr + body)

if __name__ == '__main__':
    emit(build_dev(), sys.argv[1] if len(sys.argv) > 1 else 'dev.s')
```

```python
import sys, math
from gen import *

LK, LL, LR, LW, LWS = 0, 8192, 12288, 16384, 36864
ACC = 16; A = 40; PP = 60; WB = 96
AQ, AK, AV = ACC, ACC + 8, ACC + 16
SRD_WO = 96
V16, VIDX, VFW, V8, VOW, VPS, VPL, VPUB, VLW, VC0, VQ, VSEL, VDUM = 0, 1, 2, 3, 4, 5, 6, 7, 8, 9, 13, 14, 15
HINT_OFF = 16384 + 6144

LGRP = [('L', 0, 1), ('L', 1, 2), ('L', 2, 2), ('L', 3, 2), ('L', 4, 2), ('R', 3, 1), ('R', 4, 1), ('R', 0, 2)]
LKEYS = [g + (t,) for g in LGRP for t in range(2)] + [('L', 0, 2, 0), ('L', 1, 1, 1)]
WLDS = {}
WREG = {}
for key in [(l, i, m, t) for l in 'LR' for i in range(5) for m in range(3) for t in range(2)] + [('O', j, ke) for j in range(5) for ke in range(2)]:
    if key not in LKEYS: WREG[key] = WB + 8 * len(WREG)
assert len(WREG) == 52
WS_ST2 = 0x7000000

def delay(k, n):
    n = n // 4
    while n > 0:
        t = min(n, 16); k(f"s_nop {t-1}"); n -= t

def calib(k, P, dst, mid=None):
    k("s_memtime s[38:39]")
    for i in range(11):
        k(f"s_memrealtime s[{64+2*i}:{65+2*i}]")
        k("s_nop 0")
    k("s_waitcnt lgkmcnt(0)")
    if mid: k(mid)
    k(f"s_add_u32 s{dst}, s64, s66")
    for i in range(2, 11): k(f"s_add_u32 s{dst}, s{dst}, s{64+2*i}")
    k(f"s_lshl_b32 s{dst}, s{dst}, 1")
    k(f"s_sub_u32 s{dst}, s{dst}, s38")

def role_team(k, P, fused=False, confirm=None):
    b = S_X; h = S_T; w = S_WAVE
    lst = P.get('lst', '')
    last = k.uid('last')
    srd(k, SRD_A, KA_WQ, 640 * 8192); srd(k, SRD_B, KA_WK, 640 * 8192); srd(k, SRD_C, KA_WV, 640 * 8192)
    srd(k, SRD_WO, KA_WO, 4096 * 1280)
    SR = [SRD_A, SRD_B, SRD_C]
    k(f"""
    v_lshrrev_b32 v16, 3, v0            ; rho
    v_and_b32 v17, 7, v0                ; cc
    v_and_b32 v18, 1, v16
    v_lshlrev_b32 v20, 2, v18           ; 4(rho&1)
    v_and_b32 v19, 2, v16
    v_add_u32 v20, v20, v19             ; + 2((rho>>1)&1)
    v_lshrrev_b32 v21, 2, v16
    v_add_u32 v20, v20, v21             ; + (rho>>2)
    v_lshlrev_b32 v20, 13, v20
    v_lshlrev_b32 v22, 1, v19
    v_xor_b32 v22, v22, v17
    v_lshl_add_u32 v20, v22, 4, v20
    v_lshl_add_u32 v21, v21, 2, v18
    v_lshl_add_u32 v21, v19, 2, v21     ; + 8((rho>>1)&1)
    v_mul_u32_u24 v21, 1280, v21
    v_lshl_add_u32 v21, v17, 4, v21
    s_mul_i32 s37, {s(w)}, {LWS}
    s_add_u32 s37, s37, {LW}
    s_lshl_b32 s38, {s(h)}, 8
    s_lshr_b32 s39, {s(w)}, 1
    s_lshl_b32 s39, s39, 7
    s_add_u32 s38, s38, s39
    s_mul_i32 s39, {s(b)}, {5*64*8192}
    s_add_u32 s50, s38, s39
    s_sub_u32 s39, {5*64*8192}, s39
    s_add_u32 s51, s38, s39
    s_lshl_b32 s39, {s(w)}, 19
    s_add_u32 s40, s50, s39             ; L type A
    s_add_u32 s42, s51, s39             ; R type A
    s_xor_b32 s39, s39, {2 << 19}
    s_add_u32 s41, s50, s39             ; L type B
    s_add_u32 s43, s51, s39             ; R type B
    s_bitcmp1_b32 {s(w)}, 0
    s_cselect_b32 s44, s51, s50
    s_add_u32 s44, s44, {4 << 19}       ; type C
    s_mul_i32 s45, {s(h)}, 163840
    s_mul_i32 s39, {s(b)}, 640
    s_add_u32 s45, s45, s39
    s_mul_i32 s46, {s(w)}, {32*1280}
    s_add_u32 s46, s46, s45
    s_add_u32 s46, s46, 512
    s_lshl_b32 s39, {s(w)}, 7
    s_add_u32 s45, s45, s39
    """)
    VOWN, VPAR, VEVN, VODD, VWO, VT4A, VT4B = 23, 24, 25, 26, 27, 28, 29
    def qkv_batch(sb, m, k0, a0, k1, a1):
        dm = [(SR[m], sb, 8*j*8192, 20) for j in range(8)]
        rd = []
        for kk, va in ((k0, a0), (k1, a1)):
            for t in range(2):
                for u in range(2):
                    for vv in range(2): rd.append((kk + (m, t), 4*u + 2*vv, va, u*4096 + vv*1024 + 8*t))
        return dm, rd
    def wo_batch(ke):
        dm = [(SRD_WO, 45, (64*ke + 32*(j >> 2) + 16*((j >> 1) & 1) + 2*(j & 1)) * 1280, 21) for j in range(8)]
        rd = [(('O', j, ke), 4*u + 2*vv, VWO, u*4096 + vv*1024 + 8*j) for j in range(4) for u in range(2) for vv in range(2)]
        return dm, rd
    B = {}
    for m in range(3):
        B['LA', m] = qkv_batch(40, m, ('L', 0), VOWN, ('L', 2), VPAR)
        B['LB', m] = qkv_batch(41, m, ('L', 3), VOWN, ('L', 4), VPAR)
        B['RA', m] = qkv_batch(42, m, ('R', 0), VOWN, ('R', 2), VPAR)
        B['RB', m] = qkv_batch(43, m, ('R', 3), VOWN, ('R', 4), VPAR)
        B['C', m] = qkv_batch(44, m, ('L', 1), VEVN, ('R', 1), VODD)
    for ke in range(2): B['O', ke] = wo_batch(ke)
    nl = lambda x: len({r[0] for r in B[x][1] if r[0] in LKEYS})
    order = sorted(B, key=nl)
    NB = len(order)
    SPARE = 32768
    vq = []
    def issue(dm, ldsoff, tag):
        for j, (sr, sb, c, vg) in enumerate(dm):
            k(f"s_add_u32 s39, s{sb}, {c}")
            k(f"s_add_u32 m0, s37, {ldsoff + j*1024}")
            k(f"buffer_load_dwordx4 {v(vg)}, {s(sr,4)}, s39 offen lds")
            vq.append(tag)
    def vwait(tag):
        idx = max(i for i, t in enumerate(vq) if t == tag)
        k(f"s_waitcnt vmcnt({len(vq) - idx - 1})")
        del vq[:idx+1]
    issue([(SRD_WO, 46, (16*(j >> 1) + 2*(j & 1)) * 1280, 21) for j in range(4)], SPARE, 'o4')
    for n in range(4): issue(B[order[n]][0], n * 8192, n)
    stamp(k, 0, 30)
    if STAMPS: vq.extend(['st', 'st'])
    k(f"""
    v_lshrrev_b32 v16, 4, v0            ; g
    v_and_b32 v17, 15, v0               ; n
    v_bfe_u32 v18, v0, 1, 1
    v_mov_b32 {v(VIDX)}, 0x4444
    v_mul_u32_u24 v18, 0xaaaa, v18
    v_add_u32 {v(VIDX)}, {v(VIDX)}, v18
    s_lshl_b32 s35, {s(w)}, 10
    v_lshlrev_b32 {v(VFW)}, 5, v17
    v_lshl_add_u32 {v(VFW)}, v16, 3, {v(VFW)}
    v_add_u32 {v(VFW)}, s35, {v(VFW)}
    v_lshlrev_b32 {v(V8)}, 3, v0
    v_lshrrev_b32 v18, 1, v16
    v_lshlrev_b32 {v(VOW)}, 8, v18
    v_and_b32 v18, 1, v16
    v_lshl_add_u32 {v(VOW)}, v18, 5, {v(VOW)}
    v_lshrrev_b32 v18, 2, v17
    v_lshl_add_u32 {v(VOW)}, v18, 6, {v(VOW)}
    v_and_b32 v18, 1, v17
    v_lshl_add_u32 {v(VOW)}, v18, 4, {v(VOW)}
    v_bfe_u32 v18, v17, 1, 1
    v_xor_b32 v18, 1, v18
    v_lshl_add_u32 {v(VOW)}, v18, 11, {v(VOW)}
    s_lshl_b32 s36, {s(w)}, 9
    v_add_u32 {v(VOW)}, s36, {v(VOW)}
    v_and_b32 v18, 12, v17
    v_add_u32 v18, v18, v16
    v_lshlrev_b32 {v(VPS)}, 11, v18
    v_and_b32 v18, 3, v17
    v_lshl_add_u32 {v(VPS)}, v18, 4, {v(VPS)}
    v_bfe_u32 v19, v17, 1, 1
    v_lshlrev_b32 {v(VPUB)}, 5, v19
    v_and_b32 v19, 1, v17
    v_lshl_add_u32 {v(VPUB)}, v19, 3, {v(VPUB)}
    v_lshrrev_b32 v19, 1, v16
    v_lshl_add_u32 {v(VPUB)}, v19, 4, {v(VPUB)}
    v_mul_u32_u24 v22, 1280, v19
    v_and_b32 v19, 1, v16
    v_lshl_add_u32 {v(VPUB)}, v19, 2, {v(VPUB)}
    ; mem0 voff (v22) = p*1280 + (8a+i)*2
    v_lshl_add_u32 v18, v19, 3, v18
    v_lshl_add_u32 v22, v18, 1, v22
    v_bfe_u32 v18, v17, 3, 1
    v_lshlrev_b32 v18, 4, v18
    v_mov_b32 v19, 0x3c00
    v_lshlrev_b32 {v(VPL)}, v18, v19
    ; staging read addresses: rows part = (g>>1)*2048 + ((g&1)*4 + r)*128
    v_lshrrev_b32 v18, 1, v16
    v_lshlrev_b32 v19, 11, v18
    v_bfe_u32 v18, v0, 2, 3
    v_lshl_add_u32 v19, v18, 7, v19
    v_and_b32 v18, 3, v0                ; c
    v_lshl_add_u32 {v(VWO)}, v18, 5, v19
    v_add_u32 {v(VWO)}, s37, {v(VWO)}
    v_lshl_add_u32 {v(VT4A)}, v18, 3, v19
    s_lshl_b32 s38, {s(w)}, 5
    s_add_u32 s38, s38, {LW + SPARE}
    v_add_u32 {v(VT4A)}, s38, {v(VT4A)}
    v_add_u32 {v(VT4B)}, {2*LWS}, {v(VT4A)}
    v_lshl_add_u32 v19, v18, 4, v19
    v_bfe_u32 v18, v0, 3, 1             ; r>>1
    s_and_b32 s38, {s(w)}, 1
    v_xor_b32 v18, s38, v18
    v_lshl_add_u32 v19, v18, 6, v19
    v_add_u32 {v(VOWN)}, s37, v19
    s_xor_b32 s38, {s(w)}, 1
    s_mul_i32 s38, s38, {LWS}
    s_add_u32 s38, s38, {LW}
    v_add_u32 {v(VPAR)}, s38, v19
    v_min_u32 {v(VEVN)}, {v(VOWN)}, {v(VPAR)}
    v_max_u32 {v(VODD)}, {v(VOWN)}, {v(VPAR)}
    v_lshlrev_b32 {v(V16)}, 4, v0
    v_add_u32 {v(VLW)}, s37, {v(V16)}
    v_add_u32 {v(VC0)}, s35, {v(V16)}
    v_lshrrev_b32 {v(VQ)}, 2, {v(VC0)}
    v_xor_b32 {v(VC0+1)}, 0x400, {v(VC0)}
    v_xor_b32 {v(VC0+2)}, 0x800, {v(VC0)}
    v_xor_b32 {v(VC0+3)}, 0xc00, {v(VC0)}
    """)
    k(f"""
    s_mul_i32 s39, {s(b)}, {PART_GRP}
    s_add_u32 s39, s39, {WS_SYNC+SY_PART}
    s_lshl_b32 s100, {s(h)}, 6
    s_lshl_b32 s101, {s(w)}, 15
    s_add_u32 s100, s100, s101
    s_add_u32 s100, s100, s39
    s_lshl_b32 s28, {s(w)}, 5
    s_add_u32 s28, s28, {s(h)}           ; rho
    s_lshl_b32 s101, s28, 11
    s_add_u32 s101, s101, s39
    s_lshl_b32 s39, {s(b)}, 16
    s_add_u32 s29, s39, {WS_SYNC+SY_MEML}
    s_lshl_b32 s39, {s(b)}, 20
    s_add_u32 s30, s39, {WS_SYNC+SY_MEMR+8192*P.get('pol',0)}
    s_xor_b32 s39, s39, 0x100000
    s_add_u32 s31, s39, {WS_SYNC+SY_MEMR+8192*P.get('pol',0)}
    s_lshl_b32 s32, s28, 6
    s_mov_b32 s6, 0xf000f000
    s_mov_b32 s7, 0xf000f000
    """)
    def init_stores():
        k(f"""
        s_cmp_lt_u32 s28, 80
        s_cselect_b32 s56, -1, 0
        s_mov_b32 s57, s56
        s_mov_b32 s92, {s(KA_MEM0)}
        s_and_b32 s93, {s(KA_MEM0+1)}, 0xffff
        s_mov_b32 s94, 10240
        s_mov_b32 s95, 0x20000
        s_and_b32 s39, s28, 3
        s_mul_i32 s39, s39, 2560             ; g*2 rows
        s_lshr_b32 s38, s28, 2
        s_lshl_b32 s38, s38, 5               ; T*16 cols*2B
        s_add_u32 s39, s39, s38
        s_mul_i32 s38, {s(b)}, 640
        s_add_u32 s39, s39, s38
        s_and_b64 exec, s[6:7], s[56:57]
        buffer_load_ushort v16, v22, s[92:95], s39 offen
        buffer_load_ushort v17, v22, s[92:95], s39 offen offset:8
        s_mov_b64 exec, -1
        """)
        vq.extend(['m0', 'm0'])
        if fused:
            k(f"""
            s_add_u32 s38, s32, s29
            s_add_u32 s39, s32, s30
            v_mov_b32 v92, -1
            v_mov_b32 v93, -1
            v_mov_b32 v94, -1
            v_mov_b32 v95, -1
            v_lshrrev_b32 v18, 6, {v(V16)}      ; lane>>2
            v_and_b32 v19, 48, {v(V16)}
            v_lshl_add_u32 v18, v18, 13, v19
            s_add_u32 s34, s101, {PART_SLOT}
            s_mov_b64 exec, s[56:57]
            buffer_store_dwordx4 v[92:95], {v(V16)}, {s(SRD_WS,4)}, s101 offen sc1
            buffer_store_dwordx4 v[92:95], {v(V16)}, {s(SRD_WS,4)}, s101 offen offset:1024 sc1
            buffer_store_dwordx4 v[92:95], {v(V16)}, {s(SRD_WS,4)}, s34 offen sc1
            buffer_store_dwordx4 v[92:95], {v(V16)}, {s(SRD_WS,4)}, s34 offen offset:1024 sc1
            s_and_b32 exec_lo, s56, 0xfff0
            s_mov_b32 exec_hi, 0
            buffer_store_dwordx4 v[92:95], v18, {s(SRD_WS,4)}, s38 offen sc1
            s_mov_b64 exec, -1
            """)
            vq.extend(['in'] * 5)
    def pub0():
        if 'm0' in vq: vwait('m0')
        k(f"""
        s_add_u32 s38, s32, s29
        s_add_u32 s39, s32, s30
        s_xor_b32 s34, s39, 8192
        v_lshl_or_b32 v16, v17, 16, v16
        s_and_b64 exec, s[6:7], s[56:57]
        v_min_u32 v16, 0xfffffffe, v16
        buffer_store_dword v16, {v(VPUB)}, {s(SRD_WS,4)}, s39 offen sc1
        buffer_store_dword v16, {v(VPUB)}, {s(SRD_WS,4)}, s34 offen sc1
        buffer_store_dword v16, {v(VPUB)}, {s(SRD_WS,4)}, s38 offen sc1
        s_mov_b64 exec, -1
        """)
        vq.extend(['p0'] * 3)
    WLDS.clear()
    free = []; held = []; tpool = [32 + 8*i for i in range(8)]
    tmp = {}
    def flush():
        while held and free:
            key = held.pop(0); off = free.pop(0); WLDS[key] = off; t = tmp.pop(key)
            for hh in range(2): k(f"ds_write_b128 {v(VLW)}, {v(t + 4*hh, 4)} offset:{off + 1024*hh}")
            tpool.append(t)
    def consume(rd, base):
        new = []
        for (key, ro, va, off) in rd:
            if key in WREG: reg = WREG[key]
            else:
                if key not in tmp: tmp[key] = tpool.pop(0); new.append(key)
                reg = tmp[key]
            k(f"ds_read_b64_tr_b16 {r(reg + ro, 2)}, {v(va)} offset:{base + off}")
        k("s_waitcnt lgkmcnt(0)")
        held.extend(new)
    init_stores()
    def cnt_add(val):
        k(f"""
        s_cmp_eq_u32 {s(w)}, 0
        s_cselect_b32 exec_lo, 1, 0
        s_mov_b32 exec_hi, 0
        v_mov_b32 v30, {val}
        buffer_atomic_add v30, off, {s(SRD_DBG,4)}, 0 offset:{DB_INIT} sc1
        s_mov_b64 exec, -1
        """)
        vq.append('at')
    def dbg_eval():
        k(f"""
        s_cmp_eq_u32 s92, {N_INIT}
        s_cselect_b32 s47, s93, 0
        s_cmp_lg_u64 s[94:95], 0
        s_cselect_b32 s47, s47, 0
        s_cmp_eq_u32 s91, 32
        s_cselect_b32 s47, s47, 0
        s_and_b32 s90, s94, 0xffff
        """)
    k(f"""
    s_sub_u32 s52, {s(h)}, {s(w)}
    s_lshl_b32 s52, s52, 8
    s_add_u32 s52, s52, {WS_SYNC+SY_FLAG+FL_G1}   ; K/V flag line (minus the wave part of VQ)
    s_mul_i32 s39, {s(h)}, {(1 << HS) + SKEW[0]}
    s_lshl_b32 s54, {s(w)}, 11
    s_add_u32 s51, s54, {LK}             ; K dma lds base
    s_add_u32 s54, s54, s39
    s_add_u32 s53, s54, {WS_K}           ; K quarter (running)
    s_add_u32 s54, s54, {WS_VT}          ; VT(s) wave base (running)
    """)
    NP0, NTI, NDB = 3, 6, P.get('ndb', 14)
    if P.get('touch', 0) & 2:
        k(f"buffer_load_dword v31, off, {s(SRD_WS,4)}, s53 sc1")
        vq.append('tch')
    def kv_first():
        k(f"s_add_u32 m0, s35, {LL}")
        k(f"v_lshlrev_b32 v17, 1, {v(V16)}")
        k(f"buffer_load_dword v17, {s(SRD_WS,4)}, s54 offen sc1 lds")
        k("s_mov_b32 m0, s51")
        for o in (0, 1024): k(f"buffer_load_dwordx4 {v(V16)}, {s(SRD_WS,4)}, s53 offen offset:{o} sc1 lds")
    def announce(x, sr):
        k(f"""
        s_memtime s[38:39]
        s_waitcnt lgkmcnt(0)
        s_add_u32 s38, s38, s48
        s_add_u32 s38, s38, {x}
        s_or_b32 s38, s38, 1
        v_mov_b32 v30, s38
        buffer_store_dword v30, off, {s(SRD_WS,4)}, s{sr} sc1
        s_and_b32 s39, s{sr}, -256
        v_lshrrev_b32 v19, 2, {v(V16)}
        buffer_load_dword v31, v19, {s(SRD_WS,4)}, s39 offen sc1
        """)
    for n in range(NB):
        if n == NB - 2: calib(k, P, 48)
        vwait(n)
        if STAMPS and n in P.get('stn', (1, 5, 9, 13)) and not P.get('st2'): k(f"s_memrealtime s[{[58,60,62,0][P.get('stn', (1, 5, 9, 13)).index(n)]}:{[59,61,63,1][P.get('stn', (1, 5, 9, 13)).index(n)]}]")
        if n == NB - 1 and fused:
            na = k.uid('na')
            k(f"""
            s_lshl_b32 s33, {s(h)}, 1
            s_add_u32 s33, s33, {s(b)}
            s_lshl_b32 s33, s33, 2
            s_add_u32 s33, s33, {WS_SYNC+SY_FLAG+AN[0]}
            s_cmp_eq_u32 {s(w)}, 3
            s_cselect_b32 s36, s33, {WS_SIZE}
            s_waitcnt vmcnt(0)
            v_cmp_ge_u32 vcc, 1, v31
            s_and_b32 s39, vcc_lo, 0xfff
            s_cselect_b32 s47, 0, s47
            s_cmp_eq_u32 s47, 0
            s_cbranch_scc1 {na}
            """)
            announce(P.get('ann', 700), 36)
            kv_first()
            k.label(na)
        if n == NTI and fused:
            assert 'p0' not in vq and 'in' not in vq
        k("s_barrier")
        if n == NP0: pub0()
        if n == 1: free.extend([SPARE, SPARE + 2048])
        if n >= 1:
            if n + 3 < NB: issue(B[order[n+3]][0], ((n - 1) % 4) * 8192, n + 3)
            else: free.extend([((n - 1) % 4) * 8192 + 2048*q for q in range(4)])
        if n == P.get('npl', 14) and fused:
            k(f"""
            v_lshlrev_b32 v17, 1, {v(V16)}
            s_add_u32 s34, s101, {PART_SLOT}
            s_mov_b64 exec, s[56:57]
            buffer_load_dword v16, v17, {s(SRD_WS,4)}, s101 offen {P.get('plc', '')}
            buffer_load_dword v16, v17, {s(SRD_WS,4)}, s34 offen {P.get('plc', '')}
            s_lshl_b32 s34, {s(w)}, 6
            s_add_u32 s34, s34, {s(h)}
            s_lshl_b32 s34, s34, 7
            s_add_u32 s34, s34, s29
            s_mov_b64 exec, 3
            v_lshlrev_b32 v18, 8, {v(V16)}
            buffer_load_dword v16, v18, {s(SRD_WS,4)}, s34 offen {P.get('plc', '')}
            s_mov_b64 exec, -1
            """)
            vq.extend(['pl', 'pl', 'pl'])
        if n == NDB - 1 and fused: k(f"s_load_dwordx4 s[92:95], {s(KA_DBG,2)}, {DB_INIT}\ns_load_dword s91, {s(KA_DBG,2)}, {DB_MI}")
        if n == NDB and fused:
            dbg_eval()
            k(f"buffer_load_dword v31, {v(VQ)}, {s(SRD_WS,4)}, s52 offen sc1")
            vq.append('kv')
        flush()
        rd = B[order[n]][1]
        if n == 0:
            for ke in range(2):
                for u in range(2):
                    for vv in range(2):
                        k(f"ds_read_b64_tr_b16 {r(WREG[('O', 4, ke)] + 4*u + 2*vv, 2)}, {v([VT4A, VT4B][ke])} offset:{u*LWS + vv*1024}")
        consume(rd, (n % 4) * 8192)
    k("s_barrier")
    free.extend([((NB - 1) % 4) * 8192 + 2048*q for q in range(4)])
    flush()
    assert not held and len(WLDS) == 18
    k("s_waitcnt lgkmcnt(0)")
    stamp(k, 1, 20)
    if STAMPS:
        for i, sr in enumerate([58, 60, 62, 0]):
            k(f"v_mov_b32 v20, s{sr}")
            k(f"buffer_store_dword v20, off, {s(SRD_WS,4)}, s94 offset:{36+4*i}")
    def kvspin(back):
        top = k.uid('kvs'); k.label(top)
        k(f"""
        buffer_load_dword {v(VSEL)}, {v(VQ)}, {s(SRD_WS,4)}, s52 offen sc1
        s_waitcnt vmcnt(0)
        v_cmp_ge_u32 vcc, s19, {v(VSEL)}
        s_and_b32 s39, vcc_lo, 0xfff
        s_cbranch_scc0 {back}
        s_add_u32 s44, s44, 1
        s_cmp_gt_u32 s44, {SPIN_MAX}
        s_cbranch_scc1 {last}
        s_sleep {P.get('psl', 1)}
        s_branch {top}
        """)
    if fused:
        top = k.uid('tw'); ok = k.uid('twok')
        k("s_mov_b32 s44, 0")
        k("s_mov_b32 s19, 1")
        k("s_cmp_lg_u32 s47, 0")
        k(f"s_cbranch_scc1 {ok}")
        k.label(top)
        k(f"""
        buffer_load_dwordx4 v[24:27], off, {s(SRD_DBG,4)}, 0 offset:{DB_INIT} sc1
        buffer_load_dword v28, off, {s(SRD_DBG,4)}, 0 offset:{DB_MI} sc1
        s_waitcnt vmcnt(0)
        """)
        for i in range(4): k(f"v_readfirstlane_b32 s{92+i}, v{24+i}")
        k("v_readfirstlane_b32 s91, v28")
        dbg_eval()
        k(f"""
        s_add_u32 s44, s44, 1
        s_cmp_gt_u32 s44, {SPIN_MAX}
        s_cbranch_scc1 {last}
        s_sleep 2
        s_cmp_eq_u32 s47, 0
        s_cbranch_scc1 {top}
        """)
        kok = k.uid('kok'); kvspin(kok); k.label(kok)
        announce(P.get('ann2', 500), 36)
        kv_first()
        k.label(ok)
        k(f"""
        s_and_b32 s39, s47, 1
        s_lshl_b32 s39, s39, 13
        s_add_u32 s30, s30, s39
        s_add_u32 s31, s31, s39
        """)
    if not fused: kv_first()
    HAT = P.get('hat', 0)
    HSET = f"""s_and_b32 s91, {s(h)}, {HAT - 1}
    s_lshl_b32 s91, s91, 8
    s_add_u32 s91, s91, s99
    s_cmp_eq_u32 {s(w)}, 3
    s_cselect_b32 s98, s91, s16          ; hint update (running)
    s_add_u32 s91, s98, {16384 - 768}
    s_cmp_lt_u32 {s(h)}, {HAT}
    s_cselect_b32 s91, s91, s16          ; hint reset (running)""" if HAT else f"""s_sub_u32 s91, s99, 768
    s_cmp_eq_u32 {s(w)}, 3
    s_cselect_b32 s98, s91, s16          ; hint update (running)
    s_add_u32 s91, s99, 16384
    s_cmp_eq_u32 {s(h)}, 1
    s_cselect_b32 s91, s91, s16          ; next hint line, pulled into L2 (running)"""
    k(f"""
    s_mul_i32 s39, {s(h)}, {(1 << HS) + SKEW[0]}
    s_lshl_b32 s95, {s(w)}, 10
    s_lshl_b32 s55, {s(b)}, 12
    s_lshl_b32 s38, {s(w)}, 9
    s_add_u32 s55, s55, s38
    s_add_u32 s55, s55, s39
    s_add_u32 s55, s55, {WS_FM - (1 << SS)}          ; FM(s-1) store address (running)
    s_add_u32 s15, s39, {WS_K + (1 << SS)}           ; prefetch base (running)
    s_mov_b32 s56, 0x05050505
    s_mov_b32 s57, 0x05050505
    s_mov_b32 s58, 0x0a0a0a0a
    s_mov_b32 s59, 0x0a0a0a0a
    s_mov_b32 s60, 0x50505050
    s_mov_b32 s61, 0x50505050
    s_mov_b32 s62, 0xa0a0a0a0
    s_mov_b32 s63, 0xa0a0a0a0
    s_mov_b32 s33, 0
    s_mov_b32 s43, 0
    s_mov_b32 s44, 0
    s_mov_b32 s45, 0
    s_mov_b32 s46, 0
    s_mov_b32 s49, 0
    s_lshl_b32 s50, {s(h)}, 6
    s_lshl_b32 s39, {s(b)}, 2
    s_add_u32 s50, s50, s39
    s_add_u32 s50, s50, {WS_SYNC+SY_FLAG+FL_FM}
    s_cmp_eq_u32 {s(w)}, 3
    s_cselect_b32 s50, s50, {WS_SIZE}
    s_cmp_lt_u32 {s(w)}, 2
    s_cselect_b32 s15, s15, s52
    s_cselect_b32 s21, {1 << SS}, 0      ; prefetch increment
    s_cselect_b32 s93, 5, 0
    s_cselect_b32 s94, 0, 1              ; tag mask of dwords 1..3
    s_lshl_b32 s20, s28, 8
    s_cmp_lt_u32 s28, 20
    s_cselect_b32 s20, s20, {WS_SIZE}
    s_mov_b32 s14, {float_hex(128 ** -0.5 * math.log2(math.e))}
    s_mov_b32 s16, {WS_SIZE}
    s_mov_b32 s17, 0
    s_cmp_eq_u32 {s(b)}, 0
    s_cselect_b32 s92, -1, 0
    s_add_u32 s99, s30, 7168             ; hint lines of the step (running)
    {HSET}
    s_cmp_eq_u32 s28, {96 + P.get('rep', 0)}
    s_cselect_b32 s16, {5120 - 64 * (96 + P.get('rep', 0))}, s16
    s_add_u32 s13, s32, s30
    s_add_u32 s13, s13, 16384
    s_add_u32 s12, s13, s16              ; time word of the next slot (running)
    s_cmp_lt_u32 s28, 80
    s_cselect_b32 s13, s13, {WS_SIZE}    ; remote publish (running)
    s_mov_b32 s35, s29
    s_add_u32 s36, s35, 4096
    s_mov_b32 s40, s31
    s_add_u32 s41, s40, 4096
    s_add_u32 s53, s53, {1 << SS}
    s_mul_i32 s26, {s(w)}, {-(32768 - 8192)}
    s_add_u32 s26, s26, {64*2048}
    s_mov_b32 s27, 0
    s_mov_b32 s22, 0
    s_movk_i32 s24, {P.get('dcap', 1600)}
    s_mov_b32 s19, 1
    s_cmp_eq_u32 {s(w)}, 3
    s_movk_i32 s37, {P['ltgt'] - P['rtgt']}
    s_cselect_b32 s7, {P['tlead']}, s37
    s_add_u32 s37, s7, {P.get('m2', 0)}
    s_movk_i32 s6, {P['ltgt'] + P.get('m1', 0)}
    """)
    k("s_mov_b32 s25, s48")
    k(f"v_mov_b32 {v(VDUM)}, s25")
    k(f"ds_write_b32 {v(VQ)}, {v(VDUM)} offset:{LR+2048}")
    k("s_waitcnt lgkmcnt(0)")
    if fused:
        slow = k.uid('slow')
        k("s_cmp_lg_u32 s90, 0x2020")
        k(f"s_cbranch_scc1 {slow}")
        team_loop(k, P, '', last, kvspin, fused)
        k.label(slow)
        team_loop(k, P, 'sc1', last, kvspin, fused)
    else:
        team_loop(k, P, lst, last, kvspin, fused)
    k.label(last)
    team_end(k)

def team_loop(k, P, lst, last, kvspin, fused):
    HAT = P.get("hat", 0)
    b = S_X; h = S_T; w = S_WAVE
    cold = []
    ns = P.get('nosync')
    TK = P.get('tick')
    pend = []
    def lwait_s(tag):
        if tag not in pend: return []
        idx = max(i for i, t in enumerate(pend) if t == tag)
        n = min(len(pend) - idx - 1, 15)
        del pend[:idx+1]
        return [f"s_waitcnt lgkmcnt({n})"]
    def lwait(tag):
        for x in lwait_s(tag): k(x)
    def wl_s(key, reg): return [(f"ds_read_b128 {v(reg+4*hh,4)}, {v(VLW)} offset:{WLDS[key]+1024*hh}", key) for hh in range(2)]
    dslog = []
    def ds(x, tag): k(x); pend.append(tag); dslog.append((x, tag))
    def smf(acc, areg, breg):
        k(f"v_smfmac_f32_16x16x64_bf16 {v(acc,4)}, {v(areg,4)}, {r(breg,8)}, {v(VIDX)}")
    pl = [f"buffer_load_dword {v(A+4)}, {v(VQ)}, {s(SRD_WS,4)}, s36 offen sc1 ;poll",
          f"buffer_load_dwordx4 {v(A,4)}, {v(VC0)}, {s(SRD_WS,4)}, s35 offen sc1 ;poll"]
    def poll_local():
        for x in pl: k(x)
    pr = [f"buffer_load_dwordx4 {v(A+12,4)}, {v(VC0)}, {s(SRD_WS,4)}, s40 offen sc1 ;poll",
          f"buffer_load_dword {v(A+16)}, {v(VQ)}, {s(SRD_WS,4)}, s41 offen sc1 ;poll"]
    def poll_rr():
        for x in pr: k(x)
    def dloop(sr):
        l = k.uid('dl'); k(".p2align 3"); k.label(l)
        k(f"s_sub_u32 s{sr}, s{sr}, {P['dit']}")
        k(f"s_cbranch_scc0 {l}")
    def rem(tgt, now): return [f"s_sub_u32 s27, s{tgt}, s{now}", "s_cmpk_lt_u32 s27, 4000", "s_cselect_b32 s27, s27, 0"]
    def set_slots():
        return f"""s_lshl_b32 s19, s33, 13
        s_and_b32 s18, s19, 0x6000
        s_lshl_b32 s19, s33, 14
        s_add_u32 s35, s18, s29
        s_add_u32 s36, s35, 4096
        s_add_u32 s40, s19, s31
        s_add_u32 s41, s40, 4096""".split('\n')
    def cmpsent(x): return f"v_cmp_{'f' if ns else 'eq'}_u32 vcc, -1, {v(x)}"
    def chk(b0, n=5):
        T = VDUM
        if n == 1: return [cmpsent(b0)]
        return [f"v_max3_u32 {v(T)}, {v(b0)}, {v(b0+1)}, {v(b0+2)}", f"v_max3_u32 {v(T)}, {v(T)}, {v(b0+3)}, {v(b0+n-1)}", cmpsent(T)]
    def retry(b0, reissue, cnt, post, fix=None, n=5):
        c = k.uid('cold'); back = k.uid('back')
        k(f"s_cbranch_vccnz {c}")
        k.label(back)
        def body():
            k.label(c)
            reissue()
            k(f"s_add_u32 s{cnt}, s{cnt}, 1")
            k(f"s_cmp_gt_u32 s{cnt}, {P.get('bound', 20000)}")
            k(f"s_cbranch_scc1 {last}")
            k(f"s_waitcnt vmcnt(0) lgkmcnt(0)")
            post()
            for x in chk(b0, n): k(x)
            k(f"s_cbranch_vccnz {c}")
            if fix: fix()
            k("s_waitcnt lgkmcnt(0)")
            k(f"s_branch {back}")
        cold.append(body)
    TK2 = P.get('tk2')
    def tick(i, alt=False):
        if TK2 and 3 <= i <= 8 and not alt: return
        if TK: k(f"s_memtime s[{64+2*i}:{65+2*i}]")
    def zero(base, n): return [f"v_mov_b64 {v(base+i,2)}, 0" for i in range(0, n, 2)]
    RING = [PP + 16, PP + 24, PP, PP + 8]
    WARM = f"v_mov_b32 {v(V8)}, {v(V8)}"
    VMC = PP + 32; VX = PP + 24; KR = PP + 16; PF = PP
    RD = A + 8; SEL = AK; D = A; T = A + 16
    areg = [A, A+8, A+4, A, A+8]
    rreg = [A+12, A+16, A+4, A, A+8]
    seq = [('L', 0, 1, 0), ('L', 0, 1, 1), ('L', 0, 2, 0), ('L', 0, 2, 1), ('L', 0, 0, 0), ('L', 0, 0, 1)]
    for i in range(1, 5): seq += [('L', i, m, t) for m in (0, 1, 2) for t in range(2)]
    rin = P.get('rin', 0)
    if rin:
        seq += [('R', 0, m, t) for t in range(2) for m in (1, 0)]
        seq += [('R', i, m, 0) for i in range(1, 5) for m in (1, 0)]
        seq += [('R', i, m, 1) for m in (1, 0) for i in range(1, 5)]
    else:
        seq += [('R', i, m, 0) for i in range(5) for m in (1, 0)]
        seq += [('R', i, m, 1) for m in (1, 0) for i in range(5)]
    seq += [('R', i, 2, t) for i in range(5) for t in range(2)]
    lseq = [x for x in seq if x in WLDS]
    sl = [0, 2, 3] * 6
    rslot = {x: RING[sl[n]] for n, x in enumerate(lseq)}
    def ring_pre():
        for x in lseq[:3]:
            for y, tg in wl_s(x, rslot[x]): ds(y, tg)
    def do_smf(key):
        l, i, m, t = key
        smf(ACC + 8*m + 4*t, (areg if l == 'L' else rreg)[i], WREG.get(key) or rslot[key])
    def a_rd(l, i):
        base = LL if l == 'L' else LR
        dst = (areg if l == 'L' else rreg)[i]
        if i == 1: return (f"ds_read_b128 {v(dst,4)}, {v(V16)} offset:{LR + 3072 if l == 'L' else LL}", l + '1')
        return (f"ds_read_b128 {v(dst,4)}, {v(VC0+i-1)} offset:{base}", f'{l}{i}')
    kfr = [KR, KR+4, VMC] + rreg
    kord = [0, 2, 4, 6, 1, 3, 5, 7] if P.get('nomax', 0) == 2 else list(range(8))
    def k_rd(i): return (f"ds_read_b128 {v(kfr[i],4)}, {v(V16)} offset:{LK + 1024*kord[i]}", f'k{kord[i]}')
    def pack(t):
        kq = AK + 4*t; qq = AQ + 4*t
        return [f"v_add_f32 {v(kq)}, {v(kq)}, {v(kq+2)}",
                f"v_add_f32 {v(kq+1)}, {v(kq+1)}, {v(kq+3)}",
                f"v_cvt_pk_bf16_f32 {v(kq+2)}, {v(kq)}, {v(kq+1)}",
                f"v_add_f32 {v(qq)}, {v(qq)}, {v(qq+2)}",
                f"v_add_f32 {v(qq+1)}, {v(qq+1)}, {v(qq+3)}",
                f"v_cvt_pk_bf16_f32 {v(kq+3)}, {v(qq)}, {v(qq+1)}",
                f"ds_write_b64 {v(VFW)}, {v(kq+2,2)} offset:{LL + 512*t}"]
    def fmget():
        k(f"v_add_u32 {v(VDUM)}, s95, {v(V8)}")
        k(f"v_mov_b64 {v(VMC,2)}, {v(VM,2)}")
        sk = k.uid('fmsk')
        k("s_cmp_eq_u32 s92, 0")
        k(f"s_cbranch_scc1 {sk}")
        k(f"ds_read_b64_tr_b16 {v(VMC,2)}, {v(VDUM)} offset:{LL}")
        k(f"ds_read_b64_tr_b16 {v(VMC+2,2)}, {v(VDUM)} offset:{LL+512}")
        k.label(sk)
    def fmfix():
        sk = k.uid('fmsk')
        k("s_cmp_eq_u32 s92, 0")
        k(f"s_cbranch_scc1 {sk}")
        k("s_or_b64 vcc, s[56:57], s[60:61]")
        for i in range(2): k(f"v_mov_b32_dpp {v(VMC+i)}, {v(VMC+i)} quad_perm:[0,0,1,1] row_mask:0xf bank_mask:0xf")
        for i in range(2): k(f"v_cndmask_b32_dpp {v(VMC+i)}, {v(VMC+2+i)}, {v(VMC+i)}, vcc quad_perm:[0,0,1,1] row_mask:0xf bank_mask:0xf")
        k.label(sk)
    def tail():
        k(f"""
        s_and_b32 s19, s33, 1
        s_mul_i32 s19, s19, {PART_SLOT}
        s_add_u32 s47, s19, s100
        s_add_u32 s48, s19, s101
        s_bfe_u32 s34, s33, 0x10001
        s_add_u32 s23, s47, s26
        s_xor_b32 s18, s35, 0x4000
        s_add_u32 s18, s18, s20
        v_lshlrev_b32 {v(VSEL)}, s93, {v(VQ)}
        """)
        for x in zero(AK, 4): k(x)
    def tail2():
        if TK: k(f"v_writelane_b32 {v(A+8)}, s25, 14")
        if STAMPS:
            sk = k.uid('stc')
            k("s_cmp_lg_u32 s33, 5")
            k(f"s_cbranch_scc1 {sk}")
            k("s_mov_b32 s46, s97\ns_mov_b32 s43, 0\ns_mov_b32 s45, 0\ns_mov_b32 s49, 0\ns_mov_b32 s44, 0")
            k.label(sk)
        if TK:
            k(f"""
            s_lshl_b32 s39, {s(S_WG)}, 2
            s_add_u32 s39, s39, {s(w)}
            s_lshl_b32 s39, s39, 12
            s_lshl_b32 s38, s33, 6
            s_add_u32 s39, s39, s38
            s_add_u32 s39, s39, {WS_ST2}
            s_lshl_b32 s38, s45, 10
            s_or_b32 s90, s38, s43
            s_lshl_b32 s38, s49, 20
            s_or_b32 s90, s38, s90
            """)
            for i in range(10):
                k(f"v_writelane_b32 {v(A+8)}, s{64+2*i}, {i}")
            k(f"v_writelane_b32 {v(A+8)}, s90, 13")
            k(f"v_lshrrev_b32 {v(A+9)}, 2, {v(V16)}")
    fmst = f"buffer_store_dwordx2 {v(VMC,2)}, {v(V8)}, {s(SRD_WS,4)}, s55 offen sc1"
    SX0, SX1, SM = AQ, AQ + 4, AK
    T0, T1 = AK + 4, AK + 5; VM = AK + 6
    PK = KR; PM0 = KR + 4; PM1 = KR + 6; ONE = VMC
    lastpub = k.uid('lastpub'); loop = k.uid('tloop'); entry = k.uid('entry')
    if fused:
        k(f"""
        s_lshl_b32 s39, {s(h)}, 5
        s_lshl_b32 s38, {s(b)}, 4
        s_add_u32 s39, s39, s38
        v_cmp_eq_u32 vcc, s39, {v(V16)}
        s_waitcnt vmcnt(3)
        v_cndmask_b32 {v(A+1)}, v31, v30, vcc
        """)
    for x in zero(ACC, 24): k(x)
    ring_pre()
    k("s_memtime s[96:97]")
    k("s_waitcnt lgkmcnt(0)")
    k("s_sub_u32 s97, s96, 1")
    k("s_add_u32 s42, s97, s25")
    k("s_sub_u32 s42, s42, 1000")
    tail()
    if fused:
        st = k.uid('st'); go = k.uid('go')
        k(f"""
        s_cmp_lg_u32 {s(w)}, 3
        s_cbranch_scc1 {go}
        v_lshrrev_b32 {v(A)}, 2, {v(V16)}
        s_mov_b32 s39, {WS_SYNC+SY_FLAG+AN[0]}
        s_branch {st}c
        """)
        k.label(st)
        k(f"""
        s_sleep {P.get('psl2', 0)}
        buffer_load_dword {v(A+1)}, {v(A)}, {s(SRD_WS,4)}, s39 offen sc1
        s_add_u32 s44, s44, 1
        s_cmp_gt_u32 s44, {SPIN_MAX}
        s_cbranch_scc1 {last}
        s_waitcnt vmcnt(0)
        """)
        k.label(st + 'c')
        k(f"""
        v_cmp_eq_u32 vcc, 0, {v(A+1)}
        s_cbranch_vccnz {st}
        v_subrev_u32 {v(A+1)}, s42, {v(A+1)}
        """)
        for x in (1, 2, 4, 8): k(f"v_max_i32_dpp {v(A+1)}, {v(A+1)}, {v(A+1)} row_ror:{x} row_mask:0xf bank_mask:0xf")
        for i in range(4): k(f"v_readlane_b32 s{[0,1,18,19][i]}, {v(A+1)}, {16*i}")
        k(f"""
        s_max_i32 s0, s0, s1
        s_max_i32 s18, s18, s19
        s_max_i32 s0, s0, s18
        s_add_u32 s96, s0, s42
        """)
        if HAT: k(f"""
        s_add_u32 s0, s96, {P.get('e0', 2100)}
        s_not_b32 s0, s0
        v_mov_b32 {v(VDUM)}, s0
        buffer_store_dword {v(VDUM)}, off, {s(SRD_WS,4)}, s98 {lst}
        """)
        k(f"""
        s_sub_u32 s96, s96, s25
        s_memtime s[0:1]
        s_waitcnt lgkmcnt(0)
        """)
        for x in rem(96, 0): k(x)
        dloop(27)
        k.label(go)
        k("s_sub_u32 s97, s96, 1")
        k("s_add_u32 s42, s97, s25")
        k("s_sub_u32 s42, s42, 1000")
    k(f"s_mov_b32 s39, {WS_SIZE}")
    k("s_barrier")
    k(f"s_branch {entry}")
    k.label(loop)
    pend[:] = []
    early = P.get('sc1early', 0)
    tailv = (1 if TK else 0)
    n0log = len(dslog)
    nt = (0 if rin else 2) + tailv + (0 if early else 1)
    lw = [(f"ds_write_b32 {v(VQ)}, {v(A+4)} offset:{LR + 3072}", 'w1'), (f"ds_write_b128 {v(VC0)}, {v(A,4)} offset:{LL}", 'w')]
    k(f"s_waitcnt vmcnt({nt + 1})")
    tick(0)
    ds(*lw[0])
    k(chk(A + 4, 1)[0])
    k(f"s_waitcnt vmcnt({nt})")
    do_smf(seq[0])
    def lfix(n):
        again = [x for x, tg in dslog[n0log:] if tg in rslot]
        def f():
            if again:
                for kk in lseq[:3]:
                    for x, _ in wl_s(kk, rslot[kk]): k(x)
                k("s_waitcnt lgkmcnt(0)")
            for kk in seq[:n]:
                for x in zero(ACC + 8*kk[2] + 4*kk[3], 4): k(x)
            for kk in seq[:n]: do_smf(kk)
            for x in again: k(x)
        return f
    rc = P.get('rc', 20); bx = P.get('bx', 18)
    pre = {}; val = {}; dsq = []; hook = {}
    def at(c, *xs):
        for x in xs: (val if x.startswith('v_') else pre).setdefault(c, []).append(x)
    lb = P.get('lb', 2); lc = P.get('lc', 5); lb2 = P.get('lb2', 6); rb = rc + P.get('rb', 5)
    sp = P['sp']
    sx = P.get('sx', rb)
    if sx > rb: at(sx, "s_memtime s[96:97]")
    hs_ = sx + P.get('hs', 4)
    vl = P.get('vl', [4, 5])
    npre = sum(x < rc for x in sp + vl)
    for o in (0, 1): at(vl[o], f"buffer_load_dwordx4 {v(VX+4*o,4)}, {v(V16)}, {s(SRD_WS,4)}, s54 offen offset:{1024*o} sc1")
    assert max(vl) < min(sp) and rc not in vl
    pfi = f"buffer_load_dword {v(VSEL)}, {v(VSEL)}, {s(SRD_WS,4)}, s15 offen sc1"
    at(sp[0], pfi)
    at(sp[1], fmst)
    at(sp[2] - 1, f"v_mov_b32 {v(VDUM)}, s17")
    at(sp[2], f"buffer_store_dword {v(VDUM)}, off, {s(SRD_WS,4)}, s50 sc1")
    at(sp[3] - 1, f"v_mov_b32 {v(VDUM)}, -1")
    at(sp[3], f"buffer_store_dword {v(VDUM)}, {v(VQ)}, {s(SRD_WS,4)}, s18 offen {lst}")
    rw = [(f"ds_write_b128 {v(VC0)}, {v(A+12,4)} offset:{LR}", 'w'), (f"ds_write_b32 {v(VQ)}, {v(A+16)} offset:{LL}", 'w')]
    ck = chk(A + 12)
    at(rc, f"s_waitcnt vmcnt({(0 if rin else tailv) + npre})", ck[0]); at(rc + 1, ck[1]); at(rc + 2, ck[2])
    def rre():
        for x, _ in rw: k(x)
    def h1():
        ds(*lw[1])
        retry(A + 4, poll_local, 43, lambda: [k(x) for x, _ in lw], lfix(1), 1)
    def b1():
        lwait('w1'); k("s_barrier")
        if rin == lb:
            ds(*dsq.pop(0)); poll_rr()
    def b1b():
        lwait('w'); k("s_barrier")
    for j, x in enumerate(chk(A, 4)): at(1 + j, x)
    def b2():
        lwait('w')
        k("s_barrier")
        if sx == rb: k("s_memtime s[96:97]")
        tick(2)
    hook[1] = h1; hook[lb] = b1; hook[lb2] = b1b
    hook[lc] = lambda: retry(A, lambda: k(pl[1]), 43, lambda: k(lw[1][0]), lfix(lc), 4)
    assert 1 < lb < lc < lb2 and 4 <= lc <= 6
    at(bx + 1 if rin else lc, f"v_readfirstlane_b32 s25, {v(VMC+2)}")
    if rin > lb: at(rin, *pr)
    assert rin < min(vl)
    hook[rc + P.get('rr', 3)] = lambda: retry(A + 12, poll_rr, 45, rre)
    hook[rb] = b2
    assert rb > rc + P.get('rr', 3)
    nods = set(P.get('nods', [1] + ([lb] if rin == lb else [])))
    at(hs_, "s_add_u32 s96, s96, s25", f"v_{'not' if HAT else 'mov'}_b32 {v(VDUM)}, s96")
    if HAT: at(hs_ + 1, "s_mov_b64 exec, 1", f"buffer_atomic_umin {v(VDUM)}, off, {s(SRD_WS,4)}, s98 {lst}", "s_mov_b64 exec, -1")
    else: at(hs_ + 1, f"buffer_store_dword {v(VDUM)}, {v(VQ)}, {s(SRD_WS,4)}, s98 offen {lst}")
    assert len({hs_, sp[2] - 1, sp[3] - 1, rc, rc + 1, rc + 2}) == 6
    p0 = pack(0); p1 = pack(1)
    po = 2 if rin else 0; b3 = 38 + 2*po
    for j in range(6): at(41 + po + j, p0[j])
    for j in range(3): at(47 + po + j, p1[j])
    at(b3, f"s_waitcnt vmcnt({sum(x < b3 for x in sp + [hs_ + 1])})", "s_barrier")
    assert b3 not in sp and max(sp[2:] + [hs_ + 1]) <= 41 + po
    HO = P.get('nomax', 0) == 2
    app_ds = {}
    def rel(c, *ys): app_ds.setdefault(c, []).extend(ys)
    if rin: rel(lb2, (f"ds_read_b32 {v(VMC+2)}, {v(VMC+3)}", 'L3'))
    rel(lb, a_rd('L', 1)); rel(lb2, a_rd('L', 2), a_rd('L', 3)); rel(12, a_rd('L', 4)); rel(rc, *rw); rel(rb, a_rd('R', 1), a_rd('R', 2))
    rel(max(24, rb), a_rd('R', 3)); rel(max(30, rb), a_rd('R', 4)); rel(47 + po, (p0[6], 'fw'))
    rel(46 if rin else 40, k_rd(0), k_rd(1)); rel(max(sp[1] + 2, 40), k_rd(2)); rel(52, k_rd(3)); rel(54, k_rd(4))
    def dead(tg):
        if tg in ('w', 'fw'): return 0
        if tg == 'L4': return bx
        for n_, x in enumerate(seq):
            if tg == x or tg == f'{x[0]}{x[1]}': return n_
        return 100
    qn = 0
    def gap(cnt, nxt):
        dsq.extend(app_ds.get(cnt, []))
        dsq.sort(key=lambda y: dead(y[1]))
        n0 = len(k.ins)
        def used(): return sum(2 if I.cls == 'ds' else (P.get('vmw', 1) if I.cls == 'vmem' else 1) for I in k.ins[n0:] if I.cls != 'label')
        if cnt == bx: lwait('L4'); k("s_barrier")
        for x in pre.get(cnt, []):
            k(x)
            if 'lgkmcnt(0)' in x: pend[:] = []
        if cnt in hook: hook[cnt]()
        if dsq and (used() < 2 or dead(dsq[0][1]) == 0 or cnt == lb) and cnt not in nods: ds(*dsq.pop(0))
        if dsq and cnt in P.get('ds2', [3, 4, 5]): ds(*dsq.pop(0))
        if nxt:
            need = [nxt, f'{nxt[0]}{nxt[1]}']
            while any(tg in need for _, tg in dsq):
                ds(*dsq.pop(0))
            for tg in need: lwait(tg)
        if TK2 and cnt in TK2: tick(3 + TK2.index(cnt), True)
        vs = val.get(cnt, [])
        for x in vs: k(x)
        if not vs and P.get('warm', True) and used() <= 2: k(WARM)
    def after(n):
        if seq[n] in rslot:
            q = lseq.index(seq[n])
            nx = [j for j in range(q + 1, 18) if sl[j] == sl[q]]
            if nx: dsq.extend(wl_s(lseq[nx[0]], rslot[lseq[nx[0]]]))
    after(0); gap(1, seq[1])
    for n in range(1, 52):
        do_smf(seq[n]); after(n)
        if n == 29: tick(1)
        if n == 39: tick(3)
        if n < 51: gap(n + 1, seq[n + 1])
    for x in p1[3:6]: k(x)
    ds(p1[6], 'fw')
    tick(4)
    n = 52
    dsq.extend(app_ds.pop(52))
    for _ in range(P.get('vpre', 3)):
        do_smf(seq[n]); n += 1
        gap(n, None)
    lwait('fw')
    k("s_barrier")
    kq_ = [5, 6, 7]
    for i in range(8):
        ds(f"ds_read_b64_tr_b16 {v(PF+2*i,2)}, {v(V8)} offset:{LL + 512*i}", f'f{i//2}')
        if i % 2 == 1 and n < 60:
            do_smf(seq[n]); n += 1
    while dsq: ds(*dsq.pop(0))
    def kfree():
        while kq_ and n >= 50 + 2 * (kq_[0] - 3) + 2: ds(*k_rd(kq_.pop(0)))
    kfree()
    while n < 60:
        do_smf(seq[n]); n += 1; kfree()
    assert not kq_
    tick(5)
    def smw(which, ks):
        lwait(f'f{ks}')
        if which != 'm': lwait(f'k{2*ks + which}')
    def sm(which, ks):
        smw(which, ks)
        if which == 'm': Dd, Aop = SM, PF + 4*ks
        else: Dd = SX0 + 4*which; Aop = kfr[kord.index(2*ks + which)]
        k(f"v_mfma_f32_16x16x32_bf16 {v(Dd,4)}, {v(Aop,4)}, {v(PF+4*ks,4)}, {'0' if ks == 0 else v(Dd,4)}")
    vp = []
    for t in range(2):
        vv = AV + 4*t
        vp += [f"v_add_f32 {v(vv)}, {v(vv)}, {v(vv+2)}", f"v_add_f32 {v(vv+1)}, {v(vv+1)}, {v(vv+3)}", f"v_cvt_pk_bf16_f32 {v(VM+t)}, {v(vv)}, {v(vv+1)}"]
    cst = [f"v_mov_b32 {v(PM0+1)}, 0", f"v_mov_b32 {v(PM1)}, 0"] + [f"v_mov_b32 {v(ONE+i)}, 0x3f803f80" for i in range(4)]
    so = [('m', 0), (0, 0), (1, 0), ('m', 1), (0, 1), (1, 1), ('m', 2), ('m', 3), (0, 2), (0, 3), (1, 2), (1, 3)]
    hl = [f"s_buffer_load_dword s{x}, {s(SRD_WS,4)}, s99 offset:{256*i}" for i, x in enumerate([0, 1, 18, 19][:max(HAT, 1)])]
    assert len(P.get('hg', [12])) == len(hl)
    fl = {0: [WARM], 1: vp[0:2], 2: vp[2:4], 3: vp[4:6], 4: ["s_cmp_eq_u32 s33, 63"] + cst[0:2], 5: [f"s_cbranch_scc1 {lastpub}", WARM],
          6: cst[2:4], 7: cst[4:6], 8: [WARM], 9: [f"v_max_f32 {v(T0)}, {v(SM)}, {v(SM+1)}"], 10: [WARM],
          11: [f"v_max3_f32 {v(T0)}, {v(T0)}, {v(SX0)}, {v(SX0+1)}", f"v_max3_f32 {v(T0)}, {v(T0)}, {v(SX0+2)}, {v(SX0+3)}"]}
    hpos = P.get('hpos', 2)
    NM = P.get('nomax', 0)
    zz = zero(A + 12, 8) + zero(A, 12)
    mul = lambda x: f"v_mul_f32 {v(x)}, s14, {v(x)}"
    exs = lambda x: f"v_exp_f32 {v(x)}, {v(x)}"
    if NM:
        fl[8] = [zz.pop(0)]; fl[9] = [mul(SM), mul(SM+1)]; fl[10] = [exs(SM), exs(SM+1)]; fl[11] = [mul(SX0), mul(SX0+1)]
    cvp = [f"v_cvt_pk_bf16_f32 {v(PM0)}, {v(SM)}, {v(SM+1)}", f"v_cvt_pk_bf16_f32 {v(PM1+1)}, {v(SM)}, {v(SM+1)}"]
    if NM == 2:
        zz = zero(A + 12, 8) + zero(A + 4, 4) + zero(A, 4) + zero(A + 8, 4)
        so = [(x, ks) for x in ('m', 0, 1) for ks in range(4)]
        fl = {0: ["s_movk_i32 s27, 0x1833", WARM], 1: vp[0:2], 2: vp[2:4], 3: ["s_cmp_eq_u32 s33, 63"] + vp[4:6], 4: [f"s_cbranch_scc1 {lastpub}", WARM],
              5: ["s_waitcnt lgkmcnt(0)", mul(SM), mul(SM+1)], 6: [exs(SM), cst[0]], 7: [exs(SM+1), cst[1]], 8: cst[2:4] + cvp[:1],
              9: [mul(SX0), mul(SX0+1), cvp[1]], 10: [exs(SX0), mul(SX0+2)], 11: [exs(SX0+1), mul(SX0+3)]}
        HV = P.get('hv')
        if HV is not None:
            assert HAT == 4
            fl[HV][:0] = ["s_mov_b32 exec_lo, 0x10001", "s_mov_b32 exec_hi, 0x10001",
                          f"buffer_load_dword {v(VDUM)}, {v(V16)}, {s(SRD_WS,4)}, s99 offen {lst or P.get('hvc', '')}", "s_mov_b64 exec, -1"]
        for i, g in enumerate(P.get('hg', [12])):
            if g < 12 and HV is None: fl[g].insert(0, hl[i])
        hpos = 0
    WX, WY = PF, PF + 8
    wq = []
    assert NM == 2
    for n_, (wh, ks) in enumerate(so):
        sm(wh, ks)
        if n_ < 11: smw(*so[n_ + 1])
        if n_ in (7, 8) and NM != 2: ds(*wq.pop(0))
        for x in fl.get(n_, []):
            k(x)
            if 'lgkmcnt(0)' in x: pend[:] = []
        if hpos == 2 and n_ == 11: k(hl[0])
    tick(6)
    fma = lambda x: k(f"v_fma_f32 {v(x)}, {v(x)}, s14, -{v(T0)}")
    ex = lambda x: k(exs(x))
    O0, O1 = AV, AV + 4; RS = AK; RI = T0; OP = AQ; OA = VX
    def zp(n, z):
        for _ in range(n):
            if z: k(z.pop(0))
    def softmax_max(zz, wq):
        zp(3, zz)
        k(f"v_max3_f32 {v(T0)}, {v(T0)}, {v(SX1)}, {v(SX1+1)}")
        k(f"v_max3_f32 {v(T1)}, {v(T0)}, {v(SX1+2)}, {v(SX1+3)}")
        k(f"v_max3_f32 {v(T0)}, {v(T0)}, {v(SX1+2)}, {v(SX1+3)}")
        zp(2, zz)
        k(f"v_permlane32_swap_b32 {v(T0)}, {v(T1)}")
        k(f"v_max_f32 {v(SM+2)}, {v(T0)}, {v(T1)}")
        k(f"v_max_f32 {v(T0)}, {v(T0)}, {v(T1)}")
        zp(2, zz)
        k(f"v_permlane16_swap_b32 {v(T0)}, {v(SM+2)}")
        k(f"v_max_f32 {v(T0)}, {v(T0)}, {v(SM+2)}")
        k(f"v_mul_f32 {v(T0)}, s14, {v(T0)}")
        fma(SM); fma(SM+1); ex(SM); ex(SM+1)
        fma(SX0); fma(SX0+1)
        k(f"v_cvt_pk_bf16_f32 {v(PM0)}, {v(SM)}, {v(SM+1)}")
        k(f"v_cvt_pk_bf16_f32 {v(PM1+1)}, {v(SM)}, {v(SM+1)}")
        for i in range(2, 8): fma(SX0+i)
        k(f"v_mfma_f32_16x16x16_bf16 {v(O0,4)}, {v(VM,2)}, {v(PM0,2)}, 0")
        wq and ds(*wq.pop(0))
        ex(SX0); ex(SX0+1)
        k(f"v_mfma_f32_16x16x16_bf16 {v(O1,4)}, {v(VM,2)}, {v(PM1,2)}, 0")
        wq and ds(*wq.pop(0))
        ex(SX0+2); ex(SX0+3)
        k(f"v_cvt_pk_bf16_f32 {v(PK)}, {v(SX0)}, {v(SX0+1)}")
        k(f"v_mfma_f32_16x16x16_bf16 {v(RS,4)}, {v(PM0,2)}, {v(ONE,2)}, 0")
        ex(SX0+4); ex(SX0+5)
        k(f"v_cvt_pk_bf16_f32 {v(PK+1)}, {v(SX0+2)}, {v(SX0+3)}")
        ex(SX0+6); ex(SX0+7)
        k(f"v_cvt_pk_bf16_f32 {v(PK+2)}, {v(SX0+4)}, {v(SX0+5)}")
        k(f"v_cvt_pk_bf16_f32 {v(PK+3)}, {v(SX0+6)}, {v(SX0+7)}")
        zp(1, zz)
    def softmax_nm():
        k(mul(SX0+2)); k(mul(SX0+3))
        k(f"v_cvt_pk_bf16_f32 {v(PM0)}, {v(SM)}, {v(SM+1)}")
        k(f"v_cvt_pk_bf16_f32 {v(PM1+1)}, {v(SM)}, {v(SM+1)}")
        ex(SX0)
        k(f"v_mfma_f32_16x16x16_bf16 {v(O0,4)}, {v(VM,2)}, {v(PM0,2)}, 0")
        ds(*wq.pop(0))
        ex(SX0+1); ex(SX0+2)
        k(f"v_mfma_f32_16x16x16_bf16 {v(O1,4)}, {v(VM,2)}, {v(PM1,2)}, 0")
        ds(*wq.pop(0))
        ex(SX0+3)
        for i in range(2): k(mul(SX1+i))
        k(f"v_mfma_f32_16x16x16_bf16 {v(RS,4)}, {v(PM0,2)}, {v(ONE,2)}, 0")
        for i in range(2, 4): k(mul(SX1+i))
        ex(SX1); ex(SX1+1)
        k(f"v_cvt_pk_bf16_f32 {v(PK)}, {v(SX0)}, {v(SX0+1)}")
        ex(SX1+2); ex(SX1+3)
        k(f"v_cvt_pk_bf16_f32 {v(PK+1)}, {v(SX0+2)}, {v(SX0+3)}")
        k(f"v_cvt_pk_bf16_f32 {v(PK+2)}, {v(SX0+4)}, {v(SX0+5)}")
        k(f"v_cvt_pk_bf16_f32 {v(PK+3)}, {v(SX0+6)}, {v(SX0+7)}")
        zp(2, zz)
    def softmax_nm2():
        hg = P.get('hg', [12])
        def hls(g):
            for i in range(len(hl)):
                if hg[i] == g: k(hl[i])
        k(f"v_mfma_f32_16x16x16_bf16 {v(O0,4)}, {v(VM,2)}, {v(PM0,2)}, 0")
        ex(SX0+2); ex(SX0+3)
        k(f"v_mfma_f32_16x16x16_bf16 {v(O1,4)}, {v(VM,2)}, {v(PM1,2)}, 0")
        for i in range(2): k(mul(SX1+i))
        ex(SX1)
        k(f"v_mfma_f32_16x16x16_bf16 {v(RS,4)}, {v(PM0,2)}, {v(ONE,2)}, 0")
        for i in range(2, 4): k(mul(SX1+i))
        ex(SX1+1); ex(SX1+2); ex(SX1+3)
        for i in range(4): k(f"v_cvt_pk_bf16_f32 {v(PK+i)}, {v(SX0+2*i)}, {v(SX0+2*i+1)}")
        hls(12)
        zz[:0] = cst[4:6]
        zp(2 - (hg[0] == 12), zz)
    if NM == 2: softmax_nm2()
    elif NM: softmax_nm()
    else: softmax_max(zz, wq)
    tick(7)
    VP4 = AQ + 4
    def pv(zz, hot):
        k(f"v_mfma_f32_16x16x32_bf16 {v(O0,4)}, {v(VX,4)}, {v(PK,4)}, {v(O0,4)}")
        zp(3, zz)
        k(f"v_mfma_f32_16x16x32_bf16 {v(O1,4)}, {v(VX+4,4)}, {v(PK,4)}, {v(O1,4)}")
        zp(3, zz)
        k(f"v_mfma_f32_16x16x32_bf16 {v(RS,4)}, {v(PK,4)}, {v(ONE,4)}, {v(RS,4)}")
        k(f"v_cvt_pk_bf16_f32 {v(OP)}, {v(O0)}, {v(O0+1)}")
        k(f"v_cvt_pk_bf16_f32 {v(OP+1)}, {v(O0+2)}, {v(O0+3)}")
        zp(2, zz)
        k(f"v_cvt_pk_bf16_f32 {v(OP+2)}, {v(O1)}, {v(O1+1)}")
        k(f"v_cvt_pk_bf16_f32 {v(OP+3)}, {v(O1+2)}, {v(O1+3)}")
        if hot: pend[:] = []
        (ds if hot else lambda x, t: k(x))(f"ds_write_b128 {v(VOW)}, {v(OP,4)} offset:{LR}", 'ow')
        zp(1, zz)
        k(f"v_rcp_f32 {v(RI)}, {v(RS+2)}")
        k(f"v_rcp_f32 {v(RI+1)}, {v(RS+3)}")
        zp(9 if not hot or NM != 2 else P.get('zq', 2), zz)
    pv(zz, True)
    BM = 27 if HO else 39
    if NM:
        G = AQ + 5; gc = k.uid('gc'); gb = k.uid('gb')
        if not HO: k("s_movk_i32 s39, 0x1833")
        k(f"v_max3_f32 {v(G)}, {v(RS+2)}, {v(RS+3)}, {v(RI)}")
        k(f"v_max_f32 {v(G)}, {v(G)}, {v(RI+1)}")
        k(f"v_cmp_lt_f32 vcc, {float_hex(2.0 ** P.get('glim', 60))}, {v(G)}")
        def gcold():
            k.label(gc)
            for ks in range(4):
                k(f"ds_read_b64_tr_b16 {v(A,2)}, {v(V8)} offset:{LL + 1024*ks}")
                k(f"ds_read_b64_tr_b16 {v(A+2,2)}, {v(V8)} offset:{LL + 1024*ks + 512}")
                for t in range(2): k(f"ds_read_b128 {v(A+4+4*t,4)}, {v(V16)} offset:{LK + 2048*ks + 1024*t}")
                k("s_waitcnt lgkmcnt(0)")
                for Dd, Aop in ((SM, A), (SX0, A+4), (SX1, A+8)):
                    k(f"v_mfma_f32_16x16x32_bf16 {v(Dd,4)}, {v(Aop,4)}, {v(A,4)}, {'0' if ks == 0 else v(Dd,4)}")
                k("s_nop 7")
            k(f"v_max_f32 {v(T0)}, {v(SM)}, {v(SM+1)}")
            k(f"v_max3_f32 {v(T0)}, {v(T0)}, {v(SX0)}, {v(SX0+1)}")
            k(f"v_max3_f32 {v(T0)}, {v(T0)}, {v(SX0+2)}, {v(SX0+3)}")
            softmax_max([], [])
            pv(zero(A, 12), False)
            k(f"v_lshrrev_b32 {v(VP4)}, 11, {v(VPS)}")
            k(f"v_bfi_b32 {v(VP4)}, s{BM}, {v(VPS)}, {v(VP4)}")
            k("s_waitcnt lgkmcnt(0)")
            k(f"s_branch {gb}")
        cold.append(gcold)
    fil = [f"v_lshrrev_b32 {v(VP4)}, 11, {v(VPS)}", f"v_bfi_b32 {v(VP4)}, s{BM}, {v(VPS)}, {v(VP4)}"] + ([] if HO else set_slots())
    for x in fil[:P.get('fil1', 7)]: k(x)
    fil = fil[P.get('fil1', 7):]
    if NM: k(f"s_cbranch_vccnz {gc}")
    lwait('ow')
    if NM: k.label(gb)
    k("s_barrier")
    ds(f"ds_read_b128 {v(OA,4)}, {v(V16)} offset:{LR}", 'oa0')
    ds(f"ds_read_b128 {v(OA+4,4)}, {v(V16)} offset:{LR+1024}", 'oa1')
    while wq: ds(*wq.pop(0))
    zp(9, zz)
    tick(8)
    for o in (0, 1024): k(f"buffer_load_dwordx4 {v(V16)}, {s(SRD_WS,4)}, s53 offen offset:{o} sc1 lds")
    hm = {0: [], 1: [], 2: ["s_min_u32 s0, s0, s1"], 4: ["s_min_u32 s0, s0, s1", "s_min_u32 s18, s18, s19", "s_min_u32 s0, s0, s18"]}[HAT] + (["s_not_b32 s0, s0"] if HAT else [])
    if HV is not None:
        k("s_waitcnt vmcnt(2)")
        for i, x in enumerate([0, 1, 18, 19]): k(f"v_readlane_b32 s{x}, {v(VDUM)}, {16*i}")
    for x in hm: k(x)
    fil = ["s_sub_u32 s27, s0, s96",
           "s_add_u32 s96, s96, s6", "s_min_i32 s27, s27, s24", "s_max_i32 s27, s27, 0", "s_add_u32 s96, s96, s27",
           "s_add_u32 s0, s96, s22", f"v_and_b32 {v(VDUM)}, s0, -2",
           f"buffer_store_dword {v(VDUM)}, off, {s(SRD_WS,4)}, s12 sc1", "s_sub_u32 s97, s96, s25", "s_sub_u32 s42, s96, 1000", "s_sub_u32 s96, s97, s37",
           "s_add_u32 s33, s33, 1", "s_add_u32 s40, s40, 16384", "s_add_u32 s41, s41, 16384", "s_add_u32 s35, s35, 8192", "s_bitset0_b32 s35, 15"]
    for _ in range(P.get('fil2', 8)): k(fil.pop(0))
    XS = AQ
    def fin(j):
        d = A + 4*j; o = XS + j if j < 4 else d
        x = [f"v_add_f32 {v(d)}, {v(d)}, {v(d+2)}", f"v_add_f32 {v(d+1)}, {v(d+1)}, {v(d+3)}",
             f"v_fma_mixlo_f16 {v(o)}, {v(d)}, {v(RI)}, 0", f"v_fma_mixhi_f16 {v(o)}, {v(d+1)}, {v(RI+1)}, 0"]
        if j in (0, 4): x.append(f"v_bfi_b32 {v(o)}, 1, s34, {v(o)}")
        if j == 4: x.append(f"buffer_store_dword {v(o)}, {v(VP4)}, {s(SRD_WS,4)}, s23 offen {lst}")
        if j == 2: x.append(f"buffer_store_dwordx4 {v(XS,4)}, {v(VPS)}, {s(SRD_WS,4)}, s47 offen {lst}")
        return x
    tiles = [4, 3, 0, 1, 2]
    fins = [(n_, x) for n_, j in enumerate(tiles) for x in fin(j)]
    rp = [wl_s(x, rslot[x]) for x in lseq[:3]]
    wq = dict(zip(P.get('rpos', [0, 1, 3, 4, 5, 7]), rp[0] + rp[1] + rp[2]))
    sq = fil
    per = P.get('fper', [1, 1, 1, 2, 2, 1, 1, 2, 2, 9])
    for n_ in range(10):
        j, ke = tiles[n_ // 2], n_ % 2
        lwait(f'oa{ke}'); lwait(('O', j, ke))
        smf(A + 4*j, OA + 4*ke, WREG.get(('O', j, ke), [WX, WY][ke]))
        if n_ in wq: ds(*wq[n_])
        else:
            for _ in range(2):
                if sq: k(sq.pop(0))
        if n_ == 0: lwait('oa1')
        if n_ < 3: k(WARM)
        else:
            c = 0
            while c < per[n_] and fins and 2 * fins[0][0] + 3 <= n_:
                x = fins.pop(0)[1]; k(x)
                if not x.startswith('buffer'): c += 1
    assert not sq
    for _, x in fins: k(x)
    tick(9)
    nored = k.uid('nored')
    ptr = f"""s_add_u32 s38, s35, s32
        s_add_u32 s36, s35, 4096
        s_mov_b32 s39, s13
        s_add_u32 s13, s13, 16384
        s_add_u32 s12, s12, 16384
        s_add_u32 s53, s53, {1 << SS}
        s_sub_u32 s17, s33, 1
        s_add_u32 s54, s54, {1 << SS}
        s_add_u32 s55, s55, {1 << SS}
        s_add_u32 s15, s15, s21
        s_add_u32 s98, s98, 16384
        s_add_u32 s99, s99, 16384
        s_sub_u32 s6, s6, {P.get('d1', 100)}
        s_max_u32 s6, s6, {P['ltgt']}
        s_sub_u32 s37, s37, {P.get('d2', 100)}
        s_max_u32 s37, s37, s7""".split('\n')
    k("s_memtime s[0:1]")
    for d in range(4): k(f"v_cndmask_b32 {v(SEL+d)}, 0, {v(VPL)}, s[{56+2*d}:{57+2*d}]")
    w1 = P.get('w1', 3)
    for x in ptr[:w1]: k(x)
    k("s_waitcnt lgkmcnt(0)")
    for x in rem(96, 0): k(x)
    k("s_cmp_ge_u32 s28, 80")
    k(f"s_cbranch_scc1 {nored}")
    dloop(27)
    def rload(d):
        k(f"buffer_load_dwordx4 {v(d,4)}, {v(V16)}, {s(SRD_WS,4)}, s48 offen sc1 ;poll")
        k(f"buffer_load_dwordx4 {v(d+4,4)}, {v(V16)}, {s(SRD_WS,4)}, s48 offen offset:1024 sc1 ;poll")
    if TK2 == [99]: tick(3, True)
    rload(RD)
    def house(fm=True):
        if fm: fmget()
        for x in zero(AQ, 8) + zero(AK + 4, 4) + ptr[w1:]: k(x)
    house()
    delay(k, P.get('bdel', 0))
    rl = k.uid('rl'); rcl = k.uid('rc')
    k.label(rl)
    if TK2 == [99]: tick(4, True)
    dbl = P.get('dbl', 1)
    if dbl: rload(AV)
    if TK2 == [99]: tick(5, True)
    k(f"s_waitcnt vmcnt({1 + 2*dbl})")
    if TK2 == [99]: tick(6, True)
    k(f"v_mfma_f32_16x16x32_f16 {v(D,4)}, {v(SEL,4)}, {v(RD,4)}, 0")
    k(f"v_bitop3_b32 {v(T)}, {v(RD+1)}, {v(RD+2)}, s34 bitop3:0x7e")
    k(f"s_waitcnt vmcnt({2*dbl})")
    k(f"v_mfma_f32_16x16x32_f16 {v(D,4)}, {v(SEL,4)}, {v(RD+4,4)}, {v(D,4)}")
    if TK2 == [99]: tick(7, True)
    k(f"v_bitop3_b32 {v(T+2)}, {v(RD+3)}, {v(RD+5)}, s34 bitop3:0x7e")
    k(f"v_bitop3_b32 {v(T+3)}, {v(RD+6)}, {v(RD+7)}, s34 bitop3:0x7e")
    k(f"v_bitop3_b32 {v(A+4)}, {v(RD)}, {v(RD+4)}, s34 bitop3:0x7e")
    k(f"v_or3_b32 {v(T)}, {v(T)}, {v(T+2)}, {v(T+3)}")
    k(f"v_and_or_b32 {v(T)}, {v(T)}, s94, {v(A+4)}")
    k(f"v_and_b32 {v(T)}, 1, {v(T)}")
    k(f"v_cmp_{'f' if ns else 'ne'}_u32 vcc, 0, {v(T)}")
    PB = A + 5
    k(f"""
    v_add_f32_dpp {v(D)}, {v(D)}, {v(D)} row_ror:4 row_mask:0xf bank_mask:0xf
    v_add_f32_dpp {v(D+1)}, {v(D+1)}, {v(D+1)} row_ror:4 row_mask:0xf bank_mask:0xf
    s_cbranch_vccnz {rcl}
    v_add_f32_dpp {v(D)}, {v(D)}, {v(D)} row_ror:8 row_mask:0xf bank_mask:0xf
    v_add_f32_dpp {v(D+1)}, {v(D+1)}, {v(D+1)} row_ror:8 row_mask:0xf bank_mask:0xf
    v_cvt_pk_bf16_f32 {v(D)}, {v(D)}, {v(D+1)}
    v_min_u32 {v(PB)}, 0xfffffffe, {v(D)}
    buffer_store_dword {v(PB)}, {v(VPUB)}, {s(SRD_WS,4)}, s38 offen {lst}
    """)
    if early: k(f"buffer_store_dword {v(PB)}, {v(VPUB)}, {s(SRD_WS,4)}, s39 offen sc1")
    if TK2 == [99]: tick(8, True)
    post = k.uid('post'); k.label(post)
    if early:
        tail()
        k("s_waitcnt lgkmcnt(0)")
    k("s_memtime s[0:1]")
    if early: fmfix()
    k("s_waitcnt lgkmcnt(0)")
    for x in rem(97, 0): k(x)
    def rcold():
        k.label(rcl)
        if dbl:
            k("s_waitcnt vmcnt(0)")
            for i in range(0, 8, 2): k(f"v_mov_b64 {v(RD+i,2)}, {v(AV+i,2)}")
        else: rload(RD)
        k("s_add_u32 s49, s49, 1")
        k(f"s_cmp_gt_u32 s49, {P.get('bound', 20000)}")
        k(f"s_cbranch_scc1 {last}")
        k(f"s_branch {rl}")
    cold.append(rcold)
    join = k.uid('join')
    def nrcold():
        k.label(nored)
        kb = k.uid('kvb'); nc = k.uid('nocal')
        k(f"s_cmp_lg_u32 {s(w)}, 3")
        k(f"s_cbranch_scc1 {nc}")
        k("s_add_u32 s42, s40, 5120")
        if TK:
            for i in range(10): k(f"v_writelane_b32 {v(A+6)}, s{64+2*i}, {i}")
        fmget()
        dloop(27)
        calib(k, P, 27, f"s_buffer_load_dword s42, {s(SRD_WS,4)}, s42")
        k(f"v_mov_b32 {v(VDUM)}, s27")
        k(f"ds_write_b32 {v(VQ)}, {v(VDUM)} offset:{LR+2048}")
        if P.get('dc', 1): k("s_sub_u32 s22, s27, s25"); k("s_mov_b32 s25, s27")
        if TK:
            for i in range(10): k(f"v_readlane_b32 s{64+2*i}, {v(A+6)}, {i}")
        if HAT:
            k(f"v_mov_b32 {v(VDUM)}, -1")
            k(f"buffer_store_dword {v(VDUM)}, {v(VQ)}, {s(SRD_WS,4)}, s91 offen {lst}")
        else: k(f"buffer_load_dword {v(A+16)}, off, {s(SRD_WS,4)}, s91 {P.get('hpc', '')}")
        k("s_add_u32 s91, s91, 16384")
        house(False)
        if early: fmfix()
        k(f"s_add_u32 s38, s38, {P['cdur']}")
        for x in rem(97, 38): k(x)
        if fused:
            k("s_add_u32 s19, s33, 1")
            k("s_min_u32 s19, s19, 63")
            k("s_waitcnt vmcnt(6)")
            k(f"v_cmp_ge_u32 vcc, s19, {v(VSEL)}")
            k("s_and_b32 s39, vcc_lo, 0xfff")
            k(f"s_cbranch_scc0 {kb}")
            kvspin(kb)
            k.label(kb)
        else: k("s_waitcnt vmcnt(6)")
        if early: tail()
        else: k(f"s_mov_b32 s39, {WS_SIZE}")
        k(f"s_branch {join}")
        k.label(nc)
        house()
        k(f"s_mov_b32 s39, {WS_SIZE}")
        k("s_waitcnt vmcnt(5)")
        k(f"s_branch {post}")
    cold.append(nrcold)
    k.label(join)
    tick(10)
    dloop(27)
    k.label(entry)
    tick(11)
    poll_local()
    tc = k.uid('tc'); dl3 = k.uid('dl')
    if not early:
        k(f"buffer_store_dword {v(PB)}, {v(VPUB)}, {s(SRD_WS,4)}, s39 offen sc1")
        tail(); fmfix()
        k("s_waitcnt vmcnt(4)")
        for x in zero(AV, 8): k(x)
        tail2()
    k("s_waitcnt lgkmcnt(0)")
    k("s_memtime s[0:1]")
    k(f"""
    s_cmp_eq_u32 s42, -1
    s_cbranch_scc1 {tc}
    s_sub_u32 s42, s42, s25
    s_add_i32 s42, s42, {P['rgap']}
    s_waitcnt lgkmcnt(0)
    s_sub_u32 s27, s42, s0
    s_cmpk_lt_u32 s27, 4000
    s_cselect_b32 s27, s27, 0
    """)
    k(".p2align 3")
    k.label(dl3)
    k(f"s_sub_u32 s27, s27, {P['dit']}")
    k(f"s_cbranch_scc0 {dl3}")
    if not rin: k("s_barrier")
    tick(12)
    if not rin: poll_rr()
    def tcold():
        k.label(tc)
        k(f"""
        s_add_u32 s44, s44, 1
        s_add_u32 s38, s40, 5120
        buffer_load_dword {v(VDUM)}, off, {s(SRD_WS,4)}, s38 sc1
        s_waitcnt vmcnt(0)
        s_memtime s[0:1]
        v_readfirstlane_b32 s42, {v(VDUM)}
        s_mov_b32 s27, 0
        s_waitcnt lgkmcnt(0)
        s_sub_u32 s38, s0, s97
        s_cmp_gt_u32 s38, {P.get('tcap', 3000)}
        s_cbranch_scc1 {dl3}
        s_cmp_eq_u32 s42, -1
        s_cbranch_scc1 {tc}
        s_sub_u32 s42, s42, s25
        s_sub_u32 s27, s42, s0
        s_add_i32 s27, s27, {P['rgap']}
        s_cmpk_lt_u32 s27, 4000
        s_cselect_b32 s27, s27, 0
        s_branch {dl3}
        """)
    cold.append(tcold)
    if early:
        k("s_waitcnt vmcnt(6)")
        for x in zero(AV, 8): k(x)
        tail2()
    k(f"v_mov_b32 {v(VMC+3)}, {LR + 2048 + 768}")
    if not rin: k(f"ds_read_b32 {v(VMC+2)}, {v(VMC+3)}")
    if TK:
        if P.get('rmeas'):
            k("s_waitcnt vmcnt(2)"); tick(3); k("s_waitcnt vmcnt(0)"); tick(1)
        k("s_waitcnt lgkmcnt(0)")
        for i in [10, 11, 12] + ([1, 3] if P.get('rmeas') else []): k(f"v_writelane_b32 {v(A+8)}, s{64+2*i}, {i}")
        k("s_mov_b64 exec, 0xffff")
        k(f"buffer_store_dword {v(A+8)}, {v(A+9)}, {s(SRD_WS,4)}, s39 offen")
        k("s_mov_b64 exec, -1")
    k(f"s_branch {loop}")
    for c in cold: c()
    k.label(lastpub)
    k(f"s_add_u32 s55, s55, {1 << SS}")
    k("s_waitcnt vmcnt(0)")
    fmget()
    k("s_waitcnt lgkmcnt(0)")
    fmfix()
    k(fmst)
    k(f"v_mov_b32 {v(VDUM)}, 64")
    k("s_waitcnt vmcnt(0)")
    k("s_barrier")
    k(f"buffer_store_dword {v(VDUM)}, off, {s(SRD_WS,4)}, s50 sc1")
    k(f"s_branch {last}")

def team_end(k):
    stamp(k, 2, 20)
    if STAMPS:
        k(f"""
        s_lshl_b32 s94, {s(S_WG)}, 10
        s_lshl_b32 s95, {s(S_WAVE)}, 8
        s_add_u32 s94, s94, s95
        s_add_u32 s94, s94, {WS_STAMP}
        """)
        for i, sr in enumerate([43, 44, 45, 46, 49, 33]):
            k(f"v_mov_b32 v20, s{sr}")
            k(f"buffer_store_dword v20, off, {s(SRD_WS,4)}, s94 offset:{16+4*i}")

TP = dict(nomax=2, tick=False, dit=28, sc1early=0, dbl=0, rgap=240, cdur=300, tlead=700, vl=[6,6], rin=2, rc=24, rb=4, sx=30, hs=3, sp=[8,10,14,40], rtgt=1960, ltgt=2560)

if __name__ == '__main__':
    ks = build_dev()
    variants = eval(open('tvariants.txt').read())
    for n, d in variants.items():
        P = dict(TP); P.update(d)
        k = Kernel(f"team{n}_kernel"); prologue(k)
        k.timed = True
        k(f"s_cmp_ge_u32 {s(S_X)}, 2")
        k(f"s_cbranch_scc1 {k.name}_exit")
        role_team(k, P)
        epilogue(k); ks.append(k)
    emit(ks, 'dev.s')
```

```python
NAME = "recurrent_scan__memory_aug_recurrent_mem_tr__dense_activation_mish__prompt"
WS_SIZE = 256 << 20
WS_XN   = 0x0000000
WS_Q    = 0x0400000
WS_K    = WS_Q + 8192
WS_VT   = WS_Q + 16384
WS_FM   = WS_Q + 24576
HS = 21; SS = 15
WS_ACT  = 0x4400000
WS_O    = 0x4C00000
WS_SYNC = 0x5C00000
SY_PART = 0x00000
PART_SLOT = 80 * 2048
PART_GRP = 2 * PART_SLOT
SY_MEML = 0x140000
SY_MEMR = 0x200000
SY_FLAG = 0x160000
SY_HINT = 0x170000
FL_G1   = 0x0000
FL_FF   = 0x2000
FL_FM   = 0x2400
FL_O    = 0x3000
FL_AN   = 0x3800
FL_LN   = 0x3a00
N_INIT  = 1
DB_MI   = 80
FL_END  = 0x4000
DB_TICK, DB_SNAP, DB_INIT, DB_LN, DB_POL = 0, 72, 64, 128, 68
SY_END  = SY_FLAG + FL_END
SPIN_MAX = 100000
SKEW=[0]
```

```python
import sys
import gen
DEV = len(sys.argv) > 1 and sys.argv[1] == 'dev'
gen.STAMPS = DEV
from gen import *
import team3, work
team3.STAMPS = DEV

def fprologue(k, P):
    ex = f"{k.name}_exit"
    k(f"""
    s_load_dwordx16 s[64:79], s[0:1], 0
    s_load_dwordx8 s[80:87], s[0:1], 64
    s_load_dwordx4 s[88:91], s[0:1], 96
    v_lshrrev_b32 v1, 6, v0
    v_and_b32 v0, 63, v0
    v_readfirstlane_b32 {s(S_WAVE)}, v1
    s_getreg_b32 s6, hwreg(HW_REG_XCC_ID)
    s_and_b32 s6, s6, 7
    s_lshl_b32 s7, s6, 3
    s_lshl_b64 s[28:29], 1, s7
    v_mov_b32 v4, 0
    s_waitcnt lgkmcnt(0)
    """)
    srd(k, SRD_WS, KA_WS, WS_SIZE)
    srd(k, SRD_DBG, KA_DBG, 256)
    nt = k.uid('notick')
    k(f"""
    s_cmp_lg_u32 {s(S_WAVE)}, 0
    s_cbranch_scc1 {nt}
    v_mov_b32 v2, s28
    v_mov_b32 v3, s29
    s_mov_b64 exec, 1
    buffer_atomic_add_x2 v[2:3], off, {s(SRD_DBG,4)}, 0 offset:{DB_TICK} sc0 sc1
    s_mov_b64 exec, -1
    """)
    k.label(nt)
    npf = P.get('npf', 0); wp = P.get('wp', [])
    wl = k.uid('pfw'); pe = k.uid('pfe')
    k(f"""
    s_bfe_u32 s30, s2, 0x50003
    s_cmp_ge_u32 s6, 2
    s_cbranch_scc1 {wl}
    """)
    srd(k, SRD_A, KA_WQ, 640 * 8192)
    k(f"""
    v_lshrrev_b32 v5, 1, v0
    v_lshlrev_b32 v5, 13, v5
    v_and_b32 v6, 1, v0
    v_lshl_add_u32 v5, v6, 7, v5
    s_lshl_b32 s30, s30, 8
    s_lshl_b32 s31, {s(S_WAVE)}, 18
    s_add_u32 s30, s30, s31
    s_mul_i32 s31, s6, {320*8192}
    s_add_u32 s32, s30, s31
    s_sub_u32 s31, {320*8192}, s31
    s_add_u32 s33, s30, s31
    """)
    for i in range(npf):
        if i % 2: k(f"s_add_u32 s{32 + i//2}, s{32 + i//2}, {128*8192}")
        k(f"buffer_load_dword v200, v5, {s(SRD_A,4)}, s{32 + i//2} offen")
    k(f"s_waitcnt vmcnt({npf})")
    k(f"s_branch {pe}")
    k.label(wl)
    k(f"""
    s_mul_i32 s30, s30, 6
    s_add_u32 s30, s30, s6
    s_sub_u32 s30, s30, 2
    s_lshl_b32 s30, s30, 2
    s_add_u32 s30, s30, {s(S_WAVE)}
    s_lshl_b32 s30, s30, 13
    v_lshlrev_b32 v5, 7, v0
    """)
    for ka in wp:
        srd(k, SRD_A, dict(q=KA_WQ, k=KA_WK, v=KA_WV, o=KA_WO)[ka], 640 * 8192)
        k(f"buffer_load_dword v200, v5, {s(SRD_A,4)}, s30 offen {P.get('wpc', '')}")
    k(f"s_waitcnt vmcnt({len(wp)})")
    k.label(pe)
    k(f"""
    s_cmp_eq_u32 {s(S_WAVE)}, 0
    s_cselect_b32 exec_lo, 1, 0
    s_mov_b32 exec_hi, 0
    ds_write_b64 v4, v[2:3]
    s_mov_b64 exec, -1
    s_waitcnt lgkmcnt(0)
    """)
    k(f"""
    s_barrier
    ds_read_b64 v[2:3], v4
    s_waitcnt lgkmcnt(0)
    s_barrier
    v_sad_u8 v5, v2, 0, 0
    v_sad_u8 v5, v3, 0, v5
    v_readfirstlane_b32 s30, v2
    v_readfirstlane_b32 s31, v3
    v_readfirstlane_b32 s32, v5
    s_cmp_ge_u32 s32, 256
    s_cbranch_scc1 {ex}
    s_lshr_b64 s[34:35], s[30:31], s7
    s_and_b32 {s(S_T)}, s34, 255
    s_mov_b32 {s(S_X)}, s6
    """)
    nz = k.uid('nz'); ns = k.uid('nsnap')
    k(f"""
    s_cmp_lg_u32 {s(S_WAVE)}, 0
    s_cbranch_scc1 {nz}
    s_cmp_lg_u32 s32, 255
    s_cbranch_scc1 {nz}
    s_add_u32 s34, s30, s28
    s_addc_u32 s35, s31, s29
    v_mov_b32 v2, s34
    v_mov_b32 v3, s35
    buffer_store_dwordx2 v[2:3], off, {s(SRD_DBG,4)}, 0 offset:{DB_SNAP} sc1
    """)
    k.label(nz)
    ok = k.uid('roleok'); sp = k.uid('snsp'); got = k.uid('sngot')
    k(f"""
    s_cmp_lt_u32 {s(S_T)}, 32
    s_cbranch_scc1 {ok}
    s_mov_b32 s36, 0
    """)
    k.label(sp)
    k(f"""
    buffer_load_dwordx2 v[2:3], off, {s(SRD_DBG,4)}, 0 offset:{DB_SNAP} sc1
    s_waitcnt vmcnt(0)
    v_readfirstlane_b32 s34, v2
    v_readfirstlane_b32 s35, v3
    s_cmp_lg_u64 s[34:35], 0
    s_cbranch_scc1 {got}
    s_add_u32 s36, s36, 1
    s_cmp_gt_u32 s36, {SPIN_MAX}
    s_cbranch_scc1 {ex}
    s_sleep 2
    s_branch {sp}
    """)
    k.label(got)
    k(f"s_sub_u32 s37, {s(S_T)}, 32")
    for x in range(7):
        k(f"""
        s_bfe_u32 s38, s{34 + x//4}, {(8 << 16) | (8*(x % 4))}
        s_max_u32 s38, s38, 32
        s_sub_u32 s38, s38, 32
        s_cmp_gt_u32 s6, {x}
        s_cselect_b32 s38, s38, 0
        s_add_u32 s37, s37, s38
        """)
    k(f"s_mov_b32 {s(S_X)}, 7")
    k(f"s_mov_b32 {s(S_T)}, 31")
    k("s_mov_b32 s40, 0")
    for x in range(8):
        k(f"""
        s_bfe_u32 s38, s{34 + x//4}, {(8 << 16) | (8*(x % 4))}
        s_min_u32 s38, s38, 32
        s_add_u32 s39, s38, s37
        s_cmp_lt_u32 s39, 32
        s_cselect_b32 s41, 1, 0
        s_andn2_b32 s41, s41, s40
        s_or_b32 s40, s40, s41
        s_cmp_lg_u32 s41, 0
        s_cselect_b32 {s(S_X)}, {x}, {s(S_X)}
        s_cselect_b32 {s(S_T)}, s39, {s(S_T)}
        s_sub_u32 s37, s39, 32
        """)
    k.label(ok)
    k(f"""
    s_lshl_b32 {s(S_WG)}, {s(S_T)}, 3
    s_add_u32 {s(S_WG)}, {s(S_WG)}, {s(S_X)}
    """)

def role_pol(k):
    k(f"""
    s_mov_b32 s30, -1
    s_mov_b32 s31, -1
    s_mov_b32 s32, {WS_SYNC+SY_MEMR+6144}
    s_mov_b32 s33, 0
    v_lshlrev_b32 v5, 2, v0
    s_mov_b64 exec, 0xffff
    """)
    l = k.uid('pol'); k.label(l)
    for p in range(2):
        k(f"""
        s_memtime s[34:35]
        s_waitcnt lgkmcnt(0)
        buffer_store_dword v5, v5, {s(SRD_WS,4)}, s32 offen sc1
        s_waitcnt vmcnt(0)
        s_memtime s[36:37]
        s_add_u32 s32, s32, 8192
        s_waitcnt lgkmcnt(0)
        s_sub_u32 s36, s36, s34
        s_min_u32 s{30+p}, s{30+p}, s36
        """)
    k(f"""
    s_add_u32 s33, s33, 1
    s_cmp_lt_u32 s33, 8
    s_cbranch_scc1 {l}
    s_cmp_lt_u32 s31, s30
    s_cselect_b32 s33, 3, 2
    v_mov_b32 v6, s33
    buffer_store_dword v6, off, {s(SRD_DBG,4)}, 0 offset:{DB_POL} sc1
    s_mov_b64 exec, -1
    """)
    if DEV:
        k(f"v_mov_b32 v6, s30\nv_mov_b32 v7, s31\nbuffer_store_dwordx2 v[6:7], off, {s(SRD_DBG,4)}, 0 offset:200 sc1")

def build(name, P):
    k = Kernel(name); k.timed = True
    HOLD[:] = P.get('hold', [0])
    SKEW[0] = P.get('skew', 0); AN[0] = P.get('an', 0x3800)
    for x in OPT: OPT[x] = P.get('c_' + x, 'sc1')
    OPT['touch'] = P.get('touch', 0) & 1
    OPT['fs'] = P.get('fs', 0)
    fprologue(k, P)
    ex = f"{k.name}_exit"
    wk = k.uid('worker')
    k(f"s_cmp_ge_u32 {s(S_X)}, 2")
    k(f"s_cbranch_scc1 {wk}")
    if P.get('perm') is not None:
        k(f"""
        s_lshr_b32 s6, {s(S_T)}, 3
        s_add_u32 s6, s6, {P['perm']}
        s_and_b32 s6, s6, 3
        s_and_b32 {s(S_T)}, {s(S_T)}, 7
        s_lshl_b32 {s(S_T)}, {s(S_T)}, 2
        s_add_u32 {s(S_T)}, {s(S_T)}, s6
        s_lshl_b32 {s(S_WG)}, {s(S_T)}, 3
        s_add_u32 {s(S_WG)}, {s(S_WG)}, {s(S_X)}
        """)
    team3.role_team(k, P, fused=True)
    k("s_endpgm")
    k.label(wk)
    k(f"""
    s_sub_u32 {s(S_T)}, 31, {s(S_T)}
    s_lshl_b32 {s(S_WG)}, {s(S_T)}, 3
    s_add_u32 {s(S_WG)}, {s(S_WG)}, {s(S_X)}
    """)
    stamp(k, 3, 6)
    noln = k.uid('noln'); nw0 = k.uid('nw0'); nz = k.uid('nzero'); nf = k.uid('nlf')
    k(f"""
    s_cmp_lg_u32 {s(S_WG)}, {31*8+2}
    s_cbranch_scc1 {nw0}
    s_cmp_lg_u32 {s(S_WAVE)}, 0
    s_cbranch_scc1 {nw0}
    s_mov_b32 s6, {WS_SYNC+SY_FLAG}
    v_mov_b32 v4, 0
    v_mov_b32 v5, 0
    v_mov_b32 v6, 0
    v_mov_b32 v7, 0
    v_lshlrev_b32 v8, 4, v0
    """)
    for i in range(16):
        if i and i % 4 == 0: k("s_add_u32 s6, s6, 4096")
        k(f"buffer_store_dwordx4 v[4:7], v8, {s(SRD_WS,4)}, s6 offen offset:{1024*(i%4)} sc1")
    k(f"""
    v_mov_b32 v9, {N_INIT}
    s_waitcnt vmcnt(0)
    buffer_store_dword v9, off, {s(SRD_DBG,4)}, 0 offset:{DB_INIT} sc1
    """)
    role_pol(k)
    k.label(nw0)
    k(f"""
    s_sub_u32 s7, 31, {s(S_T)}
    s_mul_i32 s7, s7, 6
    s_add_u32 s7, s7, {s(S_X)}
    s_sub_u32 s7, s7, 3
    s_cmp_ge_u32 s7, 32
    s_cbranch_scc1 {noln}
    s_lshl_b32 s6, {s(S_WAVE)}, 5
    s_add_u32 s6, s6, s7
    """)
    role_ln(k, 6)
    wait_dbg(k, ln=False)
    k(f"""
    s_waitcnt vmcnt(0)
    s_barrier
    s_cmp_lg_u32 {s(S_WAVE)}, 0
    s_cbranch_scc1 {noln}
    s_lshl_b32 s7, s7, 2
    s_add_u32 s7, s7, {WS_SYNC+SY_FLAG+FL_LN}
    v_lshlrev_b32 v8, 8, v0
    v_mov_b32 v9, 1
    s_mov_b64 exec, 63
    buffer_store_dword v9, v8, {s(SRD_WS,4)}, s7 offen sc1
    s_mov_b64 exec, -1
    """)
    k.label(noln)
    nmi = k.uid('nmi')
    k(f"""
    s_cmp_ge_u32 {s(S_X)}, 4
    s_cbranch_scc1 {nmi}
    s_sub_u32 s6, {s(S_T)}, 8
    s_cmp_ge_u32 s6, 16
    s_cbranch_scc1 {nmi}
    s_lshl_b32 s6, s6, 2
    s_add_u32 s6, s6, {s(S_WAVE)}          ; slot
    s_lshl_b32 s7, {s(S_X)}, 20
    s_add_u32 s7, s7, {WS_SYNC+SY_MEMR-(2<<20)}
    s_cmp_eq_u32 s6, 0
    s_cselect_b32 s7, {WS_SIZE}, s7
    s_lshl_b32 s6, s6, 14
    s_add_u32 s6, s6, s7
    v_mov_b32 v4, -1
    v_mov_b32 v5, -1
    v_mov_b32 v6, -1
    v_mov_b32 v7, -1
    v_lshlrev_b32 v8, 4, v0
    """)
    for hf in range(2):
        for i in range(4): k(f"buffer_store_dwordx4 v[4:7], v8, {s(SRD_WS,4)}, s6 offen offset:{1024*i} sc1")
        k("s_add_u32 s6, s6, 4096")
        k(f"buffer_store_dwordx4 v[4:7], v8, {s(SRD_WS,4)}, s6 offen sc1")
        k("s_mov_b64 exec, 0xff")
        k(f"buffer_store_dwordx4 v[4:7], v8, {s(SRD_WS,4)}, s6 offen offset:1024 sc1")
        k("s_mov_b64 exec, -1")
        k("s_add_u32 s6, s6, 4096")
    k(f"""
    v_mov_b32 v9, 1
    s_waitcnt vmcnt(0)
    s_barrier
    s_cmp_lg_u32 {s(S_WAVE)}, 0
    s_cbranch_scc1 {nmi}
    s_mov_b64 exec, 1
    buffer_atomic_add v9, off, {s(SRD_DBG,4)}, 0 offset:{DB_MI} sc1
    s_mov_b64 exec, -1
    """)
    k.label(nmi)
    n31 = k.uid('n31')
    k(f"s_cmp_lg_u32 {s(S_T)}, 31")
    k(f"s_cbranch_scc1 {n31}")
    wait_dbg(k, ln=False)
    k(f"""
    s_barrier
    s_lshl_b32 s49, {s(S_X)}, 5
    s_add_u32 s49, s49, {s(S_WAVE)}
    s_lshl_b32 s49, s49, 2
    s_add_u32 s49, s49, {WS_SYNC+SY_FLAG+FL_FF - 256 + 112}
    v_mov_b32 v6, 64
    buffer_store_dword v6, off, {s(SRD_WS,4)}, s49 sc1
    """)
    k.label(n31)
    role_gemm1(k, fused=True)
    att = k.uid('att')
    k(f"""
    s_sub_u32 s6, {s(S_X)}, 2
    s_cmp_ge_u32 {s(S_T)}, 20
    s_cbranch_scc1 {att}
    """)
    work.role_out(k, 6, S_T, fused=True)
    stamp(k, 4, 6)
    k("s_endpgm")
    k.label(att)
    k(f"""
    s_sub_u32 s7, 31, {s(S_T)}
    s_mul_i32 s7, s7, 6
    s_add_u32 s6, s6, s7
    s_cmp_ge_u32 s6, 64
    s_cbranch_scc1 {ex}
    """)
    work.role_att(k, 6, fused=True)
    stamp(k, 4, 6)
    epilogue(k)
    return k

if __name__ == '__main__':
    if DEV:
        variants = eval(open('fvariants.txt').read())
        ks = []
        for n, d in variants.items():
            P = dict(team3.TP); P.update(d)
            ks.append(build(f"f{n}_kernel", P))
        emit(ks, 'dev.s')
    else:
        P = dict(team3.TP); P.update(eval(sys.argv[2]) if len(sys.argv) > 2 else {})
        k = build(NAME + "_kernel", P)
        n = k.pad(); wn = k.lint()
        print(k.count(), n, len(wn))
        open(sys.argv[1] if len(sys.argv) > 1 else 'cdna_kernels/' + NAME + '.s', 'w').write("; @launch grid=(256,1,1) block=(256,1,1) lds=163840\n" + '.amdgcn_target "amdgcn-amd-amdhsa--gfx950"\n' + kernel_block(k.name, k.text()))
```

```python
import sys, math
from gen import *

LK, LL, LR, LW, LWS = 0, 8192, 12288, 16384, 36864
ACC = 16; A = 40; PP = 60; WB = 96
AQ, AK, AV = ACC, ACC + 8, ACC + 16
SRD_WO = 96
V16, VIDX, VFW, V8, VOW, VPS, VPL, VPUB, VLW, VC0, VQ, VSEL, VDUM = 0, 1, 2, 3, 4, 5, 6, 7, 8, 9, 13, 14, 15
HINT_OFF = 16384 + 6144

LGRP = [('L', 0, 1), ('L', 1, 2), ('L', 2, 2), ('L', 3, 2), ('L', 4, 2), ('R', 3, 1), ('R', 4, 1), ('R', 0, 2)]
LKEYS = [g + (t,) for g in LGRP for t in range(2)] + [('L', 0, 2, 0), ('L', 1, 1, 1)]
WLDS = {}
WREG = {}
for key in [(l, i, m, t) for l in 'LR' for i in range(5) for m in range(3) for t in range(2)] + [('O', j, ke) for j in range(5) for ke in range(2)]:
    if key not in LKEYS: WREG[key] = WB + 8 * len(WREG)
assert len(WREG) == 52
WS_ST2 = 0x7000000

def delay(k, n):
    n = n // 4
    while n > 0:
        t = min(n, 16); k(f"s_nop {t-1}"); n -= t

def calib(k, P, dst, mid=None):
    k("s_memtime s[38:39]")
    for i in range(11):
        k(f"s_memrealtime s[{64+2*i}:{65+2*i}]")
        k("s_nop 0")
    k("s_waitcnt lgkmcnt(0)")
    if mid: k(mid)
    k(f"s_add_u32 s{dst}, s64, s66")
    for i in range(2, 11): k(f"s_add_u32 s{dst}, s{dst}, s{64+2*i}")
    k(f"s_lshl_b32 s{dst}, s{dst}, 1")
    k(f"s_sub_u32 s{dst}, s{dst}, s38")

def role_team(k, P, fused=False, confirm=None):
    b = S_X; h = S_T; w = S_WAVE
    lst = P.get('lst', '')
    last = k.uid('last')
    srd(k, SRD_A, KA_WQ, 640 * 8192); srd(k, SRD_B, KA_WK, 640 * 8192); srd(k, SRD_C, KA_WV, 640 * 8192)
    srd(k, SRD_WO, KA_WO, 4096 * 1280)
    SR = [SRD_A, SRD_B, SRD_C]
    k(f"""
    v_lshrrev_b32 v16, 3, v0            ; rho
    v_and_b32 v17, 7, v0                ; cc
    v_and_b32 v18, 1, v16
    v_lshlrev_b32 v20, 2, v18           ; 4(rho&1)
    v_and_b32 v19, 2, v16
    v_add_u32 v20, v20, v19             ; + 2((rho>>1)&1)
    v_lshrrev_b32 v21, 2, v16
    v_add_u32 v20, v20, v21             ; + (rho>>2)
    v_lshlrev_b32 v20, 13, v20
    v_lshlrev_b32 v22, 1, v19
    v_xor_b32 v22, v22, v17
    v_lshl_add_u32 v20, v22, 4, v20
    v_lshl_add_u32 v21, v21, 2, v18
    v_lshl_add_u32 v21, v19, 2, v21     ; + 8((rho>>1)&1)
    v_mul_u32_u24 v21, 1280, v21
    v_lshl_add_u32 v21, v17, 4, v21
    s_mul_i32 s37, {s(w)}, {LWS}
    s_add_u32 s37, s37, {LW}
    s_lshl_b32 s38, {s(h)}, 8
    s_lshr_b32 s39, {s(w)}, 1
    s_lshl_b32 s39, s39, 7
    s_add_u32 s38, s38, s39
    s_mul_i32 s39, {s(b)}, {5*64*8192}
    s_add_u32 s50, s38, s39
    s_sub_u32 s39, {5*64*8192}, s39
    s_add_u32 s51, s38, s39
    s_lshl_b32 s39, {s(w)}, 19
    s_add_u32 s40, s50, s39             ; L type A
    s_add_u32 s42, s51, s39             ; R type A
    s_xor_b32 s39, s39, {2 << 19}
    s_add_u32 s41, s50, s39             ; L type B
    s_add_u32 s43, s51, s39             ; R type B
    s_bitcmp1_b32 {s(w)}, 0
    s_cselect_b32 s44, s51, s50
    s_add_u32 s44, s44, {4 << 19}       ; type C
    s_mul_i32 s45, {s(h)}, 163840
    s_mul_i32 s39, {s(b)}, 640
    s_add_u32 s45, s45, s39
    s_mul_i32 s46, {s(w)}, {32*1280}
    s_add_u32 s46, s46, s45
    s_add_u32 s46, s46, 512
    s_lshl_b32 s39, {s(w)}, 7
    s_add_u32 s45, s45, s39
    """)
    VOWN, VPAR, VEVN, VODD, VWO, VT4A, VT4B = 23, 24, 25, 26, 27, 28, 29
    def qkv_batch(sb, m, k0, a0, k1, a1):
        dm = [(SR[m], sb, 8*j*8192, 20) for j in range(8)]
        rd = []
        for kk, va in ((k0, a0), (k1, a1)):
            for t in range(2):
                for u in range(2):
                    for vv in range(2): rd.append((kk + (m, t), 4*u + 2*vv, va, u*4096 + vv*1024 + 8*t))
        return dm, rd
    def wo_batch(ke):
        dm = [(SRD_WO, 45, (64*ke + 32*(j >> 2) + 16*((j >> 1) & 1) + 2*(j & 1)) * 1280, 21) for j in range(8)]
        rd = [(('O', j, ke), 4*u + 2*vv, VWO, u*4096 + vv*1024 + 8*j) for j in range(4) for u in range(2) for vv in range(2)]
        return dm, rd
    B = {}
    for m in range(3):
        B['LA', m] = qkv_batch(40, m, ('L', 0), VOWN, ('L', 2), VPAR)
        B['LB', m] = qkv_batch(41, m, ('L', 3), VOWN, ('L', 4), VPAR)
        B['RA', m] = qkv_batch(42, m, ('R', 0), VOWN, ('R', 2), VPAR)
        B['RB', m] = qkv_batch(43, m, ('R', 3), VOWN, ('R', 4), VPAR)
        B['C', m] = qkv_batch(44, m, ('L', 1), VEVN, ('R', 1), VODD)
    for ke in range(2): B['O', ke] = wo_batch(ke)
    nl = lambda x: len({r[0] for r in B[x][1] if r[0] in LKEYS})
    order = sorted(B, key=nl)
    NB = len(order)
    SPARE = 32768
    vq = []
    def issue(dm, ldsoff, tag):
        for j, (sr, sb, c, vg) in enumerate(dm):
            k(f"s_add_u32 s39, s{sb}, {c}")
            k(f"s_add_u32 m0, s37, {ldsoff + j*1024}")
            k(f"buffer_load_dwordx4 {v(vg)}, {s(sr,4)}, s39 offen lds")
            vq.append(tag)
    def vwait(tag):
        idx = max(i for i, t in enumerate(vq) if t == tag)
        k(f"s_waitcnt vmcnt({len(vq) - idx - 1})")
        del vq[:idx+1]
    issue([(SRD_WO, 46, (16*(j >> 1) + 2*(j & 1)) * 1280, 21) for j in range(4)], SPARE, 'o4')
    for n in range(4): issue(B[order[n]][0], n * 8192, n)
    stamp(k, 0, 30)
    if STAMPS: vq.extend(['st', 'st'])
    k(f"""
    v_lshrrev_b32 v16, 4, v0            ; g
    v_and_b32 v17, 15, v0               ; n
    v_bfe_u32 v18, v0, 1, 1
    v_mov_b32 {v(VIDX)}, 0x4444
    v_mul_u32_u24 v18, 0xaaaa, v18
    v_add_u32 {v(VIDX)}, {v(VIDX)}, v18
    s_lshl_b32 s35, {s(w)}, 10
    v_lshlrev_b32 {v(VFW)}, 5, v17
    v_lshl_add_u32 {v(VFW)}, v16, 3, {v(VFW)}
    v_add_u32 {v(VFW)}, s35, {v(VFW)}
    v_lshlrev_b32 {v(V8)}, 3, v0
    v_lshrrev_b32 v18, 1, v16
    v_lshlrev_b32 {v(VOW)}, 8, v18
    v_and_b32 v18, 1, v16
    v_lshl_add_u32 {v(VOW)}, v18, 5, {v(VOW)}
    v_lshrrev_b32 v18, 2, v17
    v_lshl_add_u32 {v(VOW)}, v18, 6, {v(VOW)}
    v_and_b32 v18, 1, v17
    v_lshl_add_u32 {v(VOW)}, v18, 4, {v(VOW)}
    v_bfe_u32 v18, v17, 1, 1
    v_xor_b32 v18, 1, v18
    v_lshl_add_u32 {v(VOW)}, v18, 11, {v(VOW)}
    s_lshl_b32 s36, {s(w)}, 9
    v_add_u32 {v(VOW)}, s36, {v(VOW)}
    v_and_b32 v18, 12, v17
    v_add_u32 v18, v18, v16
    v_lshlrev_b32 {v(VPS)}, 11, v18
    v_and_b32 v18, 3, v17
    v_lshl_add_u32 {v(VPS)}, v18, 4, {v(VPS)}
    v_bfe_u32 v19, v17, 1, 1
    v_lshlrev_b32 {v(VPUB)}, 5, v19
    v_and_b32 v19, 1, v17
    v_lshl_add_u32 {v(VPUB)}, v19, 3, {v(VPUB)}
    v_lshrrev_b32 v19, 1, v16
    v_lshl_add_u32 {v(VPUB)}, v19, 4, {v(VPUB)}
    v_mul_u32_u24 v22, 1280, v19
    v_and_b32 v19, 1, v16
    v_lshl_add_u32 {v(VPUB)}, v19, 2, {v(VPUB)}
    ; mem0 voff (v22) = p*1280 + (8a+i)*2
    v_lshl_add_u32 v18, v19, 3, v18
    v_lshl_add_u32 v22, v18, 1, v22
    v_bfe_u32 v18, v17, 3, 1
    v_lshlrev_b32 v18, 4, v18
    v_mov_b32 v19, 0x3c00
    v_lshlrev_b32 {v(VPL)}, v18, v19
    ; staging read addresses: rows part = (g>>1)*2048 + ((g&1)*4 + r)*128
    v_lshrrev_b32 v18, 1, v16
    v_lshlrev_b32 v19, 11, v18
    v_bfe_u32 v18, v0, 2, 3
    v_lshl_add_u32 v19, v18, 7, v19
    v_and_b32 v18, 3, v0                ; c
    v_lshl_add_u32 {v(VWO)}, v18, 5, v19
    v_add_u32 {v(VWO)}, s37, {v(VWO)}
    v_lshl_add_u32 {v(VT4A)}, v18, 3, v19
    s_lshl_b32 s38, {s(w)}, 5
    s_add_u32 s38, s38, {LW + SPARE}
    v_add_u32 {v(VT4A)}, s38, {v(VT4A)}
    v_add_u32 {v(VT4B)}, {2*LWS}, {v(VT4A)}
    v_lshl_add_u32 v19, v18, 4, v19
    v_bfe_u32 v18, v0, 3, 1             ; r>>1
    s_and_b32 s38, {s(w)}, 1
    v_xor_b32 v18, s38, v18
    v_lshl_add_u32 v19, v18, 6, v19
    v_add_u32 {v(VOWN)}, s37, v19
    s_xor_b32 s38, {s(w)}, 1
    s_mul_i32 s38, s38, {LWS}
    s_add_u32 s38, s38, {LW}
    v_add_u32 {v(VPAR)}, s38, v19
    v_min_u32 {v(VEVN)}, {v(VOWN)}, {v(VPAR)}
    v_max_u32 {v(VODD)}, {v(VOWN)}, {v(VPAR)}
    v_lshlrev_b32 {v(V16)}, 4, v0
    v_add_u32 {v(VLW)}, s37, {v(V16)}
    v_add_u32 {v(VC0)}, s35, {v(V16)}
    v_lshrrev_b32 {v(VQ)}, 2, {v(VC0)}
    v_xor_b32 {v(VC0+1)}, 0x400, {v(VC0)}
    v_xor_b32 {v(VC0+2)}, 0x800, {v(VC0)}
    v_xor_b32 {v(VC0+3)}, 0xc00, {v(VC0)}
    """)
    k(f"""
    s_mul_i32 s39, {s(b)}, {PART_GRP}
    s_add_u32 s39, s39, {WS_SYNC+SY_PART}
    s_lshl_b32 s100, {s(h)}, 6
    s_lshl_b32 s101, {s(w)}, 15
    s_add_u32 s100, s100, s101
    s_add_u32 s100, s100, s39
    s_lshl_b32 s28, {s(w)}, 5
    s_add_u32 s28, s28, {s(h)}           ; rho
    s_lshl_b32 s101, s28, 11
    s_add_u32 s101, s101, s39
    s_lshl_b32 s39, {s(b)}, 16
    s_add_u32 s29, s39, {WS_SYNC+SY_MEML}
    s_lshl_b32 s39, {s(b)}, 20
    s_add_u32 s30, s39, {WS_SYNC+SY_MEMR+8192*P.get('pol',0)}
    s_xor_b32 s39, s39, 0x100000
    s_add_u32 s31, s39, {WS_SYNC+SY_MEMR+8192*P.get('pol',0)}
    s_lshl_b32 s32, s28, 6
    s_mov_b32 s6, 0xf000f000
    s_mov_b32 s7, 0xf000f000
    """)
    def init_stores():
        k(f"""
        s_cmp_lt_u32 s28, 80
        s_cselect_b32 s56, -1, 0
        s_mov_b32 s57, s56
        s_mov_b32 s92, {s(KA_MEM0)}
        s_and_b32 s93, {s(KA_MEM0+1)}, 0xffff
        s_mov_b32 s94, 10240
        s_mov_b32 s95, 0x20000
        s_and_b32 s39, s28, 3
        s_mul_i32 s39, s39, 2560             ; g*2 rows
        s_lshr_b32 s38, s28, 2
        s_lshl_b32 s38, s38, 5               ; T*16 cols*2B
        s_add_u32 s39, s39, s38
        s_mul_i32 s38, {s(b)}, 640
        s_add_u32 s39, s39, s38
        s_and_b64 exec, s[6:7], s[56:57]
        buffer_load_ushort v16, v22, s[92:95], s39 offen
        buffer_load_ushort v17, v22, s[92:95], s39 offen offset:8
        s_mov_b64 exec, -1
        """)
        vq.extend(['m0', 'm0'])
        if fused:
            k(f"""
            s_add_u32 s38, s32, s29
            s_add_u32 s39, s32, s30
            v_mov_b32 v92, -1
            v_mov_b32 v93, -1
            v_mov_b32 v94, -1
            v_mov_b32 v95, -1
            v_lshrrev_b32 v18, 6, {v(V16)}      ; lane>>2
            v_and_b32 v19, 48, {v(V16)}
            v_lshl_add_u32 v18, v18, 13, v19
            s_add_u32 s34, s101, {PART_SLOT}
            s_mov_b64 exec, s[56:57]
            buffer_store_dwordx4 v[92:95], {v(V16)}, {s(SRD_WS,4)}, s101 offen sc1
            buffer_store_dwordx4 v[92:95], {v(V16)}, {s(SRD_WS,4)}, s101 offen offset:1024 sc1
            buffer_store_dwordx4 v[92:95], {v(V16)}, {s(SRD_WS,4)}, s34 offen sc1
            buffer_store_dwordx4 v[92:95], {v(V16)}, {s(SRD_WS,4)}, s34 offen offset:1024 sc1
            s_and_b32 exec_lo, s56, 0xfff0
            s_mov_b32 exec_hi, 0
            buffer_store_dwordx4 v[92:95], v18, {s(SRD_WS,4)}, s38 offen sc1
            s_mov_b64 exec, -1
            """)
            vq.extend(['in'] * 5)
    def pub0():
        if 'm0' in vq: vwait('m0')
        k(f"""
        s_add_u32 s38, s32, s29
        s_add_u32 s39, s32, s30
        s_xor_b32 s34, s39, 8192
        v_lshl_or_b32 v16, v17, 16, v16
        s_and_b64 exec, s[6:7], s[56:57]
        v_min_u32 v16, 0xfffffffe, v16
        buffer_store_dword v16, {v(VPUB)}, {s(SRD_WS,4)}, s39 offen sc1
        buffer_store_dword v16, {v(VPUB)}, {s(SRD_WS,4)}, s34 offen sc1
        buffer_store_dword v16, {v(VPUB)}, {s(SRD_WS,4)}, s38 offen sc1
        s_mov_b64 exec, -1
        """)
        vq.extend(['p0'] * 3)
    WLDS.clear()
    free = []; held = []; tpool = [32 + 8*i for i in range(8)]
    tmp = {}
    def flush():
        while held and free:
            key = held.pop(0); off = free.pop(0); WLDS[key] = off; t = tmp.pop(key)
            for hh in range(2): k(f"ds_write_b128 {v(VLW)}, {v(t + 4*hh, 4)} offset:{off + 1024*hh}")
            tpool.append(t)
    def consume(rd, base):
        new = []
        for (key, ro, va, off) in rd:
            if key in WREG: reg = WREG[key]
            else:
                if key not in tmp: tmp[key] = tpool.pop(0); new.append(key)
                reg = tmp[key]
            k(f"ds_read_b64_tr_b16 {r(reg + ro, 2)}, {v(va)} offset:{base + off}")
        k("s_waitcnt lgkmcnt(0)")
        held.extend(new)
    init_stores()
    def cnt_add(val):
        k(f"""
        s_cmp_eq_u32 {s(w)}, 0
        s_cselect_b32 exec_lo, 1, 0
        s_mov_b32 exec_hi, 0
        v_mov_b32 v30, {val}
        buffer_atomic_add v30, off, {s(SRD_DBG,4)}, 0 offset:{DB_INIT} sc1
        s_mov_b64 exec, -1
        """)
        vq.append('at')
    def dbg_eval():
        k(f"""
        s_cmp_eq_u32 s92, {N_INIT}
        s_cselect_b32 s47, s93, 0
        s_cmp_lg_u64 s[94:95], 0
        s_cselect_b32 s47, s47, 0
        s_cmp_eq_u32 s91, 32
        s_cselect_b32 s47, s47, 0
        s_and_b32 s90, s94, 0xffff
        """)
    k(f"""
    s_sub_u32 s52, {s(h)}, {s(w)}
    s_lshl_b32 s52, s52, 8
    s_add_u32 s52, s52, {WS_SYNC+SY_FLAG+FL_G1}   ; K/V flag line (minus the wave part of VQ)
    s_mul_i32 s39, {s(h)}, {(1 << HS) + SKEW[0]}
    s_lshl_b32 s54, {s(w)}, 11
    s_add_u32 s51, s54, {LK}             ; K dma lds base
    s_add_u32 s54, s54, s39
    s_add_u32 s53, s54, {WS_K}           ; K quarter (running)
    s_add_u32 s54, s54, {WS_VT}          ; VT(s) wave base (running)
    """)
    NP0, NTI, NDB = 3, 6, P.get('ndb', 14)
    if P.get('touch', 0) & 2:
        k(f"buffer_load_dword v31, off, {s(SRD_WS,4)}, s53 sc1")
        vq.append('tch')
    def kv_first():
        k(f"s_add_u32 m0, s35, {LL}")
        k(f"v_lshlrev_b32 v17, 1, {v(V16)}")
        k(f"buffer_load_dword v17, {s(SRD_WS,4)}, s54 offen sc1 lds")
        k("s_mov_b32 m0, s51")
        for o in (0, 1024): k(f"buffer_load_dwordx4 {v(V16)}, {s(SRD_WS,4)}, s53 offen offset:{o} sc1 lds")
    def announce(x, sr):
        k(f"""
        s_memtime s[38:39]
        s_waitcnt lgkmcnt(0)
        s_add_u32 s38, s38, s48
        s_add_u32 s38, s38, {x}
        s_or_b32 s38, s38, 1
        v_mov_b32 v30, s38
        buffer_store_dword v30, off, {s(SRD_WS,4)}, s{sr} sc1
        s_and_b32 s39, s{sr}, -256
        v_lshrrev_b32 v19, 2, {v(V16)}
        buffer_load_dword v31, v19, {s(SRD_WS,4)}, s39 offen sc1
        """)
    for n in range(NB):
        if n == NB - 2: calib(k, P, 48)
        vwait(n)
        if STAMPS and n in P.get('stn', (1, 5, 9, 13)) and not P.get('st2'): k(f"s_memrealtime s[{[58,60,62,0][P.get('stn', (1, 5, 9, 13)).index(n)]}:{[59,61,63,1][P.get('stn', (1, 5, 9, 13)).index(n)]}]")
        if n == NB - 1 and fused:
            na = k.uid('na')
            k(f"""
            s_lshl_b32 s33, {s(h)}, 1
            s_add_u32 s33, s33, {s(b)}
            s_lshl_b32 s33, s33, 2
            s_add_u32 s33, s33, {WS_SYNC+SY_FLAG+AN[0]}
            s_cmp_eq_u32 {s(w)}, 3
            s_cselect_b32 s36, s33, {WS_SIZE}
            s_waitcnt vmcnt(0)
            v_cmp_ge_u32 vcc, 1, v31
            s_and_b32 s39, vcc_lo, 0xfff
            s_cselect_b32 s47, 0, s47
            s_cmp_eq_u32 s47, 0
            s_cbranch_scc1 {na}
            """)
            announce(P.get('ann', 700), 36)
            kv_first()
            k.label(na)
        if n == NTI and fused:
            assert 'p0' not in vq and 'in' not in vq
        k("s_barrier")
        if n == NP0: pub0()
        if n == 1: free.extend([SPARE, SPARE + 2048])
        if n >= 1:
            if n + 3 < NB: issue(B[order[n+3]][0], ((n - 1) % 4) * 8192, n + 3)
            else: free.extend([((n - 1) % 4) * 8192 + 2048*q for q in range(4)])
        if n == P.get('npl', 14) and fused:
            k(f"""
            v_lshlrev_b32 v17, 1, {v(V16)}
            s_add_u32 s34, s101, {PART_SLOT}
            s_mov_b64 exec, s[56:57]
            buffer_load_dword v16, v17, {s(SRD_WS,4)}, s101 offen {P.get('plc', '')}
            buffer_load_dword v16, v17, {s(SRD_WS,4)}, s34 offen {P.get('plc', '')}
            s_lshl_b32 s34, {s(w)}, 6
            s_add_u32 s34, s34, {s(h)}
            s_lshl_b32 s34, s34, 7
            s_add_u32 s34, s34, s29
            s_mov_b64 exec, 3
            v_lshlrev_b32 v18, 8, {v(V16)}
            buffer_load_dword v16, v18, {s(SRD_WS,4)}, s34 offen {P.get('plc', '')}
            s_mov_b64 exec, -1
            """)
            vq.extend(['pl', 'pl', 'pl'])
        if n == NDB - 1 and fused: k(f"s_load_dwordx4 s[92:95], {s(KA_DBG,2)}, {DB_INIT}\ns_load_dword s91, {s(KA_DBG,2)}, {DB_MI}")
        if n == NDB and fused:
            dbg_eval()
            k(f"buffer_load_dword v31, {v(VQ)}, {s(SRD_WS,4)}, s52 offen sc1")
            vq.append('kv')
        flush()
        rd = B[order[n]][1]
        if n == 0:
            for ke in range(2):
                for u in range(2):
                    for vv in range(2):
                        k(f"ds_read_b64_tr_b16 {r(WREG[('O', 4, ke)] + 4*u + 2*vv, 2)}, {v([VT4A, VT4B][ke])} offset:{u*LWS + vv*1024}")
        consume(rd, (n % 4) * 8192)
    k("s_barrier")
    free.extend([((NB - 1) % 4) * 8192 + 2048*q for q in range(4)])
    flush()
    assert not held and len(WLDS) == 18
    k("s_waitcnt lgkmcnt(0)")
    stamp(k, 1, 20)
    if STAMPS:
        for i, sr in enumerate([58, 60, 62, 0]):
            k(f"v_mov_b32 v20, s{sr}")
            k(f"buffer_store_dword v20, off, {s(SRD_WS,4)}, s94 offset:{36+4*i}")
    def kvspin(back):
        top = k.uid('kvs'); k.label(top)
        k(f"""
        buffer_load_dword {v(VSEL)}, {v(VQ)}, {s(SRD_WS,4)}, s52 offen sc1
        s_waitcnt vmcnt(0)
        v_cmp_ge_u32 vcc, s19, {v(VSEL)}
        s_and_b32 s39, vcc_lo, 0xfff
        s_cbranch_scc0 {back}
        s_add_u32 s44, s44, 1
        s_cmp_gt_u32 s44, {SPIN_MAX}
        s_cbranch_scc1 {last}
        s_sleep {P.get('psl', 1)}
        s_branch {top}
        """)
    if fused:
        top = k.uid('tw'); ok = k.uid('twok')
        k("s_mov_b32 s44, 0")
        k("s_mov_b32 s19, 1")
        k("s_cmp_lg_u32 s47, 0")
        k(f"s_cbranch_scc1 {ok}")
        k.label(top)
        k(f"""
        buffer_load_dwordx4 v[24:27], off, {s(SRD_DBG,4)}, 0 offset:{DB_INIT} sc1
        buffer_load_dword v28, off, {s(SRD_DBG,4)}, 0 offset:{DB_MI} sc1
        s_waitcnt vmcnt(0)
        """)
        for i in range(4): k(f"v_readfirstlane_b32 s{92+i}, v{24+i}")
        k("v_readfirstlane_b32 s91, v28")
        dbg_eval()
        k(f"""
        s_add_u32 s44, s44, 1
        s_cmp_gt_u32 s44, {SPIN_MAX}
        s_cbranch_scc1 {last}
        s_sleep 2
        s_cmp_eq_u32 s47, 0
        s_cbranch_scc1 {top}
        """)
        kok = k.uid('kok'); kvspin(kok); k.label(kok)
        announce(P.get('ann2', 500), 36)
        kv_first()
        k.label(ok)
        k(f"""
        s_and_b32 s39, s47, 1
        s_lshl_b32 s39, s39, 13
        s_add_u32 s30, s30, s39
        s_add_u32 s31, s31, s39
        """)
    if not fused: kv_first()
    HAT = P.get('hat', 0)
    HSET = f"""s_and_b32 s91, {s(h)}, {HAT - 1}
    s_lshl_b32 s91, s91, 8
    s_add_u32 s91, s91, s99
    s_cmp_eq_u32 {s(w)}, 3
    s_cselect_b32 s98, s91, s16          ; hint update (running)
    s_add_u32 s91, s98, {16384 - 768}
    s_cmp_lt_u32 {s(h)}, {HAT}
    s_cselect_b32 s91, s91, s16          ; hint reset (running)""" if HAT else f"""s_sub_u32 s91, s99, 768
    s_cmp_eq_u32 {s(w)}, 3
    s_cselect_b32 s98, s91, s16          ; hint update (running)
    s_add_u32 s91, s99, 16384
    s_cmp_eq_u32 {s(h)}, 1
    s_cselect_b32 s91, s91, s16          ; next hint line, pulled into L2 (running)"""
    k(f"""
    s_mul_i32 s39, {s(h)}, {(1 << HS) + SKEW[0]}
    s_lshl_b32 s95, {s(w)}, 10
    s_lshl_b32 s55, {s(b)}, 12
    s_lshl_b32 s38, {s(w)}, 9
    s_add_u32 s55, s55, s38
    s_add_u32 s55, s55, s39
    s_add_u32 s55, s55, {WS_FM - (1 << SS)}          ; FM(s-1) store address (running)
    s_add_u32 s15, s39, {WS_K + (1 << SS)}           ; prefetch base (running)
    s_mov_b32 s56, 0x05050505
    s_mov_b32 s57, 0x05050505
    s_mov_b32 s58, 0x0a0a0a0a
    s_mov_b32 s59, 0x0a0a0a0a
    s_mov_b32 s60, 0x50505050
    s_mov_b32 s61, 0x50505050
    s_mov_b32 s62, 0xa0a0a0a0
    s_mov_b32 s63, 0xa0a0a0a0
    s_mov_b32 s33, 0
    s_mov_b32 s43, 0
    s_mov_b32 s44, 0
    s_mov_b32 s45, 0
    s_mov_b32 s46, 0
    s_mov_b32 s49, 0
    s_lshl_b32 s50, {s(h)}, 6
    s_lshl_b32 s39, {s(b)}, 2
    s_add_u32 s50, s50, s39
    s_add_u32 s50, s50, {WS_SYNC+SY_FLAG+FL_FM}
    s_cmp_eq_u32 {s(w)}, 3
    s_cselect_b32 s50, s50, {WS_SIZE}
    s_cmp_lt_u32 {s(w)}, 2
    s_cselect_b32 s15, s15, s52
    s_cselect_b32 s21, {1 << SS}, 0      ; prefetch increment
    s_cselect_b32 s93, 5, 0
    s_cselect_b32 s94, 0, 1              ; tag mask of dwords 1..3
    s_lshl_b32 s20, s28, 8
    s_cmp_lt_u32 s28, 20
    s_cselect_b32 s20, s20, {WS_SIZE}
    s_mov_b32 s14, {float_hex(128 ** -0.5 * math.log2(math.e))}
    s_mov_b32 s16, {WS_SIZE}
    s_mov_b32 s17, 0
    s_cmp_eq_u32 {s(b)}, 0
    s_cselect_b32 s92, -1, 0
    s_add_u32 s99, s30, 7168             ; hint lines of the step (running)
    {HSET}
    s_cmp_eq_u32 s28, {96 + P.get('rep', 0)}
    s_cselect_b32 s16, {5120 - 64 * (96 + P.get('rep', 0))}, s16
    s_add_u32 s13, s32, s30
    s_add_u32 s13, s13, 16384
    s_add_u32 s12, s13, s16              ; time word of the next slot (running)
    s_cmp_lt_u32 s28, 80
    s_cselect_b32 s13, s13, {WS_SIZE}    ; remote publish (running)
    s_mov_b32 s35, s29
    s_add_u32 s36, s35, 4096
    s_mov_b32 s40, s31
    s_add_u32 s41, s40, 4096
    s_add_u32 s53, s53, {1 << SS}
    s_mul_i32 s26, {s(w)}, {-(32768 - 8192)}
    s_add_u32 s26, s26, {64*2048}
    s_mov_b32 s27, 0
    s_mov_b32 s22, 0
    s_movk_i32 s24, {P.get('dcap', 1600)}
    s_mov_b32 s19, 1
    s_cmp_eq_u32 {s(w)}, 3
    s_movk_i32 s37, {P['ltgt'] - P['rtgt']}
    s_cselect_b32 s7, {P['tlead']}, s37
    s_add_u32 s37, s7, {P.get('m2', 0)}
    s_movk_i32 s6, {P['ltgt'] + P.get('m1', 0)}
    """)
    k("s_mov_b32 s25, s48")
    k(f"v_mov_b32 {v(VDUM)}, s25")
    k(f"ds_write_b32 {v(VQ)}, {v(VDUM)} offset:{LR+2048}")
    k("s_waitcnt lgkmcnt(0)")
    if fused:
        slow = k.uid('slow')
        k("s_cmp_lg_u32 s90, 0x2020")
        k(f"s_cbranch_scc1 {slow}")
        team_loop(k, P, '', last, kvspin, fused)
        k.label(slow)
        team_loop(k, P, 'sc1', last, kvspin, fused)
    else:
        team_loop(k, P, lst, last, kvspin, fused)
    k.label(last)
    team_end(k)

def team_loop(k, P, lst, last, kvspin, fused):
    HAT = P.get("hat", 0)
    b = S_X; h = S_T; w = S_WAVE
    cold = []
    ns = P.get('nosync')
    TK = P.get('tick')
    pend = []
    def lwait_s(tag):
        if tag not in pend: return []
        idx = max(i for i, t in enumerate(pend) if t == tag)
        n = min(len(pend) - idx - 1, 15)
        del pend[:idx+1]
        return [f"s_waitcnt lgkmcnt({n})"]
    def lwait(tag):
        for x in lwait_s(tag): k(x)
    def wl_s(key, reg): return [(f"ds_read_b128 {v(reg+4*hh,4)}, {v(VLW)} offset:{WLDS[key]+1024*hh}", key) for hh in range(2)]
    dslog = []
    def ds(x, tag): k(x); pend.append(tag); dslog.append((x, tag))
    def smf(acc, areg, breg):
        k(f"v_smfmac_f32_16x16x64_bf16 {v(acc,4)}, {v(areg,4)}, {r(breg,8)}, {v(VIDX)}")
    pl = [f"buffer_load_dword {v(A+4)}, {v(VQ)}, {s(SRD_WS,4)}, s36 offen sc1 ;poll",
          f"buffer_load_dwordx4 {v(A,4)}, {v(VC0)}, {s(SRD_WS,4)}, s35 offen sc1 ;poll"]
    def poll_local():
        for x in pl: k(x)
    pr = [f"buffer_load_dwordx4 {v(A+12,4)}, {v(VC0)}, {s(SRD_WS,4)}, s40 offen sc1 ;poll",
          f"buffer_load_dword {v(A+16)}, {v(VQ)}, {s(SRD_WS,4)}, s41 offen sc1 ;poll"]
    def poll_rr():
        for x in pr: k(x)
    def dloop(sr):
        l = k.uid('dl'); k(".p2align 3"); k.label(l)
        k(f"s_sub_u32 s{sr}, s{sr}, {P['dit']}")
        k(f"s_cbranch_scc0 {l}")
    def rem(tgt, now): return [f"s_sub_u32 s27, s{tgt}, s{now}", "s_cmpk_lt_u32 s27, 4000", "s_cselect_b32 s27, s27, 0"]
    def set_slots():
        return f"""s_lshl_b32 s19, s33, 13
        s_and_b32 s18, s19, 0x6000
        s_lshl_b32 s19, s33, 14
        s_add_u32 s35, s18, s29
        s_add_u32 s36, s35, 4096
        s_add_u32 s40, s19, s31
        s_add_u32 s41, s40, 4096""".split('\n')
    def cmpsent(x): return f"v_cmp_{'f' if ns else 'eq'}_u32 vcc, -1, {v(x)}"
    def chk(b0, n=5):
        T = VDUM
        if n == 1: return [cmpsent(b0)]
        return [f"v_max3_u32 {v(T)}, {v(b0)}, {v(b0+1)}, {v(b0+2)}", f"v_max3_u32 {v(T)}, {v(T)}, {v(b0+3)}, {v(b0+n-1)}", cmpsent(T)]
    def retry(b0, reissue, cnt, post, fix=None, n=5):
        c = k.uid('cold'); back = k.uid('back')
        k(f"s_cbranch_vccnz {c}")
        k.label(back)
        def body():
            k.label(c)
            reissue()
            k(f"s_add_u32 s{cnt}, s{cnt}, 1")
            k(f"s_cmp_gt_u32 s{cnt}, {P.get('bound', 20000)}")
            k(f"s_cbranch_scc1 {last}")
            k(f"s_waitcnt vmcnt(0) lgkmcnt(0)")
            post()
            for x in chk(b0, n): k(x)
            k(f"s_cbranch_vccnz {c}")
            if fix: fix()
            k("s_waitcnt lgkmcnt(0)")
            k(f"s_branch {back}")
        cold.append(body)
    TK2 = P.get('tk2')
    def tick(i, alt=False):
        if TK2 and 3 <= i <= 8 and not alt: return
        if i in P.get('notk', []): return
        if TK: k(f"s_memtime s[{64+2*i}:{65+2*i}]")
    def zero(base, n): return [f"v_mov_b64 {v(base+i,2)}, 0" for i in range(0, n, 2)]
    RING = [PP + 16, PP + 24, PP, PP + 8]
    WARM = f"v_mov_b32 {v(V8)}, {v(V8)}"
    VMC = PP + 32; VX = PP + 24; KR = PP + 16; PF = PP
    RD = A + 8; SEL = AK; D = A; T = A + 16
    areg = [A, A+8, A+4, A, A+8]
    rreg = [A+12, A+16, A+4, A, A+8]
    seq = [('L', 0, 1, 0), ('L', 0, 1, 1), ('L', 0, 2, 0), ('L', 0, 2, 1), ('L', 0, 0, 0), ('L', 0, 0, 1)]
    for i in range(1, 5): seq += [('L', i, m, t) for m in (0, 1, 2) for t in range(2)]
    rin = P.get('rin', 0)
    if rin:
        seq += [('R', 0, m, t) for t in range(2) for m in (1, 0)]
        seq += [('R', i, m, 0) for i in range(1, 5) for m in (1, 0)]
        seq += [('R', i, m, 1) for m in (1, 0) for i in range(1, 5)]
    else:
        seq += [('R', i, m, 0) for i in range(5) for m in (1, 0)]
        seq += [('R', i, m, 1) for m in (1, 0) for i in range(5)]
    seq += [('R', i, 2, t) for i in range(5) for t in range(2)]
    lseq = [x for x in seq if x in WLDS]
    sl = [0, 2, 3] * 6
    rslot = {x: RING[sl[n]] for n, x in enumerate(lseq)}
    def ring_pre():
        for x in lseq[:3]:
            for y, tg in wl_s(x, rslot[x]): ds(y, tg)
    def do_smf(key):
        l, i, m, t = key
        smf(ACC + 8*m + 4*t, (areg if l == 'L' else rreg)[i], WREG.get(key) or rslot[key])
    def a_rd(l, i):
        base = LL if l == 'L' else LR
        dst = (areg if l == 'L' else rreg)[i]
        if i == 1: return (f"ds_read_b128 {v(dst,4)}, {v(V16)} offset:{LR + 3072 if l == 'L' else LL}", l + '1')
        return (f"ds_read_b128 {v(dst,4)}, {v(VC0+i-1)} offset:{base}", f'{l}{i}')
    kfr = [KR, KR+4, VMC] + rreg
    kord = [0, 2, 4, 6, 1, 3, 5, 7] if P.get('nomax', 0) == 2 else list(range(8))
    def k_rd(i): return (f"ds_read_b128 {v(kfr[i],4)}, {v(V16)} offset:{LK + 1024*kord[i]}", f'k{kord[i]}')
    def pack(t):
        kq = AK + 4*t; qq = AQ + 4*t
        return [f"v_add_f32 {v(kq)}, {v(kq)}, {v(kq+2)}",
                f"v_add_f32 {v(kq+1)}, {v(kq+1)}, {v(kq+3)}",
                f"v_cvt_pk_bf16_f32 {v(kq+2)}, {v(kq)}, {v(kq+1)}",
                f"v_add_f32 {v(qq)}, {v(qq)}, {v(qq+2)}",
                f"v_add_f32 {v(qq+1)}, {v(qq+1)}, {v(qq+3)}",
                f"v_cvt_pk_bf16_f32 {v(kq+3)}, {v(qq)}, {v(qq+1)}",
                f"ds_write_b64 {v(VFW)}, {v(kq+2,2)} offset:{LL + 512*t}"]
    def fmget():
        k(f"v_add_u32 {v(VDUM)}, s95, {v(V8)}")
        k(f"v_mov_b64 {v(VMC,2)}, {v(VM,2)}")
        sk = k.uid('fmsk')
        k("s_cmp_eq_u32 s92, 0")
        k(f"s_cbranch_scc1 {sk}")
        k(f"ds_read_b64_tr_b16 {v(VMC,2)}, {v(VDUM)} offset:{LL}")
        k(f"ds_read_b64_tr_b16 {v(VMC+2,2)}, {v(VDUM)} offset:{LL+512}")
        k.label(sk)
    def fmfix():
        sk = k.uid('fmsk')
        k("s_cmp_eq_u32 s92, 0")
        k(f"s_cbranch_scc1 {sk}")
        k("s_or_b64 vcc, s[56:57], s[60:61]")
        for i in range(2): k(f"v_mov_b32_dpp {v(VMC+i)}, {v(VMC+i)} quad_perm:[0,0,1,1] row_mask:0xf bank_mask:0xf")
        for i in range(2): k(f"v_cndmask_b32_dpp {v(VMC+i)}, {v(VMC+2+i)}, {v(VMC+i)}, vcc quad_perm:[0,0,1,1] row_mask:0xf bank_mask:0xf")
        k.label(sk)
    def tail():
        k(f"""
        s_and_b32 s19, s33, 1
        s_mul_i32 s19, s19, {PART_SLOT}
        s_add_u32 s47, s19, s100
        s_add_u32 s48, s19, s101
        s_bfe_u32 s34, s33, 0x10001
        s_add_u32 s23, s47, s26
        s_xor_b32 s18, s35, 0x4000
        s_add_u32 s18, s18, s20
        v_lshlrev_b32 {v(VSEL)}, s93, {v(VQ)}
        """)
        for x in zero(AK, 4): k(x)
    def tail2():
        if TK: k(f"v_writelane_b32 {v(A+8)}, s25, 14")
        if STAMPS:
            sk = k.uid('stc')
            k("s_cmp_lg_u32 s33, 5")
            k(f"s_cbranch_scc1 {sk}")
            k("s_mov_b32 s46, s97\ns_mov_b32 s43, 0\ns_mov_b32 s45, 0\ns_mov_b32 s49, 0\ns_mov_b32 s44, 0")
            k.label(sk)
        if TK:
            k(f"""
            s_lshl_b32 s39, {s(S_WG)}, 2
            s_add_u32 s39, s39, {s(w)}
            s_lshl_b32 s39, s39, 12
            s_lshl_b32 s38, s33, 6
            s_add_u32 s39, s39, s38
            s_add_u32 s39, s39, {WS_ST2}
            s_lshl_b32 s38, s45, 10
            s_or_b32 s90, s38, s43
            s_lshl_b32 s38, s49, 20
            s_or_b32 s90, s38, s90
            """)
            for i in range(10):
                k(f"v_writelane_b32 {v(A+8)}, s{64+2*i}, {i}")
            k(f"v_writelane_b32 {v(A+8)}, s90, 13")
            k(f"v_lshrrev_b32 {v(A+9)}, 2, {v(V16)}")
    fmst = f"buffer_store_dwordx2 {v(VMC,2)}, {v(V8)}, {s(SRD_WS,4)}, s55 offen sc1"
    SX0, SX1, SM = AQ, AQ + 4, AK
    T0, T1 = AK + 4, AK + 5; VM = AK + 6
    PK = KR; PM0 = KR + 4; PM1 = KR + 6; ONE = VMC
    lastpub = k.uid('lastpub'); loop = k.uid('tloop'); entry = k.uid('entry')
    if fused:
        k(f"""
        s_lshl_b32 s39, {s(h)}, 5
        s_lshl_b32 s38, {s(b)}, 4
        s_add_u32 s39, s39, s38
        v_cmp_eq_u32 vcc, s39, {v(V16)}
        s_waitcnt vmcnt(3)
        v_cndmask_b32 {v(A+1)}, v31, v30, vcc
        """)
    for x in zero(ACC, 24): k(x)
    ring_pre()
    k("s_memtime s[96:97]")
    k("s_waitcnt lgkmcnt(0)")
    k("s_sub_u32 s97, s96, 1")
    k("s_add_u32 s42, s97, s25")
    k("s_sub_u32 s42, s42, 1000")
    tail()
    if fused:
        st = k.uid('st'); go = k.uid('go')
        k(f"""
        s_cmp_lg_u32 {s(w)}, 3
        s_cbranch_scc1 {go}
        v_lshrrev_b32 {v(A)}, 2, {v(V16)}
        s_mov_b32 s39, {WS_SYNC+SY_FLAG+AN[0]}
        s_branch {st}c
        """)
        k.label(st)
        k(f"""
        s_sleep {P.get('psl2', 0)}
        buffer_load_dword {v(A+1)}, {v(A)}, {s(SRD_WS,4)}, s39 offen sc1
        s_add_u32 s44, s44, 1
        s_cmp_gt_u32 s44, {SPIN_MAX}
        s_cbranch_scc1 {last}
        s_waitcnt vmcnt(0)
        """)
        k.label(st + 'c')
        k(f"""
        v_cmp_eq_u32 vcc, 0, {v(A+1)}
        s_cbranch_vccnz {st}
        v_subrev_u32 {v(A+1)}, s42, {v(A+1)}
        """)
        for x in (1, 2, 4, 8): k(f"v_max_i32_dpp {v(A+1)}, {v(A+1)}, {v(A+1)} row_ror:{x} row_mask:0xf bank_mask:0xf")
        for i in range(4): k(f"v_readlane_b32 s{[0,1,18,19][i]}, {v(A+1)}, {16*i}")
        k(f"""
        s_max_i32 s0, s0, s1
        s_max_i32 s18, s18, s19
        s_max_i32 s0, s0, s18
        s_add_u32 s96, s0, s42
        """)
        if HAT: k(f"""
        s_add_u32 s0, s96, {P.get('e0', 2100)}
        s_not_b32 s0, s0
        v_mov_b32 {v(VDUM)}, s0
        buffer_store_dword {v(VDUM)}, off, {s(SRD_WS,4)}, s98 {lst}
        """)
        k(f"""
        s_sub_u32 s96, s96, s25
        s_memtime s[0:1]
        s_waitcnt lgkmcnt(0)
        """)
        for x in rem(96, 0): k(x)
        dloop(27)
        k.label(go)
        k("s_sub_u32 s97, s96, 1")
        k("s_add_u32 s42, s97, s25")
        k("s_sub_u32 s42, s42, 1000")
    k(f"s_mov_b32 s39, {WS_SIZE}")
    k("s_barrier")
    k(f"s_branch {entry}")
    k.label(loop)
    pend[:] = []
    early = P.get('sc1early', 0)
    tailv = (1 if TK else 0)
    n0log = len(dslog)
    nt = (0 if rin else 2) + tailv + (0 if early else 1)
    lw = [(f"ds_write_b32 {v(VQ)}, {v(A+4)} offset:{LR + 3072}", 'w1'), (f"ds_write_b128 {v(VC0)}, {v(A,4)} offset:{LL}", 'w')]
    k(f"s_waitcnt vmcnt({nt + 1})")
    tick(0)
    ds(*lw[0])
    k(chk(A + 4, 1)[0])
    k(f"s_waitcnt vmcnt({nt})")
    do_smf(seq[0])
    def lfix(n):
        again = [x for x, tg in dslog[n0log:] if tg in rslot]
        def f():
            if again:
                for kk in lseq[:3]:
                    for x, _ in wl_s(kk, rslot[kk]): k(x)
                k("s_waitcnt lgkmcnt(0)")
            for kk in seq[:n]:
                for x in zero(ACC + 8*kk[2] + 4*kk[3], 4): k(x)
            for kk in seq[:n]: do_smf(kk)
            for x in again: k(x)
        return f
    rc = P.get('rc', 20); bx = P.get('bx', 18)
    pre = {}; val = {}; dsq = []; hook = {}
    def at(c, *xs):
        for x in xs: (val if x.startswith('v_') else pre).setdefault(c, []).append(x)
    lb = P.get('lb', 2); lc = P.get('lc', 5); lb2 = P.get('lb2', 6); rb = rc + P.get('rb', 5)
    sp = P['sp']
    sx = P.get('sx', rb)
    if sx > rb: at(sx, "s_memtime s[96:97]")
    hs_ = sx + P.get('hs', 4)
    vl = P.get('vl', [4, 5])
    npre = sum(x < rc for x in sp + vl)
    for o in (0, 1): at(vl[o], f"buffer_load_dwordx4 {v(VX+4*o,4)}, {v(V16)}, {s(SRD_WS,4)}, s54 offen offset:{1024*o} sc1")
    assert max(vl) < min(sp) and rc not in vl
    pfi = f"buffer_load_dword {v(VSEL)}, {v(VSEL)}, {s(SRD_WS,4)}, s15 offen sc1"
    at(sp[0], pfi)
    at(sp[1], fmst)
    at(sp[2] - 1, f"v_mov_b32 {v(VDUM)}, s17")
    at(sp[2], f"buffer_store_dword {v(VDUM)}, off, {s(SRD_WS,4)}, s50 sc1")
    at(sp[3] - 1, f"v_mov_b32 {v(VDUM)}, -1")
    at(sp[3], f"buffer_store_dword {v(VDUM)}, {v(VQ)}, {s(SRD_WS,4)}, s18 offen {lst}")
    rw = [(f"ds_write_b128 {v(VC0)}, {v(A+12,4)} offset:{LR}", 'w'), (f"ds_write_b32 {v(VQ)}, {v(A+16)} offset:{LL}", 'w')]
    ck = chk(A + 12)
    at(rc, f"s_waitcnt vmcnt({(0 if rin else tailv) + npre})", ck[0]); at(rc + 1, ck[1]); at(rc + 2, ck[2])
    def rre():
        for x, _ in rw: k(x)
    def h1():
        ds(*lw[1])
        retry(A + 4, poll_local, 43, lambda: [k(x) for x, _ in lw], lfix(1), 1)
    def b1():
        lwait('w1'); k("s_barrier")
        if rin == lb:
            ds(*dsq.pop(0)); poll_rr()
    def b1b():
        lwait('w'); k("s_barrier")
    for j, x in enumerate(chk(A, 4)): at(1 + j, x)
    def b2():
        lwait('w')
        k("s_barrier")
        if sx == rb: k("s_memtime s[96:97]")
        tick(2)
    hook[1] = h1; hook[lb] = b1; hook[lb2] = b1b
    hook[lc] = lambda: retry(A, lambda: k(pl[1]), 43, lambda: k(lw[1][0]), lfix(lc), 4)
    assert 1 < lb < lc < lb2 and 4 <= lc <= 6
    at(bx + 1 if rin else lc, f"v_readfirstlane_b32 s25, {v(VMC+2)}")
    if rin > lb: at(rin, *pr)
    assert rin < min(vl)
    hook[rc + P.get('rr', 3)] = lambda: retry(A + 12, poll_rr, 45, rre)
    hook[rb] = b2
    assert rb > rc + P.get('rr', 3)
    nods = set(P.get('nods', [1] + ([lb] if rin == lb else [])))
    at(hs_, "s_add_u32 s96, s96, s25", f"v_{'not' if HAT else 'mov'}_b32 {v(VDUM)}, s96")
    if HAT: at(hs_ + 1, "s_mov_b64 exec, 1", f"buffer_atomic_umin {v(VDUM)}, off, {s(SRD_WS,4)}, s98 {lst}", "s_mov_b64 exec, -1")
    else: at(hs_ + 1, f"buffer_store_dword {v(VDUM)}, {v(VQ)}, {s(SRD_WS,4)}, s98 offen {lst}")
    assert len({hs_, sp[2] - 1, sp[3] - 1, rc, rc + 1, rc + 2}) == 6
    p0 = pack(0); p1 = pack(1)
    po = 2 if rin else 0; b3 = 38 + 2*po
    for j in range(6): at(41 + po + j, p0[j])
    for j in range(3): at(47 + po + j, p1[j])
    at(b3, f"s_waitcnt vmcnt({sum(x < b3 for x in sp + [hs_ + 1])})", "s_barrier")
    assert b3 not in sp and max(sp[2:] + [hs_ + 1]) <= 41 + po
    HO = P.get('nomax', 0) == 2
    app_ds = {}
    def rel(c, *ys): app_ds.setdefault(c, []).extend(ys)
    if rin: rel(lb2, (f"ds_read_b32 {v(VMC+2)}, {v(VMC+3)}", 'L3'))
    rel(lb, a_rd('L', 1)); rel(lb2, a_rd('L', 2), a_rd('L', 3)); rel(12, a_rd('L', 4)); rel(rc, *rw); rel(rb, a_rd('R', 1), a_rd('R', 2))
    rel(max(24, rb), a_rd('R', 3)); rel(max(30, rb), a_rd('R', 4)); rel(47 + po, (p0[6], 'fw'))
    rel(46 if rin else 40, k_rd(0), k_rd(1)); rel(max(sp[1] + 2, 40), k_rd(2)); rel(52, k_rd(3)); rel(54, k_rd(4))
    def dead(tg):
        if tg in ('w', 'fw'): return 0
        if tg == 'L4': return bx
        for n_, x in enumerate(seq):
            if tg == x or tg == f'{x[0]}{x[1]}': return n_
        return 100
    qn = 0
    def gap(cnt, nxt):
        dsq.extend(app_ds.get(cnt, []))
        dsq.sort(key=lambda y: dead(y[1]))
        n0 = len(k.ins)
        def used(): return sum(2 if I.cls == 'ds' else (P.get('vmw', 1) if I.cls == 'vmem' else 1) for I in k.ins[n0:] if I.cls != 'label')
        if cnt == bx: lwait('L4'); k("s_barrier")
        for x in pre.get(cnt, []):
            k(x)
            if 'lgkmcnt(0)' in x: pend[:] = []
        if cnt in hook: hook[cnt]()
        if dsq and (used() < 2 or dead(dsq[0][1]) == 0 or cnt == lb) and cnt not in nods: ds(*dsq.pop(0))
        if dsq and cnt in P.get('ds2', [3, 4, 5]): ds(*dsq.pop(0))
        if nxt:
            need = [nxt, f'{nxt[0]}{nxt[1]}']
            while any(tg in need for _, tg in dsq):
                ds(*dsq.pop(0))
            for tg in need: lwait(tg)
        if TK2 and cnt in TK2: tick(3 + TK2.index(cnt), True)
        vs = val.get(cnt, [])
        for x in vs: k(x)
        if not vs and P.get('warm', True) and used() <= 2: k(WARM)
    def after(n):
        if seq[n] in rslot:
            q = lseq.index(seq[n])
            nx = [j for j in range(q + 1, 18) if sl[j] == sl[q]]
            if nx: dsq.extend(wl_s(lseq[nx[0]], rslot[lseq[nx[0]]]))
    after(0); gap(1, seq[1])
    for n in range(1, 52):
        do_smf(seq[n]); after(n)
        if n == 29: tick(1)
        if n == 39: tick(3)
        if n < 51: gap(n + 1, seq[n + 1])
    if P.get('pk', 0) & 2: p1[3:5] = [f"v_pk_add_f32 {v(AQ+4,2)}, {v(AQ+4,2)}, {v(AQ+6,2)}", None]
    for x in p1[3:6]:
        if x: k(x)
    ds(p1[6], 'fw')
    tick(4)
    n = 52
    dsq.extend(app_ds.pop(52))
    for _ in range(P.get('vpre', 3)):
        do_smf(seq[n]); n += 1
        gap(n, None)
    lwait('fw')
    k("s_barrier")
    kq_ = [5, 6, 7]
    for i in range(8):
        ds(f"ds_read_b64_tr_b16 {v(PF+2*i,2)}, {v(V8)} offset:{LL + 512*i}", f'f{i//2}')
        if i % 2 == 1 and n < 60:
            do_smf(seq[n]); n += 1
    while dsq: ds(*dsq.pop(0))
    def kfree():
        while kq_ and n >= 50 + 2 * (kq_[0] - 3) + 2: ds(*k_rd(kq_.pop(0)))
    kfree()
    while n < 60:
        do_smf(seq[n]); n += 1; kfree()
    assert not kq_
    tick(5)
    def smw(which, ks):
        lwait(f'f{ks}')
        if which != 'm': lwait(f'k{2*ks + which}')
    def sm(which, ks):
        smw(which, ks)
        if which == 'm': Dd, Aop = SM, PF + 4*ks
        else: Dd = SX0 + 4*which; Aop = kfr[kord.index(2*ks + which)]
        k(f"v_mfma_f32_16x16x32_bf16 {v(Dd,4)}, {v(Aop,4)}, {v(PF+4*ks,4)}, {'0' if ks == 0 else v(Dd,4)}")
    vp = []
    for t in range(2):
        vv = AV + 4*t
        vp += [f"v_add_f32 {v(vv)}, {v(vv)}, {v(vv+2)}", f"v_add_f32 {v(vv+1)}, {v(vv+1)}, {v(vv+3)}", f"v_cvt_pk_bf16_f32 {v(VM+t)}, {v(vv)}, {v(vv+1)}"]
    cst = [f"v_mov_b32 {v(PM0+1)}, 0", f"v_mov_b32 {v(PM1)}, 0"] + [f"v_mov_b32 {v(ONE+i)}, 0x3f803f80" for i in range(4)]
    so = [('m', 0), (0, 0), (1, 0), ('m', 1), (0, 1), (1, 1), ('m', 2), ('m', 3), (0, 2), (0, 3), (1, 2), (1, 3)]
    hl = [f"s_buffer_load_dword s{x}, {s(SRD_WS,4)}, s99 offset:{256*i}" for i, x in enumerate([0, 1, 18, 19][:max(HAT, 1)])]
    assert len(P.get('hg', [12])) == len(hl)
    fl = {0: [WARM], 1: vp[0:2], 2: vp[2:4], 3: vp[4:6], 4: ["s_cmp_eq_u32 s33, 63"] + cst[0:2], 5: [f"s_cbranch_scc1 {lastpub}", WARM],
          6: cst[2:4], 7: cst[4:6], 8: [WARM], 9: [f"v_max_f32 {v(T0)}, {v(SM)}, {v(SM+1)}"], 10: [WARM],
          11: [f"v_max3_f32 {v(T0)}, {v(T0)}, {v(SX0)}, {v(SX0+1)}", f"v_max3_f32 {v(T0)}, {v(T0)}, {v(SX0+2)}, {v(SX0+3)}"]}
    hpos = P.get('hpos', 2)
    NM = P.get('nomax', 0)
    zz = zero(A + 12, 8) + zero(A, 12)
    mul = lambda x: f"v_mul_f32 {v(x)}, s14, {v(x)}"
    exs = lambda x: f"v_exp_f32 {v(x)}, {v(x)}"
    if NM:
        fl[8] = [zz.pop(0)]; fl[9] = [mul(SM), mul(SM+1)]; fl[10] = [exs(SM), exs(SM+1)]; fl[11] = [mul(SX0), mul(SX0+1)]
    cvp = [f"v_cvt_pk_bf16_f32 {v(PM0)}, {v(SM)}, {v(SM+1)}", f"v_cvt_pk_bf16_f32 {v(PM1+1)}, {v(SM)}, {v(SM+1)}"]
    if NM == 2:
        zz = zero(A + 12, 8) + zero(A + 4, 4) + zero(A, 4) + zero(A + 8, 4)
        so = [(x, ks) for x in ('m', 0, 1) for ks in range(4)]
        fl = {0: ["s_movk_i32 s27, 0x1833", WARM], 1: vp[0:2], 2: vp[2:4], 3: ["s_cmp_eq_u32 s33, 63"] + vp[4:6], 4: [f"s_cbranch_scc1 {lastpub}", WARM],
              5: ["s_waitcnt lgkmcnt(0)", mul(SM), mul(SM+1)], 6: [exs(SM), cst[0]], 7: [exs(SM+1), cst[1]], 8: cst[2:4] + cvp[:1],
              9: [mul(SX0), mul(SX0+1), cvp[1]], 10: [exs(SX0), mul(SX0+2)], 11: [exs(SX0+1), mul(SX0+3)]}
        HV = P.get('hv')
        if P.get('ke') and P.get('kb', 6) < 12: fl[P.get('kb', 6)].insert(0, "s_barrier")
        if HV is not None:
            assert HAT == 4
            fl[HV][:0] = ["s_mov_b32 exec_lo, 0x10001", "s_mov_b32 exec_hi, 0x10001",
                          f"buffer_load_dword {v(VDUM)}, {v(V16)}, {s(SRD_WS,4)}, s99 offen {lst or P.get('hvc', '')}", "s_mov_b64 exec, -1"]
        for i, g in enumerate(P.get('hg', [12])):
            if g < 12 and HV is None: fl[g].insert(0, hl[i])
        hpos = 0
    WX, WY = PF, PF + 8
    wq = []
    assert NM == 2
    for n_, (wh, ks) in enumerate(so):
        sm(wh, ks)
        if n_ < 11: smw(*so[n_ + 1])
        if n_ in (7, 8) and NM != 2: ds(*wq.pop(0))
        for x in fl.get(n_, []):
            k(x)
            if 'lgkmcnt(0)' in x: pend[:] = []
        if hpos == 2 and n_ == 11: k(hl[0])
    tick(6)
    fma = lambda x: k(f"v_fma_f32 {v(x)}, {v(x)}, s14, -{v(T0)}")
    ex = lambda x: k(exs(x))
    O0, O1 = AV, AV + 4; RS = AK; RI = T0; OP = AQ; OA = VX
    def zp(n, z):
        for _ in range(n):
            if z: k(z.pop(0))
    rp = [wl_s(x, rslot[x]) for x in lseq[:3]]
    early_rd = []
    def ldw(i):
        if P.get('ke') and P.get('kb', 6) == 12 + i: k("s_barrier")
        if i in P.get('ldw', []):
            x = (rp[1] + rp[2])[len(early_rd)]; early_rd.append(x); k(x[0])
    def softmax_max(zz, wq):
        zp(3, zz)
        k(f"v_max3_f32 {v(T0)}, {v(T0)}, {v(SX1)}, {v(SX1+1)}")
        k(f"v_max3_f32 {v(T1)}, {v(T0)}, {v(SX1+2)}, {v(SX1+3)}")
        k(f"v_max3_f32 {v(T0)}, {v(T0)}, {v(SX1+2)}, {v(SX1+3)}")
        zp(2, zz)
        k(f"v_permlane32_swap_b32 {v(T0)}, {v(T1)}")
        k(f"v_max_f32 {v(SM+2)}, {v(T0)}, {v(T1)}")
        k(f"v_max_f32 {v(T0)}, {v(T0)}, {v(T1)}")
        zp(2, zz)
        k(f"v_permlane16_swap_b32 {v(T0)}, {v(SM+2)}")
        k(f"v_max_f32 {v(T0)}, {v(T0)}, {v(SM+2)}")
        k(f"v_mul_f32 {v(T0)}, s14, {v(T0)}")
        fma(SM); fma(SM+1); ex(SM); ex(SM+1)
        fma(SX0); fma(SX0+1)
        k(f"v_cvt_pk_bf16_f32 {v(PM0)}, {v(SM)}, {v(SM+1)}")
        k(f"v_cvt_pk_bf16_f32 {v(PM1+1)}, {v(SM)}, {v(SM+1)}")
        for i in range(2, 8): fma(SX0+i)
        k(f"v_mfma_f32_16x16x16_bf16 {v(O0,4)}, {v(VM,2)}, {v(PM0,2)}, 0")
        wq and ds(*wq.pop(0))
        ex(SX0); ex(SX0+1)
        k(f"v_mfma_f32_16x16x16_bf16 {v(O1,4)}, {v(VM,2)}, {v(PM1,2)}, 0")
        wq and ds(*wq.pop(0))
        ex(SX0+2); ex(SX0+3)
        k(f"v_cvt_pk_bf16_f32 {v(PK)}, {v(SX0)}, {v(SX0+1)}")
        k(f"v_mfma_f32_16x16x16_bf16 {v(RS,4)}, {v(PM0,2)}, {v(ONE,2)}, 0")
        ex(SX0+4); ex(SX0+5)
        k(f"v_cvt_pk_bf16_f32 {v(PK+1)}, {v(SX0+2)}, {v(SX0+3)}")
        ex(SX0+6); ex(SX0+7)
        k(f"v_cvt_pk_bf16_f32 {v(PK+2)}, {v(SX0+4)}, {v(SX0+5)}")
        k(f"v_cvt_pk_bf16_f32 {v(PK+3)}, {v(SX0+6)}, {v(SX0+7)}")
        zp(1, zz)
    def softmax_nm():
        k(mul(SX0+2)); k(mul(SX0+3))
        k(f"v_cvt_pk_bf16_f32 {v(PM0)}, {v(SM)}, {v(SM+1)}")
        k(f"v_cvt_pk_bf16_f32 {v(PM1+1)}, {v(SM)}, {v(SM+1)}")
        ex(SX0)
        k(f"v_mfma_f32_16x16x16_bf16 {v(O0,4)}, {v(VM,2)}, {v(PM0,2)}, 0")
        ds(*wq.pop(0))
        ex(SX0+1); ex(SX0+2)
        k(f"v_mfma_f32_16x16x16_bf16 {v(O1,4)}, {v(VM,2)}, {v(PM1,2)}, 0")
        ds(*wq.pop(0))
        ex(SX0+3)
        for i in range(2): k(mul(SX1+i))
        k(f"v_mfma_f32_16x16x16_bf16 {v(RS,4)}, {v(PM0,2)}, {v(ONE,2)}, 0")
        for i in range(2, 4): k(mul(SX1+i))
        ex(SX1); ex(SX1+1)
        k(f"v_cvt_pk_bf16_f32 {v(PK)}, {v(SX0)}, {v(SX0+1)}")
        ex(SX1+2); ex(SX1+3)
        k(f"v_cvt_pk_bf16_f32 {v(PK+1)}, {v(SX0+2)}, {v(SX0+3)}")
        k(f"v_cvt_pk_bf16_f32 {v(PK+2)}, {v(SX0+4)}, {v(SX0+5)}")
        k(f"v_cvt_pk_bf16_f32 {v(PK+3)}, {v(SX0+6)}, {v(SX0+7)}")
        zp(2, zz)
    def softmax_nm2():
        hg = P.get('hg', [12])
        def hls(g):
            for i in range(len(hl)):
                if hg[i] == g: k(hl[i])
        k(f"v_mfma_f32_16x16x16_bf16 {v(O0,4)}, {v(VM,2)}, {v(PM0,2)}, 0")
        ldw(0)
        ex(SX0+2); ex(SX0+3)
        k(f"v_mfma_f32_16x16x16_bf16 {v(O1,4)}, {v(VM,2)}, {v(PM1,2)}, 0")
        for i in range(2): k(mul(SX1+i))
        ex(SX1)
        k(f"v_mfma_f32_16x16x16_bf16 {v(RS,4)}, {v(PM0,2)}, {v(ONE,2)}, 0")
        ldw(1)
        for i in range(2, 4): k(mul(SX1+i))
        ex(SX1+1); ex(SX1+2); ex(SX1+3)
        for i in range(4): k(f"v_cvt_pk_bf16_f32 {v(PK+i)}, {v(SX0+2*i)}, {v(SX0+2*i+1)}")
        hls(12)
        zz[:0] = cst[4:6]
        zp(2 - (hg[0] == 12), zz)
    if NM == 2: softmax_nm2()
    elif NM: softmax_nm()
    else: softmax_max(zz, wq)
    tick(7)
    if TK2 == [98]: tick(3, True)
    VP4 = AQ + 4
    GP = P.get('gpos')
    def pv(zz, hot):
        k(f"v_mfma_f32_16x16x32_bf16 {v(O0,4)}, {v(VX,4)}, {v(PK,4)}, {v(O0,4)}")
        if hot: ldw(2)
        zp(3, zz)
        k(f"v_mfma_f32_16x16x32_bf16 {v(O1,4)}, {v(VX+4,4)}, {v(PK,4)}, {v(O1,4)}")
        if hot: ldw(3)
        zp(3, zz)
        k(f"v_mfma_f32_16x16x32_bf16 {v(RS,4)}, {v(PK,4)}, {v(ONE,4)}, {v(RS,4)}")
        if hot: ldw(4)
        k(f"v_cvt_pk_bf16_f32 {v(OP)}, {v(O0)}, {v(O0+1)}")
        k(f"v_cvt_pk_bf16_f32 {v(OP+1)}, {v(O0+2)}, {v(O0+3)}")
        zp(2, zz)
        k(f"v_cvt_pk_bf16_f32 {v(OP+2)}, {v(O1)}, {v(O1+1)}")
        k(f"v_cvt_pk_bf16_f32 {v(OP+3)}, {v(O1+2)}, {v(O1+3)}")
        if hot: pend[:] = []
        (ds if hot else lambda x, t: k(x))(f"ds_write_b128 {v(VOW)}, {v(OP,4)} offset:{LR}", 'ow')
        if TK2 == [98] and hot: tick(4, True)
        if hot and GP is not None: return
        zp(1, zz)
        k(f"v_rcp_f32 {v(RI)}, {v(RS+2)}")
        k(f"v_rcp_f32 {v(RI+1)}, {v(RS+3)}")
        zp(9 if not hot or NM != 2 else P.get('zq', 2), zz)
    BM = 27 if HO else 39
    GM = P.get('gmid', 0)
    vp4 = lambda m: [f"v_lshrrev_b32 {v(VP4)}, 11, {v(VPS)}", f"v_bfi_b32 {v(VP4)}, s{m}, {v(VPS)}, {v(VP4)}"]
    if GM:
        zz.insert(0, vp4(BM)[0]); zz.insert(2, vp4(BM)[1])
    pv(zz, True)
    if NM:
        G = AQ + 5; gc = k.uid('gc'); gb = k.uid('gb')
        if not HO: k("s_movk_i32 s39, 0x1833")
        gl = [f"v_max3_f32 {v(G)}, {v(RS+2)}, {v(RS+3)}, {v(RI)}", f"v_max_f32 {v(G)}, {v(G)}, {v(RI+1)}",
              f"v_cmp_lt_f32 vcc, {float_hex(2.0 ** P.get('glim', 60))}, {v(G)}"]
        if GP is None:
            for x in gl: k(x)
        def gcold():
            k.label(gc)
            if GP is not None:
                k("s_waitcnt lgkmcnt(0)")
                for o in (0, 1): k(f"buffer_load_dwordx4 {v(VX+4*o,4)}, {v(V16)}, {s(SRD_WS,4)}, s54 offen offset:{1024*o} sc1")
                k("s_waitcnt vmcnt(0)")
                k("s_barrier")
            for ks in range(4):
                k(f"ds_read_b64_tr_b16 {v(A,2)}, {v(V8)} offset:{LL + 1024*ks}")
                k(f"ds_read_b64_tr_b16 {v(A+2,2)}, {v(V8)} offset:{LL + 1024*ks + 512}")
                if GM:
                    k("s_sub_u32 s38, s53, s51")
                    k(f"s_sub_u32 s38, s38, {(1 << SS) - LK - 2048*ks}")
                    for t in range(2): k(f"buffer_load_dwordx4 {v(A+4+4*t,4)}, {v(V16)}, {s(SRD_WS,4)}, s38 offen offset:{1024*t} sc1")
                else:
                    for t in range(2): k(f"ds_read_b128 {v(A+4+4*t,4)}, {v(V16)} offset:{LK + 2048*ks + 1024*t}")
                k("s_waitcnt vmcnt(0) lgkmcnt(0)")
                for Dd, Aop in ((SM, A), (SX0, A+4), (SX1, A+8)):
                    k(f"v_mfma_f32_16x16x32_bf16 {v(Dd,4)}, {v(Aop,4)}, {v(A,4)}, {'0' if ks == 0 else v(Dd,4)}")
                k("s_nop 7")
            k(f"v_max_f32 {v(T0)}, {v(SM)}, {v(SM+1)}")
            k(f"v_max3_f32 {v(T0)}, {v(T0)}, {v(SX0)}, {v(SX0+1)}")
            k(f"v_max3_f32 {v(T0)}, {v(T0)}, {v(SX0+2)}, {v(SX0+3)}")
            softmax_max([], [])
            pv(zero(A, 20 if GM else 12), False)
            if GM: k("s_movk_i32 s38, 0x1833")
            for x in vp4(38 if GM else BM): k(x)
            k("s_waitcnt lgkmcnt(0)")
            if GP is not None:
                k("s_barrier")
                for o in (0, 1): k(f"ds_read_b128 {v(OA+4*o,4)}, {v(V16)} offset:{LR+1024*o}")
                for x in redo: k(x)
                k("s_waitcnt lgkmcnt(0)")
                if GM:
                    for j, ke in oord[:GM + 1]: smf(A + 4*j, OA + 4*ke, WREG[('O', j, ke)])
            k(f"s_branch {gb}")
        cold.append(gcold)
    fil = [f"v_lshrrev_b32 {v(VP4)}, 11, {v(VPS)}", f"v_bfi_b32 {v(VP4)}, s{BM}, {v(VPS)}, {v(VP4)}"] + ([] if HO else set_slots())
    redo = []; ov = {}
    if GM:
        fil = zz[:1] + [f"v_rcp_f32 {v(RI)}, {v(RS+2)}", f"v_rcp_f32 {v(RI+1)}, {v(RS+3)}"]
        assert len(zz) == 4 and GP == 3 and GM == 3
        ov = {0: gl[:1], 1: gl[1:2], 2: gl[2:] + zz[1:3], P.get('zl', 5): zz[3:]}
        if P.get('oord'): ov = {0: gl[:1], 1: zz[1:2] + gl[1:2], 2: gl[2:], 3: zz[2:4]}
        zz[:] = []
    elif GP is not None:
        fil = zz[:1] + [f"v_rcp_f32 {v(RI)}, {v(RS+2)}", f"v_rcp_f32 {v(RI+1)}, {v(RS+3)}"] + zz[1:] + fil + gl
        zz[:] = fil[GP:]; fil = fil[:GP]
    kd = [f"buffer_load_dwordx4 {v(V16)}, {s(SRD_WS,4)}, s53 offen offset:{o} sc1 lds" for o in (0, 1024)]
    assert GM or not P.get('ke')
    if P.get('kp', 0) == 0:
        for _ in range(P.get('ke', 0)): k(kd.pop(0))
    for x in fil: k(x)
    if P.get('kp', 0) == 1:
        for _ in range(P.get('ke', 0)): k(kd.pop(0))
    if NM and GP is None: k(f"s_cbranch_vccnz {gc}")
    if TK2 == [98]: tick(5, True)
    lwait('ow')
    if NM and GP is None: k.label(gb)
    if TK2 == [98]: tick(6, True)
    k("s_barrier")
    if TK2 == [98]: tick(7, True)
    ds(f"ds_read_b128 {v(OA,4)}, {v(V16)} offset:{LR}", 'oa0')
    oa1 = lambda i: ds(f"ds_read_b128 {v(OA+4,4)}, {v(V16)} offset:{LR+1024}", 'oa1') if P.get('oa1d', 0) == i else None
    oa1(0)
    hm = {0: [], 1: [], 2: ["s_min_u32 s0, s0, s1"], 4: ["s_min_u32 s0, s0, s1", "s_min_u32 s18, s18, s19", "s_min_u32 s0, s0, s18"]}[HAT] + (["s_not_b32 s0, s0"] if HAT else [])
    while wq: ds(*wq.pop(0))
    zp(19, zz)
    if GP is not None and not GM:
        for _ in range(P.get('hm1', 0)): k(hm.pop(0))
        k(f"s_cbranch_vccnz {gc}")
        k.label(gb)
    tick(8)
    KL = P.get('kl', 0)
    def kdma():
        for x in kd: k(x)
    if not KL: kdma()
    oa1(1)
    if HV is not None:
        k("s_waitcnt vmcnt(2)")
        for i, x in enumerate([0, 1, 18, 19]): k(f"v_readlane_b32 s{x}, {v(VDUM)}, {16*i}")
    for x in hm: k(x)
    oa1(2)
    fil = ["s_sub_u32 s27, s0, s96",
           "s_add_u32 s96, s96, s6", "s_min_i32 s27, s27, s24", "s_max_i32 s27, s27, 0", "s_add_u32 s96, s96, s27",
           "s_add_u32 s0, s96, s22", f"v_and_b32 {v(VDUM)}, s0, -2",
           f"buffer_store_dword {v(VDUM)}, off, {s(SRD_WS,4)}, s12 sc1", "s_sub_u32 s97, s96, s25", "s_sub_u32 s42, s96, 1000", "s_sub_u32 s96, s97, s37",
           "s_add_u32 s33, s33, 1", "s_add_u32 s40, s40, 16384", "s_add_u32 s41, s41, 16384", "s_add_u32 s35, s35, 8192", "s_bitset0_b32 s35, 15"]
    for _ in range(P.get('fil2', 8)): k(fil.pop(0))
    oa1(3)
    XS = AQ
    def fin(j):
        d = A + 4*j; o = XS + j if j < 4 else d
        x = [f"v_add_f32 {v(d)}, {v(d)}, {v(d+2)}", f"v_add_f32 {v(d+1)}, {v(d+1)}, {v(d+3)}",
             f"v_fma_mixlo_f16 {v(o)}, {v(d)}, {v(RI)}, 0", f"v_fma_mixhi_f16 {v(o)}, {v(d+1)}, {v(RI+1)}, 0"]
        if P.get('pk', 0) & 1: x[:2] = [f"v_pk_add_f32 {v(d,2)}, {v(d,2)}, {v(d+2,2)}"]
        if j in (0, 4): x.append(f"v_bfi_b32 {v(o)}, 1, s34, {v(o)}")
        if j == 4: x.append(f"buffer_store_dword {v(o)}, {v(VP4)}, {s(SRD_WS,4)}, s23 offen {lst}")
        if j == 2: x.append(f"buffer_store_dwordx4 {v(XS,4)}, {v(VPS)}, {s(SRD_WS,4)}, s47 offen {lst}")
        return x
    tiles = [4, 3, 0, 1, 2]
    oord = [(j, ke) for j in tiles for ke in range(2)]
    if P.get('oord'): oord = [(4, 0), (3, 0), (4, 1), (0, 0), (3, 1), (1, 0), (0, 1), (2, 0), (1, 1), (2, 1)]
    fins = [(oord.index((j, 1)) + 2, x) for j in tiles for x in fin(j)]
    wq = dict(zip(P.get('rpos', [0, 1, 3, 4, 5, 7]), [x for x in rp[0] + rp[1] + rp[2] if x not in early_rd]))
    sq = fil
    per = P.get('fper', [1, 1, 1, 2, 2, 1, 1, 2, 2, 9])
    for n_ in range(10):
        j, ke = oord[n_]
        lwait(f'oa{ke}'); lwait(('O', j, ke))
        smf(A + 4*j, OA + 4*ke, WREG.get(('O', j, ke), [WX, WY][ke]))
        if GM and n_ == GM:
            k(f"s_cbranch_vccnz {gc}")
            k.label(gb)
        if n_ in wq:
            ds(*wq[n_])
            if n_ < GM: redo.append(wq[n_][0])
        else:
            for _ in range(P.get('sper', [2, 2, 0, 1, 2, 2, 2, 2, 2, 2])[n_] if GM else 2):
                if sq: k(sq.pop(0))
        if n_ == 0 and TK2 == [98]: tick(8, True)
        if n_ == P.get('oord', 0): lwait('oa1')
        for x in ov.get(n_, []): k(x)
        if n_ < 3: GM or k(WARM)
        else:
            c = 0
            while c < per[n_] and fins and fins[0][0] <= n_:
                x = fins.pop(0)[1]; k(x)
                if not x.startswith('buffer'): c += 1
    assert not sq
    for _, x in fins: k(x)
    tick(9)
    nored = k.uid('nored')
    ptr = f"""s_add_u32 s38, s35, s32
        s_add_u32 s36, s35, 4096
        s_mov_b32 s39, s13
        s_add_u32 s13, s13, 16384
        s_add_u32 s12, s12, 16384
        s_add_u32 s53, s53, {1 << SS}
        s_sub_u32 s17, s33, 1
        s_add_u32 s54, s54, {1 << SS}
        s_add_u32 s55, s55, {1 << SS}
        s_add_u32 s15, s15, s21
        s_add_u32 s98, s98, 16384
        s_add_u32 s99, s99, 16384
        s_sub_u32 s6, s6, {P.get('d1', 100)}
        s_max_u32 s6, s6, {P['ltgt']}
        s_sub_u32 s37, s37, {P.get('d2', 100)}
        s_max_u32 s37, s37, s7""".split('\n')
    k("s_memtime s[0:1]")
    for d in range(4): k(f"v_cndmask_b32 {v(SEL+d)}, 0, {v(VPL)}, s[{56+2*d}:{57+2*d}]")
    w1 = P.get('w1', 3)
    for x in ptr[:w1]: k(x)
    k("s_waitcnt lgkmcnt(0)")
    for x in rem(96, 0): k(x)
    k("s_cmp_ge_u32 s28, 80")
    k(f"s_cbranch_scc1 {nored}")
    dloop(27)
    def rload(d):
        k(f"buffer_load_dwordx4 {v(d,4)}, {v(V16)}, {s(SRD_WS,4)}, s48 offen sc1 ;poll")
        k(f"buffer_load_dwordx4 {v(d+4,4)}, {v(V16)}, {s(SRD_WS,4)}, s48 offen offset:1024 sc1 ;poll")
    if TK2 == [99]: tick(3, True)
    rload(RD)
    late_rd = [x[0] for x in rp[0] + rp[1] + rp[2] if x not in early_rd and x not in wq.values()]
    assert w1 <= 5 and HV is None
    def house(fm=True):
        if KL: kdma()
        if fm: fmget()
        for x in late_rd: k(x)
        for x in zero(AQ, 8) + zero(AK + 4, 4) + ptr[w1:]: k(x)
    house()
    delay(k, P.get('bdel', 0))
    rl = k.uid('rl'); rcl = k.uid('rc')
    k.label(rl)
    if TK2 == [99]: tick(4, True)
    dbl = P.get('dbl', 1)
    if dbl: rload(AV)
    if TK2 == [99]: tick(5, True)
    assert not (dbl and KL)
    k(f"s_waitcnt vmcnt({1 + 2*dbl + 2*KL})")
    if TK2 == [99]: tick(6, True)
    k(f"v_mfma_f32_16x16x32_f16 {v(D,4)}, {v(SEL,4)}, {v(RD,4)}, 0")
    k(f"v_bitop3_b32 {v(T)}, {v(RD+1)}, {v(RD+2)}, s34 bitop3:0x7e")
    k(f"s_waitcnt vmcnt({2*dbl + 2*KL})")
    k(f"v_mfma_f32_16x16x32_f16 {v(D,4)}, {v(SEL,4)}, {v(RD+4,4)}, {v(D,4)}")
    if TK2 == [99]: tick(7, True)
    k(f"v_bitop3_b32 {v(T+2)}, {v(RD+3)}, {v(RD+5)}, s34 bitop3:0x7e")
    k(f"v_bitop3_b32 {v(T+3)}, {v(RD+6)}, {v(RD+7)}, s34 bitop3:0x7e")
    k(f"v_bitop3_b32 {v(A+4)}, {v(RD)}, {v(RD+4)}, s34 bitop3:0x7e")
    k(f"v_or3_b32 {v(T)}, {v(T)}, {v(T+2)}, {v(T+3)}")
    k(f"v_and_or_b32 {v(T)}, {v(T)}, s94, {v(A+4)}")
    k(f"v_and_b32 {v(T)}, 1, {v(T)}")
    k(f"v_cmp_{'f' if ns else 'ne'}_u32 vcc, 0, {v(T)}")
    PB = A + 5
    k(f"""
    v_add_f32_dpp {v(D)}, {v(D)}, {v(D)} row_ror:4 row_mask:0xf bank_mask:0xf
    v_add_f32_dpp {v(D+1)}, {v(D+1)}, {v(D+1)} row_ror:4 row_mask:0xf bank_mask:0xf
    s_cbranch_vccnz {rcl}
    v_add_f32_dpp {v(D)}, {v(D)}, {v(D)} row_ror:8 row_mask:0xf bank_mask:0xf
    v_add_f32_dpp {v(D+1)}, {v(D+1)}, {v(D+1)} row_ror:8 row_mask:0xf bank_mask:0xf
    v_cvt_pk_bf16_f32 {v(D)}, {v(D)}, {v(D+1)}
    v_min_u32 {v(PB)}, 0xfffffffe, {v(D)}
    buffer_store_dword {v(PB)}, {v(VPUB)}, {s(SRD_WS,4)}, s38 offen {lst}
    """)
    if early: k(f"buffer_store_dword {v(PB)}, {v(VPUB)}, {s(SRD_WS,4)}, s39 offen sc1")
    if TK2 == [99]: tick(8, True)
    post = k.uid('post'); k.label(post)
    if early:
        tail()
        k("s_waitcnt lgkmcnt(0)")
    k("s_memtime s[0:1]")
    if early: fmfix()
    k("s_waitcnt lgkmcnt(0)")
    for x in rem(97, 0): k(x)
    def rcold():
        k.label(rcl)
        if dbl:
            k("s_waitcnt vmcnt(0)")
            for i in range(0, 8, 2): k(f"v_mov_b64 {v(RD+i,2)}, {v(AV+i,2)}")
        else: rload(RD)
        if KL: k("s_waitcnt vmcnt(0)")
        k("s_add_u32 s49, s49, 1")
        k(f"s_cmp_gt_u32 s49, {P.get('bound', 20000)}")
        k(f"s_cbranch_scc1 {last}")
        k(f"s_branch {rl}")
    cold.append(rcold)
    join = k.uid('join')
    def nrcold():
        k.label(nored)
        kb = k.uid('kvb'); nc = k.uid('nocal')
        k(f"s_cmp_lg_u32 {s(w)}, 3")
        k(f"s_cbranch_scc1 {nc}")
        k("s_add_u32 s42, s40, 5120")
        if TK:
            for i in range(10): k(f"v_writelane_b32 {v(A+6)}, s{64+2*i}, {i}")
        fmget()
        dloop(27)
        calib(k, P, 27, f"s_buffer_load_dword s42, {s(SRD_WS,4)}, s42")
        k(f"v_mov_b32 {v(VDUM)}, s27")
        k(f"ds_write_b32 {v(VQ)}, {v(VDUM)} offset:{LR+2048}")
        if P.get('dc', 1): k("s_sub_u32 s22, s27, s25"); k("s_mov_b32 s25, s27")
        if TK:
            for i in range(10): k(f"v_readlane_b32 s{64+2*i}, {v(A+6)}, {i}")
        if HAT:
            k(f"v_mov_b32 {v(VDUM)}, -1")
            k(f"buffer_store_dword {v(VDUM)}, {v(VQ)}, {s(SRD_WS,4)}, s91 offen {lst}")
        else: k(f"buffer_load_dword {v(A+16)}, off, {s(SRD_WS,4)}, s91 {P.get('hpc', '')}")
        k("s_add_u32 s91, s91, 16384")
        house(False)
        if early: fmfix()
        k(f"s_add_u32 s38, s38, {P['cdur']}")
        for x in rem(97, 38): k(x)
        if fused:
            k("s_add_u32 s19, s33, 1")
            k("s_min_u32 s19, s19, 63")
            k("s_waitcnt vmcnt(6)")
            k(f"v_cmp_ge_u32 vcc, s19, {v(VSEL)}")
            k("s_and_b32 s39, vcc_lo, 0xfff")
            k(f"s_cbranch_scc0 {kb}")
            kvspin(kb)
            k.label(kb)
        else: k("s_waitcnt vmcnt(6)")
        if early: tail()
        else: k(f"s_mov_b32 s39, {WS_SIZE}")
        k(f"s_branch {join}")
        k.label(nc)
        house()
        k(f"s_mov_b32 s39, {WS_SIZE}")
        k("s_waitcnt vmcnt(5)")
        k(f"s_branch {post}")
    cold.append(nrcold)
    k.label(join)
    tick(10)
    dloop(27)
    k.label(entry)
    tick(11)
    poll_local()
    tc = k.uid('tc'); dl3 = k.uid('dl')
    if not early:
        k(f"buffer_store_dword {v(PB)}, {v(VPUB)}, {s(SRD_WS,4)}, s39 offen sc1")
        tail(); fmfix()
        k("s_waitcnt vmcnt(4)")
        for x in zero(AV, 8): k(x)
        tail2()
    k("s_waitcnt lgkmcnt(0)")
    k("s_memtime s[0:1]")
    k(f"""
    s_cmp_eq_u32 s42, -1
    s_cbranch_scc1 {tc}
    s_sub_u32 s42, s42, s25
    s_add_i32 s42, s42, {P['rgap']}
    s_waitcnt lgkmcnt(0)
    s_sub_u32 s27, s42, s0
    s_cmpk_lt_u32 s27, 4000
    s_cselect_b32 s27, s27, 0
    """)
    k(".p2align 3")
    k.label(dl3)
    k(f"s_sub_u32 s27, s27, {P['dit']}")
    k(f"s_cbranch_scc0 {dl3}")
    if not rin: k("s_barrier")
    tick(12)
    if not rin: poll_rr()
    def tcold():
        k.label(tc)
        k(f"""
        s_add_u32 s44, s44, 1
        s_add_u32 s38, s40, 5120
        buffer_load_dword {v(VDUM)}, off, {s(SRD_WS,4)}, s38 sc1
        s_waitcnt vmcnt(0)
        s_memtime s[0:1]
        v_readfirstlane_b32 s42, {v(VDUM)}
        s_mov_b32 s27, 0
        s_waitcnt lgkmcnt(0)
        s_sub_u32 s38, s0, s97
        s_cmp_gt_u32 s38, {P.get('tcap', 3000)}
        s_cbranch_scc1 {dl3}
        s_cmp_eq_u32 s42, -1
        s_cbranch_scc1 {tc}
        s_sub_u32 s42, s42, s25
        s_sub_u32 s27, s42, s0
        s_add_i32 s27, s27, {P['rgap']}
        s_cmpk_lt_u32 s27, 4000
        s_cselect_b32 s27, s27, 0
        s_branch {dl3}
        """)
    cold.append(tcold)
    if early:
        k("s_waitcnt vmcnt(6)")
        for x in zero(AV, 8): k(x)
        tail2()
    k(f"v_mov_b32 {v(VMC+3)}, {LR + 2048 + 768}")
    if not rin: k(f"ds_read_b32 {v(VMC+2)}, {v(VMC+3)}")
    if TK:
        if P.get('rmeas'):
            k("s_waitcnt vmcnt(2)"); tick(3); k("s_waitcnt vmcnt(0)"); tick(1)
        k("s_waitcnt lgkmcnt(0)")
        for i in [10, 11, 12] + ([1, 3] if P.get('rmeas') else []): k(f"v_writelane_b32 {v(A+8)}, s{64+2*i}, {i}")
        k("s_mov_b64 exec, 0xffff")
        k(f"buffer_store_dword {v(A+8)}, {v(A+9)}, {s(SRD_WS,4)}, s39 offen")
        k("s_mov_b64 exec, -1")
    k(f"s_branch {loop}")
    for c in cold: c()
    k.label(lastpub)
    k(f"s_add_u32 s55, s55, {1 << SS}")
    k("s_waitcnt vmcnt(0)")
    fmget()
    k("s_waitcnt lgkmcnt(0)")
    fmfix()
    k(fmst)
    k(f"v_mov_b32 {v(VDUM)}, 64")
    k("s_waitcnt vmcnt(0)")
    k("s_barrier")
    k(f"buffer_store_dword {v(VDUM)}, off, {s(SRD_WS,4)}, s50 sc1")
    k(f"s_branch {last}")

def team_end(k):
    stamp(k, 2, 20)
    if STAMPS:
        k(f"""
        s_lshl_b32 s94, {s(S_WG)}, 10
        s_lshl_b32 s95, {s(S_WAVE)}, 8
        s_add_u32 s94, s94, s95
        s_add_u32 s94, s94, {WS_STAMP}
        """)
        for i, sr in enumerate([43, 44, 45, 46, 49, 33]):
            k(f"v_mov_b32 v20, s{sr}")
            k(f"buffer_store_dword v20, off, {s(SRD_WS,4)}, s94 offset:{16+4*i}")

TP = dict(nomax=2, tick=False, dit=28, sc1early=0, dbl=0, rgap=240, cdur=300, tlead=700, vl=[6,6], rin=2, rc=24, rb=4, sx=30, hs=3, sp=[8,10,14,40], rtgt=1960, ltgt=2560)

if __name__ == '__main__':
    ks = build_dev()
    variants = eval(open('tvariants.txt').read())
    for n, d in variants.items():
        P = dict(TP); P.update(d)
        k = Kernel(f"team{n}_kernel"); prologue(k)
        k.timed = True
        k(f"s_cmp_ge_u32 {s(S_X)}, 2")
        k(f"s_cbranch_scc1 {k.name}_exit")
        role_team(k, P)
        epilogue(k); ks.append(k)
    emit(ks, 'dev.s')
```

```python
import sys, math
from gen import *

LK, LL, LR, LW, LWS = 0, 8192, 12288, 16384, 36864
ACC = 16; A = 40; PP = 60; WB = 96
AQ, AK, AV = ACC, ACC + 8, ACC + 16
SRD_WO = 96
V16, VIDX, VFW, V8, VOW, VPS, VPL, VPUB, VLW, VC0, VQ, VSEL, VDUM = 0, 1, 2, 3, 4, 5, 6, 7, 8, 9, 13, 14, 15
HINT_OFF = 16384 + 6144

LGRP = [('L', 0, 1), ('L', 1, 2), ('L', 2, 2), ('L', 3, 2), ('L', 4, 2), ('R', 3, 1), ('R', 4, 1), ('R', 0, 2)]
LKEYS = [g + (t,) for g in LGRP for t in range(2)] + [('L', 0, 2, 0), ('L', 1, 1, 1)]
WLDS = {}
WREG = {}
for key in [(l, i, m, t) for l in 'LR' for i in range(5) for m in range(3) for t in range(2)] + [('O', j, ke) for j in range(5) for ke in range(2)]:
    if key not in LKEYS: WREG[key] = WB + 8 * len(WREG)
assert len(WREG) == 52
WS_ST2 = 0x7000000

def delay(k, n):
    n = n // 4
    while n > 0:
        t = min(n, 16); k(f"s_nop {t-1}"); n -= t

def calib(k, P, dst, mid=None):
    k("s_memtime s[38:39]")
    for i in range(11):
        k(f"s_memrealtime s[{64+2*i}:{65+2*i}]")
        k("s_nop 0")
    k("s_waitcnt lgkmcnt(0)")
    if mid: k(mid)
    k(f"s_add_u32 s{dst}, s64, s66")
    for i in range(2, 11): k(f"s_add_u32 s{dst}, s{dst}, s{64+2*i}")
    k(f"s_lshl_b32 s{dst}, s{dst}, 1")
    k(f"s_sub_u32 s{dst}, s{dst}, s38")

def role_team(k, P, fused=False, confirm=None):
    b = S_X; h = S_T; w = S_WAVE
    lst = P.get('lst', '')
    last = k.uid('last')
    srd(k, SRD_A, KA_WQ, 640 * 8192); srd(k, SRD_B, KA_WK, 640 * 8192); srd(k, SRD_C, KA_WV, 640 * 8192)
    srd(k, SRD_WO, KA_WO, 4096 * 1280)
    SR = [SRD_A, SRD_B, SRD_C]
    k(f"""
    v_lshrrev_b32 v16, 3, v0            ; rho
    v_and_b32 v17, 7, v0                ; cc
    v_and_b32 v18, 1, v16
    v_lshlrev_b32 v20, 2, v18           ; 4(rho&1)
    v_and_b32 v19, 2, v16
    v_add_u32 v20, v20, v19             ; + 2((rho>>1)&1)
    v_lshrrev_b32 v21, 2, v16
    v_add_u32 v20, v20, v21             ; + (rho>>2)
    v_lshlrev_b32 v20, 13, v20
    v_lshlrev_b32 v22, 1, v19
    v_xor_b32 v22, v22, v17
    v_lshl_add_u32 v20, v22, 4, v20
    v_lshl_add_u32 v21, v21, 2, v18
    v_lshl_add_u32 v21, v19, 2, v21     ; + 8((rho>>1)&1)
    v_mul_u32_u24 v21, 1280, v21
    v_lshl_add_u32 v21, v17, 4, v21
    s_mul_i32 s37, {s(w)}, {LWS}
    s_add_u32 s37, s37, {LW}
    s_lshl_b32 s38, {s(h)}, 8
    s_lshr_b32 s39, {s(w)}, 1
    s_lshl_b32 s39, s39, 7
    s_add_u32 s38, s38, s39
    s_mul_i32 s39, {s(b)}, {5*64*8192}
    s_add_u32 s50, s38, s39
    s_sub_u32 s39, {5*64*8192}, s39
    s_add_u32 s51, s38, s39
    s_lshl_b32 s39, {s(w)}, 19
    s_add_u32 s40, s50, s39             ; L type A
    s_add_u32 s42, s51, s39             ; R type A
    s_xor_b32 s39, s39, {2 << 19}
    s_add_u32 s41, s50, s39             ; L type B
    s_add_u32 s43, s51, s39             ; R type B
    s_bitcmp1_b32 {s(w)}, 0
    s_cselect_b32 s44, s51, s50
    s_add_u32 s44, s44, {4 << 19}       ; type C
    s_mul_i32 s45, {s(h)}, 163840
    s_mul_i32 s39, {s(b)}, 640
    s_add_u32 s45, s45, s39
    s_mul_i32 s46, {s(w)}, {32*1280}
    s_add_u32 s46, s46, s45
    s_add_u32 s46, s46, 512
    s_lshl_b32 s39, {s(w)}, 7
    s_add_u32 s45, s45, s39
    """)
    VOWN, VPAR, VEVN, VODD, VWO, VT4A, VT4B = 23, 24, 25, 26, 27, 28, 29
    def qkv_batch(sb, m, k0, a0, k1, a1):
        dm = [(SR[m], sb, 8*j*8192, 20) for j in range(8)]
        rd = []
        for kk, va in ((k0, a0), (k1, a1)):
            for t in range(2):
                for u in range(2):
                    for vv in range(2): rd.append((kk + (m, t), 4*u + 2*vv, va, u*4096 + vv*1024 + 8*t))
        return dm, rd
    def wo_batch(ke):
        dm = [(SRD_WO, 45, (64*ke + 32*(j >> 2) + 16*((j >> 1) & 1) + 2*(j & 1)) * 1280, 21) for j in range(8)]
        rd = [(('O', j, ke), 4*u + 2*vv, VWO, u*4096 + vv*1024 + 8*j) for j in range(4) for u in range(2) for vv in range(2)]
        return dm, rd
    B = {}
    for m in range(3):
        B['LA', m] = qkv_batch(40, m, ('L', 0), VOWN, ('L', 2), VPAR)
        B['LB', m] = qkv_batch(41, m, ('L', 3), VOWN, ('L', 4), VPAR)
        B['RA', m] = qkv_batch(42, m, ('R', 0), VOWN, ('R', 2), VPAR)
        B['RB', m] = qkv_batch(43, m, ('R', 3), VOWN, ('R', 4), VPAR)
        B['C', m] = qkv_batch(44, m, ('L', 1), VEVN, ('R', 1), VODD)
    for ke in range(2): B['O', ke] = wo_batch(ke)
    nl = lambda x: len({r[0] for r in B[x][1] if r[0] in LKEYS})
    order = sorted(B, key=nl)
    NB = len(order)
    SPARE = 32768
    vq = []
    def issue(dm, ldsoff, tag):
        for j, (sr, sb, c, vg) in enumerate(dm):
            k(f"s_add_u32 s39, s{sb}, {c}")
            k(f"s_add_u32 m0, s37, {ldsoff + j*1024}")
            k(f"buffer_load_dwordx4 {v(vg)}, {s(sr,4)}, s39 offen lds")
            vq.append(tag)
    def vwait(tag):
        idx = max(i for i, t in enumerate(vq) if t == tag)
        k(f"s_waitcnt vmcnt({len(vq) - idx - 1})")
        del vq[:idx+1]
    issue([(SRD_WO, 46, (16*(j >> 1) + 2*(j & 1)) * 1280, 21) for j in range(4)], SPARE, 'o4')
    for n in range(4): issue(B[order[n]][0], n * 8192, n)
    stamp(k, 0, 30)
    if STAMPS: vq.extend(['st', 'st'])
    k(f"""
    v_lshrrev_b32 v16, 4, v0            ; g
    v_and_b32 v17, 15, v0               ; n
    v_bfe_u32 v18, v0, 1, 1
    v_mov_b32 {v(VIDX)}, 0x4444
    v_mul_u32_u24 v18, 0xaaaa, v18
    v_add_u32 {v(VIDX)}, {v(VIDX)}, v18
    s_lshl_b32 s35, {s(w)}, 10
    v_lshlrev_b32 {v(VFW)}, 5, v17
    v_lshl_add_u32 {v(VFW)}, v16, 3, {v(VFW)}
    v_add_u32 {v(VFW)}, s35, {v(VFW)}
    v_lshlrev_b32 {v(V8)}, 3, v0
    v_lshrrev_b32 v18, 1, v16
    v_lshlrev_b32 {v(VOW)}, 8, v18
    v_and_b32 v18, 1, v16
    v_lshl_add_u32 {v(VOW)}, v18, 5, {v(VOW)}
    v_lshrrev_b32 v18, 2, v17
    v_lshl_add_u32 {v(VOW)}, v18, 6, {v(VOW)}
    v_and_b32 v18, 1, v17
    v_lshl_add_u32 {v(VOW)}, v18, 4, {v(VOW)}
    v_bfe_u32 v18, v17, 1, 1
    v_xor_b32 v18, 1, v18
    v_lshl_add_u32 {v(VOW)}, v18, 11, {v(VOW)}
    s_lshl_b32 s36, {s(w)}, 9
    v_add_u32 {v(VOW)}, s36, {v(VOW)}
    v_and_b32 v18, 12, v17
    v_add_u32 v18, v18, v16
    v_lshlrev_b32 {v(VPS)}, 11, v18
    v_and_b32 v18, 3, v17
    v_lshl_add_u32 {v(VPS)}, v18, 4, {v(VPS)}
    v_bfe_u32 v19, v17, 1, 1
    v_lshlrev_b32 {v(VPUB)}, 5, v19
    v_and_b32 v19, 1, v17
    v_lshl_add_u32 {v(VPUB)}, v19, 3, {v(VPUB)}
    v_lshrrev_b32 v19, 1, v16
    v_lshl_add_u32 {v(VPUB)}, v19, 4, {v(VPUB)}
    v_mul_u32_u24 v22, 1280, v19
    v_and_b32 v19, 1, v16
    v_lshl_add_u32 {v(VPUB)}, v19, 2, {v(VPUB)}
    ; mem0 voff (v22) = p*1280 + (8a+i)*2
    v_lshl_add_u32 v18, v19, 3, v18
    v_lshl_add_u32 v22, v18, 1, v22
    v_bfe_u32 v18, v17, 3, 1
    v_lshlrev_b32 v18, 4, v18
    v_mov_b32 v19, 0x3c00
    v_lshlrev_b32 {v(VPL)}, v18, v19
    ; staging read addresses: rows part = (g>>1)*2048 + ((g&1)*4 + r)*128
    v_lshrrev_b32 v18, 1, v16
    v_lshlrev_b32 v19, 11, v18
    v_bfe_u32 v18, v0, 2, 3
    v_lshl_add_u32 v19, v18, 7, v19
    v_and_b32 v18, 3, v0                ; c
    v_lshl_add_u32 {v(VWO)}, v18, 5, v19
    v_add_u32 {v(VWO)}, s37, {v(VWO)}
    v_lshl_add_u32 {v(VT4A)}, v18, 3, v19
    s_lshl_b32 s38, {s(w)}, 5
    s_add_u32 s38, s38, {LW + SPARE}
    v_add_u32 {v(VT4A)}, s38, {v(VT4A)}
    v_add_u32 {v(VT4B)}, {2*LWS}, {v(VT4A)}
    v_lshl_add_u32 v19, v18, 4, v19
    v_bfe_u32 v18, v0, 3, 1             ; r>>1
    s_and_b32 s38, {s(w)}, 1
    v_xor_b32 v18, s38, v18
    v_lshl_add_u32 v19, v18, 6, v19
    v_add_u32 {v(VOWN)}, s37, v19
    s_xor_b32 s38, {s(w)}, 1
    s_mul_i32 s38, s38, {LWS}
    s_add_u32 s38, s38, {LW}
    v_add_u32 {v(VPAR)}, s38, v19
    v_min_u32 {v(VEVN)}, {v(VOWN)}, {v(VPAR)}
    v_max_u32 {v(VODD)}, {v(VOWN)}, {v(VPAR)}
    v_lshlrev_b32 {v(V16)}, 4, v0
    v_add_u32 {v(VLW)}, s37, {v(V16)}
    v_add_u32 {v(VC0)}, s35, {v(V16)}
    v_lshrrev_b32 {v(VQ)}, 2, {v(VC0)}
    v_xor_b32 {v(VC0+1)}, 0x400, {v(VC0)}
    v_xor_b32 {v(VC0+2)}, 0x800, {v(VC0)}
    v_xor_b32 {v(VC0+3)}, 0xc00, {v(VC0)}
    """)
    k(f"""
    s_mul_i32 s39, {s(b)}, {PART_GRP}
    s_add_u32 s39, s39, {WS_SYNC+SY_PART}
    s_lshl_b32 s100, {s(h)}, 6
    s_lshl_b32 s101, {s(w)}, 15
    s_add_u32 s100, s100, s101
    s_add_u32 s100, s100, s39
    s_lshl_b32 s28, {s(w)}, 5
    s_add_u32 s28, s28, {s(h)}           ; rho
    s_lshl_b32 s101, s28, 11
    s_add_u32 s101, s101, s39
    s_lshl_b32 s39, {s(b)}, 16
    s_add_u32 s29, s39, {WS_SYNC+SY_MEML}
    s_lshl_b32 s39, {s(b)}, 20
    s_add_u32 s30, s39, {WS_SYNC+SY_MEMR+8192*P.get('pol',0)}
    s_xor_b32 s39, s39, 0x100000
    s_add_u32 s31, s39, {WS_SYNC+SY_MEMR+8192*P.get('pol',0)}
    s_lshl_b32 s32, s28, 6
    s_mov_b32 s6, 0xf000f000
    s_mov_b32 s7, 0xf000f000
    """)
    def init_stores():
        k(f"""
        s_cmp_lt_u32 s28, 80
        s_cselect_b32 s56, -1, 0
        s_mov_b32 s57, s56
        s_mov_b32 s92, {s(KA_MEM0)}
        s_and_b32 s93, {s(KA_MEM0+1)}, 0xffff
        s_mov_b32 s94, 10240
        s_mov_b32 s95, 0x20000
        s_and_b32 s39, s28, 3
        s_mul_i32 s39, s39, 2560             ; g*2 rows
        s_lshr_b32 s38, s28, 2
        s_lshl_b32 s38, s38, 5               ; T*16 cols*2B
        s_add_u32 s39, s39, s38
        s_mul_i32 s38, {s(b)}, 640
        s_add_u32 s39, s39, s38
        s_and_b64 exec, s[6:7], s[56:57]
        buffer_load_ushort v16, v22, s[92:95], s39 offen
        buffer_load_ushort v17, v22, s[92:95], s39 offen offset:8
        s_mov_b64 exec, -1
        """)
        vq.extend(['m0', 'm0'])
        if fused:
            k(f"""
            s_add_u32 s38, s32, s29
            s_add_u32 s39, s32, s30
            v_mov_b32 v92, -1
            v_mov_b32 v93, -1
            v_mov_b32 v94, -1
            v_mov_b32 v95, -1
            v_lshrrev_b32 v18, 6, {v(V16)}      ; lane>>2
            v_and_b32 v19, 48, {v(V16)}
            v_lshl_add_u32 v18, v18, 13, v19
            s_add_u32 s34, s101, {PART_SLOT}
            s_mov_b64 exec, s[56:57]
            buffer_store_dwordx4 v[92:95], {v(V16)}, {s(SRD_WS,4)}, s101 offen sc1
            buffer_store_dwordx4 v[92:95], {v(V16)}, {s(SRD_WS,4)}, s101 offen offset:1024 sc1
            buffer_store_dwordx4 v[92:95], {v(V16)}, {s(SRD_WS,4)}, s34 offen sc1
            buffer_store_dwordx4 v[92:95], {v(V16)}, {s(SRD_WS,4)}, s34 offen offset:1024 sc1
            s_and_b32 exec_lo, s56, 0xfff0
            s_mov_b32 exec_hi, 0
            buffer_store_dwordx4 v[92:95], v18, {s(SRD_WS,4)}, s38 offen sc1
            s_mov_b64 exec, -1
            """)
            vq.extend(['in'] * 5)
    def pub0():
        if 'm0' in vq: vwait('m0')
        k(f"""
        s_add_u32 s38, s32, s29
        s_add_u32 s39, s32, s30
        s_xor_b32 s34, s39, 8192
        v_lshl_or_b32 v16, v17, 16, v16
        s_and_b64 exec, s[6:7], s[56:57]
        v_min_u32 v16, 0xfffffffe, v16
        buffer_store_dword v16, {v(VPUB)}, {s(SRD_WS,4)}, s39 offen sc1
        buffer_store_dword v16, {v(VPUB)}, {s(SRD_WS,4)}, s34 offen sc1
        buffer_store_dword v16, {v(VPUB)}, {s(SRD_WS,4)}, s38 offen sc1
        s_mov_b64 exec, -1
        """)
        vq.extend(['p0'] * 3)
    WLDS.clear()
    free = []; held = []; tpool = [32 + 8*i for i in range(8)]
    tmp = {}
    def flush():
        while held and free:
            key = held.pop(0); off = free.pop(0); WLDS[key] = off; t = tmp.pop(key)
            for hh in range(2): k(f"ds_write_b128 {v(VLW)}, {v(t + 4*hh, 4)} offset:{off + 1024*hh}")
            tpool.append(t)
    def consume(rd, base):
        new = []
        for (key, ro, va, off) in rd:
            if key in WREG: reg = WREG[key]
            else:
                if key not in tmp: tmp[key] = tpool.pop(0); new.append(key)
                reg = tmp[key]
            k(f"ds_read_b64_tr_b16 {r(reg + ro, 2)}, {v(va)} offset:{base + off}")
        k("s_waitcnt lgkmcnt(0)")
        held.extend(new)
    init_stores()
    def cnt_add(val):
        k(f"""
        s_cmp_eq_u32 {s(w)}, 0
        s_cselect_b32 exec_lo, 1, 0
        s_mov_b32 exec_hi, 0
        v_mov_b32 v30, {val}
        buffer_atomic_add v30, off, {s(SRD_DBG,4)}, 0 offset:{DB_INIT} sc1
        s_mov_b64 exec, -1
        """)
        vq.append('at')
    def dbg_eval():
        k(f"""
        s_cmp_eq_u32 s92, {N_INIT}
        s_cselect_b32 s47, s93, 0
        s_cmp_lg_u64 s[94:95], 0
        s_cselect_b32 s47, s47, 0
        s_cmp_eq_u32 s91, 32
        s_cselect_b32 s47, s47, 0
        s_and_b32 s90, s94, 0xffff
        """)
    k(f"""
    s_sub_u32 s52, {s(h)}, {s(w)}
    s_lshl_b32 s52, s52, 8
    s_add_u32 s52, s52, {WS_SYNC+SY_FLAG+FL_G1}   ; K/V flag line (minus the wave part of VQ)
    s_mul_i32 s39, {s(h)}, {(1 << HS) + SKEW[0]}
    s_lshl_b32 s54, {s(w)}, 11
    s_add_u32 s51, s54, {LK}             ; K dma lds base
    s_add_u32 s54, s54, s39
    s_add_u32 s53, s54, {WS_K}           ; K quarter (running)
    s_add_u32 s54, s54, {WS_VT}          ; VT(s) wave base (running)
    """)
    NP0, NTI, NDB = 3, 6, P.get('ndb', 14)
    if P.get('touch', 0) & 2:
        k(f"buffer_load_dword v31, off, {s(SRD_WS,4)}, s53 sc1")
        vq.append('tch')
    def kv_first():
        k(f"s_add_u32 m0, s35, {LL}")
        k(f"v_lshlrev_b32 v17, 1, {v(V16)}")
        k(f"buffer_load_dword v17, {s(SRD_WS,4)}, s54 offen sc1 lds")
        k("s_mov_b32 m0, s51")
        for o in (0, 1024): k(f"buffer_load_dwordx4 {v(V16)}, {s(SRD_WS,4)}, s53 offen offset:{o} sc1 lds")
    def announce(x, sr):
        k(f"""
        s_memtime s[38:39]
        s_waitcnt lgkmcnt(0)
        s_add_u32 s38, s38, s48
        s_add_u32 s38, s38, {x}
        s_or_b32 s38, s38, 1
        v_mov_b32 v30, s38
        buffer_store_dword v30, off, {s(SRD_WS,4)}, s{sr} sc1
        s_and_b32 s39, s{sr}, -256
        v_lshrrev_b32 v19, 2, {v(V16)}
        buffer_load_dword v31, v19, {s(SRD_WS,4)}, s39 offen sc1
        """)
    for n in range(NB):
        if n == NB - 2: calib(k, P, 48)
        vwait(n)
        if STAMPS and n in P.get('stn', (1, 5, 9, 13)) and not P.get('st2'): k(f"s_memrealtime s[{[58,60,62,0][P.get('stn', (1, 5, 9, 13)).index(n)]}:{[59,61,63,1][P.get('stn', (1, 5, 9, 13)).index(n)]}]")
        if n == NB - 1 and fused:
            na = k.uid('na')
            k(f"""
            s_lshl_b32 s33, {s(h)}, 1
            s_add_u32 s33, s33, {s(b)}
            s_lshl_b32 s33, s33, 2
            s_add_u32 s33, s33, {WS_SYNC+SY_FLAG+AN[0]}
            s_cmp_eq_u32 {s(w)}, 3
            s_cselect_b32 s36, s33, {WS_SIZE}
            s_waitcnt vmcnt(0)
            v_cmp_ge_u32 vcc, 1, v31
            s_and_b32 s39, vcc_lo, 0xfff
            s_cselect_b32 s47, 0, s47
            s_cmp_eq_u32 s47, 0
            s_cbranch_scc1 {na}
            """)
            announce(P.get('ann', 700), 36)
            kv_first()
            k.label(na)
        if n == NTI and fused:
            assert 'p0' not in vq and 'in' not in vq
        k("s_barrier")
        if n == NP0: pub0()
        if n == 1: free.extend([SPARE, SPARE + 2048])
        if n >= 1:
            if n + 3 < NB: issue(B[order[n+3]][0], ((n - 1) % 4) * 8192, n + 3)
            else: free.extend([((n - 1) % 4) * 8192 + 2048*q for q in range(4)])
        if n == P.get('npl', 14) and fused:
            k(f"""
            v_lshlrev_b32 v17, 1, {v(V16)}
            s_add_u32 s34, s101, {PART_SLOT}
            s_mov_b64 exec, s[56:57]
            buffer_load_dword v16, v17, {s(SRD_WS,4)}, s101 offen {P.get('plc', '')}
            buffer_load_dword v16, v17, {s(SRD_WS,4)}, s34 offen {P.get('plc', '')}
            s_lshl_b32 s34, {s(w)}, 6
            s_add_u32 s34, s34, {s(h)}
            s_lshl_b32 s34, s34, 7
            s_add_u32 s34, s34, s29
            s_mov_b64 exec, 3
            v_lshlrev_b32 v18, 8, {v(V16)}
            buffer_load_dword v16, v18, {s(SRD_WS,4)}, s34 offen {P.get('plc', '')}
            s_mov_b64 exec, -1
            """)
            vq.extend(['pl', 'pl', 'pl'])
        if n == NDB - 1 and fused: k(f"s_load_dwordx4 s[92:95], {s(KA_DBG,2)}, {DB_INIT}\ns_load_dword s91, {s(KA_DBG,2)}, {DB_MI}")
        if n == NDB and fused:
            dbg_eval()
            k(f"buffer_load_dword v31, {v(VQ)}, {s(SRD_WS,4)}, s52 offen sc1")
            vq.append('kv')
        flush()
        rd = B[order[n]][1]
        if n == 0:
            for ke in range(2):
                for u in range(2):
                    for vv in range(2):
                        k(f"ds_read_b64_tr_b16 {r(WREG[('O', 4, ke)] + 4*u + 2*vv, 2)}, {v([VT4A, VT4B][ke])} offset:{u*LWS + vv*1024}")
        consume(rd, (n % 4) * 8192)
    k("s_barrier")
    free.extend([((NB - 1) % 4) * 8192 + 2048*q for q in range(4)])
    flush()
    assert not held and len(WLDS) == 18
    k("s_waitcnt lgkmcnt(0)")
    stamp(k, 1, 20)
    if STAMPS:
        for i, sr in enumerate([58, 60, 62, 0]):
            k(f"v_mov_b32 v20, s{sr}")
            k(f"buffer_store_dword v20, off, {s(SRD_WS,4)}, s94 offset:{36+4*i}")
    def kvspin(back):
        top = k.uid('kvs'); k.label(top)
        k(f"""
        buffer_load_dword {v(VSEL)}, {v(VQ)}, {s(SRD_WS,4)}, s52 offen sc1
        s_waitcnt vmcnt(0)
        v_cmp_ge_u32 vcc, s19, {v(VSEL)}
        s_and_b32 s39, vcc_lo, 0xfff
        s_cbranch_scc0 {back}
        s_add_u32 s44, s44, 1
        s_cmp_gt_u32 s44, {SPIN_MAX}
        s_cbranch_scc1 {last}
        s_sleep {P.get('psl', 1)}
        s_branch {top}
        """)
    if fused:
        top = k.uid('tw'); ok = k.uid('twok')
        k("s_mov_b32 s44, 0")
        k("s_mov_b32 s19, 1")
        k("s_cmp_lg_u32 s47, 0")
        k(f"s_cbranch_scc1 {ok}")
        k.label(top)
        k(f"""
        buffer_load_dwordx4 v[24:27], off, {s(SRD_DBG,4)}, 0 offset:{DB_INIT} sc1
        buffer_load_dword v28, off, {s(SRD_DBG,4)}, 0 offset:{DB_MI} sc1
        s_waitcnt vmcnt(0)
        """)
        for i in range(4): k(f"v_readfirstlane_b32 s{92+i}, v{24+i}")
        k("v_readfirstlane_b32 s91, v28")
        dbg_eval()
        k(f"""
        s_add_u32 s44, s44, 1
        s_cmp_gt_u32 s44, {SPIN_MAX}
        s_cbranch_scc1 {last}
        s_sleep 2
        s_cmp_eq_u32 s47, 0
        s_cbranch_scc1 {top}
        """)
        kok = k.uid('kok'); kvspin(kok); k.label(kok)
        announce(P.get('ann2', 500), 36)
        kv_first()
        k.label(ok)
        k(f"""
        s_and_b32 s39, s47, 1
        s_lshl_b32 s39, s39, 13
        s_add_u32 s30, s30, s39
        s_add_u32 s31, s31, s39
        """)
    if not fused: kv_first()
    HAT = P.get('hat', 0)
    HSET = f"""s_and_b32 s91, {s(h)}, {HAT - 1}
    s_lshl_b32 s91, s91, 8
    s_add_u32 s91, s91, s99
    s_cmp_eq_u32 {s(w)}, 3
    s_cselect_b32 s98, s91, s16          ; hint update (running)
    s_add_u32 s91, s98, {16384 - 768}
    s_cmp_lt_u32 {s(h)}, {HAT}
    s_cselect_b32 s91, s91, s16          ; hint reset (running)""" if HAT else f"""s_sub_u32 s91, s99, 768
    s_cmp_eq_u32 {s(w)}, 3
    s_cselect_b32 s98, s91, s16          ; hint update (running)
    s_add_u32 s91, s99, 16384
    s_cmp_eq_u32 {s(h)}, 1
    s_cselect_b32 s91, s91, s16          ; next hint line, pulled into L2 (running)"""
    k(f"""
    s_mul_i32 s39, {s(h)}, {(1 << HS) + SKEW[0]}
    s_lshl_b32 s95, {s(w)}, 10
    s_lshl_b32 s55, {s(b)}, 12
    s_lshl_b32 s38, {s(w)}, 9
    s_add_u32 s55, s55, s38
    s_add_u32 s55, s55, s39
    s_add_u32 s55, s55, {WS_FM + (63 << SS if P.get('fs') else -(1 << SS))}          ; FM(s-1) store address (running)
    s_add_u32 s15, s39, {WS_K + (1 << SS)}           ; prefetch base (running)
    s_mov_b32 s56, 0x05050505
    s_mov_b32 s57, 0x05050505
    s_mov_b32 s58, 0x0a0a0a0a
    s_mov_b32 s59, 0x0a0a0a0a
    s_mov_b32 s60, 0x50505050
    s_mov_b32 s61, 0x50505050
    s_mov_b32 s62, 0xa0a0a0a0
    s_mov_b32 s63, 0xa0a0a0a0
    s_mov_b32 s33, 0
    s_mov_b32 s43, 0
    s_mov_b32 s44, 0
    s_mov_b32 s45, 0
    s_mov_b32 s46, 0
    s_mov_b32 s49, 0
    s_lshl_b32 s50, {s(h)}, 6
    s_lshl_b32 s39, {s(b)}, 2
    s_add_u32 s50, s50, s39
    s_add_u32 s50, s50, {WS_SYNC+SY_FLAG+FL_FM}
    s_cmp_eq_u32 {s(w)}, 3
    s_cselect_b32 s50, s50, {WS_SIZE}
    s_cmp_lt_u32 {s(w)}, 2
    s_cselect_b32 s15, s15, s52
    s_cselect_b32 s21, {1 << SS}, 0      ; prefetch increment
    s_cselect_b32 s93, 5, 0
    s_cselect_b32 s94, 0, 1              ; tag mask of dwords 1..3
    s_lshl_b32 s20, s28, 8
    s_cmp_lt_u32 s28, 20
    s_cselect_b32 s20, s20, {WS_SIZE}
    s_mov_b32 s14, {float_hex(128 ** -0.5 * math.log2(math.e))}
    s_mov_b32 s16, {WS_SIZE}
    s_mov_b32 s17, 0
    s_cmp_eq_u32 {s(b)}, 0
    s_cselect_b32 s92, -1, 0
    s_add_u32 s99, s30, 7168             ; hint lines of the step (running)
    {HSET}
    s_cmp_eq_u32 s28, {96 + P.get('rep', 0)}
    s_cselect_b32 s16, {5120 - 64 * (96 + P.get('rep', 0))}, s16
    s_add_u32 s13, s32, s30
    s_add_u32 s13, s13, 16384
    s_add_u32 s12, s13, s16              ; time word of the next slot (running)
    s_cmp_lt_u32 s28, 80
    s_cselect_b32 s13, s13, {WS_SIZE}    ; remote publish (running)
    s_mov_b32 s35, s29
    s_add_u32 s36, s35, 4096
    s_mov_b32 s40, s31
    s_add_u32 s41, s40, 4096
    s_add_u32 s53, s53, {1 << SS}
    s_mul_i32 s26, {s(w)}, {-(32768 - 8192)}
    s_add_u32 s26, s26, {64*2048}
    s_mov_b32 s27, 0
    s_mov_b32 s22, 0
    s_movk_i32 s24, {P.get('dcap', 1600)}
    s_mov_b32 s19, 1
    s_cmp_eq_u32 {s(w)}, 3
    s_movk_i32 s37, {P['ltgt'] - P['rtgt']}
    s_cselect_b32 s7, {P['tlead']}, s37
    s_add_u32 s37, s7, {P.get('m2', 0)}
    s_movk_i32 s6, {P['ltgt'] + P.get('m1', 0)}
    """)
    if P.get('fs'):
        for i in range(4): k(f"v_mov_b32 {v(PP+32+i)}, -1")
        k(f"s_sub_u32 s38, s55, {1 << SS}")
        k(f"buffer_store_dwordx2 {v(PP+32,2)}, {v(V8)}, {s(SRD_WS,4)}, s38 offen sc1")
    k("s_mov_b32 s25, s48")
    k(f"v_mov_b32 {v(VDUM)}, s25")
    k(f"ds_write_b32 {v(VQ)}, {v(VDUM)} offset:{LR+2048}")
    k("s_waitcnt lgkmcnt(0)")
    if fused:
        slow = k.uid('slow')
        k("s_cmp_lg_u32 s90, 0x2020")
        k(f"s_cbranch_scc1 {slow}")
        team_loop(k, P, '', last, kvspin, fused)
        k.label(slow)
        team_loop(k, P, 'sc1', last, kvspin, fused)
    else:
        team_loop(k, P, lst, last, kvspin, fused)
    k.label(last)
    team_end(k)

def team_loop(k, P, lst, last, kvspin, fused):
    HAT = P.get("hat", 0)
    b = S_X; h = S_T; w = S_WAVE
    cold = []
    ns = P.get('nosync')
    TK = P.get('tick')
    pend = []
    def lwait_s(tag):
        if tag not in pend: return []
        idx = max(i for i, t in enumerate(pend) if t == tag)
        n = min(len(pend) - idx - 1, 15)
        del pend[:idx+1]
        return [f"s_waitcnt lgkmcnt({n})"]
    def lwait(tag):
        for x in lwait_s(tag): k(x)
    def wl_s(key, reg): return [(f"ds_read_b128 {v(reg+4*hh,4)}, {v(VLW)} offset:{WLDS[key]+1024*hh}", key) for hh in range(2)]
    dslog = []
    def ds(x, tag): k(x); pend.append(tag); dslog.append((x, tag))
    def smf(acc, areg, breg):
        k(f"v_smfmac_f32_16x16x64_bf16 {v(acc,4)}, {v(areg,4)}, {r(breg,8)}, {v(VIDX)}")
    pl = [f"buffer_load_dword {v(A+4)}, {v(VQ)}, {s(SRD_WS,4)}, s36 offen sc1 ;poll",
          f"buffer_load_dwordx4 {v(A,4)}, {v(VC0)}, {s(SRD_WS,4)}, s35 offen sc1 ;poll"]
    def poll_local():
        for x in pl: k(x)
    pr = [f"buffer_load_dwordx4 {v(A+12,4)}, {v(VC0)}, {s(SRD_WS,4)}, s40 offen sc1 ;poll",
          f"buffer_load_dword {v(A+16)}, {v(VQ)}, {s(SRD_WS,4)}, s41 offen sc1 ;poll"]
    def poll_rr():
        for x in pr: k(x)
    def dloop(sr):
        l = k.uid('dl'); k(".p2align 3"); k.label(l)
        k(f"s_sub_u32 s{sr}, s{sr}, {P['dit']}")
        k(f"s_cbranch_scc0 {l}")
    def rem(tgt, now): return [f"s_sub_u32 s27, s{tgt}, s{now}", "s_cmpk_lt_u32 s27, 4000", "s_cselect_b32 s27, s27, 0"]
    def set_slots():
        return f"""s_lshl_b32 s19, s33, 13
        s_and_b32 s18, s19, 0x6000
        s_lshl_b32 s19, s33, 14
        s_add_u32 s35, s18, s29
        s_add_u32 s36, s35, 4096
        s_add_u32 s40, s19, s31
        s_add_u32 s41, s40, 4096""".split('\n')
    def cmpsent(x): return f"v_cmp_{'f' if ns else 'eq'}_u32 vcc, -1, {v(x)}"
    def chk(b0, n=5):
        T = VDUM
        if n == 1: return [cmpsent(b0)]
        return [f"v_max3_u32 {v(T)}, {v(b0)}, {v(b0+1)}, {v(b0+2)}", f"v_max3_u32 {v(T)}, {v(T)}, {v(b0+3)}, {v(b0+n-1)}", cmpsent(T)]
    def retry(b0, reissue, cnt, post, fix=None, n=5):
        c = k.uid('cold'); back = k.uid('back')
        k(f"s_cbranch_vccnz {c}")
        k.label(back)
        def body():
            k.label(c)
            reissue()
            k(f"s_add_u32 s{cnt}, s{cnt}, 1")
            k(f"s_cmp_gt_u32 s{cnt}, {P.get('bound', 20000)}")
            k(f"s_cbranch_scc1 {last}")
            k(f"s_waitcnt vmcnt(0) lgkmcnt(0)")
            post()
            for x in chk(b0, n): k(x)
            k(f"s_cbranch_vccnz {c}")
            AD = P.get('ad')
            if AD and cnt == 43:
                sk = k.uid('ad')
                k(f"""
                s_cmp_lt_u32 s33, {AD[3]}
                s_cbranch_scc1 {sk}
                s_add_u32 s6, s6, {AD[0]}
                s_min_u32 s6, s6, {P['ltgt'] + AD[2]}
                s_add_u32 s37, s37, {AD[1]}
                s_add_u32 s27, s7, {AD[2] * AD[1] // AD[0]}
                s_min_u32 s37, s37, s27
                """)
                k.label(sk)
            if fix: fix()
            k("s_waitcnt lgkmcnt(0)")
            k(f"s_branch {back}")
        cold.append(body)
    TK2 = P.get('tk2')
    def tick(i, alt=False):
        if TK2 and 3 <= i <= 8 and not alt: return
        if i in P.get('notk', []): return
        if TK: k(f"s_memtime s[{64+2*i}:{65+2*i}]")
    def zero(base, n): return [f"v_mov_b64 {v(base+i,2)}, 0" for i in range(0, n, 2)]
    RING = [PP + 16, PP + 24, PP, PP + 8]
    WARM = f"v_mov_b32 {v(V8)}, {v(V8)}"
    VMC = PP + 32; VX = PP + 24; KR = PP + 16; PF = PP
    RD = A + 8; SEL = AK; D = A; T = A + 16
    areg = [A, A+8, A+4, A, A+8]
    rreg = [A+12, A+16, A+4, A, A+8]
    seq = [('L', 0, 1, 0), ('L', 0, 1, 1), ('L', 0, 2, 0), ('L', 0, 2, 1), ('L', 0, 0, 0), ('L', 0, 0, 1)]
    for i in range(1, 5): seq += [('L', i, m, t) for m in (0, 1, 2) for t in range(2)]
    rin = P.get('rin', 0)
    if rin:
        seq += [('R', 0, m, t) for t in range(2) for m in (1, 0)]
        seq += [('R', i, m, 0) for i in range(1, 5) for m in (1, 0)]
        seq += [('R', i, m, 1) for m in (1, 0) for i in range(1, 5)]
    else:
        seq += [('R', i, m, 0) for i in range(5) for m in (1, 0)]
        seq += [('R', i, m, 1) for m in (1, 0) for i in range(5)]
    seq += [('R', i, 2, t) for i in range(5) for t in range(2)]
    lseq = [x for x in seq if x in WLDS]
    sl = [0, 2, 3] * 6
    rslot = {x: RING[sl[n]] for n, x in enumerate(lseq)}
    def ring_pre():
        for x in lseq[:3]:
            for y, tg in wl_s(x, rslot[x]): ds(y, tg)
    def do_smf(key):
        l, i, m, t = key
        smf(ACC + 8*m + 4*t, (areg if l == 'L' else rreg)[i], WREG.get(key) or rslot[key])
    def a_rd(l, i):
        base = LL if l == 'L' else LR
        dst = (areg if l == 'L' else rreg)[i]
        if i == 1: return (f"ds_read_b128 {v(dst,4)}, {v(V16)} offset:{LR + 3072 if l == 'L' else LL}", l + '1')
        return (f"ds_read_b128 {v(dst,4)}, {v(VC0+i-1)} offset:{base}", f'{l}{i}')
    kfr = [KR, KR+4, VMC] + rreg
    kord = [0, 2, 4, 6, 1, 3, 5, 7] if P.get('nomax', 0) == 2 else list(range(8))
    def k_rd(i): return (f"ds_read_b128 {v(kfr[i],4)}, {v(V16)} offset:{LK + 1024*kord[i]}", f'k{kord[i]}')
    def pack(t):
        kq = AK + 4*t; qq = AQ + 4*t
        return [f"v_add_f32 {v(kq)}, {v(kq)}, {v(kq+2)}",
                f"v_add_f32 {v(kq+1)}, {v(kq+1)}, {v(kq+3)}",
                f"v_cvt_pk_bf16_f32 {v(kq+2)}, {v(kq)}, {v(kq+1)}",
                f"v_add_f32 {v(qq)}, {v(qq)}, {v(qq+2)}",
                f"v_add_f32 {v(qq+1)}, {v(qq+1)}, {v(qq+3)}",
                f"v_cvt_pk_bf16_f32 {v(kq+3)}, {v(qq)}, {v(qq+1)}",
                f"ds_write_b64 {v(VFW)}, {v(kq+2,2)} offset:{LL + 512*t}"]
    def fmget():
        k(f"v_add_u32 {v(VDUM)}, s95, {v(V8)}")
        k(f"v_mov_b64 {v(VMC,2)}, {v(VM,2)}")
        sk = k.uid('fmsk')
        k("s_cmp_eq_u32 s92, 0")
        k(f"s_cbranch_scc1 {sk}")
        k(f"ds_read_b64_tr_b16 {v(VMC,2)}, {v(VDUM)} offset:{LL}")
        k(f"ds_read_b64_tr_b16 {v(VMC+2,2)}, {v(VDUM)} offset:{LL+512}")
        k.label(sk)
    def fmfix():
        sk = k.uid('fmsk')
        k("s_cmp_eq_u32 s92, 0")
        k(f"s_cbranch_scc1 {sk}")
        k("s_or_b64 vcc, s[56:57], s[60:61]")
        for i in range(2): k(f"v_mov_b32_dpp {v(VMC+i)}, {v(VMC+i)} quad_perm:[0,0,1,1] row_mask:0xf bank_mask:0xf")
        for i in range(2): k(f"v_cndmask_b32_dpp {v(VMC+i)}, {v(VMC+2+i)}, {v(VMC+i)}, vcc quad_perm:[0,0,1,1] row_mask:0xf bank_mask:0xf")
        k.label(sk)
    def tail():
        k(f"""
        s_and_b32 s19, s33, 1
        s_mul_i32 s19, s19, {PART_SLOT}
        s_add_u32 s47, s19, s100
        s_add_u32 s48, s19, s101
        s_bfe_u32 s34, s33, 0x10001
        s_add_u32 s23, s47, s26
        s_xor_b32 s18, s35, 0x4000
        s_add_u32 s18, s18, s20
        v_lshlrev_b32 {v(VSEL)}, s93, {v(VQ)}
        """)
        for x in zero(AK, 4): k(x)
    def tail2():
        if TK: k(f"v_writelane_b32 {v(A+8)}, s25, 14")
        if STAMPS:
            sk = k.uid('stc')
            k("s_cmp_lg_u32 s33, 5")
            k(f"s_cbranch_scc1 {sk}")
            k("s_mov_b32 s46, s97\ns_mov_b32 s43, 0\ns_mov_b32 s45, 0\ns_mov_b32 s49, 0\ns_mov_b32 s44, 0")
            k.label(sk)
        if TK:
            k(f"""
            s_lshl_b32 s39, {s(S_WG)}, 2
            s_add_u32 s39, s39, {s(w)}
            s_lshl_b32 s39, s39, 12
            s_lshl_b32 s38, s33, 6
            s_add_u32 s39, s39, s38
            s_add_u32 s39, s39, {WS_ST2}
            s_lshl_b32 s38, s45, 10
            s_or_b32 s90, s38, s43
            s_lshl_b32 s38, s49, 20
            s_or_b32 s90, s38, s90
            """)
            for i in range(10):
                k(f"v_writelane_b32 {v(A+8)}, s{64+2*i}, {i}")
            k(f"v_writelane_b32 {v(A+8)}, s90, 13")
            k(f"v_lshrrev_b32 {v(A+9)}, 2, {v(V16)}")
    fmst = f"buffer_store_dwordx2 {v(VMC,2)}, {v(V8)}, {s(SRD_WS,4)}, s55 offen sc1"
    SX0, SX1, SM = AQ, AQ + 4, AK
    T0, T1 = AK + 4, AK + 5; VM = AK + 6
    PK = KR; PM0 = KR + 4; PM1 = KR + 6; ONE = VMC
    lastpub = k.uid('lastpub'); loop = k.uid('tloop'); entry = k.uid('entry')
    if fused:
        k(f"""
        s_lshl_b32 s39, {s(h)}, 5
        s_lshl_b32 s38, {s(b)}, 4
        s_add_u32 s39, s39, s38
        v_cmp_eq_u32 vcc, s39, {v(V16)}
        s_waitcnt vmcnt(3)
        v_cndmask_b32 {v(A+1)}, v31, v30, vcc
        """)
    for x in zero(ACC, 24): k(x)
    ring_pre()
    k("s_memtime s[96:97]")
    k("s_waitcnt lgkmcnt(0)")
    k("s_sub_u32 s97, s96, 1")
    k("s_add_u32 s42, s97, s25")
    k("s_sub_u32 s42, s42, 1000")
    tail()
    if fused:
        st = k.uid('st'); go = k.uid('go')
        k(f"""
        s_cmp_lg_u32 {s(w)}, 3
        s_cbranch_scc1 {go}
        v_lshrrev_b32 {v(A)}, 2, {v(V16)}
        s_mov_b32 s39, {WS_SYNC+SY_FLAG+AN[0]}
        s_branch {st}c
        """)
        k.label(st)
        k(f"""
        s_sleep {P.get('psl2', 0)}
        buffer_load_dword {v(A+1)}, {v(A)}, {s(SRD_WS,4)}, s39 offen sc1
        s_add_u32 s44, s44, 1
        s_cmp_gt_u32 s44, {SPIN_MAX}
        s_cbranch_scc1 {last}
        s_waitcnt vmcnt(0)
        """)
        k.label(st + 'c')
        k(f"""
        v_cmp_eq_u32 vcc, 0, {v(A+1)}
        s_cbranch_vccnz {st}
        v_subrev_u32 {v(A+1)}, s42, {v(A+1)}
        """)
        for x in (1, 2, 4, 8): k(f"v_max_i32_dpp {v(A+1)}, {v(A+1)}, {v(A+1)} row_ror:{x} row_mask:0xf bank_mask:0xf")
        for i in range(4): k(f"v_readlane_b32 s{[0,1,18,19][i]}, {v(A+1)}, {16*i}")
        k(f"""
        s_max_i32 s0, s0, s1
        s_max_i32 s18, s18, s19
        s_max_i32 s0, s0, s18
        s_add_u32 s96, s0, s42
        """)
        if HAT: k(f"""
        s_add_u32 s0, s96, {P.get('e0', 2100)}
        s_not_b32 s0, s0
        v_mov_b32 {v(VDUM)}, s0
        buffer_store_dword {v(VDUM)}, off, {s(SRD_WS,4)}, s98 {lst}
        """)
        k(f"""
        s_sub_u32 s96, s96, s25
        s_memtime s[0:1]
        s_waitcnt lgkmcnt(0)
        """)
        for x in rem(96, 0): k(x)
        dloop(27)
        k.label(go)
        k("s_sub_u32 s97, s96, 1")
        k("s_add_u32 s42, s97, s25")
        k("s_sub_u32 s42, s42, 1000")
    k(f"s_mov_b32 s39, {WS_SIZE}")
    k("s_barrier")
    k(f"s_branch {entry}")
    k.label(loop)
    pend[:] = []
    early = P.get('sc1early', 0)
    tailv = (1 if TK else 0)
    n0log = len(dslog)
    nt = (0 if rin else 2) + tailv + (0 if early else 1)
    lw = [(f"ds_write_b32 {v(VQ)}, {v(A+4)} offset:{LR + 3072}", 'w1'), (f"ds_write_b128 {v(VC0)}, {v(A,4)} offset:{LL}", 'w')]
    k(f"s_waitcnt vmcnt({nt + 1})")
    tick(0)
    ds(*lw[0])
    k(chk(A + 4, 1)[0])
    k(f"s_waitcnt vmcnt({nt})")
    do_smf(seq[0])
    def lfix(n):
        again = [x for x, tg in dslog[n0log:] if tg in rslot]
        def f():
            if again:
                for kk in lseq[:3]:
                    for x, _ in wl_s(kk, rslot[kk]): k(x)
                k("s_waitcnt lgkmcnt(0)")
            for kk in seq[:n]:
                for x in zero(ACC + 8*kk[2] + 4*kk[3], 4): k(x)
            for kk in seq[:n]: do_smf(kk)
            for x in again: k(x)
        return f
    rc = P.get('rc', 20); bx = P.get('bx', 18)
    pre = {}; val = {}; dsq = []; hook = {}
    def at(c, *xs):
        for x in xs: (val if x.startswith('v_') else pre).setdefault(c, []).append(x)
    lb = P.get('lb', 2); lc = P.get('lc', 5); lb2 = P.get('lb2', 6); rb = rc + P.get('rb', 5)
    sp = P['sp']
    sx = P.get('sx', rb)
    if sx > rb: at(sx, "s_memtime s[96:97]")
    hs_ = sx + P.get('hs', 4)
    vl = P.get('vl', [4, 5])
    npre = sum(x < rc for x in sp + vl)
    for o in (0, 1): at(vl[o], f"buffer_load_dwordx4 {v(VX+4*o,4)}, {v(V16)}, {s(SRD_WS,4)}, s54 offen offset:{1024*o} sc1")
    assert max(vl) < min(sp) and rc not in vl
    pfi = f"buffer_load_dword {v(VSEL)}, {v(VSEL)}, {s(SRD_WS,4)}, s15 offen sc1"
    at(sp[0], pfi)
    at(sp[1], fmst)
    at(sp[2] - 1, f"v_mov_b32 {v(VDUM)}, s17")
    at(sp[2], f"buffer_store_dword {v(VDUM)}, off, {s(SRD_WS,4)}, s50 sc1")
    at(sp[3] - 1, f"v_mov_b32 {v(VDUM)}, -1")
    at(sp[3], f"buffer_store_dword {v(VDUM)}, {v(VQ)}, {s(SRD_WS,4)}, s18 offen {lst}")
    rw = [(f"ds_write_b128 {v(VC0)}, {v(A+12,4)} offset:{LR}", 'w'), (f"ds_write_b32 {v(VQ)}, {v(A+16)} offset:{LL}", 'w')]
    ck = chk(A + 12)
    at(rc, f"s_waitcnt vmcnt({(0 if rin else tailv) + npre})", ck[0]); at(rc + 1, ck[1]); at(rc + 2, ck[2])
    def rre():
        for x, _ in rw: k(x)
    def h1():
        ds(*lw[1])
        retry(A + 4, poll_local, 43, lambda: [k(x) for x, _ in lw], lfix(1), 1)
    def b1():
        lwait('w1'); k("s_barrier")
        if rin == lb:
            ds(*dsq.pop(0)); poll_rr()
    def b1b():
        lwait('w'); k("s_barrier")
    for j, x in enumerate(chk(A, 4)): at(1 + j, x)
    def b2():
        lwait('w')
        k("s_barrier")
        if sx == rb: k("s_memtime s[96:97]")
        tick(2)
    hook[1] = h1; hook[lb] = b1; hook[lb2] = b1b
    hook[lc] = lambda: retry(A, lambda: k(pl[1]), 43, lambda: k(lw[1][0]), lfix(lc), 4)
    assert 1 < lb < lc < lb2 and 4 <= lc <= 6
    at(bx + 1 if rin else lc, f"v_readfirstlane_b32 s25, {v(VMC+2)}")
    if rin > lb: at(rin, *pr)
    assert rin < min(vl)
    hook[rc + P.get('rr', 3)] = lambda: retry(A + 12, poll_rr, 45, rre)
    hook[rb] = b2
    assert rb > rc + P.get('rr', 3)
    nods = set(P.get('nods', [1] + ([lb] if rin == lb else [])))
    at(hs_, "s_add_u32 s96, s96, s25", f"v_{'not' if HAT else 'mov'}_b32 {v(VDUM)}, s96")
    if HAT: at(hs_ + 1, "s_mov_b64 exec, 1", f"buffer_atomic_umin {v(VDUM)}, off, {s(SRD_WS,4)}, s98 {lst}", "s_mov_b64 exec, -1")
    else: at(hs_ + 1, f"buffer_store_dword {v(VDUM)}, {v(VQ)}, {s(SRD_WS,4)}, s98 offen {lst}")
    assert len({hs_, sp[2] - 1, sp[3] - 1, rc, rc + 1, rc + 2}) == 6
    p0 = pack(0); p1 = pack(1)
    po = 2 if rin else 0; b3 = 38 + 2*po
    for j in range(6): at(41 + po + j, p0[j])
    for j in range(3): at(47 + po + j, p1[j])
    at(b3, f"s_waitcnt vmcnt({sum(x < b3 for x in sp + [hs_ + 1])})", "s_barrier")
    assert b3 not in sp and max(sp[2:] + [hs_ + 1]) <= 41 + po
    HO = P.get('nomax', 0) == 2
    app_ds = {}
    def rel(c, *ys): app_ds.setdefault(c, []).extend(ys)
    if rin: rel(lb2, (f"ds_read_b32 {v(VMC+2)}, {v(VMC+3)}", 'L3'))
    rel(lb, a_rd('L', 1)); rel(lb2, a_rd('L', 2), a_rd('L', 3)); rel(12, a_rd('L', 4)); rel(rc, *rw); rel(rb, a_rd('R', 1), a_rd('R', 2))
    rel(max(24, rb), a_rd('R', 3)); rel(max(30, rb), a_rd('R', 4)); rel(47 + po, (p0[6], 'fw'))
    rel(46 if rin else 40, k_rd(0), k_rd(1)); rel(max(sp[1] + 2, 40), k_rd(2)); rel(52, k_rd(3)); rel(54, k_rd(4))
    def dead(tg):
        if tg in ('w', 'fw'): return 0
        if tg == 'L4': return bx
        for n_, x in enumerate(seq):
            if tg == x or tg == f'{x[0]}{x[1]}': return n_
        return 100
    qn = 0
    def gap(cnt, nxt):
        dsq.extend(app_ds.get(cnt, []))
        dsq.sort(key=lambda y: dead(y[1]))
        n0 = len(k.ins)
        def used(): return sum(2 if I.cls == 'ds' else (P.get('vmw', 1) if I.cls == 'vmem' else 1) for I in k.ins[n0:] if I.cls != 'label')
        if cnt == bx: lwait('L4'); k("s_barrier")
        for x in pre.get(cnt, []):
            k(x)
            if 'lgkmcnt(0)' in x: pend[:] = []
        if cnt in hook: hook[cnt]()
        if dsq and (used() < 2 or dead(dsq[0][1]) == 0 or cnt == lb) and cnt not in nods: ds(*dsq.pop(0))
        if dsq and cnt in P.get('ds2', [3, 4, 5]): ds(*dsq.pop(0))
        if nxt:
            need = [nxt, f'{nxt[0]}{nxt[1]}']
            while any(tg in need for _, tg in dsq):
                ds(*dsq.pop(0))
            for tg in need: lwait(tg)
        if TK2 and cnt in TK2: tick(3 + TK2.index(cnt), True)
        vs = val.get(cnt, [])
        for x in vs: k(x)
        if not vs and P.get('warm', True) and used() <= 2: k(WARM)
    def after(n):
        if seq[n] in rslot:
            q = lseq.index(seq[n])
            nx = [j for j in range(q + 1, 18) if sl[j] == sl[q]]
            if nx: dsq.extend(wl_s(lseq[nx[0]], rslot[lseq[nx[0]]]))
    after(0); gap(1, seq[1])
    for n in range(1, 52):
        do_smf(seq[n]); after(n)
        if n == 29: tick(1)
        if n == 39: tick(3)
        if n < 51: gap(n + 1, seq[n + 1])
    if P.get('pk', 0) & 2: p1[3:5] = [f"v_pk_add_f32 {v(AQ+4,2)}, {v(AQ+4,2)}, {v(AQ+6,2)}", None]
    for x in p1[3:6]:
        if x: k(x)
    ds(p1[6], 'fw')
    tick(4)
    n = 52
    dsq.extend(app_ds.pop(52))
    for _ in range(P.get('vpre', 3)):
        do_smf(seq[n]); n += 1
        gap(n, None)
    lwait('fw')
    k("s_barrier")
    kq_ = [5, 6, 7]
    for i in range(8):
        ds(f"ds_read_b64_tr_b16 {v(PF+2*i,2)}, {v(V8)} offset:{LL + 512*i}", f'f{i//2}')
        if i % 2 == 1 and n < 60:
            do_smf(seq[n]); n += 1
    while dsq: ds(*dsq.pop(0))
    def kfree():
        while kq_ and n >= 50 + 2 * (kq_[0] - 3) + 2: ds(*k_rd(kq_.pop(0)))
    kfree()
    while n < 60:
        do_smf(seq[n]); n += 1; kfree()
    assert not kq_
    tick(5)
    def smw(which, ks):
        lwait(f'f{ks}')
        if which != 'm': lwait(f'k{2*ks + which}')
    def sm(which, ks):
        smw(which, ks)
        if which == 'm': Dd, Aop = SM, PF + 4*ks
        else: Dd = SX0 + 4*which; Aop = kfr[kord.index(2*ks + which)]
        k(f"v_mfma_f32_16x16x32_bf16 {v(Dd,4)}, {v(Aop,4)}, {v(PF+4*ks,4)}, {'0' if ks == 0 else v(Dd,4)}")
    vp = []
    for t in range(2):
        vv = AV + 4*t
        vp += [f"v_add_f32 {v(vv)}, {v(vv)}, {v(vv+2)}", f"v_add_f32 {v(vv+1)}, {v(vv+1)}, {v(vv+3)}", f"v_cvt_pk_bf16_f32 {v(VM+t)}, {v(vv)}, {v(vv+1)}"]
    cst = [f"v_mov_b32 {v(PM0+1)}, 0", f"v_mov_b32 {v(PM1)}, 0"] + [f"v_mov_b32 {v(ONE+i)}, 0x3f803f80" for i in range(4)]
    so = [('m', 0), (0, 0), (1, 0), ('m', 1), (0, 1), (1, 1), ('m', 2), ('m', 3), (0, 2), (0, 3), (1, 2), (1, 3)]
    hl = [f"s_buffer_load_dword s{x}, {s(SRD_WS,4)}, s99 offset:{256*i}" for i, x in enumerate([0, 1, 18, 19][:max(HAT, 1)])]
    assert len(P.get('hg', [12])) == len(hl)
    fl = {0: [WARM], 1: vp[0:2], 2: vp[2:4], 3: vp[4:6], 4: ["s_cmp_eq_u32 s33, 63"] + cst[0:2], 5: [f"s_cbranch_scc1 {lastpub}", WARM],
          6: cst[2:4], 7: cst[4:6], 8: [WARM], 9: [f"v_max_f32 {v(T0)}, {v(SM)}, {v(SM+1)}"], 10: [WARM],
          11: [f"v_max3_f32 {v(T0)}, {v(T0)}, {v(SX0)}, {v(SX0+1)}", f"v_max3_f32 {v(T0)}, {v(T0)}, {v(SX0+2)}, {v(SX0+3)}"]}
    hpos = P.get('hpos', 2)
    NM = P.get('nomax', 0)
    zz = zero(A + 12, 8) + zero(A, 12)
    mul = lambda x: f"v_mul_f32 {v(x)}, s14, {v(x)}"
    exs = lambda x: f"v_exp_f32 {v(x)}, {v(x)}"
    if NM:
        fl[8] = [zz.pop(0)]; fl[9] = [mul(SM), mul(SM+1)]; fl[10] = [exs(SM), exs(SM+1)]; fl[11] = [mul(SX0), mul(SX0+1)]
    cvp = [f"v_cvt_pk_bf16_f32 {v(PM0)}, {v(SM)}, {v(SM+1)}", f"v_cvt_pk_bf16_f32 {v(PM1+1)}, {v(SM)}, {v(SM+1)}"]
    if NM == 2:
        zz = zero(A + 12, 8) + zero(A + 4, 4) + zero(A, 4) + zero(A + 8, 4)
        so = [(x, ks) for x in ('m', 0, 1) for ks in range(4)]
        fl = {0: ["s_movk_i32 s27, 0x1833", WARM], 1: vp[0:2], 2: vp[2:4], 3: ["s_cmp_eq_u32 s33, 63"] + vp[4:6], 4: [f"s_cbranch_scc1 {lastpub}", WARM],
              5: ["s_waitcnt lgkmcnt(0)", mul(SM), mul(SM+1)], 6: [exs(SM), cst[0]], 7: [exs(SM+1), cst[1]], 8: cst[2:4] + cvp[:1],
              9: [mul(SX0), mul(SX0+1), cvp[1]], 10: [exs(SX0), mul(SX0+2)], 11: [exs(SX0+1), mul(SX0+3)]}
        HV = P.get('hv')
        if P.get('ke') and P.get('kb', 6) < 12: fl[P.get('kb', 6)].insert(0, "s_barrier")
        if HV is not None:
            assert HAT == 4
            fl[HV][:0] = ["s_mov_b32 exec_lo, 0x10001", "s_mov_b32 exec_hi, 0x10001",
                          f"buffer_load_dword {v(VDUM)}, {v(V16)}, {s(SRD_WS,4)}, s99 offen {lst or P.get('hvc', '')}", "s_mov_b64 exec, -1"]
        for i, g in enumerate(P.get('hg', [12])):
            if g < 12 and HV is None: fl[g].insert(0, hl[i])
        hpos = 0
    WX, WY = PF, PF + 8
    wq = []
    assert NM == 2
    for n_, (wh, ks) in enumerate(so):
        sm(wh, ks)
        if n_ < 11: smw(*so[n_ + 1])
        if n_ in (7, 8) and NM != 2: ds(*wq.pop(0))
        for x in fl.get(n_, []):
            k(x)
            if 'lgkmcnt(0)' in x: pend[:] = []
        if hpos == 2 and n_ == 11: k(hl[0])
    tick(6)
    fma = lambda x: k(f"v_fma_f32 {v(x)}, {v(x)}, s14, -{v(T0)}")
    ex = lambda x: k(exs(x))
    O0, O1 = AV, AV + 4; RS = AK; RI = T0; OP = AQ; OA = VX
    def zp(n, z):
        for _ in range(n):
            if z: k(z.pop(0))
    rp = [wl_s(x, rslot[x]) for x in lseq[:3]]
    early_rd = []
    def ldw(i):
        if P.get('ke') and P.get('kb', 6) == 12 + i: k("s_barrier")
        if i in P.get('ldw', []):
            x = (rp[1] + rp[2])[len(early_rd)]; early_rd.append(x); k(x[0])
    def softmax_max(zz, wq):
        zp(3, zz)
        k(f"v_max3_f32 {v(T0)}, {v(T0)}, {v(SX1)}, {v(SX1+1)}")
        k(f"v_max3_f32 {v(T1)}, {v(T0)}, {v(SX1+2)}, {v(SX1+3)}")
        k(f"v_max3_f32 {v(T0)}, {v(T0)}, {v(SX1+2)}, {v(SX1+3)}")
        zp(2, zz)
        k(f"v_permlane32_swap_b32 {v(T0)}, {v(T1)}")
        k(f"v_max_f32 {v(SM+2)}, {v(T0)}, {v(T1)}")
        k(f"v_max_f32 {v(T0)}, {v(T0)}, {v(T1)}")
        zp(2, zz)
        k(f"v_permlane16_swap_b32 {v(T0)}, {v(SM+2)}")
        k(f"v_max_f32 {v(T0)}, {v(T0)}, {v(SM+2)}")
        k(f"v_mul_f32 {v(T0)}, s14, {v(T0)}")
        fma(SM); fma(SM+1); ex(SM); ex(SM+1)
        fma(SX0); fma(SX0+1)
        k(f"v_cvt_pk_bf16_f32 {v(PM0)}, {v(SM)}, {v(SM+1)}")
        k(f"v_cvt_pk_bf16_f32 {v(PM1+1)}, {v(SM)}, {v(SM+1)}")
        for i in range(2, 8): fma(SX0+i)
        k(f"v_mfma_f32_16x16x16_bf16 {v(O0,4)}, {v(VM,2)}, {v(PM0,2)}, 0")
        wq and ds(*wq.pop(0))
        ex(SX0); ex(SX0+1)
        k(f"v_mfma_f32_16x16x16_bf16 {v(O1,4)}, {v(VM,2)}, {v(PM1,2)}, 0")
        wq and ds(*wq.pop(0))
        ex(SX0+2); ex(SX0+3)
        k(f"v_cvt_pk_bf16_f32 {v(PK)}, {v(SX0)}, {v(SX0+1)}")
        k(f"v_mfma_f32_16x16x16_bf16 {v(RS,4)}, {v(PM0,2)}, {v(ONE,2)}, 0")
        ex(SX0+4); ex(SX0+5)
        k(f"v_cvt_pk_bf16_f32 {v(PK+1)}, {v(SX0+2)}, {v(SX0+3)}")
        ex(SX0+6); ex(SX0+7)
        k(f"v_cvt_pk_bf16_f32 {v(PK+2)}, {v(SX0+4)}, {v(SX0+5)}")
        k(f"v_cvt_pk_bf16_f32 {v(PK+3)}, {v(SX0+6)}, {v(SX0+7)}")
        zp(1, zz)
    def softmax_nm():
        k(mul(SX0+2)); k(mul(SX0+3))
        k(f"v_cvt_pk_bf16_f32 {v(PM0)}, {v(SM)}, {v(SM+1)}")
        k(f"v_cvt_pk_bf16_f32 {v(PM1+1)}, {v(SM)}, {v(SM+1)}")
        ex(SX0)
        k(f"v_mfma_f32_16x16x16_bf16 {v(O0,4)}, {v(VM,2)}, {v(PM0,2)}, 0")
        ds(*wq.pop(0))
        ex(SX0+1); ex(SX0+2)
        k(f"v_mfma_f32_16x16x16_bf16 {v(O1,4)}, {v(VM,2)}, {v(PM1,2)}, 0")
        ds(*wq.pop(0))
        ex(SX0+3)
        for i in range(2): k(mul(SX1+i))
        k(f"v_mfma_f32_16x16x16_bf16 {v(RS,4)}, {v(PM0,2)}, {v(ONE,2)}, 0")
        for i in range(2, 4): k(mul(SX1+i))
        ex(SX1); ex(SX1+1)
        k(f"v_cvt_pk_bf16_f32 {v(PK)}, {v(SX0)}, {v(SX0+1)}")
        ex(SX1+2); ex(SX1+3)
        k(f"v_cvt_pk_bf16_f32 {v(PK+1)}, {v(SX0+2)}, {v(SX0+3)}")
        k(f"v_cvt_pk_bf16_f32 {v(PK+2)}, {v(SX0+4)}, {v(SX0+5)}")
        k(f"v_cvt_pk_bf16_f32 {v(PK+3)}, {v(SX0+6)}, {v(SX0+7)}")
        zp(2, zz)
    def softmax_nm2():
        hg = P.get('hg', [12])
        def hls(g):
            for i in range(len(hl)):
                if hg[i] == g: k(hl[i])
        k(f"v_mfma_f32_16x16x16_bf16 {v(O0,4)}, {v(VM,2)}, {v(PM0,2)}, 0")
        ldw(0)
        ex(SX0+2); ex(SX0+3)
        k(f"v_mfma_f32_16x16x16_bf16 {v(O1,4)}, {v(VM,2)}, {v(PM1,2)}, 0")
        for i in range(2): k(mul(SX1+i))
        ex(SX1)
        k(f"v_mfma_f32_16x16x16_bf16 {v(RS,4)}, {v(PM0,2)}, {v(ONE,2)}, 0")
        ldw(1)
        for i in range(2, 4): k(mul(SX1+i))
        ex(SX1+1); ex(SX1+2); ex(SX1+3)
        for i in range(4): k(f"v_cvt_pk_bf16_f32 {v(PK+i)}, {v(SX0+2*i)}, {v(SX0+2*i+1)}")
        hls(12)
        zz[:0] = cst[4:6]
        zp(2 - (hg[0] == 12), zz)
    if NM == 2: softmax_nm2()
    elif NM: softmax_nm()
    else: softmax_max(zz, wq)
    tick(7)
    if TK2 == [98]: tick(3, True)
    VP4 = AQ + 4
    GP = P.get('gpos')
    def pv(zz, hot):
        k(f"v_mfma_f32_16x16x32_bf16 {v(O0,4)}, {v(VX,4)}, {v(PK,4)}, {v(O0,4)}")
        if hot: ldw(2)
        zp(3, zz)
        k(f"v_mfma_f32_16x16x32_bf16 {v(O1,4)}, {v(VX+4,4)}, {v(PK,4)}, {v(O1,4)}")
        if hot: ldw(3)
        zp(3, zz)
        k(f"v_mfma_f32_16x16x32_bf16 {v(RS,4)}, {v(PK,4)}, {v(ONE,4)}, {v(RS,4)}")
        if hot: ldw(4)
        k(f"v_cvt_pk_bf16_f32 {v(OP)}, {v(O0)}, {v(O0+1)}")
        k(f"v_cvt_pk_bf16_f32 {v(OP+1)}, {v(O0+2)}, {v(O0+3)}")
        zp(2, zz)
        k(f"v_cvt_pk_bf16_f32 {v(OP+2)}, {v(O1)}, {v(O1+1)}")
        k(f"v_cvt_pk_bf16_f32 {v(OP+3)}, {v(O1+2)}, {v(O1+3)}")
        if hot: pend[:] = []
        (ds if hot else lambda x, t: k(x))(f"ds_write_b128 {v(VOW)}, {v(OP,4)} offset:{LR}", 'ow')
        if TK2 == [98] and hot: tick(4, True)
        if hot and GP is not None: return
        zp(1, zz)
        k(f"v_rcp_f32 {v(RI)}, {v(RS+2)}")
        k(f"v_rcp_f32 {v(RI+1)}, {v(RS+3)}")
        zp(9 if not hot or NM != 2 else P.get('zq', 2), zz)
    BM = 27 if HO else 39
    GM = P.get('gmid', 0)
    vp4 = lambda m: [f"v_lshrrev_b32 {v(VP4)}, 11, {v(VPS)}", f"v_bfi_b32 {v(VP4)}, s{m}, {v(VPS)}, {v(VP4)}"]
    if GM:
        zz.insert(0, vp4(BM)[0]); zz.insert(2, vp4(BM)[1])
    pv(zz, True)
    if NM:
        G = AQ + 5; gc = k.uid('gc'); gb = k.uid('gb')
        if not HO: k("s_movk_i32 s39, 0x1833")
        gl = [f"v_max3_f32 {v(G)}, {v(RS+2)}, {v(RS+3)}, {v(RI)}", f"v_max_f32 {v(G)}, {v(G)}, {v(RI+1)}",
              f"v_cmp_lt_f32 vcc, {float_hex(2.0 ** P.get('glim', 60))}, {v(G)}"]
        if GP is None:
            for x in gl: k(x)
        def gcold():
            k.label(gc)
            if GP is not None:
                k("s_waitcnt lgkmcnt(0)")
                for o in (0, 1): k(f"buffer_load_dwordx4 {v(VX+4*o,4)}, {v(V16)}, {s(SRD_WS,4)}, s54 offen offset:{1024*o} sc1")
                k("s_waitcnt vmcnt(0)")
                k("s_barrier")
            for ks in range(4):
                k(f"ds_read_b64_tr_b16 {v(A,2)}, {v(V8)} offset:{LL + 1024*ks}")
                k(f"ds_read_b64_tr_b16 {v(A+2,2)}, {v(V8)} offset:{LL + 1024*ks + 512}")
                if GM:
                    k("s_sub_u32 s38, s53, s51")
                    k(f"s_sub_u32 s38, s38, {(1 << SS) - LK - 2048*ks}")
                    for t in range(2): k(f"buffer_load_dwordx4 {v(A+4+4*t,4)}, {v(V16)}, {s(SRD_WS,4)}, s38 offen offset:{1024*t} sc1")
                else:
                    for t in range(2): k(f"ds_read_b128 {v(A+4+4*t,4)}, {v(V16)} offset:{LK + 2048*ks + 1024*t}")
                k("s_waitcnt vmcnt(0) lgkmcnt(0)")
                for Dd, Aop in ((SM, A), (SX0, A+4), (SX1, A+8)):
                    k(f"v_mfma_f32_16x16x32_bf16 {v(Dd,4)}, {v(Aop,4)}, {v(A,4)}, {'0' if ks == 0 else v(Dd,4)}")
                k("s_nop 7")
            k(f"v_max_f32 {v(T0)}, {v(SM)}, {v(SM+1)}")
            k(f"v_max3_f32 {v(T0)}, {v(T0)}, {v(SX0)}, {v(SX0+1)}")
            k(f"v_max3_f32 {v(T0)}, {v(T0)}, {v(SX0+2)}, {v(SX0+3)}")
            softmax_max([], [])
            pv(zero(A, 20 if GM else 12), False)
            if GM: k("s_movk_i32 s38, 0x1833")
            for x in vp4(38 if GM else BM): k(x)
            k("s_waitcnt lgkmcnt(0)")
            if GP is not None:
                k("s_barrier")
                for o in (0, 1): k(f"ds_read_b128 {v(OA+4*o,4)}, {v(V16)} offset:{LR+1024*o}")
                for x in redo: k(x)
                k("s_waitcnt lgkmcnt(0)")
                if GM:
                    for j, ke in oord[:GM + 1]: smf(A + 4*j, OA + 4*ke, WREG[('O', j, ke)])
            k(f"s_branch {gb}")
        cold.append(gcold)
    fil = [f"v_lshrrev_b32 {v(VP4)}, 11, {v(VPS)}", f"v_bfi_b32 {v(VP4)}, s{BM}, {v(VPS)}, {v(VP4)}"] + ([] if HO else set_slots())
    redo = []; ov = {}
    if GM:
        fil = zz[:1] + [f"v_rcp_f32 {v(RI)}, {v(RS+2)}", f"v_rcp_f32 {v(RI+1)}, {v(RS+3)}"]
        assert len(zz) == 4 and GP == 3 and GM == 3
        ov = {0: gl[:1], 1: gl[1:2], 2: gl[2:] + zz[1:3], P.get('zl', 5): zz[3:]}
        if P.get('oord'): ov = {0: gl[:1], 1: zz[1:2] + gl[1:2], 2: gl[2:], 3: zz[2:4]}
        zz[:] = []
    elif GP is not None:
        fil = zz[:1] + [f"v_rcp_f32 {v(RI)}, {v(RS+2)}", f"v_rcp_f32 {v(RI+1)}, {v(RS+3)}"] + zz[1:] + fil + gl
        zz[:] = fil[GP:]; fil = fil[:GP]
    kd = [f"buffer_load_dwordx4 {v(V16)}, {s(SRD_WS,4)}, s53 offen offset:{o} sc1 lds" for o in (0, 1024)]
    assert GM or not P.get('ke')
    if P.get('kp', 0) == 0:
        for _ in range(P.get('ke', 0)): k(kd.pop(0))
    for x in fil: k(x)
    if P.get('kp', 0) == 1:
        for _ in range(P.get('ke', 0)): k(kd.pop(0))
    if NM and GP is None: k(f"s_cbranch_vccnz {gc}")
    if TK2 == [98]: tick(5, True)
    lwait('ow')
    if NM and GP is None: k.label(gb)
    if TK2 == [98]: tick(6, True)
    k("s_barrier")
    if TK2 == [98]: tick(7, True)
    ds(f"ds_read_b128 {v(OA,4)}, {v(V16)} offset:{LR}", 'oa0')
    oa1 = lambda i: ds(f"ds_read_b128 {v(OA+4,4)}, {v(V16)} offset:{LR+1024}", 'oa1') if P.get('oa1d', 0) == i else None
    oa1(0)
    hm = {0: [], 1: [], 2: ["s_min_u32 s0, s0, s1"], 4: ["s_min_u32 s0, s0, s1", "s_min_u32 s18, s18, s19", "s_min_u32 s0, s0, s18"]}[HAT] + (["s_not_b32 s0, s0"] if HAT else [])
    while wq: ds(*wq.pop(0))
    zp(19, zz)
    if GP is not None and not GM:
        for _ in range(P.get('hm1', 0)): k(hm.pop(0))
        k(f"s_cbranch_vccnz {gc}")
        k.label(gb)
    tick(8)
    KL = P.get('kl', 0)
    def kdma():
        for x in kd: k(x)
    if not KL: kdma()
    oa1(1)
    if HV is not None:
        k("s_waitcnt vmcnt(2)")
        for i, x in enumerate([0, 1, 18, 19]): k(f"v_readlane_b32 s{x}, {v(VDUM)}, {16*i}")
    for x in hm: k(x)
    oa1(2)
    fil = ["s_sub_u32 s27, s0, s96",
           "s_add_u32 s96, s96, s6", "s_min_i32 s27, s27, s24", "s_max_i32 s27, s27, 0", "s_add_u32 s96, s96, s27",
           "s_add_u32 s0, s96, s22", f"v_and_b32 {v(VDUM)}, s0, -2",
           f"buffer_store_dword {v(VDUM)}, off, {s(SRD_WS,4)}, s12 sc1", "s_sub_u32 s97, s96, s25", "s_sub_u32 s42, s96, 1000", "s_sub_u32 s96, s97, s37",
           "s_add_u32 s33, s33, 1", "s_add_u32 s40, s40, 16384", "s_add_u32 s41, s41, 16384", "s_add_u32 s35, s35, 8192", "s_bitset0_b32 s35, 15"]
    for _ in range(P.get('fil2', 8)): k(fil.pop(0))
    oa1(3)
    XS = AQ
    def fin(j):
        d = A + 4*j; o = XS + j if j < 4 else d
        x = [f"v_add_f32 {v(d)}, {v(d)}, {v(d+2)}", f"v_add_f32 {v(d+1)}, {v(d+1)}, {v(d+3)}",
             f"v_fma_mixlo_f16 {v(o)}, {v(d)}, {v(RI)}, 0", f"v_fma_mixhi_f16 {v(o)}, {v(d+1)}, {v(RI+1)}, 0"]
        if P.get('pk', 0) & 1: x[:2] = [f"v_pk_add_f32 {v(d,2)}, {v(d,2)}, {v(d+2,2)}"]
        if j in (0, 4): x.append(f"v_bfi_b32 {v(o)}, 1, s34, {v(o)}")
        if j == 4: x.append(f"buffer_store_dword {v(o)}, {v(VP4)}, {s(SRD_WS,4)}, s23 offen {lst}")
        if j == 2: x.append(f"buffer_store_dwordx4 {v(XS,4)}, {v(VPS)}, {s(SRD_WS,4)}, s47 offen {lst}")
        return x
    tiles = [4, 3, 0, 1, 2]
    oord = [(j, ke) for j in tiles for ke in range(2)]
    if P.get('oord'): oord = [(4, 0), (3, 0), (4, 1), (0, 0), (3, 1), (1, 0), (0, 1), (2, 0), (1, 1), (2, 1)]
    fins = [(oord.index((j, 1)) + 2, x) for j in tiles for x in fin(j)]
    wq = dict(zip(P.get('rpos', [0, 1, 3, 4, 5, 7]), [x for x in rp[0] + rp[1] + rp[2] if x not in early_rd]))
    sq = fil
    per = P.get('fper', [1, 1, 1, 2, 2, 1, 1, 2, 2, 9])
    for n_ in range(10):
        j, ke = oord[n_]
        lwait(f'oa{ke}'); lwait(('O', j, ke))
        smf(A + 4*j, OA + 4*ke, WREG.get(('O', j, ke), [WX, WY][ke]))
        if GM and n_ == GM:
            k(f"s_cbranch_vccnz {gc}")
            k.label(gb)
        if n_ in wq:
            ds(*wq[n_])
            if n_ < GM: redo.append(wq[n_][0])
        else:
            for _ in range(P.get('sper', [2, 2, 0, 1, 2, 2, 2, 2, 2, 2])[n_] if GM else 2):
                if sq: k(sq.pop(0))
        if n_ == 0 and TK2 == [98]: tick(8, True)
        if n_ == P.get('oord', 0): lwait('oa1')
        for x in ov.get(n_, []): k(x)
        if n_ < 3: GM or k(WARM)
        else:
            c = 0
            while c < per[n_] and fins and fins[0][0] <= n_:
                x = fins.pop(0)[1]; k(x)
                if not x.startswith('buffer'): c += 1
    assert not sq
    for _, x in fins: k(x)
    tick(9)
    nored = k.uid('nored')
    ptr = f"""s_add_u32 s38, s35, s32
        s_add_u32 s36, s35, 4096
        s_mov_b32 s39, s13
        s_add_u32 s13, s13, 16384
        s_add_u32 s12, s12, 16384
        s_add_u32 s53, s53, {1 << SS}
        s_sub_u32 s17, s33, 1
        s_add_u32 s54, s54, {1 << SS}
        s_add_u32 s55, s55, {1 << SS}
        s_add_u32 s15, s15, s21
        s_add_u32 s98, s98, 16384
        s_add_u32 s99, s99, 16384
        s_sub_u32 s6, s6, {P.get('d1', 100)}
        s_max_u32 s6, s6, {P['ltgt']}
        s_sub_u32 s37, s37, {P.get('d2', 100)}
        s_max_u32 s37, s37, s7""".split('\n')
    if P.get('fs'): ptr[6:6] = ["s_cmp_eq_u32 s33, 1", f"s_cselect_b32 s17, {64 << SS}, 0", "s_sub_u32 s55, s55, s17"]
    k("s_memtime s[0:1]")
    for d in range(4): k(f"v_cndmask_b32 {v(SEL+d)}, 0, {v(VPL)}, s[{56+2*d}:{57+2*d}]")
    w1 = P.get('w1', 3)
    for x in ptr[:w1]: k(x)
    k("s_waitcnt lgkmcnt(0)")
    for x in rem(96, 0): k(x)
    k("s_cmp_ge_u32 s28, 80")
    k(f"s_cbranch_scc1 {nored}")
    dloop(27)
    def rload(d):
        k(f"buffer_load_dwordx4 {v(d,4)}, {v(V16)}, {s(SRD_WS,4)}, s48 offen sc1 ;poll")
        k(f"buffer_load_dwordx4 {v(d+4,4)}, {v(V16)}, {s(SRD_WS,4)}, s48 offen offset:1024 sc1 ;poll")
    if TK2 == [99]: tick(3, True)
    rload(RD)
    late_rd = [x[0] for x in rp[0] + rp[1] + rp[2] if x not in early_rd and x not in wq.values()]
    assert w1 <= 5 and HV is None
    def house(fm=True):
        if KL: kdma()
        if fm: fmget()
        for x in late_rd: k(x)
        for x in zero(AQ, 8) + zero(AK + 4, 4) + ptr[w1:]: k(x)
    house()
    delay(k, P.get('bdel', 0))
    rl = k.uid('rl'); rcl = k.uid('rc')
    k.label(rl)
    if TK2 == [99]: tick(4, True)
    dbl = P.get('dbl', 1)
    if dbl: rload(AV)
    if TK2 == [99]: tick(5, True)
    assert not (dbl and KL)
    k(f"s_waitcnt vmcnt({1 + 2*dbl + 2*KL})")
    if TK2 == [99]: tick(6, True)
    k(f"v_mfma_f32_16x16x32_f16 {v(D,4)}, {v(SEL,4)}, {v(RD,4)}, 0")
    k(f"v_bitop3_b32 {v(T)}, {v(RD+1)}, {v(RD+2)}, s34 bitop3:0x7e")
    k(f"s_waitcnt vmcnt({2*dbl + 2*KL})")
    k(f"v_mfma_f32_16x16x32_f16 {v(D,4)}, {v(SEL,4)}, {v(RD+4,4)}, {v(D,4)}")
    if TK2 == [99]: tick(7, True)
    k(f"v_bitop3_b32 {v(T+2)}, {v(RD+3)}, {v(RD+5)}, s34 bitop3:0x7e")
    k(f"v_bitop3_b32 {v(T+3)}, {v(RD+6)}, {v(RD+7)}, s34 bitop3:0x7e")
    k(f"v_bitop3_b32 {v(A+4)}, {v(RD)}, {v(RD+4)}, s34 bitop3:0x7e")
    k(f"v_or3_b32 {v(T)}, {v(T)}, {v(T+2)}, {v(T+3)}")
    k(f"v_and_or_b32 {v(T)}, {v(T)}, s94, {v(A+4)}")
    k(f"v_and_b32 {v(T)}, 1, {v(T)}")
    k(f"v_cmp_{'f' if ns else 'ne'}_u32 vcc, 0, {v(T)}")
    PB = A + 5
    k(f"""
    v_add_f32_dpp {v(D)}, {v(D)}, {v(D)} row_ror:4 row_mask:0xf bank_mask:0xf
    v_add_f32_dpp {v(D+1)}, {v(D+1)}, {v(D+1)} row_ror:4 row_mask:0xf bank_mask:0xf
    s_cbranch_vccnz {rcl}
    v_add_f32_dpp {v(D)}, {v(D)}, {v(D)} row_ror:8 row_mask:0xf bank_mask:0xf
    v_add_f32_dpp {v(D+1)}, {v(D+1)}, {v(D+1)} row_ror:8 row_mask:0xf bank_mask:0xf
    v_cvt_pk_bf16_f32 {v(D)}, {v(D)}, {v(D+1)}
    v_min_u32 {v(PB)}, 0xfffffffe, {v(D)}
    buffer_store_dword {v(PB)}, {v(VPUB)}, {s(SRD_WS,4)}, s38 offen {lst}
    """)
    if early: k(f"buffer_store_dword {v(PB)}, {v(VPUB)}, {s(SRD_WS,4)}, s39 offen sc1")
    if TK2 == [99]: tick(8, True)
    post = k.uid('post'); k.label(post)
    if early:
        tail()
        k("s_waitcnt lgkmcnt(0)")
    k("s_memtime s[0:1]")
    if early: fmfix()
    k("s_waitcnt lgkmcnt(0)")
    for x in rem(97, 0): k(x)
    def rcold():
        k.label(rcl)
        if dbl:
            k("s_waitcnt vmcnt(0)")
            for i in range(0, 8, 2): k(f"v_mov_b64 {v(RD+i,2)}, {v(AV+i,2)}")
        else: rload(RD)
        if KL: k("s_waitcnt vmcnt(0)")
        k("s_add_u32 s49, s49, 1")
        k(f"s_cmp_gt_u32 s49, {P.get('bound', 20000)}")
        k(f"s_cbranch_scc1 {last}")
        k(f"s_branch {rl}")
    cold.append(rcold)
    join = k.uid('join')
    def nrcold():
        k.label(nored)
        kb = k.uid('kvb'); nc = k.uid('nocal')
        k(f"s_cmp_lg_u32 {s(w)}, 3")
        k(f"s_cbranch_scc1 {nc}")
        k("s_add_u32 s42, s40, 5120")
        if TK:
            for i in range(10): k(f"v_writelane_b32 {v(A+6)}, s{64+2*i}, {i}")
        fmget()
        dloop(27)
        calib(k, P, 27, f"s_buffer_load_dword s42, {s(SRD_WS,4)}, s42")
        k(f"v_mov_b32 {v(VDUM)}, s27")
        k(f"ds_write_b32 {v(VQ)}, {v(VDUM)} offset:{LR+2048}")
        if P.get('dc', 1): k("s_sub_u32 s22, s27, s25"); k("s_mov_b32 s25, s27")
        if TK:
            for i in range(10): k(f"v_readlane_b32 s{64+2*i}, {v(A+6)}, {i}")
        if HAT:
            k(f"v_mov_b32 {v(VDUM)}, -1")
            k(f"buffer_store_dword {v(VDUM)}, {v(VQ)}, {s(SRD_WS,4)}, s91 offen {lst}")
        else: k(f"buffer_load_dword {v(A+16)}, off, {s(SRD_WS,4)}, s91 {P.get('hpc', '')}")
        k("s_add_u32 s91, s91, 16384")
        house(False)
        if early: fmfix()
        k(f"s_add_u32 s38, s38, {P['cdur']}")
        for x in rem(97, 38): k(x)
        if fused:
            k("s_add_u32 s19, s33, 1")
            k("s_min_u32 s19, s19, 63")
            k("s_waitcnt vmcnt(6)")
            k(f"v_cmp_ge_u32 vcc, s19, {v(VSEL)}")
            k("s_and_b32 s39, vcc_lo, 0xfff")
            k(f"s_cbranch_scc0 {kb}")
            kvspin(kb)
            k.label(kb)
        else: k("s_waitcnt vmcnt(6)")
        if early: tail()
        else: k(f"s_mov_b32 s39, {WS_SIZE}")
        k(f"s_branch {join}")
        k.label(nc)
        house()
        k(f"s_mov_b32 s39, {WS_SIZE}")
        k("s_waitcnt vmcnt(5)")
        k(f"s_branch {post}")
    cold.append(nrcold)
    k.label(join)
    tick(10)
    dloop(27)
    k.label(entry)
    tick(11)
    poll_local()
    tc = k.uid('tc'); dl3 = k.uid('dl')
    if not early:
        k(f"buffer_store_dword {v(PB)}, {v(VPUB)}, {s(SRD_WS,4)}, s39 offen sc1")
        tail(); fmfix()
        k("s_waitcnt vmcnt(4)")
        for x in zero(AV, 8): k(x)
        tail2()
    k("s_waitcnt lgkmcnt(0)")
    k("s_memtime s[0:1]")
    k(f"""
    s_cmp_eq_u32 s42, -1
    s_cbranch_scc1 {tc}
    s_sub_u32 s42, s42, s25
    s_add_i32 s42, s42, {P['rgap']}
    s_waitcnt lgkmcnt(0)
    s_sub_u32 s27, s42, s0
    s_cmpk_lt_u32 s27, 4000
    s_cselect_b32 s27, s27, 0
    """)
    k(".p2align 3")
    k.label(dl3)
    k(f"s_sub_u32 s27, s27, {P['dit']}")
    k(f"s_cbranch_scc0 {dl3}")
    if not rin: k("s_barrier")
    tick(12)
    if not rin: poll_rr()
    def tcold():
        k.label(tc)
        k(f"""
        s_add_u32 s44, s44, 1
        s_add_u32 s38, s40, 5120
        buffer_load_dword {v(VDUM)}, off, {s(SRD_WS,4)}, s38 sc1
        s_waitcnt vmcnt(0)
        s_memtime s[0:1]
        v_readfirstlane_b32 s42, {v(VDUM)}
        s_mov_b32 s27, 0
        s_waitcnt lgkmcnt(0)
        s_sub_u32 s38, s0, s97
        s_cmp_gt_u32 s38, {P.get('tcap', 3000)}
        s_cbranch_scc1 {dl3}
        s_cmp_eq_u32 s42, -1
        s_cbranch_scc1 {tc}
        s_sub_u32 s42, s42, s25
        s_sub_u32 s27, s42, s0
        s_add_i32 s27, s27, {P['rgap']}
        s_cmpk_lt_u32 s27, 4000
        s_cselect_b32 s27, s27, 0
        s_branch {dl3}
        """)
    cold.append(tcold)
    if early:
        k("s_waitcnt vmcnt(6)")
        for x in zero(AV, 8): k(x)
        tail2()
    k(f"v_mov_b32 {v(VMC+3)}, {LR + 2048 + 768}")
    if not rin: k(f"ds_read_b32 {v(VMC+2)}, {v(VMC+3)}")
    if TK:
        if P.get('rmeas'):
            k("s_waitcnt vmcnt(2)"); tick(3); k("s_waitcnt vmcnt(0)"); tick(1)
        k("s_waitcnt lgkmcnt(0)")
        for i in [10, 11, 12] + ([1, 3] if P.get('rmeas') else []): k(f"v_writelane_b32 {v(A+8)}, s{64+2*i}, {i}")
        k("s_mov_b64 exec, 0xffff")
        k(f"buffer_store_dword {v(A+8)}, {v(A+9)}, {s(SRD_WS,4)}, s39 offen")
        k("s_mov_b64 exec, -1")
    k(f"s_branch {loop}")
    for c in cold: c()
    k.label(lastpub)
    k(f"s_add_u32 s55, s55, {1 << SS}")
    k("s_waitcnt lgkmcnt(0)" if P.get('lw') else "s_waitcnt vmcnt(0)")
    fmget()
    k("s_waitcnt lgkmcnt(0)")
    fmfix()
    k(fmst)
    k(f"v_mov_b32 {v(VDUM)}, 64")
    k("s_waitcnt vmcnt(0)")
    k("s_barrier")
    k(f"buffer_store_dword {v(VDUM)}, off, {s(SRD_WS,4)}, s50 sc1")
    k(f"s_branch {last}")

def team_end(k):
    stamp(k, 2, 20)
    if STAMPS:
        k(f"""
        s_lshl_b32 s94, {s(S_WG)}, 10
        s_lshl_b32 s95, {s(S_WAVE)}, 8
        s_add_u32 s94, s94, s95
        s_add_u32 s94, s94, {WS_STAMP}
        """)
        for i, sr in enumerate([43, 44, 45, 46, 49, 33]):
            k(f"v_mov_b32 v20, s{sr}")
            k(f"buffer_store_dword v20, off, {s(SRD_WS,4)}, s94 offset:{16+4*i}")

TP = dict(nomax=2, tick=False, dit=28, sc1early=0, dbl=0, rgap=240, cdur=300, tlead=700, vl=[6,6], rin=2, rc=24, rb=4, sx=30, hs=3, sp=[8,10,14,40], rtgt=1960, ltgt=2560)

if __name__ == '__main__':
    ks = build_dev()
    variants = eval(open('tvariants.txt').read())
    for n, d in variants.items():
        P = dict(TP); P.update(d)
        k = Kernel(f"team{n}_kernel"); prologue(k)
        k.timed = True
        k(f"s_cmp_ge_u32 {s(S_X)}, 2")
        k(f"s_cbranch_scc1 {k.name}_exit")
        role_team(k, P)
        epilogue(k); ks.append(k)
    emit(ks, 'dev.s')
```

```python
import sys, math
from gen import *

NEG = float_hex(-1e30)
LOG2E = 1.4426950408889634

def wload(k, pieces, v_lds, s_ldsbase, nslots, s_tmp, group=8):
    n = len(pieces)
    def issue(i):
        sr, sb, c, vg, _ = pieces[i]
        k(f"s_add_u32 {s(s_tmp)}, {s(sb)}, {c}")
        k(f"s_add_u32 m0, {s(s_ldsbase)}, {(i % nslots)*1024}")
        k(f"buffer_load_dwordx4 {v(vg)}, {s(sr,4)}, {s(s_tmp)} offen lds")
    issued = 0
    while issued < min(n, nslots):
        issue(issued); issued += 1
    done = 0
    while done < n:
        g = min(group, n - done)
        k(f"s_waitcnt vmcnt({issued - done - g})")
        for i in range(done, done + g):
            for (reg, off) in pieces[i][4]:
                k(f"ds_read_b64_tr_b16 {r(reg,2)}, {v(v_lds)} offset:{(i % nslots)*1024+off}")
        done += g
        if issued < n:
            k("s_waitcnt lgkmcnt(0)")
            for i in range(issued, min(n, issued + g)): issue(i)
            issued = min(n, issued + g)
    k("s_waitcnt lgkmcnt(0)")

def spin_ge(k, vdst, vaddr, soff, s_thr, s_cnt, exec_mask=None, off=0, sleep=2):
    top = k.uid('spin'); ok = k.uid('spok')
    k.label(top)
    k(f"buffer_load_dword {v(vdst)}, {v(vaddr)}, {s(SRD_WS,4)}, {s(soff)} offen offset:{off} sc1")
    k("s_waitcnt vmcnt(0)")
    k(f"v_cmp_gt_u32 vcc, {s(s_thr)}, {v(vdst)}")
    k(f"s_cbranch_vccz {ok}")
    k(f"s_add_u32 {s(s_cnt)}, {s(s_cnt)}, 1")
    k(f"s_cmp_gt_u32 {s(s_cnt)}, {SPIN_MAX}")
    k(f"s_cbranch_scc1 {k.name}_exit")
    k(f"s_sleep {sleep}")
    k(f"s_branch {top}")
    k.label(ok)

def role_att(k, s_a, fused=False):
    Q = 16; K = 32; V = 64; F = 96; VM = 112; S0 = 120; S1 = 124; SM = 128; C0 = 132; C1 = 136
    PK = 140; PM0 = 144; PM1 = 146; T0 = 148; T1 = 149; RS = 150; O = 160; OP = 192
    w = S_WAVE
    done = k.uid('attdone')
    k(f"""
    v_mbcnt_lo_u32_b32 v0, -1, 0
    v_mbcnt_hi_u32_b32 v0, -1, v0
    s_lshr_b32 s26, {s(s_a)}, 4
    s_and_b32 s27, {s(s_a)}, 15
    s_lshl_b32 s27, s27, 1
    s_lshr_b32 s28, {s(w)}, 1
    s_add_u32 s27, s27, s28              ; head
    s_and_b32 s28, {s(w)}, 1             ; qt
    v_lshrrev_b32 v2, 4, v0              ; g
    v_and_b32 v3, 15, v0                 ; n
    s_lshl_b32 s29, s28, 4
    v_add_u32 v3, s29, v3
    v_lshlrev_b32 v2, 2, v2              ; 4g
    v_sub_u32 v3, v3, v2                 ; q - 4g   (signed)
    v_mov_b32 v4, {NEG}
    """)
    for i in range(4):
        k(f"v_cmp_gt_i32 vcc, {i}, v3")
        k(f"v_cndmask_b32 {v(C0+i)}, 0, v4, vcc")
        k(f"v_cmp_gt_i32 vcc, {16+i}, v3")
        k(f"v_cndmask_b32 {v(C1+i)}, 0, v4, vcc")
    k(f"""
    v_min_u32 v5, 1, v0
    v_lshlrev_b32 v5, 2, v5
    v_lshrrev_b32 v7, 2, v0
    v_lshlrev_b32 v7, 5, v7
    v_and_b32 v8, 1, v0
    v_lshl_add_u32 v7, v8, 4, v7
    v_min_u32 v6, 17, v0
    v_lshlrev_b32 v6, 2, v6
    v_lshlrev_b32 v1, 3, v0
    v_lshlrev_b32 v0, 4, v0
    v_mov_b32 {v(PM0+1)}, 0
    v_mov_b32 {v(PM1)}, 0
    s_mul_i32 s30, s27, {(1 << HS) + SKEW[0]}
    s_lshl_b32 s31, s26, {SS}
    s_add_u32 s30, s30, s31
    s_lshl_b32 s31, s28, 10              ; qt*1024
    s_lshl_b32 s32, s27, 12
    s_lshl_b32 s33, s28, 17
    s_add_u32 s32, s32, s33
    s_lshl_b32 s33, s26, 18
    s_add_u32 s32, s32, s33
    s_add_u32 s32, s32, {WS_O}
    s_lshl_b32 s34, s27, 6
    s_add_u32 s34, s34, {WS_SYNC+SY_FLAG+FL_FM}
    s_lshl_b32 s35, s27, 8
    s_add_u32 s35, s35, {WS_SYNC+SY_FLAG+FL_G1}
    s_lshl_b32 s36, s26, 8               ; FL_O[rep][qt][h]
    s_lshl_b32 s37, s28, 7
    s_add_u32 s36, s36, s37
    s_lshl_b32 s37, s27, 2
    s_add_u32 s36, s36, s37
    s_add_u32 s36, s36, {WS_SYNC+SY_FLAG+FL_O}
    s_mov_b32 s40, 0
    s_mov_b32 s41, {float_hex(128 ** -0.5 * LOG2E)}
    """)
    def qkv_loads():
        if fused:
            k("s_add_u32 s37, s26, 1")
            spin_ge(k, T0, 6, 35, 37, 40)
        k(f"s_add_u32 s37, s30, {WS_Q}")
        k(f"s_add_u32 s37, s37, s31")
        k(f"s_add_u32 s38, s37, 4096")
        for ks in range(4):
            k(f"buffer_load_dwordx4 {v(Q+4*ks,4)}, v0, {s(SRD_WS,4)}, {'s37' if ks < 2 else 's38'} offen offset:{2048*(ks%2)} sc1")
        for base, reg in ((WS_K, K), (WS_VT, V)):
            k(f"s_add_u32 s37, s30, {base}")
            k(f"s_add_u32 s38, s37, 4096")
            for f in range(8):
                k(f"buffer_load_dwordx4 {v(reg+4*f,4)}, v0, {s(SRD_WS,4)}, {'s37' if f < 4 else 's38'} offen offset:{1024*(f%4)} {OPT['att']}")
    qkv_loads()
    loop = k.uid('attloop'); k.label(loop)
    k("s_waitcnt vmcnt(8)")
    for ks in range(4):
        for tt, S, C in ((0, S0, C0), (1, S1, C1)):
            k(f"v_mfma_f32_16x16x32_bf16 {v(S,4)}, {v(K+8*ks+4*tt,4)}, {v(Q+4*ks,4)}, {v(C if ks == 0 else S,4)}")
    if fused:
        k("s_add_u32 s37, s26, 1")
    k(f"s_add_u32 s39, s30, {WS_FM}")
    k(f"s_add_u32 s38, s39, 4096")
    def fm_loads():
        for ks in range(4):
            k(f"buffer_load_dwordx4 {v(F+4*ks,4)}, v7, {s(SRD_WS,4)}, s39 offen offset:{512*ks} sc1")
        for b in range(4):
            k(f"buffer_load_dwordx2 {v(VM+2*b,2)}, v1, {s(SRD_WS,4)}, s38 offen offset:{512*b} sc1")
    have = k.uid('have')
    if fused and OPT.get('fs'):
        norm = k.uid('norm'); top = k.uid('fmp')
        k("s_cmp_lt_u32 s26, 62")
        k(f"s_cbranch_scc1 {norm}")
        k.label(top)
        k(f"buffer_load_dword {v(T0)}, v5, {s(SRD_WS,4)}, s34 offen sc1")
        fm_loads()
        k("s_waitcnt vmcnt(0)")
        rg = [F + i for i in range(16)] + [VM + i for i in range(8)]
        k(f"v_max_u32 {v(T1)}, {v(rg[0])}, {v(rg[1])}")
        for i in range(2, 24, 2): k(f"v_max3_u32 {v(T1)}, {v(T1)}, {v(rg[i])}, {v(rg[i+1])}")
        k(f"""
        v_cmp_eq_u32 vcc, -1, {v(T1)}
        s_cbranch_vccz {have}
        v_cmp_gt_u32 vcc, s37, {v(T0)}
        s_cbranch_vccz {norm}
        s_add_u32 s40, s40, 1
        s_cmp_gt_u32 s40, {SPIN_MAX}
        s_cbranch_scc1 {k.name}_exit
        s_sleep {OPT['fs']}
        s_branch {top}
        """)
        k.label(norm)
    if fused: spin_ge(k, T0, 5, 34, 37, 40)
    fm_loads()
    k.label(have)
    k(f"v_max3_f32 {v(T0)}, {v(S0)}, {v(S0+1)}, {v(S0+2)}")
    k(f"v_max3_f32 {v(T1)}, {v(S0+3)}, {v(S1)}, {v(S1+1)}")
    k(f"v_max3_f32 {v(T1)}, {v(T1)}, {v(S1+2)}, {v(S1+3)}")
    k(f"v_max_f32 {v(T0)}, {v(T0)}, {v(T1)}")
    for ks in range(4):
        k(f"s_waitcnt vmcnt({7-ks})")
        k(f"v_mfma_f32_16x16x32_bf16 {v(SM,4)}, {v(F+4*ks,4)}, {v(Q+4*ks,4)}, {'0' if ks == 0 else v(SM,4)}")
    k(f"""
    v_max3_f32 {v(T0)}, {v(T0)}, {v(SM)}, {v(SM+1)}
    v_mov_b32 {v(T1)}, {v(T0)}
    v_permlane32_swap_b32 {v(T0)}, {v(T1)}
    v_max_f32 {v(T0)}, {v(T0)}, {v(T1)}
    v_mov_b32 {v(T1)}, {v(T0)}
    v_permlane16_swap_b32 {v(T0)}, {v(T1)}
    v_max_f32 {v(T0)}, {v(T0)}, {v(T1)}
    v_mul_f32 {v(T0)}, s41, {v(T0)}
    """)
    sv = [S0 + i for i in range(10)]
    for x in sv: k(f"v_fma_f32 {v(x)}, {v(x)}, s41, -{v(T0)}")
    for x in sv: k(f"v_exp_f32 {v(x)}, {v(x)}")
    for i in range(4): k(f"v_cvt_pk_bf16_f32 {v(PK+i)}, {v(S0+2*i)}, {v(S0+2*i+1)}")
    k(f"v_cvt_pk_bf16_f32 {v(PM0)}, {v(SM)}, {v(SM+1)}")
    k(f"v_mov_b32 {v(PM1+1)}, {v(PM0)}")
    k("s_waitcnt vmcnt(0)")
    for et in range(8):
        k(f"v_mfma_f32_16x16x32_bf16 {v(O+4*et,4)}, {v(V+4*et,4)}, {v(PK,4)}, 0")
        if et == 0:
            k(f"v_pk_add_f32 {v(S0,2)}, {v(S0,2)}, {v(S0+2,2)}")
            k(f"v_pk_add_f32 {v(S1,2)}, {v(S1,2)}, {v(S1+2,2)}")
        if et == 1:
            k(f"v_pk_add_f32 {v(S0,2)}, {v(S0,2)}, {v(SM,2)}")
        if et == 2:
            k(f"v_pk_add_f32 {v(S0,2)}, {v(S0,2)}, {v(S1,2)}")
        if et == 3:
            k(f"v_add_f32 {v(RS)}, {v(S0)}, {v(S0+1)}")
        if et == 4:
            xsum_g(k, RS, T1)
        if et == 7:
            k(f"v_rcp_f32 {v(RS)}, {v(RS)}")
    for et in range(8):
        k(f"v_mfma_f32_16x16x16_bf16 {v(O+4*et,4)}, {v(VM+2*(et//2),2)}, {v(PM1 if et % 2 else PM0,2)}, {v(O+4*et,4)}")
    k(f"v_mov_b32 {v(RS+1)}, {v(RS)}")
    for b in range(4):
        for i in range(4):
            o = O + 8*b + 2*i
            k(f"v_pk_mul_f32 {v(o,2)}, {v(o,2)}, {v(RS,2)}")
            k(f"v_cvt_pk_bf16_f32 {v(OP+4*b+i)}, {v(o)}, {v(o+1)}")
        k(f"buffer_store_dwordx4 {v(OP+4*b,4)}, v0, {s(SRD_WS,4)}, s32 offen offset:{1024*b} sc1")
    k(f"""
    s_add_u32 s26, s26, 4
    s_add_u32 s30, s30, {4 << SS}
    s_add_u32 s32, s32, {4 << 18}
    """)
    if fused:
        k(f"v_mov_b32 {v(T1)}, s26")
        k("s_waitcnt vmcnt(0)")
        k(f"buffer_store_dword {v(T1)}, off, {s(SRD_WS,4)}, s36 sc1")
    k("s_cmp_ge_u32 s26, 64")
    k(f"s_cbranch_scc1 {done}")
    qkv_loads()
    k(f"s_branch {loop}")
    k.label(done)

def role_out(k, s_x, s_blk, fused=False):
    ACS = 16; ACG = 24; RA = 32; RB = 88; W2 = 144; WO = 256
    w = S_WAVE
    done = k.uid('outdone')
    srd(k, SRD_A, KA_WO, 4096 * 1280); srd(k, SRD_B, KA_W2, 1728 * 1280)
    srd(k, SRD_C, KA_X, 2048 * 1280); srd(k, 28, KA_OUT, 2048 * 1280)
    SRD_O = 28
    k(f"""
    v_mbcnt_lo_u32_b32 v0, -1, 0
    v_mbcnt_hi_u32_b32 v0, -1, v0
    v_lshrrev_b32 v1, 4, v0              ; g
    v_bfe_u32 v2, v0, 2, 2
    v_lshl_add_u32 v2, v1, 3, v2
    v_mul_u32_u24 v2, 1280, v2
    v_and_b32 v3, 3, v0
    v_lshl_add_u32 v2, v3, 4, v2
    v_and_b32 v3, 15, v0
    v_mul_u32_u24 v3, 1280, v3
    v_lshl_add_u32 v3, v1, 4, v3         ; v3 = n*1280 + 16g
    s_lshl_b32 s32, {s(s_blk)}, 6
    s_lshl_b32 s33, {s(w)}, 2
    s_add_u32 s33, s33, s32
    v_add_u32 v3, s33, v3
    v_and_b32 v5, 7, v0
    v_lshlrev_b32 v5, 2, v5
    v_lshlrev_b32 v7, 2, v0
    v_lshlrev_b32 v0, 4, v0
    s_lshl_b32 s34, {s(w)}, 15
    s_add_u32 s34, s34, 32768
    v_add_u32 v4, s34, v0
    s_mul_i32 s35, {s(w)}, {1024*1280}
    s_add_u32 s35, s35, s32
    s_mul_i32 s36, {s(w)}, {32*1280}
    s_add_u32 s36, s36, s32              ; w2 base
    s_lshl_b32 s37, {s(w)}, 12
    v_add_u32 v6, s37, v0
    s_lshr_b32 s37, {s(w)}, 1
    s_lshl_b32 s37, s37, 10
    s_and_b32 s38, {s(w)}, 1
    s_lshl_b32 s38, s38, 3
    s_add_u32 s37, s37, s38
    v_add_u32 v8, s37, v0
    s_barrier
    """)
    pieces = []
    for i in range(14):
        for u in range(2):
            pieces.append((SRD_B, 36, (128*i + 4*u) * 1280, 2, [(W2 + 8*i + 4*t + 2*u, 8*t) for t in range(2)]))
    for ks in range(32):
        for u in range(2):
            pieces.append((SRD_A, 35, (32*ks + 4*u) * 1280, 2, [(WO + 8*ks + 4*t + 2*u, 8*t) for t in range(2)]))
    wload(k, pieces, 4, 34, 32, 39)
    nz = k.uid('nz')
    k(f"s_cmp_lt_u32 {s(w)}, 2")
    k(f"s_cbranch_scc1 {nz}")
    for i in range(8): k(f"v_mov_b32 {v(W2+8*13+i)}, 0")
    k.label(nz)
    k(f"""
    s_mov_b32 s40, {s(s_x)}
    s_mul_i32 s41, s40, {54*1024}
    s_lshl_b32 s39, {s(w)}, 10
    s_add_u32 s41, s41, s39
    s_add_u32 s41, s41, {WS_ACT}
    s_lshl_b32 s42, s40, 17
    s_lshl_b32 s39, {s(w)}, 15
    s_add_u32 s42, s42, s39
    s_add_u32 s42, s42, {WS_O}
    s_cmp_lt_u32 {s(w)}, 2
    s_cselect_b32 s43, {13*4096}, 0
    s_mov_b32 s44, 0
    s_mov_b32 s45, 0
    s_lshl_b32 s46, {s(w)}, 5
    s_add_u32 s46, s46, {WS_SYNC+SY_FLAG+FL_O}
    """)
    if fused:
        k(f"s_mov_b32 s38, {WS_SYNC+SY_FLAG+FL_FF}")
        k("s_mov_b32 s39, 64")
        for i in range(3):
            spin_ge(k, 9, 7, 38, 39, 44, off=256*i)
    def act_load(i):
        if i < 13: k(f"s_add_u32 s39, s41, {4096*i}")
        else: k("s_add_u32 s39, s41, s43")
        k(f"buffer_load_dwordx4 {v(RA+4*i,4)}, v0, {s(SRD_WS,4)}, s39 offen {OPT['o']}")
    def oreg(f):
        return RB + 4*f if f < 14 else (RA + 4*(f-14) if f < 28 else RB + 4*(f-28))
    def o_load(f):
        if f % 4 == 0: k(f"s_add_u32 s38, s42, {1024*f}")
        k(f"buffer_load_dwordx4 {v(oreg(f),4)}, v0, {s(SRD_WS,4)}, s38 offen offset:{1024*(f%4)} {OPT['o']}")
    for i in range(14): act_load(i)
    k(f"buffer_load_dword v9, v3, {s(SRD_C,4)}, 0 offen")
    loop = k.uid('outloop'); k.label(loop)
    k("s_mul_i32 s47, s40, 20480")
    for i in range(14):
        k(f"s_waitcnt vmcnt({14-i})")
        for t in range(2):
            k(f"v_mfma_f32_16x16x32_bf16 {v(ACG+4*t,4)}, {v(W2+8*i+4*t,4)}, {v(RA+4*i,4)}, {'0' if i == 0 else v(ACG+4*t,4)}")
    if fused:
        k(f"""
        s_lshr_b32 s38, s40, 1
        s_add_u32 s39, s38, 1
        s_and_b32 s38, s40, 7            ; (seg&3)*2+tt
        s_lshl_b32 s38, s38, 7
        s_add_u32 s38, s38, s46
        """)
        spin_ge(k, 9, 5, 38, 39, 44)
    for f in range(28): o_load(f)
    k(f"buffer_load_dword v9, v3, {s(SRD_C,4)}, s47 offen")
    k("v_add_u32 v10, s45, v6")
    k("v_add_u32 v11, s45, v8")
    for t in range(2):
        k(f"ds_write_b128 v10, {v(ACG+4*t,4)} offset:{2048+1024*t}")
    k(f"s_add_u32 s41, s41, {6*54*1024}")
    k("s_add_u32 s48, s40, 6")
    k("s_cmp_lt_u32 s48, 128")
    k(f"s_cselect_b32 s41, s41, {WS_ACT}")
    q = [f'o{f}' for f in range(28)] + ['x']
    for f in range(32):
        idx = q.index(f'o{f}')
        k(f"s_waitcnt vmcnt({len(q)-idx-1})")
        del q[:idx+1]
        for t in range(2):
            k(f"v_mfma_f32_16x16x32_bf16 {v(ACS+4*t,4)}, {r(WO+8*f+4*t,4)}, {v(oreg(f),4)}, {'0' if f == 0 else v(ACS+4*t,4)}")
        if f < 4:
            o_load(28 + f); q.append(f'o{28+f}')
        if 14 <= f < 28:
            act_load(f - 14); q.append(f'a{f-14}')
    for t in range(2):
        k(f"ds_write_b128 v10, {v(ACS+4*t,4)} offset:{1024*t}")
    k("s_waitcnt lgkmcnt(0)")
    k("s_barrier")
    E = RB
    for p in range(2):
        for ww in range(4):
            k(f"ds_read_b64 {v(E+8*p+2*ww,2)}, v11 offset:{4096*ww+2048*(1-p)}")
    G = E; S = E + 8
    k("s_waitcnt lgkmcnt(4)")
    k(f"v_pk_add_f32 {v(G,2)}, {v(G,2)}, {v(G+2,2)}")
    k(f"v_pk_add_f32 {v(G+4,2)}, {v(G+4,2)}, {v(G+6,2)}")
    k(f"v_pk_add_f32 {v(G,2)}, {v(G,2)}, {v(G+4,2)}")
    def rb2(x, t):
        k(f"v_cvt_pk_bf16_f32 {v(t)}, {v(x)}, {v(x+1)}")
        k(f"v_lshlrev_b32 {v(x)}, 16, {v(t)}")
        k(f"v_and_b32 {v(x+1)}, 0xffff0000, {v(t)}")
    rb2(G, G+2)
    for i in range(2):
        k(f"v_mul_f32 {v(G+2+i)}, {float_hex(-LOG2E)}, {v(G+i)}")
        k(f"v_exp_f32 {v(G+2+i)}, {v(G+2+i)}")
    for i in range(2):
        k(f"v_add_f32 {v(G+2+i)}, 1.0, {v(G+2+i)}")
        k(f"v_rcp_f32 {v(G+2+i)}, {v(G+2+i)}")
    k("s_waitcnt lgkmcnt(0)")
    k(f"v_pk_add_f32 {v(S,2)}, {v(S,2)}, {v(S+2,2)}")
    k(f"v_pk_add_f32 {v(S+4,2)}, {v(S+4,2)}, {v(S+6,2)}")
    k(f"v_pk_add_f32 {v(S,2)}, {v(S,2)}, {v(S+4,2)}")
    k(f"v_pk_mul_f32 {v(G,2)}, {v(G,2)}, {v(G+2,2)}")
    rb2(S, S+2)
    rb2(G, G+2)
    k(f"v_pk_mul_f32 {v(S,2)}, {v(S,2)}, {v(G,2)}")
    k(f"v_lshlrev_b32 {v(G)}, 16, v9")
    k(f"v_and_b32 {v(G+1)}, 0xffff0000, v9")
    rb2(S, S+2)
    k(f"v_pk_add_f32 {v(S,2)}, {v(S,2)}, {v(G,2)}")
    k(f"v_cvt_pk_bf16_f32 v12, {v(S)}, {v(S+1)}")
    k(f"buffer_store_dword v12, v3, {s(SRD_O,4)}, s47 offen")
    k(f"""
    s_mov_b32 s40, s48
    s_add_u32 s42, s42, {6 << 17}
    s_xor_b32 s45, s45, 16384
    s_cmp_lt_u32 s40, 128
    s_cbranch_scc1 {loop}
    """)
    k.label(done)

def dev_att():
    k = Kernel("att_kernel"); prologue(k)
    k(f"""
    s_cmp_lt_u32 {s(S_X)}, 2
    s_cbranch_scc1 {k.name}_exit
    s_cmp_lt_u32 {s(S_T)}, 20
    s_cbranch_scc1 {k.name}_exit
    s_sub_u32 s6, {s(S_X)}, 2
    s_mul_i32 s6, s6, 12
    s_add_u32 s6, s6, {s(S_T)}
    s_sub_u32 s6, s6, 20
    s_cmp_ge_u32 s6, 64
    s_cbranch_scc1 {k.name}_exit
    """)
    role_att(k, 6)
    epilogue(k); return k
def dev_out():
    k = Kernel("out_kernel"); prologue(k)
    k(f"""
    s_cmp_lt_u32 {s(S_X)}, 2
    s_cbranch_scc1 {k.name}_exit
    s_cmp_ge_u32 {s(S_T)}, 20
    s_cbranch_scc1 {k.name}_exit
    s_sub_u32 s6, {s(S_X)}, 2
    """)
    role_out(k, 6, S_T)
    epilogue(k); return k
```
